```python
import torch

def _softmax(x, axis=-1):
    return torch.softmax(x, dim=axis)

def _gelu(x):
    return torch.nn.functional.gelu(x, approximate='tanh')

def _silu(x):
    return torch.nn.functional.silu(x)

def _sigmoid(x):
    return torch.sigmoid(x)

def _layernorm(x, axis=-1, eps=1e-05):
    m = x.mean(dim=axis, keepdim=True)
    v = x.var(dim=axis, keepdim=True, unbiased=False)
    return (x - m) / torch.sqrt(v + eps)

def _scatter_add(tgt, idx, src, axis=0):
    return tgt.clone().index_add_(axis, idx, src)

def _segment_sum(src, seg, n):
    out = torch.zeros((n,) + src.shape[1:], dtype=src.dtype)
    return out.index_add_(0, seg, src)

def _pad(x, pw):
    flat = tuple((v for pair in reversed(pw) for v in pair))
    return torch.nn.functional.pad(x, flat)
kernel_name = 'adaLN_cond__mha_block__moe_arch_mod__prompt'

def setup_inputs():

    _w = lambda a: (lambda t: t.to(torch.bfloat16) if t.is_floating_point() else t)(torch.as_tensor(a))

    def _A_setup():
        B, S, D, H = (1, 2048, 512, 32)
        return {'x': _w((lambda *s: torch.randn(*s, dtype=torch.bfloat16) * 0.05)(B, S, D)), 'wqkv': _w((lambda *s: torch.randn(*s, dtype=torch.bfloat16) * 0.05)(D, 3 * D)), 'wo': _w((lambda *s: torch.randn(*s, dtype=torch.bfloat16) * 0.05)(D, D))}
    _A_in = _A_setup()

    def _B_setup():
        B, S, D, F, C = (1, 2048, 512, 1792, 2)
        return {'x': _w((lambda *s: torch.randn(*s, dtype=torch.bfloat16) * 0.05)(B, S, D)), 'w_r': _w((lambda *s: torch.randn(*s, dtype=torch.bfloat16) * 0.05)(D)), 'w_gate': _w((lambda *s: torch.randn(*s, dtype=torch.bfloat16) * 0.05)(D, F)), 'w_up': _w((lambda *s: torch.randn(*s, dtype=torch.bfloat16) * 0.05)(D, F)), 'w_down': _w((lambda *s: torch.randn(*s, dtype=torch.bfloat16) * 0.05)(F, D))}
    _B_in = _B_setup()
    return {'A_x': _A_in['x'], 'A_wqkv': _A_in['wqkv'], 'A_wo': _A_in['wo'], 'B_x': _B_in['x'], 'B_w_r': _B_in['w_r'], 'B_w_gate': _B_in['w_gate'], 'B_w_up': _B_in['w_up'], 'B_w_down': _B_in['w_down'], 'c': _w((lambda *s: torch.randn(*s, dtype=torch.bfloat16) * 0.1)(1, 512) * 8.0), 'w_mod': _w((lambda *s: torch.randn(*s, dtype=torch.bfloat16) * 0.1)(512, 6 * 512) * 512 ** (-0.5) * 8.0)}

def reference(A_x, A_wqkv, A_wo, B_x, B_w_r, B_w_gate, B_w_up, B_w_down, c, w_mod):

    def _A_ref(x, wqkv, wo):
        B, S, D = x.shape
        H = 32
        Dh = D // H
        qkv = (lambda x, *d: x.permute(*d))((x @ wqkv).reshape(B, S, 3, H, Dh), 2, 0, 3, 1, 4)
        q, k, v = (qkv[0], qkv[1], qkv[2])
        scores = torch.einsum('bhqd,bhkd->bhqk', q, k) * Dh ** (-0.5)
        p = _softmax(scores, axis=-1)
        o = torch.einsum('bhqk,bhkd->bhqd', p, v)
        return (lambda x, *d: x.permute(*d))(o, 0, 2, 1, 3).reshape(B, S, D) @ wo

    def _B_ref(x, w_r, w_gate, w_up, w_down):
        B, S, D = x.shape
        C = 2
        r = x @ w_r
        idx = torch.argsort(-r, axis=-1)[:, :C]
        idx_e = (lambda x, n, axis: torch.repeat_interleave(x, n, dim=axis))(idx.reshape(B, C, 1), D, axis=2)
        x_sel = (lambda x, i, axis: torch.take_along_dim(x, i, dim=axis))(x, idx_e, axis=1)
        g = _silu(x_sel @ w_gate)
        u = x_sel @ w_up
        y = g * u @ w_down
        r_sel = _sigmoid((lambda x, i, axis: torch.take_along_dim(x, i, dim=axis))(r, idx, axis=1))
        y = y * r_sel.reshape(B, C, 1)
        b_off = (torch.arange(B) * S).reshape(B, 1)
        flat_idx = (idx + b_off).reshape(B * C)
        zero = (x * 0.0).reshape(B * S, D)
        upd = _scatter_add(zero, flat_idx, y.reshape(B * C, D), axis=0)
        return x + upd.reshape(B, S, D)
    x = A_x
    mod = (_silu(c) @ w_mod).reshape(c.shape[0], 6, 1, -1)
    sa, ca, ga, sb, cb, gb = (mod[:, 0].clone(), mod[:, 1].clone(), mod[:, 2].clone(), mod[:, 3].clone(), mod[:, 4].clone(), mod[:, 5].clone())
    h = _layernorm(x, axis=-1) * (1 + ca) + sa
    x = x + ga * _A_ref(h, A_wqkv, A_wo)
    h = _layernorm(x, axis=-1) * (1 + cb) + sb
    x = x + gb * _B_ref(h, B_w_r, B_w_gate, B_w_up, B_w_down)
    return x
```

```python
class Asm:
    def __init__(self):
        self.lines = []
        self._lab = 0
    def __call__(self, s):
        for ln in s.strip("\n").split("\n"):
            ln = ln.strip()
            if ln:
                self.lines.append("  " + ln)
    def label(self, name):
        self.lines.append(name + ":")
    def raw(self, s):
        self.lines.append(s)
    def newlabel(self, p="L"):
        self._lab += 1
        return f"{p}_{self._lab}"
    def text(self):
        return "\n".join(self.lines) + "\n"

def vr(b, n=1):
    return f"v{b}" if n == 1 else f"v[{b}:{b+n-1}]"
def sr(b, n=1):
    return f"s{b}" if n == 1 else f"s[{b}:{b+n-1}]"

def kernel_begin(a, name):
    a.raw(".text")
    a.raw(f".globl {name}")
    a.raw(".p2align 8")
    a.raw(f".type {name},@function")
    a.label(name)

def kernel_desc(name, vgpr, sgpr=102):
    acc = min(256, (vgpr + 3) // 4 * 4)
    return f""".section .rodata,"a"
.p2align 6
.amdhsa_kernel {name}
  .amdhsa_next_free_vgpr {vgpr}
  .amdhsa_next_free_sgpr {sgpr}
  .amdhsa_accum_offset {acc}
  .amdhsa_group_segment_fixed_size 0
  .amdhsa_kernarg_size 104
  .amdhsa_user_sgpr_count 2
  .amdhsa_user_sgpr_kernarg_segment_ptr 1
  .amdhsa_system_sgpr_workgroup_id_x 1
.end_amdhsa_kernel
"""

def srd(a, d, lo, nbytes, add=0):
    if add:
        a(f"s_add_u32 s{d}, s{lo}, {add}")
        a(f"s_addc_u32 s{d+1}, s{lo+1}, 0")
    else:
        a(f"s_mov_b32 s{d}, s{lo}")
        a(f"s_mov_b32 s{d+1}, s{lo+1}")
    a(f"s_mov_b32 s{d+2}, {nbytes}")
    a(f"s_mov_b32 s{d+3}, 0x20000")

def wave_allreduce(a, v, t, op="v_add_f32"):
    for n in (8, 4, 2, 1):
        a("s_nop 1")
        a(f"{op}_dpp v{v}, v{v}, v{v} row_ror:{n} row_mask:0xf bank_mask:0xf")
    a(f"v_mov_b32 v{t}, v{v}")
    a("s_nop 1")
    a(f"v_permlane16_swap_b32 v{t}, v{v}")
    a("s_nop 1")
    a(f"{op} v{v}, v{v}, v{t}")
    a(f"v_mov_b32 v{t}, v{v}")
    a("s_nop 1")
    a(f"v_permlane32_swap_b32 v{t}, v{v}")
    a("s_nop 1")
    a(f"{op} v{v}, v{v}, v{t}")

def rnd_bf16(a, v):
    a(f"v_cvt_pk_bf16_f32 v{v}, v{v}, v{v}")
    a(f"v_and_b32 v{v}, 0xffff0000, v{v}")
```

```python
import sys
from asmlib import *

WS_MODF = 0
WS_MODB = 0x4000
WS_KEY = 0x8000
WS_ACT = 0xA000
WS_SEL = 0xC000
WS_XF = 0x100000
WS_QF = 0x300000
WS_KV = 0x500000
WS_OF = 0x900000
WS_X1 = 0xB00000
WS_H2 = 0xD00000
WS_WOF = 0xF00000
WS_BYTES = 268435456
LOG2E = 0x3fb8aa3b
NLOG2E = 0xbfb8aa3b
import struct
def f32(x): return "0x%08x" % struct.unpack("<I", struct.pack("<f", x))[0]

def multi_allreduce(a, vs, ts, op="v_add_f32"):
    pad = max(0, 3 - len(vs))
    a("s_nop 1")
    for n in (8, 4, 2, 1):
        for v in vs:
            a(f"{op}_dpp v{v}, v{v}, v{v} row_ror:{n} row_mask:0xf bank_mask:0xf")
        if pad: a(f"s_nop {pad-1}")
    for sw in ("v_permlane16_swap_b32", "v_permlane32_swap_b32"):
        for v, t in zip(vs, ts):
            a(f"v_mov_b32 v{t}, v{v}")
        a("s_nop 1")
        for v, t in zip(vs, ts):
            a(f"{sw} v{t}, v{v}")
        a("s_nop 1")
        for v, t in zip(vs, ts):
            a(f"{op} v{v}, v{v}, v{t}")

def unpack8(a, dst, src):
    for i in range(4):
        a(f"v_lshlrev_b32 v{dst+2*i}, 16, v{src+i}")
        a(f"v_and_b32 v{dst+2*i+1}, 0xffff0000, v{src+i}")

def layernorm_rows(a, rows, tmp):
    n = len(rows)
    S = [tmp + i for i in range(n)]
    T = [tmp + n + i for i in range(n)]
    M = [tmp + 2 * n + i for i in range(n)]
    for q, x in enumerate(rows):
        a(f"v_add_f32 v{S[q]}, v{x}, v{x+1}")
        for i in range(2, 8):
            a(f"v_add_f32 v{S[q]}, v{S[q]}, v{x+i}")
    multi_allreduce(a, S, T)
    for q, x in enumerate(rows):
        a(f"v_mul_f32 v{M[q]}, {f32(1/512)}, v{S[q]}")
        a(f"v_sub_f32 v{T[q]}, v{x}, v{M[q]}")
        a(f"v_mul_f32 v{S[q]}, v{T[q]}, v{T[q]}")
        for i in range(1, 8):
            a(f"v_sub_f32 v{T[q]}, v{x+i}, v{M[q]}")
            a(f"v_fmac_f32 v{S[q]}, v{T[q]}, v{T[q]}")
    multi_allreduce(a, S, T)
    for q, x in enumerate(rows):
        a(f"v_mul_f32 v{S[q]}, {f32(1/512)}, v{S[q]}")
        rnd_bf16(a, S[q])
        a(f"v_add_f32 v{S[q]}, {f32(1e-5)}, v{S[q]}")
        rnd_bf16(a, S[q])
        a(f"v_sqrt_f32 v{S[q]}, v{S[q]}")
        rnd_bf16(a, M[q])
        rnd_bf16(a, S[q])
        a(f"v_rcp_f32 v{S[q]}, v{S[q]}")
        for i in range(0, 8, 2):
            a(f"v_sub_f32 v{x+i}, v{x+i}, v{M[q]}")
            a(f"v_sub_f32 v{x+i+1}, v{x+i+1}, v{M[q]}")
            a(f"v_cvt_pk_bf16_f32 v{T[q]}, v{x+i}, v{x+i+1}")
            a(f"v_lshlrev_b32 v{x+i}, 16, v{T[q]}")
            a(f"v_and_b32 v{x+i+1}, 0xffff0000, v{T[q]}")
            a(f"v_mul_f32 v{x+i}, v{x+i}, v{S[q]}")
            a(f"v_mul_f32 v{x+i+1}, v{x+i+1}, v{S[q]}")

def rnd_pair(a, x, y, t):
    a(f"v_cvt_pk_bf16_f32 v{t}, v{x}, v{y}")
    a(f"v_lshlrev_b32 v{x}, 16, v{t}")
    a(f"v_and_b32 v{y}, 0xffff0000, v{t}")

def k_prep(a):
    kernel_begin(a, "prep_kernel")
    a("s_cmp_ge_u32 s2, 256")
    a("s_cbranch_scc1 prep_end")
    a("s_load_dwordx2 s[4:5], s[0:1], 96")
    a("s_cmp_ge_u32 s2, 224")
    a("s_cbranch_scc1 prep_wo")
    a("s_cmp_ge_u32 s2, 96")
    a("s_cbranch_scc1 prep_xhat")
    a("s_load_dwordx2 s[6:7], s[0:1], 64")
    a("s_load_dwordx2 s[8:9], s[0:1], 72")
    a("v_and_b32 v1, 3, v0")
    a("v_lshrrev_b32 v2, 2, v0")
    a("v_mul_u32_u24 v3, 6144, v2")
    a("v_lshl_add_u32 v3, v1, 4, v3")
    a("s_lshl_b32 s3, s2, 6")
    a("v_add_u32 v3, s3, v3")
    a("v_lshlrev_b32 v4, 1, v2")
    a("s_waitcnt lgkmcnt(0)")
    srd(a, 12, 8, 512 * 6144)
    srd(a, 16, 6, 1024)
    for p in range(8):
        a(f"buffer_load_ushort v{10+p}, v4, s[16:19], 0 offen offset:{128*p}")
    for p in range(8):
        a(f"s_mov_b32 s20, {p*393216}")
        a(f"buffer_load_dwordx4 v[{20+4*p}:{23+4*p}], v3, s[12:15], s20 offen")
    for i in range(8):
        a(f"v_mov_b32 v{60+i}, 0")
    a("s_waitcnt vmcnt(8)")
    for p in range(8):
        c = 10 + p
        a(f"v_lshlrev_b32 v{c}, 16, v{c}")
        a(f"v_mul_f32 v{70+p}, {NLOG2E:#x}, v{c}")
        a(f"v_exp_f32 v{70+p}, v{70+p}")
    for p in range(8):
        a(f"v_add_f32 v{70+p}, 1.0, v{70+p}")
        a(f"v_rcp_f32 v{70+p}, v{70+p}")
    for p in range(8):
        a(f"v_mul_f32 v{10+p}, v{10+p}, v{70+p}")
        rnd_bf16(a, 10 + p)
    for p in range(8):
        a(f"s_waitcnt vmcnt({7-p})")
        for i in range(4):
            w = 20 + 4 * p + i
            a(f"v_lshlrev_b32 v70, 16, v{w}")
            a(f"v_and_b32 v71, 0xffff0000, v{w}")
            a(f"v_fmac_f32 v{60+2*i}, v70, v{10+p}")
            a(f"v_fmac_f32 v{61+2*i}, v71, v{10+p}")
    a("s_nop 1")
    for n in (4, 8):
        for i in range(8):
            a(f"v_add_f32_dpp v{60+i}, v{60+i}, v{60+i} row_ror:{n} row_mask:0xf bank_mask:0xf")
    a("v_lshrrev_b32 v5, 4, v0")
    a("v_lshlrev_b32 v5, 7, v5")
    a("v_lshl_add_u32 v5, v1, 5, v5")
    a("v_and_b32 v6, 15, v0")
    a("v_cmp_gt_u32 vcc, 4, v6")
    a("s_and_saveexec_b64 s[22:23], vcc")
    a("ds_write_b128 v5, v[60:63]")
    a("ds_write_b128 v5, v[64:67] offset:16")
    a("s_mov_b64 exec, s[22:23]")
    a("s_waitcnt lgkmcnt(0)")
    a("s_barrier")
    a("v_cmp_gt_u32 vcc, 32, v0")
    a("s_and_saveexec_b64 s[22:23], vcc")
    a("s_cbranch_execz prep_end")
    a("v_lshlrev_b32 v5, 2, v0")
    for i in range(16):
        a(f"ds_read_b32 v{20+i}, v5 offset:{128*i}")
    a("s_waitcnt lgkmcnt(0)")
    for i in range(1, 16):
        a(f"v_add_f32 v20, v20, v{20+i}")
    rnd_bf16(a, 20)
    a("s_lshr_b32 s24, s2, 4")
    a("s_mov_b32 s25, 0")
    a("s_cmp_eq_u32 s24, 1")
    a("s_cselect_b32 s25, 1.0, s25")
    a("s_cmp_eq_u32 s24, 4")
    a("s_cselect_b32 s25, 1.0, s25")
    a("v_add_f32 v20, s25, v20")
    rnd_bf16(a, 20)
    a("s_lshl_b32 s3, s2, 7")
    a("v_add_u32 v5, s3, v5")
    a(f"global_store_dword v5, v20, s[4:5] offset:{WS_MODF}")
    a("v_lshrrev_b32 v5, 1, v5")
    a(f"v_add_u32 v5, {WS_MODB}, v5")
    a("global_store_short_d16_hi v5, v20, s[4:5]")
    a("s_endpgm")
    a.label("prep_xhat")
    a("s_load_dwordx2 s[6:7], s[0:1], 0")
    a("s_sub_u32 s3, s2, 96")
    a("v_lshrrev_b32 v1, 6, v0")
    a("v_and_b32 v2, 63, v0")
    a("v_lshlrev_b32 v3, 12, v1")
    a("v_lshl_add_u32 v3, v2, 4, v3")
    a("s_lshl_b32 s8, s3, 14")
    a("v_add_u32 v3, s8, v3")
    a("s_waitcnt lgkmcnt(0)")
    for q in range(4):
        a(f"global_load_dwordx4 v[{8+4*q}:{11+4*q}], v3, s[6:7] offset:{1024*q}")
    a("v_lshlrev_b32 v4, 8, v2")
    a("v_lshl_add_u32 v4, v1, 6, v4")
    a(f"s_add_u32 s8, s8, {WS_XF}")
    a("v_add_u32 v4, s8, v4")
    rows = [24 + 8 * q for q in range(4)]
    for q in range(4):
        a(f"s_waitcnt vmcnt({3-q})")
        unpack8(a, rows[q], 8 + 4 * q)
    layernorm_rows(a, rows, 60)
    for q in range(4):
        for i in range(4):
            a(f"v_cvt_pk_bf16_f32 v{8+4*q+i}, v{rows[q]+2*i}, v{rows[q]+2*i+1}")
        a(f"global_store_dwordx4 v4, v[{8+4*q}:{11+4*q}], s[4:5] offset:{16*q}")
    a("s_endpgm")
    a.label("prep_wo")
    a("s_load_dwordx2 s[6:7], s[0:1], 16")
    a("s_sub_u32 s3, s2, 224")
    a("v_lshrrev_b32 v1, 1, v0")
    a("v_lshlrev_b32 v1, 10, v1")
    a("v_and_b32 v2, 1, v0")
    a("v_lshl_add_u32 v1, v2, 4, v1")
    a("s_lshl_b32 s8, s3, 5")
    a("v_add_u32 v1, s8, v1")
    a("s_waitcnt lgkmcnt(0)")
    srd(a, 12, 6, 512 * 1024)
    for p in range(4):
        a(f"s_mov_b32 s20, {p*131072}")
        a(f"buffer_load_dwordx4 v[{8+4*p}:{11+4*p}], v1, s[12:15], s20 offen")
    a("v_lshlrev_b32 v2, 4, v0")
    for p in range(4):
        a(f"s_waitcnt vmcnt({3-p})")
        a(f"ds_write_b128 v2, v[{8+4*p}:{11+4*p}] offset:{4096*p}")
    a("v_and_b32 v3, 63, v0")
    a("v_lshrrev_b32 v4, 5, v3")
    a("v_lshlrev_b32 v4, 9, v4")
    a("v_bfe_u32 v5, v3, 4, 1")
    a("v_lshl_add_u32 v4, v5, 7, v4")
    a("v_bfe_u32 v5, v3, 2, 2")
    a("v_lshl_add_u32 v4, v5, 5, v4")
    a("v_and_b32 v5, 3, v3")
    a("v_lshl_add_u32 v4, v5, 3, v4")
    a("v_lshrrev_b32 v5, 6, v0")
    a("v_lshl_add_u32 v4, v5, 12, v4")
    a("v_lshlrev_b32 v6, 12, v5")
    a("v_lshl_add_u32 v6, v3, 4, v6")
    a("s_lshl_b32 s8, s3, 14")
    a(f"s_add_u32 s8, s8, {WS_WOF}")
    a("v_add_u32 v6, s8, v6")
    a("s_waitcnt lgkmcnt(0)")
    a("s_barrier")
    for n in range(4):
        a(f"ds_read_b64_tr_b16 v[{8+4*n}:{9+4*n}], v4 offset:{1024*n}")
        a(f"ds_read_b64_tr_b16 v[{10+4*n}:{11+4*n}], v4 offset:{1024*n+256}")
    for n in range(4):
        a(f"s_waitcnt lgkmcnt({6-2*n})")
        a(f"global_store_dwordx4 v6, v[{8+4*n}:{11+4*n}], s[4:5] offset:{1024*n}")
    a.label("prep_end")
    a("s_endpgm")

def decode_hb(a, sh, sb):
    a("s_and_b32 s3, s2, 7")
    a("s_lshr_b32 s28, s2, 3")
    a(f"s_and_b32 s{sb}, s3, 3")
    a(f"s_lshl_b32 s{sb}, s{sb}, 1")
    a("s_and_b32 s29, s28, 1")
    a(f"s_add_u32 s{sb}, s{sb}, s29")
    a(f"s_lshr_b32 s{sh}, s3, 2")
    a(f"s_lshl_b32 s{sh}, s{sh}, 4")
    a("s_lshr_b32 s29, s28, 1")
    a(f"s_add_u32 s{sh}, s{sh}, s29")

QSCALE = 0.25 * 1.4426950408889634
def k_qkv(a):
    kernel_begin(a, "qkv_kernel")
    a("s_cmp_ge_u32 s2, 256")
    a("s_cbranch_scc1 qkv_end")
    a("s_load_dwordx2 s[4:5], s[0:1], 96")
    a("s_load_dwordx2 s[6:7], s[0:1], 8")
    decode_hb(a, 30, 31)
    a("v_lshrrev_b32 v1, 6, v0")
    a("v_and_b32 v2, 63, v0")
    a("s_nop 0")
    a("v_readfirstlane_b32 s32, v1")
    a("v_lshrrev_b32 v3, 1, v0")
    a("v_lshlrev_b32 v4, 2, v3")
    a("v_mul_u32_u24 v5, 3072, v3")
    a("v_and_b32 v6, 1, v0")
    a("v_lshl_add_u32 v5, v6, 4, v5")
    a("s_lshl_b32 s33, s30, 5")
    a("v_add_u32 v5, s33, v5")
    a("s_waitcnt lgkmcnt(0)")
    srd(a, 12, 6, 512 * 3072)
    srd(a, 16, 4, WS_BYTES)
    WR = 160
    for p in range(2):
        for t in range(3):
            a(f"s_mov_b32 s20, {p*256*3072 + t*1024}")
            r = WR + 4 * (3 * p + t)
            a(f"buffer_load_dwordx4 v[{r}:{r+3}], v5, s[12:15], s20 offen")
    a(f"buffer_load_dword v184, v4, s[16:19], 0 offen offset:{WS_MODF+2048}")
    a(f"buffer_load_dword v185, v4, s[16:19], 0 offen offset:{WS_MODF+2048+1024}")
    a("v_lshrrev_b32 v7, 4, v2")
    a("v_lshlrev_b32 v8, 4, v7")
    a("s_lshl_b32 s20, s32, 7")
    a(f"s_add_u32 s20, s20, {WS_MODB}")
    a("buffer_load_dwordx4 v[188:191], v8, s[16:19], s20 offen")
    a("buffer_load_dwordx4 v[192:195], v8, s[16:19], s20 offen offset:64")
    XR = 32
    a("v_lshlrev_b32 v9, 4, v2")
    a("s_lshl_b32 s20, s31, 18")
    a("s_lshl_b32 s21, s32, 15")
    a("s_add_u32 s20, s20, s21")
    a(f"s_add_u32 s20, s20, {WS_XF}")
    for grp in range(8):
        for n in range(4):
            r = XR + 4 * (4 * grp + n)
            a(f"buffer_load_dwordx4 v[{r}:{r+3}], v9, s[16:19], s20 offen offset:{1024*n}")
        if grp != 7:
            a("s_add_u32 s20, s20, 4096")
    a("v_lshlrev_b32 v10, 5, v3")
    a("v_bfe_u32 v11, v3, 3, 1")
    a("v_lshlrev_b32 v11, 7, v11")
    a("v_xor_b32 v10, v10, v11")
    a("v_lshl_add_u32 v10, v6, 4, v10")
    a("v_add_u32 v11, 49152, v10")
    a("v_bfe_u32 v12, v2, 2, 2")
    a("v_lshlrev_b32 v12, 5, v12")
    a("v_and_b32 v13, 1, v7")
    a("v_lshlrev_b32 v13, 7, v13")
    a("v_xor_b32 v12, v12, v13")
    a("v_lshl_add_u32 v12, v7, 8, v12")
    a("v_and_b32 v13, 3, v2")
    a("v_lshl_add_u32 v12, v13, 3, v12")
    a("v_xor_b32 v13, 0x80, v12")
    a("s_lshl_b32 s21, s32, 11")
    a("s_add_u32 s21, s21, 49152")
    a("v_add_u32 v14, s21, v12")
    a("v_add_u32 v15, s21, v13")
    a("s_waitcnt vmcnt(36)")
    for p in range(2):
        a(f"ds_write_b128 v11, v[{WR+12*p}:{WR+12*p+3}] offset:{8192*p}")
        a(f"ds_write_b128 v11, v[{WR+12*p+8}:{WR+12*p+11}] offset:{16384+8192*p}")
    a("s_waitcnt vmcnt(34)")
    for p in range(2):
        for t in range(3):
            r = WR + 4 * (3 * p + t)
            d = 200 + 4 * ((3 * p + t) & 1)
            for i in range(4):
                a(f"v_lshlrev_b32 v16, 16, v{r+i}")
                a(f"v_and_b32 v17, 0xffff0000, v{r+i}")
                a(f"v_mul_f32 v16, v16, v{184+p}")
                a(f"v_mul_f32 v17, v17, v{184+p}")
                a(f"v_cvt_pk_bf16_f32 v{d+i}, v16, v17")
            a(f"ds_write_b128 v10, v[{d}:{d+3}] offset:{16384*t+8192*p}")
    a("s_waitcnt lgkmcnt(0)")
    a("s_barrier")
    for n in range(2):
        a(f"ds_read_b64_tr_b16 v[{160+8*n}:{161+8*n}], v14 offset:{1024*n}")
        a(f"ds_read_b64_tr_b16 v[{162+8*n}:{163+8*n}], v15 offset:{1024*n}")
        a(f"ds_read_b64_tr_b16 v[{164+8*n}:{165+8*n}], v14 offset:{16384+1024*n}")
        a(f"ds_read_b64_tr_b16 v[{166+8*n}:{167+8*n}], v15 offset:{16384+1024*n}")
    WF = [216, 228]
    def rd_w(s):
        b = WF[s & 1]
        for t in range(3):
            a(f"ds_read_b64_tr_b16 v[{b+4*t}:{b+4*t+1}], v12 offset:{16384*t+1024*s}")
            a(f"ds_read_b64_tr_b16 v[{b+4*t+2}:{b+4*t+3}], v13 offset:{16384*t+1024*s}")
    rd_w(0)
    a("s_waitcnt vmcnt(32) lgkmcnt(6)")
    a("v_mfma_f32_16x16x32_bf16 v[208:211], v[160:163], v[188:191], 0")
    a("v_mfma_f32_16x16x32_bf16 v[212:215], v[188:191], v[164:167], 0")
    a("v_mfma_f32_16x16x32_bf16 v[208:211], v[168:171], v[192:195], v[208:211]")
    a("v_mfma_f32_16x16x32_bf16 v[212:215], v[192:195], v[172:175], v[212:215]")
    a("s_lshl_b32 s21, s32, 7")
    a("s_add_u32 s21, s21, 81920")
    a("v_lshl_add_u32 v16, v7, 4, s21")
    a("v_and_b32 v17, 15, v2")
    a("v_lshl_add_u32 v17, v17, 2, s21")
    a("s_nop 4")
    a("ds_write_b128 v16, v[208:211]")
    a("ds_write_b32 v17, v212 offset:64")
    ACC = 176
    for s in range(16):
        if s < 15:
            rd_w(s + 1)
            a(f"s_waitcnt vmcnt({15-s}) lgkmcnt(6)")
        else:
            a("s_waitcnt vmcnt(0) lgkmcnt(0)")
        b = WF[s & 1]
        for u in range(2):
            x = XR + 4 * (16 * u + s)
            for t in range(3):
                acc = ACC + 8 * t + 4 * u
                c = "0" if s == 0 else f"v[{acc}:{acc+3}]"
                if t < 2:
                    a(f"v_mfma_f32_16x16x32_bf16 v[{acc}:{acc+3}], v[{b+4*t}:{b+4*t+3}], v[{x}:{x+3}], {c}")
                else:
                    a(f"v_mfma_f32_16x16x32_bf16 v[{acc}:{acc+3}], v[{x}:{x+3}], v[{b+4*t}:{b+4*t+3}], {c}")
    a("s_barrier")
    a("v_lshlrev_b32 v16, 4, v7")
    a("v_add_u32 v16, 81920, v16")
    a("v_and_b32 v17, 15, v2")
    a("v_lshlrev_b32 v18, 2, v17")
    a("v_add_u32 v18, 81920, v18")
    for w in range(8):
        a(f"ds_read_b128 v[{32+4*w}:{35+4*w}], v16 offset:{128*w}")
        a(f"ds_read_b32 v{64+w}, v18 offset:{128*w+64}")
    a("v_lshrrev_b32 v20, 1, v7")
    a("v_and_b32 v21, 1, v7")
    a("v_lshlrev_b32 v21, 3, v21")
    a("v_lshl_add_u32 v21, v17, 4, v21")
    a("v_lshl_add_u32 v22, v20, 9, v21")
    a("v_lshl_add_u32 v23, v20, 8, v21")
    a("s_lshl_b32 s20, s31, 3")
    a("s_add_u32 s20, s20, s32")
    a("s_lshl_b32 s21, s30, 16")
    a("s_lshl_b32 s22, s20, 10")
    a("s_add_u32 s21, s21, s22")
    a(f"s_add_u32 s21, s21, {WS_QF}")
    a("s_lshl_b32 s22, s30, 17")
    a("s_lshl_b32 s23, s20, 11")
    a("s_add_u32 s22, s22, s23")
    a(f"s_add_u32 s22, s22, {WS_KV}")
    a("s_waitcnt lgkmcnt(0)")
    for w in range(1, 8):
        for r in range(4):
            a(f"v_add_f32 v{32+r}, v{32+r}, v{32+4*w+r}")
        a(f"v_add_f32 v64, v64, v{64+w}")
    a(f"s_mov_b32 s24, {f32(QSCALE)}")
    for u in range(2):
        q = ACC + 4 * u; k = ACC + 8 + 4 * u; v = ACC + 16 + 4 * u
        for r in range(4):
            a(f"v_add_f32 v{q+r}, v{q+r}, v{32+r}")
            a(f"v_mul_f32 v{q+r}, s24, v{q+r}")
            a(f"v_add_f32 v{v+r}, v{v+r}, v64")
        d = 80 + 6 * u
        a(f"v_cvt_pk_bf16_f32 v{d}, v{q}, v{q+1}")
        a(f"v_cvt_pk_bf16_f32 v{d+1}, v{q+2}, v{q+3}")
        a(f"v_cvt_pk_bf16_f32 v{d+2}, v{k}, v{k+1}")
        a(f"v_cvt_pk_bf16_f32 v{d+3}, v{k+2}, v{k+3}")
        a(f"v_cvt_pk_bf16_f32 v{d+4}, v{v}, v{v+1}")
        a(f"v_cvt_pk_bf16_f32 v{d+5}, v{v+2}, v{v+3}")
        a(f"buffer_store_dwordx2 v[{d}:{d+1}], v22, s[16:19], s21 offen offset:{256*u}")
        a(f"buffer_store_dwordx2 v[{d+2}:{d+3}], v22, s[16:19], s22 offen offset:{256*u}")
        a(f"buffer_store_dwordx2 v[{d+4}:{d+5}], v23, s[16:19], s22 offen offset:{1024+512*u}")
    a.label("qkv_end")
    a("s_endpgm")

def k_attn(a):
    kernel_begin(a, "attn_kernel")
    a("s_cmp_ge_u32 s2, 256")
    a("s_cbranch_scc1 attn_end")
    a("s_load_dwordx2 s[4:5], s[0:1], 96")
    decode_hb(a, 30, 31)
    a("v_lshrrev_b32 v1, 6, v0")
    a("v_and_b32 v2, 63, v0")
    a("s_nop 0")
    a("v_readfirstlane_b32 s32, v1")
    a("v_lshlrev_b32 v3, 4, v2")
    a("s_waitcnt lgkmcnt(0)")
    srd(a, 16, 4, WS_BYTES)
    Q = 8; C = 16; S = [32, 48]; O = 64; K = [80, 84]; V = [88, 96]; IDX = 104
    a("s_lshl_b32 s20, s31, 3")
    a("s_add_u32 s20, s20, s32")
    a("s_lshl_b32 s21, s30, 16")
    a("s_lshl_b32 s22, s20, 10")
    a("s_add_u32 s21, s21, s22")
    a(f"s_add_u32 s21, s21, {WS_QF}")
    a(f"buffer_load_dwordx4 v[{Q}:{Q+3}], v3, s[16:19], s21 offen")
    a("s_lshl_b32 s22, s30, 17")
    a("s_lshl_b32 s23, s32, 14")
    a("s_add_u32 s22, s22, s23")
    a(f"s_add_u32 s22, s22, {WS_KV}")
    for grp in range(4):
        a("s_mov_b32 m0, s23")
        a("s_nop 0")
        for n in range(4):
            a(f"buffer_load_dwordx4 v3, s[16:19], s22 offen offset:{1024*n} lds")
        if grp != 3:
            a("s_add_u32 s22, s22, 4096")
            a("s_add_u32 s23, s23, 4096")
    a("v_lshrrev_b32 v4, 5, v2")
    a("v_lshlrev_b32 v4, 8, v4")
    a("v_and_b32 v5, 15, v2")
    a("v_lshl_add_u32 v4, v5, 4, v4")
    a("v_add_u32 v4, 1024, v4")
    a(f"v_mov_b32 v{IDX}, 0xdddddddd")
    for i in range(16):
        a(f"v_mov_b32 v{V[0]+i}, 0x3f803f80")
        a(f"v_mov_b32 v{O+i}, 0")
    a("s_mov_b32 s34, 0x0000ffff")
    a("s_mov_b32 s35, 0x0000ffff")
    a("s_mov_b32 s36, 0")
    a("s_waitcnt vmcnt(0)")
    a("s_barrier")
    a(f"ds_read_b128 v[{K[0]}:{K[0]+3}], v3")
    a(f"ds_read_b128 v[{K[1]}:{K[1]+3}], v3 offset:2048")
    a("s_waitcnt lgkmcnt(1)")
    a(f"v_mfma_f32_32x32x16_bf16 v[{S[0]}:{S[0]+15}], v[{K[0]}:{K[0]+3}], v[{Q}:{Q+3}], 0")
    a("s_nop 11")
    s0 = S[0]
    a(f"v_max3_f32 v6, v{s0}, v{s0+1}, v{s0+2}")
    for i in range(3, 15, 2):
        a(f"v_max3_f32 v6, v6, v{s0+i}, v{s0+i+1}")
    a(f"v_max_f32 v6, v6, v{s0+15}")
    a.label("attn_setmax")
    a("v_mov_b32 v7, v6")
    a("s_nop 1")
    a("v_permlane32_swap_b32 v7, v6")
    a("s_nop 1")
    a("v_max_f32 v6, v6, v7")
    for i in range(16):
        a(f"v_sub_f32 v{C+i}, 0, v6")
    a("s_mov_b64 exec, s[34:35]")
    a(f"ds_read_b128 v[{V[0]}:{V[0]+3}], v4")
    a(f"ds_read_b128 v[{V[0]+4}:{V[0]+7}], v4 offset:512")
    a("s_mov_b64 exec, -1")
    a(f"v_mfma_f32_32x32x16_bf16 v[{S[0]}:{S[0]+15}], v[{K[0]}:{K[0]+3}], v[{Q}:{Q+3}], v[{C}:{C+15}]")
    for i in range(8):
        a(f"v_mov_b32 v{S[1]+8+i}, 0")
    a("s_mov_b32 s37, 8")
    a("s_nop 3")
    a.raw(".p2align 6")
    a.label("attn_loop")
    for t in range(8):
        cur = S[t & 1]; nxt = S[(t + 1) & 1]
        e = lambda i: a(f"v_exp_f32 v{cur+i}, v{cur+i}")
        a("s_waitcnt lgkmcnt(0)")
        e(0); e(1)
        vp = V[(t + 1) & 1]
        a(f"v_smfmac_f32_32x32x32_bf16 v[{O}:{O+15}], v[{vp+4}:{vp+7}], v[{nxt+8}:{nxt+15}], v{IDX}")
        e(2); e(3); e(4)
        kn = K[(t + 1) & 1]
        a(f"v_mfma_f32_32x32x16_bf16 v[{nxt}:{nxt+15}], v[{kn}:{kn+3}], v[{Q}:{Q+3}], v[{C}:{C+15}]")
        kc = K[t & 1]
        a(f"ds_read_b128 v[{kc}:{kc+3}], v3 offset:{2048*(t+2)}")
        a("s_mov_b64 exec, s[34:35]")
        a(f"ds_read_b128 v[{vp}:{vp+3}], v4 offset:{2048*(t+1)}")
        a(f"ds_read_b128 v[{vp+4}:{vp+7}], v4 offset:{2048*(t+1)+512}")
        a("s_mov_b64 exec, -1")
        for i in range(5, 10): e(i)
        vc = V[t & 1]
        a(f"v_smfmac_f32_32x32x32_bf16 v[{O}:{O+15}], v[{vc}:{vc+3}], v[{cur}:{cur+7}], v{IDX}")
        for i in range(10, 16): e(i)
    a("v_add_u32 v3, 0x4000, v3")
    a("v_add_u32 v4, 0x4000, v4")
    a("s_sub_u32 s37, s37, 1")
    a("s_cmp_lg_u32 s37, 0")
    a("s_cbranch_scc1 attn_loop")
    a(f"v_smfmac_f32_32x32x32_bf16 v[{O}:{O+15}], v[{V[1]+4}:{V[1]+7}], v[{S[1]+8}:{S[1]+15}], v{IDX}")
    a("s_waitcnt lgkmcnt(0)")
    a("v_subrev_u32 v3, 0x20000, v3")
    a("v_subrev_u32 v4, 0x20000, v4")
    a("s_nop 9")
    a(f"v_mov_b32 v6, {f32(2.0**40)}")
    a(f"v_add_f32 v7, abs(v{O}), abs(v{O+1})")
    for i in range(2, 8):
        a(f"v_add_f32 v7, v7, abs(v{O+i})")
    a(f"v_mov_b32 v5, {f32(3.0e38)}")
    a(f"v_cmp_nle_f32 vcc, v{O+8}, v6")
    a(f"v_cmp_nle_f32 s[38:39], v7, v5")
    a("s_or_b64 vcc, vcc, s[38:39]")
    a("s_cmp_lg_u32 s36, 0")
    a("s_cbranch_scc1 attn_fin")
    a("s_cbranch_vccnz attn_fallback")
    a.label("attn_fin")
    a(f"v_rcp_f32 v6, v{O+8}")
    a("s_nop 0")
    for i in range(8):
        a(f"v_mul_f32 v{O+i}, v{O+i}, v6")
    for i in range(4):
        a(f"v_cvt_pk_bf16_f32 v{8+i}, v{O+2*i}, v{O+2*i+1}")
    a("s_lshl_b32 s21, s20, 15")
    a("s_lshl_b32 s22, s30, 10")
    a("s_add_u32 s21, s21, s22")
    a(f"s_add_u32 s21, s21, {WS_OF}")
    a("buffer_store_dwordx4 v[8:11], v3, s[16:19], s21 offen")
    a.label("attn_end")
    a("s_endpgm")
    a.label("attn_fallback")
    a("s_mov_b32 s36, 1")
    a("s_mov_b32 s37, 64")
    a("v_mov_b32 v6, 0xff800000")
    a("v_mov_b32 v5, v3")
    a.label("attn_fb_loop")
    a(f"ds_read_b128 v[{K[0]}:{K[0]+3}], v5")
    a("v_add_u32 v5, 0x800, v5")
    a("s_waitcnt lgkmcnt(0)")
    a(f"v_mfma_f32_32x32x16_bf16 v[{S[0]}:{S[0]+15}], v[{K[0]}:{K[0]+3}], v[{Q}:{Q+3}], 0")
    a("s_nop 11")
    for i in range(0, 16, 2):
        a(f"v_max3_f32 v6, v6, v{s0+i}, v{s0+i+1}")
    a("s_sub_u32 s37, s37, 1")
    a("s_cmp_lg_u32 s37, 0")
    a("s_cbranch_scc1 attn_fb_loop")
    a(f"ds_read_b128 v[{K[0]}:{K[0]+3}], v3")
    a(f"ds_read_b128 v[{K[1]}:{K[1]+3}], v3 offset:2048")
    for i in range(16):
        a(f"v_mov_b32 v{O+i}, 0")
    a("s_waitcnt lgkmcnt(0)")
    a("s_branch attn_setmax")

def k_oproj(a):
    kernel_begin(a, "oproj_kernel")
    a("s_cmp_ge_u32 s2, 256")
    a("s_cbranch_scc1 oproj_end")
    a("s_load_dwordx2 s[4:5], s[0:1], 96")
    a("s_load_dwordx2 s[6:7], s[0:1], 0")
    a("s_lshr_b32 s30, s2, 2")
    a("s_and_b32 s31, s2, 3")
    a("v_lshrrev_b32 v1, 6, v0")
    a("v_and_b32 v2, 63, v0")
    a("s_nop 0")
    a("v_readfirstlane_b32 s32, v1")
    a("v_lshlrev_b32 v3, 4, v2")
    a("s_waitcnt lgkmcnt(0)")
    srd(a, 16, 4, WS_BYTES)
    a("s_lshl_b32 s23, s32, 12")
    a("s_lshl_b32 s22, s30, 15")
    a("s_add_u32 s22, s22, s23")
    a(f"s_add_u32 s22, s22, {WS_OF}")
    a("s_mov_b32 m0, s23")
    a("s_nop 0")
    for n in range(4):
        a(f"buffer_load_dwordx4 v3, s[16:19], s22 offen offset:{1024*n} lds")
    a("s_lshl_b32 s20, s31, 3")
    a("s_add_u32 s20, s20, s32")
    a("s_lshl_b32 s20, s20, 14")
    a(f"s_add_u32 s20, s20, {WS_WOF}")
    for grp in range(4):
        for n in range(4):
            r = 32 + 4 * (4 * grp + n)
            a(f"buffer_load_dwordx4 v[{r}:{r+3}], v3, s[16:19], s20 offen offset:{1024*n}")
        if grp != 3:
            a("s_add_u32 s20, s20, 4096")
    a("v_lshrrev_b32 v4, 4, v0")
    a("v_and_b32 v5, 15, v0")
    a("v_lshlrev_b32 v6, 10, v4")
    a("v_lshl_add_u32 v6, v5, 4, v6")
    a("s_lshl_b32 s20, s30, 15")
    a("s_lshl_b32 s21, s31, 8")
    a("s_add_u32 s20, s20, s21")
    a("v_add_u32 v6, s20, v6")
    a("global_load_dwordx4 v[96:99], v6, s[6:7]")
    a("v_lshlrev_b32 v7, 5, v5")
    a("s_lshl_b32 s21, s31, 9")
    a(f"s_add_u32 s21, s21, {WS_MODF+4096}")
    a("buffer_load_dwordx4 v[100:103], v7, s[16:19], s21 offen")
    a("buffer_load_dwordx4 v[104:107], v7, s[16:19], s21 offen offset:16")
    a("v_lshrrev_b32 v8, 5, v2")
    a("v_lshlrev_b32 v8, 10, v8")
    a("v_bfe_u32 v9, v2, 4, 1")
    a("v_lshl_add_u32 v8, v9, 9, v8")
    a("v_and_b32 v9, 15, v2")
    a("v_lshl_add_u32 v8, v9, 4, v8")
    a("v_mul_u32_u24 v10, 528, v9")
    a("v_lshrrev_b32 v11, 4, v2")
    a("v_lshl_add_u32 v10, v11, 4, v10")
    a("s_lshl_b32 s21, s32, 6")
    a("s_add_u32 s21, s21, 32768")
    a("v_add_u32 v10, s21, v10")
    a("v_mul_u32_u24 v11, 528, v4")
    a("v_lshl_add_u32 v11, v5, 5, v11")
    a("v_add_u32 v11, 32768, v11")
    a("s_waitcnt vmcnt(19)")
    a("s_barrier")
    OFR = 112
    def rd(s):
        b = OFR + 8 * (s & 1)
        a(f"ds_read_b128 v[{b}:{b+3}], v8 offset:{2048*s}")
        a(f"ds_read_b128 v[{b+4}:{b+7}], v8 offset:{2048*s+256}")
    rd(0)
    for s in range(16):
        if s < 15:
            rd(s + 1)
            a(f"s_waitcnt vmcnt({18-s}) lgkmcnt(2)")
        else:
            a("s_waitcnt vmcnt(3) lgkmcnt(0)")
        b = OFR + 8 * (s & 1)
        for u in range(2):
            acc = 12 + 4 * u
            c = "0" if s == 0 else f"v[{acc}:{acc+3}]"
            a(f"v_mfma_f32_16x16x32_bf16 v[{acc}:{acc+3}], v[{32+4*s}:{35+4*s}], v[{b+4*u}:{b+4*u+3}], {c}")
    a("s_nop 7")
    a("ds_write_b128 v10, v[12:15]")
    a(f"ds_write_b128 v10, v[16:19] offset:{16*528}")
    a("s_waitcnt lgkmcnt(0)")
    a("s_barrier")
    a("ds_read_b128 v[32:35], v11")
    a("ds_read_b128 v[36:39], v11 offset:16")
    a("s_waitcnt vmcnt(0)")
    unpack8(a, 40, 96)
    a("s_waitcnt lgkmcnt(0)")
    for i in range(0, 8, 2):
        rnd_pair(a, 32 + i, 33 + i, 48)
        a(f"v_mul_f32 v{32+i}, v{32+i}, v{100+i}")
        a(f"v_mul_f32 v{33+i}, v{33+i}, v{101+i}")
        rnd_pair(a, 32 + i, 33 + i, 48)
        a(f"v_add_f32 v{32+i}, v{32+i}, v{40+i}")
        a(f"v_add_f32 v{33+i}, v{33+i}, v{41+i}")
        a(f"v_cvt_pk_bf16_f32 v{52+i//2}, v{32+i}, v{33+i}")
    a(f"s_mov_b32 s21, {WS_X1}")
    a("buffer_store_dwordx4 v[52:55], v6, s[16:19], s21 offen")
    a.label("oproj_end")
    a("s_endpgm")

def k_ln2(a):
    kernel_begin(a, "ln2_kernel")
    a("s_cmp_ge_u32 s2, 256")
    a("s_cbranch_scc1 ln2_end")
    a("s_load_dwordx2 s[4:5], s[0:1], 96")
    a("s_load_dwordx2 s[6:7], s[0:1], 32")
    a("s_load_dwordx2 s[8:9], s[0:1], 80")
    a("v_and_b32 v2, 63, v0")
    a("v_lshlrev_b32 v3, 4, v0")
    a("s_lshl_b32 s20, s2, 13")
    a("v_add_u32 v3, s20, v3")
    a("v_lshlrev_b32 v4, 5, v2")
    a("v_lshlrev_b32 v5, 4, v2")
    a("s_waitcnt lgkmcnt(0)")
    srd(a, 16, 4, WS_BYTES)
    a(f"s_mov_b32 s21, {WS_X1}")
    a("buffer_load_dwordx4 v[8:11], v3, s[16:19], s21 offen")
    for j, base in enumerate((3, 4, 5)):
        a(f"s_mov_b32 s22, {WS_MODF + base*2048}")
        a(f"buffer_load_dwordx4 v[{40+8*j}:{43+8*j}], v4, s[16:19], s22 offen")
        a(f"buffer_load_dwordx4 v[{44+8*j}:{47+8*j}], v4, s[16:19], s22 offen offset:16")
    a("global_load_dwordx4 v[12:15], v5, s[6:7]")
    a("s_waitcnt vmcnt(7)")
    unpack8(a, 16, 8)
    unpack8(a, 24, 8)
    layernorm_rows(a, [24], 64)
    a("s_waitcnt vmcnt(0)")
    unpack8(a, 32, 12)
    a("v_mov_b32 v70, 0")
    for i in range(0, 8, 2):
        rnd_pair(a, 24 + i, 25 + i, 68)
        a(f"v_mul_f32 v{24+i}, v{24+i}, v{48+i}")
        a(f"v_mul_f32 v{25+i}, v{25+i}, v{49+i}")
        rnd_pair(a, 24 + i, 25 + i, 68)
        a(f"v_add_f32 v{24+i}, v{24+i}, v{40+i}")
        a(f"v_add_f32 v{25+i}, v{25+i}, v{41+i}")
        a(f"v_cvt_pk_bf16_f32 v{8+i//2}, v{24+i}, v{25+i}")
        a(f"v_lshlrev_b32 v{24+i}, 16, v{8+i//2}")
        a(f"v_and_b32 v{25+i}, 0xffff0000, v{8+i//2}")
        a(f"v_fmac_f32 v70, v{24+i}, v{32+i}")
        a(f"v_fmac_f32 v70, v{25+i}, v{33+i}")
        a(f"v_mul_f32 v{24+i}, v{24+i}, v{56+i}")
        a(f"v_mul_f32 v{25+i}, v{25+i}, v{57+i}")
        rnd_pair(a, 24 + i, 25 + i, 68)
        a(f"v_add_f32 v{24+i}, v{24+i}, v{16+i}")
        a(f"v_add_f32 v{25+i}, v{25+i}, v{17+i}")
        a(f"v_cvt_pk_bf16_f32 v{12+i//2}, v{24+i}, v{25+i}")
    a(f"s_mov_b32 s21, {WS_H2}")
    a("buffer_store_dwordx4 v[8:11], v3, s[16:19], s21 offen")
    a("global_store_dwordx4 v3, v[12:15], s[8:9]")
    multi_allreduce(a, [70], [71])
    a("v_cvt_pk_bf16_f32 v70, v70, v70")
    a("v_and_b32 v70, 0xffff0000, v70")
    a("v_ashrrev_i32 v71, 31, v70")
    a("v_or_b32 v71, 0x80000000, v71")
    a("v_xor_b32 v70, v70, v71")
    a("v_and_b32 v70, 0xffff0000, v70")
    a("v_lshrrev_b32 v71, 10, v3")
    a("v_sub_u32 v72, 0xffff, v71")
    a("v_or_b32 v70, v70, v72")
    a("v_lshlrev_b32 v71, 2, v71")
    a("v_cmp_eq_u32 vcc, 0, v2")
    a("s_and_saveexec_b64 s[22:23], vcc")
    a(f"s_mov_b32 s21, {WS_KEY}")
    a("buffer_store_dword v70, v71, s[16:19], s21 offen")
    a.label("ln2_end")
    a("s_endpgm")

def tr_addr_natural(a, d1, d2, lane, t1, t2):
    a(f"v_lshrrev_b32 v{t1}, 4, v{lane}")
    a(f"v_bfe_u32 v{d1}, v{lane}, 2, 2")
    a(f"v_lshlrev_b32 v{d1}, 5, v{d1}")
    a(f"v_and_b32 v{t2}, 1, v{t1}")
    a(f"v_lshlrev_b32 v{t2}, 7, v{t2}")
    a(f"v_xor_b32 v{d1}, v{d1}, v{t2}")
    a(f"v_lshl_add_u32 v{d1}, v{t1}, 8, v{d1}")
    a(f"v_and_b32 v{t2}, 3, v{lane}")
    a(f"v_lshl_add_u32 v{d1}, v{t2}, 3, v{d1}")
    a(f"v_xor_b32 v{d2}, 0x80, v{d1}")

def dma_row_src(a, d, lane, pitch, t1, t2):
    a(f"v_lshrrev_b32 v{t1}, 1, v{lane}")
    a(f"v_bfe_u32 v{t2}, v{lane}, 4, 1")
    a(f"v_lshlrev_b32 v{t2}, 2, v{t2}")
    a(f"v_xor_b32 v{t1}, v{t1}, v{t2}")
    a(f"v_mul_u32_u24 v{d}, {pitch}, v{t1}")
    a(f"v_and_b32 v{t2}, 1, v{lane}")
    a(f"v_lshl_add_u32 v{d}, v{t2}, 4, v{d}")

def k_gateup(a):
    kernel_begin(a, "gateup_kernel")
    a("s_cmp_ge_u32 s2, 112")
    a("s_cbranch_scc1 gateup_end")
    a("s_load_dwordx2 s[4:5], s[0:1], 96")
    a("s_load_dwordx4 s[8:11], s[0:1], 40")
    a("v_lshrrev_b32 v1, 6, v0")
    a("v_and_b32 v2, 63, v0")
    a("s_nop 0")
    a("v_readfirstlane_b32 s32, v1")
    a("v_lshlrev_b32 v3, 4, v2")
    dma_row_src(a, 4, 2, 3584, 5, 6)
    a("s_and_b32 s33, s32, 1")
    a("s_lshr_b32 s34, s32, 1")
    a("s_waitcnt lgkmcnt(0)")
    srd(a, 16, 4, WS_BYTES)
    a(f"s_mov_b32 s21, {WS_KEY}")
    for n in range(8):
        if n == 4: a(f"s_mov_b32 s21, {WS_KEY+4096}")
        a(f"buffer_load_dwordx4 v[{32+4*n}:{35+4*n}], v3, s[16:19], s21 offen offset:{1024*(n&3)}")
    a("s_cmp_eq_u32 s33, 0")
    a("s_cselect_b32 s12, s8, s10")
    a("s_cselect_b32 s13, s9, s11")
    a(f"s_mov_b32 s14, {512*3584}")
    a("s_mov_b32 s15, 0x20000")
    a(f"s_mul_i32 s22, s34, {128*3584}")
    a("s_lshl_b32 s23, s2, 5")
    a("s_add_u32 s22, s22, s23")
    a("s_lshl_b32 s23, s32, 12")
    for n in range(4):
        a("s_mov_b32 m0, s23")
        a("s_nop 0")
        a("buffer_load_dwordx4 v4, s[12:15], s22 offen lds")
        if n != 3:
            a(f"s_add_u32 s22, s22, {32*3584}")
            a("s_add_u32 s23, s23, 1024")
    tr_addr_natural(a, 8, 9, 2, 5, 6)
    a("s_lshl_b32 s23, s32, 12")
    a("v_add_u32 v8, s23, v8")
    a("v_add_u32 v9, s23, v9")
    a("s_waitcnt vmcnt(4)")
    a("v_max_u32 v10, v32, v33")
    a("v_min_u32 v11, v32, v33")
    for i in range(2, 32):
        a(f"v_med3_u32 v11, v10, v11, v{32+i}")
        a(f"v_max_u32 v10, v10, v{32+i}")
    a("v_mov_b32 v12, v10")
    multi_allreduce(a, [12], [13], op="v_max_u32")
    a("v_cmp_eq_u32 vcc, v12, v10")
    a("s_nop 1")
    a("v_cndmask_b32 v14, v10, v11, vcc")
    multi_allreduce(a, [14], [13], op="v_max_u32")
    a("v_and_b32 v15, 1, v2")
    a("v_cmp_eq_u32 vcc, 0, v15")
    a("s_nop 1")
    a("v_cndmask_b32 v16, v14, v12, vcc")
    a("v_and_b32 v17, 0xffff, v16")
    a("v_sub_u32 v17, 0xffff, v17")
    a("v_lshlrev_b32 v17, 10, v17")
    a("v_lshrrev_b32 v18, 4, v2")
    a("v_lshl_add_u32 v17, v18, 4, v17")
    a("s_lshl_b32 s21, s34, 8")
    a(f"s_add_u32 s21, s21, {WS_H2}")
    for n in range(4):
        a(f"buffer_load_dwordx4 v[{32+4*n}:{35+4*n}], v17, s[16:19], s21 offen offset:{64*n}")
    a("s_or_b32 s24, s2, s32")
    a("s_cmp_lg_u32 s24, 0")
    a("s_cbranch_scc1 gateup_nosel")
    a("v_lshlrev_b32 v19, 2, v2")
    a("v_cmp_gt_u32 vcc, 2, v2")
    a("s_and_saveexec_b64 s[26:27], vcc")
    a(f"s_mov_b32 s24, {WS_SEL}")
    a("buffer_store_dword v16, v19, s[16:19], s24 offen")
    a("s_mov_b64 exec, s[26:27]")
    a("s_waitcnt vmcnt(0)")
    a.label("gateup_nosel")
    a("s_waitcnt vmcnt(4)")
    for n in range(4):
        a(f"ds_read_b64_tr_b16 v[{48+4*n}:{49+4*n}], v8 offset:{1024*n}")
        a(f"ds_read_b64_tr_b16 v[{50+4*n}:{51+4*n}], v9 offset:{1024*n}")
    a("s_waitcnt vmcnt(0) lgkmcnt(0)")
    for n in range(4):
        c = "0" if n == 0 else "v[20:23]"
        a(f"v_mfma_f32_16x16x32_bf16 v[20:23], v[{32+4*n}:{35+4*n}], v[{48+4*n}:{51+4*n}], {c}")
    a("s_lshl_b32 s23, s32, 7")
    a("s_add_u32 s23, s23, 32768")
    a("v_lshl_add_u32 v24, v2, 2, s23")
    a("v_cmp_gt_u32 vcc, 16, v2")
    a("s_and_saveexec_b64 s[26:27], vcc")
    a("s_nop 4")
    a("ds_write_b32 v24, v20")
    a("ds_write_b32 v24, v21 offset:64")
    a("s_mov_b64 exec, s[26:27]")
    a("s_waitcnt lgkmcnt(0)")
    a("s_barrier")
    a("v_cmp_gt_u32 vcc, 32, v0")
    a("s_and_saveexec_b64 s[26:27], vcc")
    a("s_cbranch_execz gateup_end")
    a("v_lshlrev_b32 v24, 2, v0")
    for w in range(8):
        a(f"ds_read_b32 v{32+w}, v24 offset:{32768+128*w}")
    a("s_waitcnt lgkmcnt(0)")
    for w in range(2, 8):
        a(f"v_add_f32 v{32+(w&1)}, v{32+(w&1)}, v{32+w}")
    rnd_pair(a, 32, 33, 40)
    a(f"v_mul_f32 v34, {NLOG2E:#x}, v32")
    a("v_exp_f32 v34, v34")
    a("s_nop 0")
    a("v_add_f32 v34, 1.0, v34")
    a("v_rcp_f32 v34, v34")
    a("s_nop 0")
    a("v_mul_f32 v32, v32, v34")
    rnd_bf16(a, 32)
    a("v_mul_f32 v32, v32, v33")
    a("v_cvt_pk_bf16_f32 v32, v32, v32")
    a("v_lshrrev_b32 v25, 4, v0")
    a("v_mul_u32_u24 v25, 3584, v25")
    a("v_and_b32 v26, 15, v0")
    a("v_lshl_add_u32 v25, v26, 1, v25")
    a("s_lshl_b32 s21, s2, 5")
    a(f"s_add_u32 s21, s21, {WS_ACT}")
    a("buffer_store_short v32, v25, s[16:19], s21 offen")
    a.label("gateup_end")
    a("s_endpgm")

def k_down(a):
    kernel_begin(a, "down_kernel")
    a("s_cmp_ge_u32 s2, 32")
    a("s_cbranch_scc1 down_end")
    a("s_load_dwordx2 s[4:5], s[0:1], 96")
    a("s_load_dwordx2 s[6:7], s[0:1], 56")
    a("s_load_dwordx2 s[8:9], s[0:1], 80")
    a("v_lshrrev_b32 v1, 6, v0")
    a("v_and_b32 v2, 63, v0")
    a("s_nop 0")
    a("v_readfirstlane_b32 s32, v1")
    dma_row_src(a, 4, 2, 1024, 5, 6)
    a("s_waitcnt lgkmcnt(0)")
    srd(a, 16, 4, WS_BYTES)
    srd(a, 12, 6, 1792 * 1024)
    a("v_bfe_u32 v10, v0, 4, 1")
    a("v_lshlrev_b32 v11, 2, v10")
    a(f"s_mov_b32 s24, {WS_SEL}")
    a("buffer_load_dword v12, v11, s[16:19], s24 offen")
    a("v_and_b32 v13, 1, v2")
    a("v_mul_u32_u24 v13, 3584, v13")
    a("v_lshrrev_b32 v14, 4, v2")
    a("v_lshl_add_u32 v13, v14, 4, v13")
    a("s_mul_i32 s21, s32, 448")
    a(f"s_add_u32 s21, s21, {WS_ACT}")
    for n in range(7):
        a(f"buffer_load_dwordx4 v[{32+4*n}:{35+4*n}], v13, s[16:19], s21 offen offset:{64*n}")
    a(f"s_mul_i32 s22, s32, {224*1024}")
    a("s_lshl_b32 s23, s2, 5")
    a("s_add_u32 s22, s22, s23")
    a("s_mul_i32 s23, s32, 7168")
    for n in range(7):
        a("s_mov_b32 m0, s23")
        a("s_nop 0")
        a("buffer_load_dwordx4 v4, s[12:15], s22 offen lds")
        if n != 6:
            a(f"s_add_u32 s22, s22, {32*1024}")
            a("s_add_u32 s23, s23, 1024")
    tr_addr_natural(a, 8, 9, 2, 5, 6)
    a("s_mul_i32 s23, s32, 7168")
    a("v_add_u32 v8, s23, v8")
    a("v_add_u32 v9, s23, v9")
    a("s_waitcnt vmcnt(14)")
    a("v_and_b32 v15, 0xffff, v12")
    a("v_sub_u32 v15, 0xffff, v15")
    a("v_lshlrev_b32 v15, 10, v15")
    a("v_and_b32 v16, 15, v0")
    a("v_lshl_add_u32 v15, v16, 1, v15")
    a("s_lshl_b32 s21, s2, 5")
    a("v_add_u32 v15, s21, v15")
    a(f"s_mov_b32 s24, {WS_H2}")
    a(f"s_mov_b32 s25, {WS_X1}")
    a("buffer_load_ushort v17, v15, s[16:19], s24 offen")
    a("buffer_load_ushort v18, v15, s[16:19], s25 offen")
    a("v_lshlrev_b32 v19, 2, v16")
    a("s_lshl_b32 s21, s2, 6")
    a(f"s_add_u32 s21, s21, {WS_MODF+5*2048}")
    a("buffer_load_dword v19, v19, s[16:19], s21 offen")
    a("s_waitcnt vmcnt(3)")
    for n in range(7):
        a(f"ds_read_b64_tr_b16 v[{64+4*n}:{65+4*n}], v8 offset:{1024*n}")
        a(f"ds_read_b64_tr_b16 v[{66+4*n}:{67+4*n}], v9 offset:{1024*n}")
    a("s_waitcnt lgkmcnt(0)")
    for n in range(7):
        c = "0" if n == 0 else "v[20:23]"
        a(f"v_mfma_f32_16x16x32_bf16 v[20:23], v[{32+4*n}:{35+4*n}], v[{64+4*n}:{67+4*n}], {c}")
    a("s_lshl_b32 s23, s32, 7")
    a("s_add_u32 s23, s23, 57344")
    a("v_lshl_add_u32 v24, v2, 2, s23")
    a("v_cmp_gt_u32 vcc, 16, v2")
    a("s_and_saveexec_b64 s[26:27], vcc")
    a("s_nop 4")
    a("ds_write_b32 v24, v20")
    a("ds_write_b32 v24, v21 offset:64")
    a("s_mov_b64 exec, s[26:27]")
    a("s_waitcnt lgkmcnt(0)")
    a("s_barrier")
    a("v_cmp_gt_u32 vcc, 32, v0")
    a("s_and_saveexec_b64 s[26:27], vcc")
    a("s_cbranch_execz down_end")
    a("v_lshlrev_b32 v24, 2, v0")
    for w in range(8):
        a(f"ds_read_b32 v{32+w}, v24 offset:{57344+128*w}")
    a("v_and_b32 v12, 0xffff0000, v12")
    a("v_ashrrev_i32 v25, 31, v12")
    a("v_not_b32 v25, v25")
    a("v_or_b32 v25, 0x80000000, v25")
    a("v_xor_b32 v12, v12, v25")
    a("v_and_b32 v12, 0xffff0000, v12")
    a(f"v_mul_f32 v25, {NLOG2E:#x}, v12")
    a("v_exp_f32 v25, v25")
    a("s_nop 0")
    a("v_add_f32 v25, 1.0, v25")
    a("v_rcp_f32 v25, v25")
    a("s_nop 0")
    rnd_bf16(a, 25)
    a("s_waitcnt vmcnt(0) lgkmcnt(0)")
    for w in range(1, 8):
        a(f"v_add_f32 v32, v32, v{32+w}")
    rnd_bf16(a, 32)
    a("v_mul_f32 v32, v32, v25")
    rnd_bf16(a, 32)
    a("v_lshlrev_b32 v17, 16, v17")
    a("v_lshlrev_b32 v18, 16, v18")
    a("v_add_f32 v32, v32, v17")
    rnd_bf16(a, 32)
    a("v_mul_f32 v32, v32, v19")
    rnd_bf16(a, 32)
    a("v_add_f32 v32, v32, v18")
    a("v_cvt_pk_bf16_f32 v32, v32, v32")
    a("global_store_short v15, v32, s[8:9]")
    a.label("down_end")
    a("s_endpgm")

KERNELS = [
    ("prep_kernel", k_prep, 256, 256, 16384, 96),
    ("qkv_kernel", k_qkv, 256, 512, 83968, 240),
    ("attn_kernel", k_attn, 256, 512, 131072 + 8192, 112),
    ("oproj_kernel", k_oproj, 256, 512, 32768 + 32 * 528, 128),
    ("ln2_kernel", k_ln2, 256, 512, 0, 80),
    ("gateup_kernel", k_gateup, 112, 512, 33792, 72),
    ("down_kernel", k_down, 32, 512, 58368, 96),
]

def main(out):
    hdr = open("adaLN_cond__mha_block__moe_arch_mod__prompt.s.ref").read().split("; Override launch")[0]
    txt = hdr
    for name, fn, gx, bx, lds, vg in KERNELS:
        txt += f"; @launch kernel={name} grid=({gx},1,1) block=({bx},1,1) lds={lds}\n"
    txt += '.amdgcn_target "amdgcn-amd-amdhsa--gfx950"\n'
    a = Asm()
    for name, fn, gx, bx, lds, vg in KERNELS:
        fn(a)
    txt += a.text()
    for name, fn, gx, bx, lds, vg in KERNELS:
        txt += kernel_desc(name, vg)
    open(out, "w").write(txt)

if __name__ == "__main__":
    main(sys.argv[1] if len(sys.argv) > 1 else "adaLN_cond__mha_block__moe_arch_mod__prompt.s")
```

```python
import sys
from asmlib import *

WS_MODF = 0
WS_MODB = 0x4000
WS_KEY = 0x8000
WS_ACT = 0xA000
WS_SEL = 0xC000
WS_XF = 0x100000
WS_QF = 0x300000
WS_KV = 0x500000
WS_OF = 0x900000
WS_X1 = 0xB00000
WS_H2 = 0xD00000
WS_WOF = 0xF00000
WS_BYTES = 268435456
LOG2E = 0x3fb8aa3b
NLOG2E = 0xbfb8aa3b
import struct
def f32(x): return "0x%08x" % struct.unpack("<I", struct.pack("<f", x))[0]


PROF = False
WS_STAMP = 0x2000000
class Prof:
    kid = 0
    n = 0
def stamp(a):
    if not PROF: return
    i = Prof.n; Prof.n += 1
    a(f"s_memrealtime s[{70+2*i}:{71+2*i}]")
    a("s_waitcnt lgkmcnt(0)")
def stamp_begin(a, kid):
    Prof.kid = kid; Prof.n = 0
    if PROF:
        for i in range(1, 15): a(f"s_mov_b32 s{70+2*i}, 1")
        a("s_memtime s[64:65]")
    stamp(a)
def stamp_end(a):
    if not PROF: return
    a("s_waitcnt vmcnt(0)")
    a("s_memtime s[66:67]")
    stamp(a)
    a("s_mov_b64 exec, 1")
    a("v_readfirstlane_b32 s69, v0")
    a("s_and_b32 s69, s69, 0x1c0")
    a("s_lshl_b32 s68, s2, 9")
    a("s_add_u32 s69, s69, s68")
    a(f"s_add_u32 s69, s69, {WS_STAMP + Prof.kid*262144}")
    a("v_mov_b32 v1, s69")
    for i in range(Prof.n):
        a(f"v_mov_b32 v2, s{70+2*i}")
        a(f"global_store_dword v1, v2, s[4:5] offset:{4*i}")
    a("s_sub_u32 s66, s66, s64")
    a("v_mov_b32 v2, s66")
    a("global_store_dword v1, v2, s[4:5] offset:60")

def multi_allreduce(a, vs, ts, op="v_add_f32"):
    pad = max(0, 3 - len(vs))
    a("s_nop 1")
    for n in (8, 4, 2, 1):
        for v in vs:
            a(f"{op}_dpp v{v}, v{v}, v{v} row_ror:{n} row_mask:0xf bank_mask:0xf")
        if pad: a(f"s_nop {pad-1}")
    for sw in ("v_permlane16_swap_b32", "v_permlane32_swap_b32"):
        for v, t in zip(vs, ts):
            a(f"v_mov_b32 v{t}, v{v}")
        a("s_nop 1")
        for v, t in zip(vs, ts):
            a(f"{sw} v{t}, v{v}")
        a("s_nop 1")
        for v, t in zip(vs, ts):
            a(f"{op} v{v}, v{v}, v{t}")

def unpack8(a, dst, src):
    for i in range(4):
        a(f"v_lshlrev_b32 v{dst+2*i}, 16, v{src+i}")
        a(f"v_and_b32 v{dst+2*i+1}, 0xffff0000, v{src+i}")

def layernorm_rows(a, rows, tmp):
    n = len(rows)
    S = [tmp + i for i in range(n)]
    T = [tmp + n + i for i in range(n)]
    M = [tmp + 2 * n + i for i in range(n)]
    for q, x in enumerate(rows):
        a(f"v_add_f32 v{S[q]}, v{x}, v{x+1}")
        for i in range(2, 8):
            a(f"v_add_f32 v{S[q]}, v{S[q]}, v{x+i}")
    multi_allreduce(a, S, T)
    for q, x in enumerate(rows):
        a(f"v_mul_f32 v{M[q]}, {f32(1/512)}, v{S[q]}")
        a(f"v_sub_f32 v{T[q]}, v{x}, v{M[q]}")
        a(f"v_mul_f32 v{S[q]}, v{T[q]}, v{T[q]}")
        for i in range(1, 8):
            a(f"v_sub_f32 v{T[q]}, v{x+i}, v{M[q]}")
            a(f"v_fmac_f32 v{S[q]}, v{T[q]}, v{T[q]}")
    multi_allreduce(a, S, T)
    for q, x in enumerate(rows):
        a(f"v_mul_f32 v{S[q]}, {f32(1/512)}, v{S[q]}")
        rnd_bf16(a, S[q])
        a(f"v_add_f32 v{S[q]}, {f32(1e-5)}, v{S[q]}")
        rnd_bf16(a, S[q])
        a(f"v_sqrt_f32 v{S[q]}, v{S[q]}")
        rnd_bf16(a, M[q])
        rnd_bf16(a, S[q])
        a(f"v_rcp_f32 v{S[q]}, v{S[q]}")
        for i in range(0, 8, 2):
            a(f"v_sub_f32 v{x+i}, v{x+i}, v{M[q]}")
            a(f"v_sub_f32 v{x+i+1}, v{x+i+1}, v{M[q]}")
            a(f"v_cvt_pk_bf16_f32 v{T[q]}, v{x+i}, v{x+i+1}")
            a(f"v_lshlrev_b32 v{x+i}, 16, v{T[q]}")
            a(f"v_and_b32 v{x+i+1}, 0xffff0000, v{T[q]}")
            a(f"v_mul_f32 v{x+i}, v{x+i}, v{S[q]}")
            a(f"v_mul_f32 v{x+i+1}, v{x+i+1}, v{S[q]}")

def rnd_pair(a, x, y, t):
    a(f"v_cvt_pk_bf16_f32 v{t}, v{x}, v{y}")
    a(f"v_lshlrev_b32 v{x}, 16, v{t}")
    a(f"v_and_b32 v{y}, 0xffff0000, v{t}")

def k_prep(a):
    kernel_begin(a, "prep_kernel")
    a("s_cmp_ge_u32 s2, 256")
    a("s_cbranch_scc1 prep_end")
    stamp_begin(a, 0)
    a("s_load_dwordx2 s[4:5], s[0:1], 96")
    a("s_cmp_ge_u32 s2, 224")
    a("s_cbranch_scc1 prep_wo")
    a("s_cmp_ge_u32 s2, 96")
    a("s_cbranch_scc1 prep_xhat")
    a("s_load_dwordx2 s[6:7], s[0:1], 64")
    a("s_load_dwordx2 s[8:9], s[0:1], 72")
    a("v_and_b32 v1, 3, v0")
    a("v_lshrrev_b32 v2, 2, v0")
    a("v_mul_u32_u24 v3, 6144, v2")
    a("v_lshl_add_u32 v3, v1, 4, v3")
    a("s_lshl_b32 s3, s2, 6")
    a("v_add_u32 v3, s3, v3")
    a("v_lshlrev_b32 v4, 1, v2")
    a("s_waitcnt lgkmcnt(0)")
    srd(a, 12, 8, 512 * 6144)
    srd(a, 16, 6, 1024)
    for p in range(8):
        a(f"buffer_load_ushort v{10+p}, v4, s[16:19], 0 offen offset:{128*p}")
    for p in range(8):
        a(f"s_mov_b32 s20, {p*393216}")
        a(f"buffer_load_dwordx4 v[{20+4*p}:{23+4*p}], v3, s[12:15], s20 offen")
    for i in range(8):
        a(f"v_mov_b32 v{60+i}, 0")
    stamp(a)
    a("s_waitcnt vmcnt(8)")
    stamp(a)
    for p in range(8):
        c = 10 + p
        a(f"v_lshlrev_b32 v{c}, 16, v{c}")
        a(f"v_mul_f32 v{70+p}, {NLOG2E:#x}, v{c}")
        a(f"v_exp_f32 v{70+p}, v{70+p}")
    for p in range(8):
        a(f"v_add_f32 v{70+p}, 1.0, v{70+p}")
        a(f"v_rcp_f32 v{70+p}, v{70+p}")
    for p in range(8):
        a(f"v_mul_f32 v{10+p}, v{10+p}, v{70+p}")
        rnd_bf16(a, 10 + p)
    for p in range(8):
        a(f"s_waitcnt vmcnt({7-p})")
        for i in range(4):
            w = 20 + 4 * p + i
            a(f"v_lshlrev_b32 v70, 16, v{w}")
            a(f"v_and_b32 v71, 0xffff0000, v{w}")
            a(f"v_fmac_f32 v{60+2*i}, v70, v{10+p}")
            a(f"v_fmac_f32 v{61+2*i}, v71, v{10+p}")
    stamp(a)
    a("s_nop 1")
    for n in (4, 8):
        for i in range(8):
            a(f"v_add_f32_dpp v{60+i}, v{60+i}, v{60+i} row_ror:{n} row_mask:0xf bank_mask:0xf")
    a("v_lshrrev_b32 v5, 4, v0")
    a("v_lshlrev_b32 v5, 7, v5")
    a("v_lshl_add_u32 v5, v1, 5, v5")
    a("v_and_b32 v6, 15, v0")
    a("v_cmp_gt_u32 vcc, 4, v6")
    a("s_and_saveexec_b64 s[22:23], vcc")
    a("ds_write_b128 v5, v[60:63]")
    a("ds_write_b128 v5, v[64:67] offset:16")
    a("s_mov_b64 exec, s[22:23]")
    a("s_waitcnt lgkmcnt(0)")
    a("s_barrier")
    a("v_cmp_gt_u32 vcc, 32, v0")
    a("s_and_saveexec_b64 s[22:23], vcc")
    a("s_cbranch_execz prep_end")
    a("v_lshlrev_b32 v5, 2, v0")
    for i in range(16):
        a(f"ds_read_b32 v{20+i}, v5 offset:{128*i}")
    a("s_waitcnt lgkmcnt(0)")
    for i in range(1, 16):
        a(f"v_add_f32 v20, v20, v{20+i}")
    rnd_bf16(a, 20)
    a("s_lshr_b32 s24, s2, 4")
    a("s_mov_b32 s25, 0")
    a("s_cmp_eq_u32 s24, 1")
    a("s_cselect_b32 s25, 1.0, s25")
    a("s_cmp_eq_u32 s24, 4")
    a("s_cselect_b32 s25, 1.0, s25")
    a("v_add_f32 v20, s25, v20")
    rnd_bf16(a, 20)
    a("s_lshl_b32 s3, s2, 7")
    a("v_add_u32 v5, s3, v5")
    a(f"global_store_dword v5, v20, s[4:5] offset:{WS_MODF}")
    a("v_lshrrev_b32 v5, 1, v5")
    a(f"v_add_u32 v5, {WS_MODB}, v5")
    a("global_store_short_d16_hi v5, v20, s[4:5]")
    stamp_end(a)
    a("s_endpgm")
    Prof.n = 1
    a.label("prep_xhat")
    a("s_load_dwordx2 s[6:7], s[0:1], 0")
    a("s_sub_u32 s3, s2, 96")
    a("v_lshrrev_b32 v1, 6, v0")
    a("v_and_b32 v2, 63, v0")
    a("v_lshlrev_b32 v3, 12, v1")
    a("v_lshl_add_u32 v3, v2, 4, v3")
    a("s_lshl_b32 s8, s3, 14")
    a("v_add_u32 v3, s8, v3")
    a("s_waitcnt lgkmcnt(0)")
    for q in range(4):
        a(f"global_load_dwordx4 v[{8+4*q}:{11+4*q}], v3, s[6:7] offset:{1024*q}")
    a("v_lshlrev_b32 v4, 8, v2")
    a("v_lshl_add_u32 v4, v1, 6, v4")
    a(f"s_add_u32 s8, s8, {WS_XF}")
    a("v_add_u32 v4, s8, v4")
    rows = [24 + 8 * q for q in range(4)]
    stamp(a)
    if PROF: a("s_waitcnt vmcnt(0)")
    stamp(a)
    for q in range(4):
        a(f"s_waitcnt vmcnt({3-q})")
        unpack8(a, rows[q], 8 + 4 * q)
    layernorm_rows(a, rows, 60)
    for q in range(4):
        for i in range(4):
            a(f"v_cvt_pk_bf16_f32 v{8+4*q+i}, v{rows[q]+2*i}, v{rows[q]+2*i+1}")
        if q == 0: stamp(a)
        a(f"global_store_dwordx4 v4, v[{8+4*q}:{11+4*q}], s[4:5] offset:{16*q}")
    stamp_end(a)
    a("s_endpgm")
    Prof.n = 1
    a.label("prep_wo")
    a("s_load_dwordx2 s[6:7], s[0:1], 16")
    a("s_sub_u32 s3, s2, 224")
    a("v_lshrrev_b32 v1, 1, v0")
    a("v_lshlrev_b32 v1, 10, v1")
    a("v_and_b32 v2, 1, v0")
    a("v_lshl_add_u32 v1, v2, 4, v1")
    a("s_lshl_b32 s8, s3, 5")
    a("v_add_u32 v1, s8, v1")
    a("s_waitcnt lgkmcnt(0)")
    srd(a, 12, 6, 512 * 1024)
    for p in range(4):
        a(f"s_mov_b32 s20, {p*131072}")
        a(f"buffer_load_dwordx4 v[{8+4*p}:{11+4*p}], v1, s[12:15], s20 offen")
    a("v_lshlrev_b32 v2, 4, v0")
    for p in range(4):
        a(f"s_waitcnt vmcnt({3-p})")
        a(f"ds_write_b128 v2, v[{8+4*p}:{11+4*p}] offset:{4096*p}")
    a("v_and_b32 v3, 63, v0")
    a("v_lshrrev_b32 v4, 5, v3")
    a("v_lshlrev_b32 v4, 9, v4")
    a("v_bfe_u32 v5, v3, 4, 1")
    a("v_lshl_add_u32 v4, v5, 7, v4")
    a("v_bfe_u32 v5, v3, 2, 2")
    a("v_lshl_add_u32 v4, v5, 5, v4")
    a("v_and_b32 v5, 3, v3")
    a("v_lshl_add_u32 v4, v5, 3, v4")
    a("v_lshrrev_b32 v5, 6, v0")
    a("v_lshl_add_u32 v4, v5, 12, v4")
    a("v_lshlrev_b32 v6, 12, v5")
    a("v_lshl_add_u32 v6, v3, 4, v6")
    a("s_lshl_b32 s8, s3, 14")
    a(f"s_add_u32 s8, s8, {WS_WOF}")
    a("v_add_u32 v6, s8, v6")
    a("s_waitcnt lgkmcnt(0)")
    a("s_barrier")
    for n in range(4):
        a(f"ds_read_b64_tr_b16 v[{8+4*n}:{9+4*n}], v4 offset:{1024*n}")
        a(f"ds_read_b64_tr_b16 v[{10+4*n}:{11+4*n}], v4 offset:{1024*n+256}")
    for n in range(4):
        a(f"s_waitcnt lgkmcnt({6-2*n})")
        a(f"global_store_dwordx4 v6, v[{8+4*n}:{11+4*n}], s[4:5] offset:{1024*n}")
    stamp_end(a)
    a.label("prep_end")
    a("s_endpgm")

def decode_hb(a, sh, sb):
    a("s_and_b32 s3, s2, 7")
    a("s_lshr_b32 s28, s2, 3")
    a(f"s_and_b32 s{sb}, s3, 3")
    a(f"s_lshl_b32 s{sb}, s{sb}, 1")
    a("s_and_b32 s29, s28, 1")
    a(f"s_add_u32 s{sb}, s{sb}, s29")
    a(f"s_lshr_b32 s{sh}, s3, 2")
    a(f"s_lshl_b32 s{sh}, s{sh}, 4")
    a("s_lshr_b32 s29, s28, 1")
    a(f"s_add_u32 s{sh}, s{sh}, s29")

QSCALE = 0.25 * 1.4426950408889634
def k_qkv(a):
    kernel_begin(a, "qkv_kernel")
    a("s_cmp_ge_u32 s2, 256")
    a("s_cbranch_scc1 qkv_end")
    stamp_begin(a, 1)
    a("s_load_dwordx2 s[4:5], s[0:1], 96")
    a("s_load_dwordx2 s[6:7], s[0:1], 8")
    decode_hb(a, 30, 31)
    a("v_lshrrev_b32 v1, 6, v0")
    a("v_and_b32 v2, 63, v0")
    a("s_nop 0")
    a("v_readfirstlane_b32 s32, v1")
    a("v_lshrrev_b32 v3, 1, v0")
    a("v_lshlrev_b32 v4, 2, v3")
    a("v_mul_u32_u24 v5, 3072, v3")
    a("v_and_b32 v6, 1, v0")
    a("v_lshl_add_u32 v5, v6, 4, v5")
    a("s_lshl_b32 s33, s30, 5")
    a("v_add_u32 v5, s33, v5")
    a("s_waitcnt lgkmcnt(0)")
    srd(a, 12, 6, 512 * 3072)
    srd(a, 16, 4, WS_BYTES)
    WR = 160
    for p in range(2):
        for t in range(3):
            a(f"s_mov_b32 s20, {p*256*3072 + t*1024}")
            r = WR + 4 * (3 * p + t)
            a(f"buffer_load_dwordx4 v[{r}:{r+3}], v5, s[12:15], s20 offen")
    a(f"buffer_load_dword v184, v4, s[16:19], 0 offen offset:{WS_MODF+2048}")
    a(f"buffer_load_dword v185, v4, s[16:19], 0 offen offset:{WS_MODF+2048+1024}")
    a("v_lshrrev_b32 v7, 4, v2")
    a("v_lshlrev_b32 v8, 4, v7")
    a("s_lshl_b32 s20, s32, 7")
    a(f"s_add_u32 s20, s20, {WS_MODB}")
    a("buffer_load_dwordx4 v[188:191], v8, s[16:19], s20 offen")
    a("buffer_load_dwordx4 v[192:195], v8, s[16:19], s20 offen offset:64")
    XR = 32
    a("v_lshlrev_b32 v9, 4, v2")
    a("s_lshl_b32 s20, s31, 18")
    a("s_lshl_b32 s21, s32, 15")
    a("s_add_u32 s20, s20, s21")
    a(f"s_add_u32 s20, s20, {WS_XF}")
    for grp in range(8):
        for n in range(4):
            r = XR + 4 * (4 * grp + n)
            a(f"buffer_load_dwordx4 v[{r}:{r+3}], v9, s[16:19], s20 offen offset:{1024*n}")
        if grp != 7:
            a("s_add_u32 s20, s20, 4096")
    a("v_lshlrev_b32 v10, 5, v3")
    a("v_bfe_u32 v11, v3, 3, 1")
    a("v_lshlrev_b32 v11, 7, v11")
    a("v_xor_b32 v10, v10, v11")
    a("v_lshl_add_u32 v10, v6, 4, v10")
    a("v_add_u32 v11, 49152, v10")
    a("v_bfe_u32 v12, v2, 2, 2")
    a("v_lshlrev_b32 v12, 5, v12")
    a("v_and_b32 v13, 1, v7")
    a("v_lshlrev_b32 v13, 7, v13")
    a("v_xor_b32 v12, v12, v13")
    a("v_lshl_add_u32 v12, v7, 8, v12")
    a("v_and_b32 v13, 3, v2")
    a("v_lshl_add_u32 v12, v13, 3, v12")
    a("v_xor_b32 v13, 0x80, v12")
    a("s_lshl_b32 s21, s32, 11")
    a("s_add_u32 s21, s21, 49152")
    a("v_add_u32 v14, s21, v12")
    a("v_add_u32 v15, s21, v13")
    stamp(a)
    a("s_waitcnt vmcnt(36)")
    stamp(a)
    for p in range(2):
        a(f"ds_write_b128 v11, v[{WR+12*p}:{WR+12*p+3}] offset:{8192*p}")
        a(f"ds_write_b128 v11, v[{WR+12*p+8}:{WR+12*p+11}] offset:{16384+8192*p}")
    a("s_waitcnt vmcnt(34)")
    for p in range(2):
        for t in range(3):
            r = WR + 4 * (3 * p + t)
            d = 200 + 4 * ((3 * p + t) & 1)
            for i in range(4):
                a(f"v_lshlrev_b32 v16, 16, v{r+i}")
                a(f"v_and_b32 v17, 0xffff0000, v{r+i}")
                a(f"v_mul_f32 v16, v16, v{184+p}")
                a(f"v_mul_f32 v17, v17, v{184+p}")
                a(f"v_cvt_pk_bf16_f32 v{d+i}, v16, v17")
            a(f"ds_write_b128 v10, v[{d}:{d+3}] offset:{16384*t+8192*p}")
    a("s_waitcnt lgkmcnt(0)")
    a("s_barrier")
    stamp(a)
    if PROF: a("s_waitcnt vmcnt(15)")
    stamp(a)
    if PROF: a("s_waitcnt vmcnt(0)")
    stamp(a)
    for n in range(2):
        a(f"ds_read_b64_tr_b16 v[{160+8*n}:{161+8*n}], v14 offset:{1024*n}")
        a(f"ds_read_b64_tr_b16 v[{162+8*n}:{163+8*n}], v15 offset:{1024*n}")
        a(f"ds_read_b64_tr_b16 v[{164+8*n}:{165+8*n}], v14 offset:{16384+1024*n}")
        a(f"ds_read_b64_tr_b16 v[{166+8*n}:{167+8*n}], v15 offset:{16384+1024*n}")
    WF = [216, 228]
    def rd_w(s):
        b = WF[s & 1]
        for t in range(3):
            a(f"ds_read_b64_tr_b16 v[{b+4*t}:{b+4*t+1}], v12 offset:{16384*t+1024*s}")
            a(f"ds_read_b64_tr_b16 v[{b+4*t+2}:{b+4*t+3}], v13 offset:{16384*t+1024*s}")
    rd_w(0)
    a("s_waitcnt vmcnt(32) lgkmcnt(6)")
    a("v_mfma_f32_16x16x32_bf16 v[208:211], v[160:163], v[188:191], 0")
    a("v_mfma_f32_16x16x32_bf16 v[212:215], v[188:191], v[164:167], 0")
    a("v_mfma_f32_16x16x32_bf16 v[208:211], v[168:171], v[192:195], v[208:211]")
    a("v_mfma_f32_16x16x32_bf16 v[212:215], v[192:195], v[172:175], v[212:215]")
    a("s_lshl_b32 s21, s32, 7")
    a("s_add_u32 s21, s21, 81920")
    a("v_lshl_add_u32 v16, v7, 4, s21")
    a("v_and_b32 v17, 15, v2")
    a("v_lshl_add_u32 v17, v17, 2, s21")
    a("s_nop 4")
    a("ds_write_b128 v16, v[208:211]")
    a("ds_write_b32 v17, v212 offset:64")
    ACC = 176
    for s in range(16):
        if s < 15:
            rd_w(s + 1)
            a(f"s_waitcnt vmcnt({15-s}) lgkmcnt(6)")
        else:
            a("s_waitcnt vmcnt(0) lgkmcnt(0)")
        b = WF[s & 1]
        for u in range(2):
            x = XR + 4 * (16 * u + s)
            for t in range(3):
                acc = ACC + 8 * t + 4 * u
                c = "0" if s == 0 else f"v[{acc}:{acc+3}]"
                if t < 2:
                    a(f"v_mfma_f32_16x16x32_bf16 v[{acc}:{acc+3}], v[{b+4*t}:{b+4*t+3}], v[{x}:{x+3}], {c}")
                else:
                    a(f"v_mfma_f32_16x16x32_bf16 v[{acc}:{acc+3}], v[{x}:{x+3}], v[{b+4*t}:{b+4*t+3}], {c}")
    a("s_barrier")
    stamp(a)
    a("v_lshlrev_b32 v16, 4, v7")
    a("v_add_u32 v16, 81920, v16")
    a("v_and_b32 v17, 15, v2")
    a("v_lshlrev_b32 v18, 2, v17")
    a("v_add_u32 v18, 81920, v18")
    for w in range(8):
        a(f"ds_read_b128 v[{32+4*w}:{35+4*w}], v16 offset:{128*w}")
        a(f"ds_read_b32 v{64+w}, v18 offset:{128*w+64}")
    a("v_lshrrev_b32 v20, 1, v7")
    a("v_and_b32 v21, 1, v7")
    a("v_lshlrev_b32 v21, 3, v21")
    a("v_lshl_add_u32 v21, v17, 4, v21")
    a("v_lshl_add_u32 v22, v20, 9, v21")
    a("v_lshl_add_u32 v23, v20, 8, v21")
    a("s_lshl_b32 s20, s31, 3")
    a("s_add_u32 s20, s20, s32")
    a("s_lshl_b32 s21, s30, 16")
    a("s_lshl_b32 s22, s20, 10")
    a("s_add_u32 s21, s21, s22")
    a(f"s_add_u32 s21, s21, {WS_QF}")
    a("s_lshl_b32 s22, s30, 17")
    a("s_lshl_b32 s23, s20, 11")
    a("s_add_u32 s22, s22, s23")
    a(f"s_add_u32 s22, s22, {WS_KV}")
    a("s_waitcnt lgkmcnt(0)")
    for w in range(1, 8):
        for r in range(4):
            a(f"v_add_f32 v{32+r}, v{32+r}, v{32+4*w+r}")
        a(f"v_add_f32 v64, v64, v{64+w}")
    a(f"s_mov_b32 s24, {f32(QSCALE)}")
    for u in range(2):
        q = ACC + 4 * u; k = ACC + 8 + 4 * u; v = ACC + 16 + 4 * u
        for r in range(4):
            a(f"v_add_f32 v{q+r}, v{q+r}, v{32+r}")
            a(f"v_mul_f32 v{q+r}, s24, v{q+r}")
            a(f"v_add_f32 v{v+r}, v{v+r}, v64")
        d = 80 + 6 * u
        a(f"v_cvt_pk_bf16_f32 v{d}, v{q}, v{q+1}")
        a(f"v_cvt_pk_bf16_f32 v{d+1}, v{q+2}, v{q+3}")
        a(f"v_cvt_pk_bf16_f32 v{d+2}, v{k}, v{k+1}")
        a(f"v_cvt_pk_bf16_f32 v{d+3}, v{k+2}, v{k+3}")
        a(f"v_cvt_pk_bf16_f32 v{d+4}, v{v}, v{v+1}")
        a(f"v_cvt_pk_bf16_f32 v{d+5}, v{v+2}, v{v+3}")
        a(f"buffer_store_dwordx2 v[{d}:{d+1}], v22, s[16:19], s21 offen offset:{256*u}")
        a(f"buffer_store_dwordx2 v[{d+2}:{d+3}], v22, s[16:19], s22 offen offset:{256*u}")
        a(f"buffer_store_dwordx2 v[{d+4}:{d+5}], v23, s[16:19], s22 offen offset:{1024+512*u}")
    stamp_end(a)
    a.label("qkv_end")
    a("s_endpgm")

def k_attn(a):
    kernel_begin(a, "attn_kernel")
    a("s_cmp_ge_u32 s2, 256")
    a("s_cbranch_scc1 attn_end")
    stamp_begin(a, 2)
    a("s_load_dwordx2 s[4:5], s[0:1], 96")
    decode_hb(a, 30, 31)
    a("v_lshrrev_b32 v1, 6, v0")
    a("v_and_b32 v2, 63, v0")
    a("s_nop 0")
    a("v_readfirstlane_b32 s32, v1")
    a("v_lshlrev_b32 v3, 4, v2")
    a("s_waitcnt lgkmcnt(0)")
    srd(a, 16, 4, WS_BYTES)
    Q = 8; C = 16; S = [32, 48]; O = 64; K = [80, 84]; V = [88, 96]; IDX = 104
    a("s_lshl_b32 s20, s31, 3")
    a("s_add_u32 s20, s20, s32")
    a("s_lshl_b32 s21, s30, 16")
    a("s_lshl_b32 s22, s20, 10")
    a("s_add_u32 s21, s21, s22")
    a(f"s_add_u32 s21, s21, {WS_QF}")
    a(f"buffer_load_dwordx4 v[{Q}:{Q+3}], v3, s[16:19], s21 offen")
    a("s_lshl_b32 s22, s30, 17")
    a("s_lshl_b32 s23, s32, 14")
    a("s_add_u32 s22, s22, s23")
    a(f"s_add_u32 s22, s22, {WS_KV}")
    for grp in range(4):
        a("s_mov_b32 m0, s23")
        a("s_nop 0")
        for n in range(4):
            a(f"buffer_load_dwordx4 v3, s[16:19], s22 offen offset:{1024*n} lds")
        if grp != 3:
            a("s_add_u32 s22, s22, 4096")
            a("s_add_u32 s23, s23, 4096")
    a("v_lshrrev_b32 v4, 5, v2")
    a("v_lshlrev_b32 v4, 8, v4")
    a("v_and_b32 v5, 15, v2")
    a("v_lshl_add_u32 v4, v5, 4, v4")
    a("v_add_u32 v4, 1024, v4")
    a(f"v_mov_b32 v{IDX}, 0xdddddddd")
    for i in range(16):
        a(f"v_mov_b32 v{V[0]+i}, 0x3f803f80")
        a(f"v_mov_b32 v{O+i}, 0")
    a("s_mov_b32 s34, 0x0000ffff")
    a("s_mov_b32 s35, 0x0000ffff")
    a("s_mov_b32 s36, 0")
    stamp(a)
    a("s_waitcnt vmcnt(0)")
    stamp(a)
    a("s_barrier")
    stamp(a)
    a(f"ds_read_b128 v[{K[0]}:{K[0]+3}], v3")
    a(f"ds_read_b128 v[{K[1]}:{K[1]+3}], v3 offset:2048")
    a("s_waitcnt lgkmcnt(1)")
    a(f"v_mfma_f32_32x32x16_bf16 v[{S[0]}:{S[0]+15}], v[{K[0]}:{K[0]+3}], v[{Q}:{Q+3}], 0")
    a("s_nop 11")
    s0 = S[0]
    a(f"v_max3_f32 v6, v{s0}, v{s0+1}, v{s0+2}")
    for i in range(3, 15, 2):
        a(f"v_max3_f32 v6, v6, v{s0+i}, v{s0+i+1}")
    a(f"v_max_f32 v6, v6, v{s0+15}")
    a.label("attn_setmax")
    a("v_mov_b32 v7, v6")
    a("s_nop 1")
    a("v_permlane32_swap_b32 v7, v6")
    a("s_nop 1")
    a("v_max_f32 v6, v6, v7")
    for i in range(16):
        a(f"v_sub_f32 v{C+i}, 0, v6")
    a("s_mov_b64 exec, s[34:35]")
    a(f"ds_read_b128 v[{V[0]}:{V[0]+3}], v4")
    a(f"ds_read_b128 v[{V[0]+4}:{V[0]+7}], v4 offset:512")
    a("s_mov_b64 exec, -1")
    a(f"v_mfma_f32_32x32x16_bf16 v[{S[0]}:{S[0]+15}], v[{K[0]}:{K[0]+3}], v[{Q}:{Q+3}], v[{C}:{C+15}]")
    for i in range(8):
        a(f"v_mov_b32 v{S[1]+8+i}, 0")
    a("s_mov_b32 s37, 8")
    a("s_nop 3")
    a.raw(".p2align 6")
    a.label("attn_loop")
    for t in range(8):
        cur = S[t & 1]; nxt = S[(t + 1) & 1]
        e = lambda i: a(f"v_exp_f32 v{cur+i}, v{cur+i}")
        a("s_waitcnt lgkmcnt(0)")
        e(0); e(1)
        vp = V[(t + 1) & 1]
        a(f"v_smfmac_f32_32x32x32_bf16 v[{O}:{O+15}], v[{vp+4}:{vp+7}], v[{nxt+8}:{nxt+15}], v{IDX}")
        e(2); e(3); e(4)
        kn = K[(t + 1) & 1]
        a(f"v_mfma_f32_32x32x16_bf16 v[{nxt}:{nxt+15}], v[{kn}:{kn+3}], v[{Q}:{Q+3}], v[{C}:{C+15}]")
        kc = K[t & 1]
        a(f"ds_read_b128 v[{kc}:{kc+3}], v3 offset:{2048*(t+2)}")
        a("s_mov_b64 exec, s[34:35]")
        a(f"ds_read_b128 v[{vp}:{vp+3}], v4 offset:{2048*(t+1)}")
        a(f"ds_read_b128 v[{vp+4}:{vp+7}], v4 offset:{2048*(t+1)+512}")
        a("s_mov_b64 exec, -1")
        for i in range(5, 10): e(i)
        vc = V[t & 1]
        a(f"v_smfmac_f32_32x32x32_bf16 v[{O}:{O+15}], v[{vc}:{vc+3}], v[{cur}:{cur+7}], v{IDX}")
        for i in range(10, 16): e(i)
    a("v_add_u32 v3, 0x4000, v3")
    a("v_add_u32 v4, 0x4000, v4")
    a("s_sub_u32 s37, s37, 1")
    a("s_cmp_lg_u32 s37, 0")
    a("s_cbranch_scc1 attn_loop")
    stamp(a)
    a(f"v_smfmac_f32_32x32x32_bf16 v[{O}:{O+15}], v[{V[1]+4}:{V[1]+7}], v[{S[1]+8}:{S[1]+15}], v{IDX}")
    a("s_waitcnt lgkmcnt(0)")
    a("v_subrev_u32 v3, 0x20000, v3")
    a("v_subrev_u32 v4, 0x20000, v4")
    a("s_nop 9")
    a(f"v_mov_b32 v6, {f32(2.0**40)}")
    a(f"v_add_f32 v7, abs(v{O}), abs(v{O+1})")
    for i in range(2, 8):
        a(f"v_add_f32 v7, v7, abs(v{O+i})")
    a(f"v_mov_b32 v5, {f32(3.0e38)}")
    a(f"v_cmp_nle_f32 vcc, v{O+8}, v6")
    a(f"v_cmp_nle_f32 s[38:39], v7, v5")
    a("s_or_b64 vcc, vcc, s[38:39]")
    a("s_cmp_lg_u32 s36, 0")
    a("s_cbranch_scc1 attn_fin")
    a("s_cbranch_vccnz attn_fallback")
    a.label("attn_fin")
    a(f"v_rcp_f32 v6, v{O+8}")
    a("s_nop 0")
    for i in range(8):
        a(f"v_mul_f32 v{O+i}, v{O+i}, v6")
    for i in range(4):
        a(f"v_cvt_pk_bf16_f32 v{8+i}, v{O+2*i}, v{O+2*i+1}")
    a("s_lshl_b32 s21, s20, 15")
    a("s_lshl_b32 s22, s30, 10")
    a("s_add_u32 s21, s21, s22")
    a(f"s_add_u32 s21, s21, {WS_OF}")
    a("buffer_store_dwordx4 v[8:11], v3, s[16:19], s21 offen")
    stamp_end(a)
    a.label("attn_end")
    a("s_endpgm")
    a.label("attn_fallback")
    a("s_mov_b32 s36, 1")
    a("s_mov_b32 s37, 64")
    a("v_mov_b32 v6, 0xff800000")
    a("v_mov_b32 v5, v3")
    a.label("attn_fb_loop")
    a(f"ds_read_b128 v[{K[0]}:{K[0]+3}], v5")
    a("v_add_u32 v5, 0x800, v5")
    a("s_waitcnt lgkmcnt(0)")
    a(f"v_mfma_f32_32x32x16_bf16 v[{S[0]}:{S[0]+15}], v[{K[0]}:{K[0]+3}], v[{Q}:{Q+3}], 0")
    a("s_nop 11")
    for i in range(0, 16, 2):
        a(f"v_max3_f32 v6, v6, v{s0+i}, v{s0+i+1}")
    a("s_sub_u32 s37, s37, 1")
    a("s_cmp_lg_u32 s37, 0")
    a("s_cbranch_scc1 attn_fb_loop")
    a(f"ds_read_b128 v[{K[0]}:{K[0]+3}], v3")
    a(f"ds_read_b128 v[{K[1]}:{K[1]+3}], v3 offset:2048")
    for i in range(16):
        a(f"v_mov_b32 v{O+i}, 0")
    a("s_waitcnt lgkmcnt(0)")
    a("s_branch attn_setmax")

def k_oproj(a):
    kernel_begin(a, "oproj_kernel")
    a("s_cmp_ge_u32 s2, 256")
    a("s_cbranch_scc1 oproj_end")
    stamp_begin(a, 3)
    a("s_load_dwordx2 s[4:5], s[0:1], 96")
    a("s_load_dwordx2 s[6:7], s[0:1], 0")
    a("s_lshr_b32 s30, s2, 2")
    a("s_and_b32 s31, s2, 3")
    a("v_lshrrev_b32 v1, 6, v0")
    a("v_and_b32 v2, 63, v0")
    a("s_nop 0")
    a("v_readfirstlane_b32 s32, v1")
    a("v_lshlrev_b32 v3, 4, v2")
    a("s_waitcnt lgkmcnt(0)")
    srd(a, 16, 4, WS_BYTES)
    a("s_lshl_b32 s23, s32, 12")
    a("s_lshl_b32 s22, s30, 15")
    a("s_add_u32 s22, s22, s23")
    a(f"s_add_u32 s22, s22, {WS_OF}")
    a("s_mov_b32 m0, s23")
    a("s_nop 0")
    for n in range(4):
        a(f"buffer_load_dwordx4 v3, s[16:19], s22 offen offset:{1024*n} lds")
    a("s_lshl_b32 s20, s31, 3")
    a("s_add_u32 s20, s20, s32")
    a("s_lshl_b32 s20, s20, 14")
    a(f"s_add_u32 s20, s20, {WS_WOF}")
    for grp in range(4):
        for n in range(4):
            r = 32 + 4 * (4 * grp + n)
            a(f"buffer_load_dwordx4 v[{r}:{r+3}], v3, s[16:19], s20 offen offset:{1024*n}")
        if grp != 3:
            a("s_add_u32 s20, s20, 4096")
    a("v_lshrrev_b32 v4, 4, v0")
    a("v_and_b32 v5, 15, v0")
    a("v_lshlrev_b32 v6, 10, v4")
    a("v_lshl_add_u32 v6, v5, 4, v6")
    a("s_lshl_b32 s20, s30, 15")
    a("s_lshl_b32 s21, s31, 8")
    a("s_add_u32 s20, s20, s21")
    a("v_add_u32 v6, s20, v6")
    a("global_load_dwordx4 v[96:99], v6, s[6:7]")
    a("v_lshlrev_b32 v7, 5, v5")
    a("s_lshl_b32 s21, s31, 9")
    a(f"s_add_u32 s21, s21, {WS_MODF+4096}")
    a("buffer_load_dwordx4 v[100:103], v7, s[16:19], s21 offen")
    a("buffer_load_dwordx4 v[104:107], v7, s[16:19], s21 offen offset:16")
    a("v_lshrrev_b32 v8, 5, v2")
    a("v_lshlrev_b32 v8, 10, v8")
    a("v_bfe_u32 v9, v2, 4, 1")
    a("v_lshl_add_u32 v8, v9, 9, v8")
    a("v_and_b32 v9, 15, v2")
    a("v_lshl_add_u32 v8, v9, 4, v8")
    a("v_mul_u32_u24 v10, 528, v9")
    a("v_lshrrev_b32 v11, 4, v2")
    a("v_lshl_add_u32 v10, v11, 4, v10")
    a("s_lshl_b32 s21, s32, 6")
    a("s_add_u32 s21, s21, 32768")
    a("v_add_u32 v10, s21, v10")
    a("v_mul_u32_u24 v11, 528, v4")
    a("v_lshl_add_u32 v11, v5, 5, v11")
    a("v_add_u32 v11, 32768, v11")
    stamp(a)
    a("s_waitcnt vmcnt(19)")
    stamp(a)
    a("s_barrier")
    if PROF: a("s_waitcnt vmcnt(0)")
    stamp(a)
    OFR = 112
    def rd(s):
        b = OFR + 8 * (s & 1)
        a(f"ds_read_b128 v[{b}:{b+3}], v8 offset:{2048*s}")
        a(f"ds_read_b128 v[{b+4}:{b+7}], v8 offset:{2048*s+256}")
    rd(0)
    for s in range(16):
        if s < 15:
            rd(s + 1)
            a(f"s_waitcnt vmcnt({18-s}) lgkmcnt(2)")
        else:
            a("s_waitcnt vmcnt(3) lgkmcnt(0)")
        b = OFR + 8 * (s & 1)
        for u in range(2):
            acc = 12 + 4 * u
            c = "0" if s == 0 else f"v[{acc}:{acc+3}]"
            a(f"v_mfma_f32_16x16x32_bf16 v[{acc}:{acc+3}], v[{32+4*s}:{35+4*s}], v[{b+4*u}:{b+4*u+3}], {c}")
    stamp(a)
    a("s_nop 7")
    a("ds_write_b128 v10, v[12:15]")
    a(f"ds_write_b128 v10, v[16:19] offset:{16*528}")
    a("s_waitcnt lgkmcnt(0)")
    a("s_barrier")
    a("ds_read_b128 v[32:35], v11")
    a("ds_read_b128 v[36:39], v11 offset:16")
    a("s_waitcnt vmcnt(0)")
    unpack8(a, 40, 96)
    a("s_waitcnt lgkmcnt(0)")
    for i in range(0, 8, 2):
        rnd_pair(a, 32 + i, 33 + i, 48)
        a(f"v_mul_f32 v{32+i}, v{32+i}, v{100+i}")
        a(f"v_mul_f32 v{33+i}, v{33+i}, v{101+i}")
        rnd_pair(a, 32 + i, 33 + i, 48)
        a(f"v_add_f32 v{32+i}, v{32+i}, v{40+i}")
        a(f"v_add_f32 v{33+i}, v{33+i}, v{41+i}")
        a(f"v_cvt_pk_bf16_f32 v{52+i//2}, v{32+i}, v{33+i}")
    a(f"s_mov_b32 s21, {WS_X1}")
    a("buffer_store_dwordx4 v[52:55], v6, s[16:19], s21 offen")
    stamp_end(a)
    a.label("oproj_end")
    a("s_endpgm")

def k_ln2(a):
    kernel_begin(a, "ln2_kernel")
    a("s_cmp_ge_u32 s2, 256")
    a("s_cbranch_scc1 ln2_end")
    stamp_begin(a, 4)
    a("s_load_dwordx2 s[4:5], s[0:1], 96")
    a("s_load_dwordx2 s[6:7], s[0:1], 32")
    a("s_load_dwordx2 s[8:9], s[0:1], 80")
    a("v_and_b32 v2, 63, v0")
    a("v_lshlrev_b32 v3, 4, v0")
    a("s_lshl_b32 s20, s2, 13")
    a("v_add_u32 v3, s20, v3")
    a("v_lshlrev_b32 v4, 5, v2")
    a("v_lshlrev_b32 v5, 4, v2")
    a("s_waitcnt lgkmcnt(0)")
    srd(a, 16, 4, WS_BYTES)
    a(f"s_mov_b32 s21, {WS_X1}")
    a("buffer_load_dwordx4 v[8:11], v3, s[16:19], s21 offen")
    for j, base in enumerate((3, 4, 5)):
        a(f"s_mov_b32 s22, {WS_MODF + base*2048}")
        a(f"buffer_load_dwordx4 v[{40+8*j}:{43+8*j}], v4, s[16:19], s22 offen")
        a(f"buffer_load_dwordx4 v[{44+8*j}:{47+8*j}], v4, s[16:19], s22 offen offset:16")
    a("global_load_dwordx4 v[12:15], v5, s[6:7]")
    a("s_waitcnt vmcnt(7)")
    unpack8(a, 16, 8)
    unpack8(a, 24, 8)
    layernorm_rows(a, [24], 64)
    a("s_waitcnt vmcnt(0)")
    unpack8(a, 32, 12)
    a("v_mov_b32 v70, 0")
    for i in range(0, 8, 2):
        rnd_pair(a, 24 + i, 25 + i, 68)
        a(f"v_mul_f32 v{24+i}, v{24+i}, v{48+i}")
        a(f"v_mul_f32 v{25+i}, v{25+i}, v{49+i}")
        rnd_pair(a, 24 + i, 25 + i, 68)
        a(f"v_add_f32 v{24+i}, v{24+i}, v{40+i}")
        a(f"v_add_f32 v{25+i}, v{25+i}, v{41+i}")
        a(f"v_cvt_pk_bf16_f32 v{8+i//2}, v{24+i}, v{25+i}")
        a(f"v_lshlrev_b32 v{24+i}, 16, v{8+i//2}")
        a(f"v_and_b32 v{25+i}, 0xffff0000, v{8+i//2}")
        a(f"v_fmac_f32 v70, v{24+i}, v{32+i}")
        a(f"v_fmac_f32 v70, v{25+i}, v{33+i}")
        a(f"v_mul_f32 v{24+i}, v{24+i}, v{56+i}")
        a(f"v_mul_f32 v{25+i}, v{25+i}, v{57+i}")
        rnd_pair(a, 24 + i, 25 + i, 68)
        a(f"v_add_f32 v{24+i}, v{24+i}, v{16+i}")
        a(f"v_add_f32 v{25+i}, v{25+i}, v{17+i}")
        a(f"v_cvt_pk_bf16_f32 v{12+i//2}, v{24+i}, v{25+i}")
    a(f"s_mov_b32 s21, {WS_H2}")
    a("buffer_store_dwordx4 v[8:11], v3, s[16:19], s21 offen")
    a("global_store_dwordx4 v3, v[12:15], s[8:9]")
    multi_allreduce(a, [70], [71])
    a("v_cvt_pk_bf16_f32 v70, v70, v70")
    a("v_and_b32 v70, 0xffff0000, v70")
    a("v_ashrrev_i32 v71, 31, v70")
    a("v_or_b32 v71, 0x80000000, v71")
    a("v_xor_b32 v70, v70, v71")
    a("v_and_b32 v70, 0xffff0000, v70")
    a("v_lshrrev_b32 v71, 10, v3")
    a("v_sub_u32 v72, 0xffff, v71")
    a("v_or_b32 v70, v70, v72")
    a("v_lshlrev_b32 v71, 2, v71")
    a("v_cmp_eq_u32 vcc, 0, v2")
    a("s_and_saveexec_b64 s[22:23], vcc")
    a(f"s_mov_b32 s21, {WS_KEY}")
    a("buffer_store_dword v70, v71, s[16:19], s21 offen")
    stamp_end(a)
    a.label("ln2_end")
    a("s_endpgm")

def tr_addr_natural(a, d1, d2, lane, t1, t2):
    a(f"v_lshrrev_b32 v{t1}, 4, v{lane}")
    a(f"v_bfe_u32 v{d1}, v{lane}, 2, 2")
    a(f"v_lshlrev_b32 v{d1}, 5, v{d1}")
    a(f"v_and_b32 v{t2}, 1, v{t1}")
    a(f"v_lshlrev_b32 v{t2}, 7, v{t2}")
    a(f"v_xor_b32 v{d1}, v{d1}, v{t2}")
    a(f"v_lshl_add_u32 v{d1}, v{t1}, 8, v{d1}")
    a(f"v_and_b32 v{t2}, 3, v{lane}")
    a(f"v_lshl_add_u32 v{d1}, v{t2}, 3, v{d1}")
    a(f"v_xor_b32 v{d2}, 0x80, v{d1}")

def dma_row_src(a, d, lane, pitch, t1, t2):
    a(f"v_lshrrev_b32 v{t1}, 1, v{lane}")
    a(f"v_bfe_u32 v{t2}, v{lane}, 4, 1")
    a(f"v_lshlrev_b32 v{t2}, 2, v{t2}")
    a(f"v_xor_b32 v{t1}, v{t1}, v{t2}")
    a(f"v_mul_u32_u24 v{d}, {pitch}, v{t1}")
    a(f"v_and_b32 v{t2}, 1, v{lane}")
    a(f"v_lshl_add_u32 v{d}, v{t2}, 4, v{d}")

def k_gateup(a):
    kernel_begin(a, "gateup_kernel")
    a("s_cmp_ge_u32 s2, 112")
    a("s_cbranch_scc1 gateup_end")
    stamp_begin(a, 5)
    a("s_load_dwordx2 s[4:5], s[0:1], 96")
    a("s_load_dwordx4 s[8:11], s[0:1], 40")
    a("v_lshrrev_b32 v1, 6, v0")
    a("v_and_b32 v2, 63, v0")
    a("s_nop 0")
    a("v_readfirstlane_b32 s32, v1")
    a("v_lshlrev_b32 v3, 4, v2")
    dma_row_src(a, 4, 2, 3584, 5, 6)
    a("s_and_b32 s33, s32, 1")
    a("s_lshr_b32 s34, s32, 1")
    a("s_waitcnt lgkmcnt(0)")
    srd(a, 16, 4, WS_BYTES)
    a(f"s_mov_b32 s21, {WS_KEY}")
    for n in range(8):
        if n == 4: a(f"s_mov_b32 s21, {WS_KEY+4096}")
        a(f"buffer_load_dwordx4 v[{32+4*n}:{35+4*n}], v3, s[16:19], s21 offen offset:{1024*(n&3)}")
    a("s_cmp_eq_u32 s33, 0")
    a("s_cselect_b32 s12, s8, s10")
    a("s_cselect_b32 s13, s9, s11")
    a(f"s_mov_b32 s14, {512*3584}")
    a("s_mov_b32 s15, 0x20000")
    a(f"s_mul_i32 s22, s34, {128*3584}")
    a("s_lshl_b32 s23, s2, 5")
    a("s_add_u32 s22, s22, s23")
    a("s_lshl_b32 s23, s32, 12")
    for n in range(4):
        a("s_mov_b32 m0, s23")
        a("s_nop 0")
        a("buffer_load_dwordx4 v4, s[12:15], s22 offen lds")
        if n != 3:
            a(f"s_add_u32 s22, s22, {32*3584}")
            a("s_add_u32 s23, s23, 1024")
    tr_addr_natural(a, 8, 9, 2, 5, 6)
    a("s_lshl_b32 s23, s32, 12")
    a("v_add_u32 v8, s23, v8")
    a("v_add_u32 v9, s23, v9")
    stamp(a)
    a("s_waitcnt vmcnt(4)")
    stamp(a)
    a("v_max_u32 v10, v32, v33")
    a("v_min_u32 v11, v32, v33")
    for i in range(2, 32):
        a(f"v_med3_u32 v11, v10, v11, v{32+i}")
        a(f"v_max_u32 v10, v10, v{32+i}")
    a("v_mov_b32 v12, v10")
    multi_allreduce(a, [12], [13], op="v_max_u32")
    a("v_cmp_eq_u32 vcc, v12, v10")
    a("s_nop 1")
    a("v_cndmask_b32 v14, v10, v11, vcc")
    multi_allreduce(a, [14], [13], op="v_max_u32")
    a("v_and_b32 v15, 1, v2")
    a("v_cmp_eq_u32 vcc, 0, v15")
    a("s_nop 1")
    a("v_cndmask_b32 v16, v14, v12, vcc")
    a("v_and_b32 v17, 0xffff, v16")
    a("v_sub_u32 v17, 0xffff, v17")
    a("v_lshlrev_b32 v17, 10, v17")
    a("v_lshrrev_b32 v18, 4, v2")
    a("v_lshl_add_u32 v17, v18, 4, v17")
    a("s_lshl_b32 s21, s34, 8")
    a(f"s_add_u32 s21, s21, {WS_H2}")
    for n in range(4):
        a(f"buffer_load_dwordx4 v[{32+4*n}:{35+4*n}], v17, s[16:19], s21 offen offset:{64*n}")
    a("s_or_b32 s24, s2, s32")
    a("s_cmp_lg_u32 s24, 0")
    a("s_cbranch_scc1 gateup_nosel")
    a("v_lshlrev_b32 v19, 2, v2")
    a("v_cmp_gt_u32 vcc, 2, v2")
    a("s_and_saveexec_b64 s[26:27], vcc")
    a(f"s_mov_b32 s24, {WS_SEL}")
    a("buffer_store_dword v16, v19, s[16:19], s24 offen")
    a("s_mov_b64 exec, s[26:27]")
    a("s_waitcnt vmcnt(0)")
    a.label("gateup_nosel")
    stamp(a)
    a("s_waitcnt vmcnt(4)")
    stamp(a)
    if PROF: a("s_waitcnt vmcnt(0)")
    stamp(a)
    for n in range(4):
        a(f"ds_read_b64_tr_b16 v[{48+4*n}:{49+4*n}], v8 offset:{1024*n}")
        a(f"ds_read_b64_tr_b16 v[{50+4*n}:{51+4*n}], v9 offset:{1024*n}")
    a("s_waitcnt vmcnt(0) lgkmcnt(0)")
    for n in range(4):
        c = "0" if n == 0 else "v[20:23]"
        a(f"v_mfma_f32_16x16x32_bf16 v[20:23], v[{32+4*n}:{35+4*n}], v[{48+4*n}:{51+4*n}], {c}")
    a("s_lshl_b32 s23, s32, 7")
    a("s_add_u32 s23, s23, 32768")
    a("v_lshl_add_u32 v24, v2, 2, s23")
    a("v_cmp_gt_u32 vcc, 16, v2")
    a("s_and_saveexec_b64 s[26:27], vcc")
    a("s_nop 4")
    a("ds_write_b32 v24, v20")
    a("ds_write_b32 v24, v21 offset:64")
    a("s_mov_b64 exec, s[26:27]")
    a("s_waitcnt lgkmcnt(0)")
    a("s_barrier")
    a("v_cmp_gt_u32 vcc, 32, v0")
    a("s_and_saveexec_b64 s[26:27], vcc")
    a("s_cbranch_execz gateup_end")
    a("v_lshlrev_b32 v24, 2, v0")
    for w in range(8):
        a(f"ds_read_b32 v{32+w}, v24 offset:{32768+128*w}")
    a("s_waitcnt lgkmcnt(0)")
    for w in range(2, 8):
        a(f"v_add_f32 v{32+(w&1)}, v{32+(w&1)}, v{32+w}")
    rnd_pair(a, 32, 33, 40)
    a(f"v_mul_f32 v34, {NLOG2E:#x}, v32")
    a("v_exp_f32 v34, v34")
    a("s_nop 0")
    a("v_add_f32 v34, 1.0, v34")
    a("v_rcp_f32 v34, v34")
    a("s_nop 0")
    a("v_mul_f32 v32, v32, v34")
    rnd_bf16(a, 32)
    a("v_mul_f32 v32, v32, v33")
    a("v_cvt_pk_bf16_f32 v32, v32, v32")
    a("v_lshrrev_b32 v25, 4, v0")
    a("v_mul_u32_u24 v25, 3584, v25")
    a("v_and_b32 v26, 15, v0")
    a("v_lshl_add_u32 v25, v26, 1, v25")
    a("s_lshl_b32 s21, s2, 5")
    a(f"s_add_u32 s21, s21, {WS_ACT}")
    a("buffer_store_short v32, v25, s[16:19], s21 offen")
    stamp_end(a)
    a.label("gateup_end")
    a("s_endpgm")

def k_down(a):
    kernel_begin(a, "down_kernel")
    a("s_cmp_ge_u32 s2, 32")
    a("s_cbranch_scc1 down_end")
    stamp_begin(a, 6)
    a("s_load_dwordx2 s[4:5], s[0:1], 96")
    a("s_load_dwordx2 s[6:7], s[0:1], 56")
    a("s_load_dwordx2 s[8:9], s[0:1], 80")
    a("v_lshrrev_b32 v1, 6, v0")
    a("v_and_b32 v2, 63, v0")
    a("s_nop 0")
    a("v_readfirstlane_b32 s32, v1")
    dma_row_src(a, 4, 2, 1024, 5, 6)
    a("s_waitcnt lgkmcnt(0)")
    srd(a, 16, 4, WS_BYTES)
    srd(a, 12, 6, 1792 * 1024)
    a("v_bfe_u32 v10, v0, 4, 1")
    a("v_lshlrev_b32 v11, 2, v10")
    a(f"s_mov_b32 s24, {WS_SEL}")
    a("buffer_load_dword v12, v11, s[16:19], s24 offen")
    a("v_and_b32 v13, 1, v2")
    a("v_mul_u32_u24 v13, 3584, v13")
    a("v_lshrrev_b32 v14, 4, v2")
    a("v_lshl_add_u32 v13, v14, 4, v13")
    a("s_mul_i32 s21, s32, 448")
    a(f"s_add_u32 s21, s21, {WS_ACT}")
    for n in range(7):
        a(f"buffer_load_dwordx4 v[{32+4*n}:{35+4*n}], v13, s[16:19], s21 offen offset:{64*n}")
    a(f"s_mul_i32 s22, s32, {224*1024}")
    a("s_lshl_b32 s23, s2, 5")
    a("s_add_u32 s22, s22, s23")
    a("s_mul_i32 s23, s32, 7168")
    for n in range(7):
        a("s_mov_b32 m0, s23")
        a("s_nop 0")
        a("buffer_load_dwordx4 v4, s[12:15], s22 offen lds")
        if n != 6:
            a(f"s_add_u32 s22, s22, {32*1024}")
            a("s_add_u32 s23, s23, 1024")
    tr_addr_natural(a, 8, 9, 2, 5, 6)
    a("s_mul_i32 s23, s32, 7168")
    a("v_add_u32 v8, s23, v8")
    a("v_add_u32 v9, s23, v9")
    stamp(a)
    a("s_waitcnt vmcnt(14)")
    stamp(a)
    a("v_and_b32 v15, 0xffff, v12")
    a("v_sub_u32 v15, 0xffff, v15")
    a("v_lshlrev_b32 v15, 10, v15")
    a("v_and_b32 v16, 15, v0")
    a("v_lshl_add_u32 v15, v16, 1, v15")
    a("s_lshl_b32 s21, s2, 5")
    a("v_add_u32 v15, s21, v15")
    a(f"s_mov_b32 s24, {WS_H2}")
    a(f"s_mov_b32 s25, {WS_X1}")
    a("buffer_load_ushort v17, v15, s[16:19], s24 offen")
    a("buffer_load_ushort v18, v15, s[16:19], s25 offen")
    a("v_lshlrev_b32 v19, 2, v16")
    a("s_lshl_b32 s21, s2, 6")
    a(f"s_add_u32 s21, s21, {WS_MODF+5*2048}")
    a("buffer_load_dword v19, v19, s[16:19], s21 offen")
    a("s_waitcnt vmcnt(3)")
    stamp(a)
    for n in range(7):
        a(f"ds_read_b64_tr_b16 v[{64+4*n}:{65+4*n}], v8 offset:{1024*n}")
        a(f"ds_read_b64_tr_b16 v[{66+4*n}:{67+4*n}], v9 offset:{1024*n}")
    a("s_waitcnt lgkmcnt(0)")
    for n in range(7):
        c = "0" if n == 0 else "v[20:23]"
        a(f"v_mfma_f32_16x16x32_bf16 v[20:23], v[{32+4*n}:{35+4*n}], v[{64+4*n}:{67+4*n}], {c}")
    a("s_lshl_b32 s23, s32, 7")
    a("s_add_u32 s23, s23, 57344")
    a("v_lshl_add_u32 v24, v2, 2, s23")
    a("v_cmp_gt_u32 vcc, 16, v2")
    a("s_and_saveexec_b64 s[26:27], vcc")
    a("s_nop 4")
    a("ds_write_b32 v24, v20")
    a("ds_write_b32 v24, v21 offset:64")
    a("s_mov_b64 exec, s[26:27]")
    a("s_waitcnt lgkmcnt(0)")
    a("s_barrier")
    a("v_cmp_gt_u32 vcc, 32, v0")
    a("s_and_saveexec_b64 s[26:27], vcc")
    a("s_cbranch_execz down_end")
    a("v_lshlrev_b32 v24, 2, v0")
    for w in range(8):
        a(f"ds_read_b32 v{32+w}, v24 offset:{57344+128*w}")
    a("v_and_b32 v12, 0xffff0000, v12")
    a("v_ashrrev_i32 v25, 31, v12")
    a("v_not_b32 v25, v25")
    a("v_or_b32 v25, 0x80000000, v25")
    a("v_xor_b32 v12, v12, v25")
    a("v_and_b32 v12, 0xffff0000, v12")
    a(f"v_mul_f32 v25, {NLOG2E:#x}, v12")
    a("v_exp_f32 v25, v25")
    a("s_nop 0")
    a("v_add_f32 v25, 1.0, v25")
    a("v_rcp_f32 v25, v25")
    a("s_nop 0")
    rnd_bf16(a, 25)
    a("s_waitcnt vmcnt(0) lgkmcnt(0)")
    for w in range(1, 8):
        a(f"v_add_f32 v32, v32, v{32+w}")
    rnd_bf16(a, 32)
    a("v_mul_f32 v32, v32, v25")
    rnd_bf16(a, 32)
    a("v_lshlrev_b32 v17, 16, v17")
    a("v_lshlrev_b32 v18, 16, v18")
    a("v_add_f32 v32, v32, v17")
    rnd_bf16(a, 32)
    a("v_mul_f32 v32, v32, v19")
    rnd_bf16(a, 32)
    a("v_add_f32 v32, v32, v18")
    a("v_cvt_pk_bf16_f32 v32, v32, v32")
    a("global_store_short v15, v32, s[8:9]")
    stamp_end(a)
    a.label("down_end")
    a("s_endpgm")

KERNELS = [
    ("prep_kernel", k_prep, 256, 256, 16384, 96),
    ("qkv_kernel", k_qkv, 256, 512, 83968, 240),
    ("attn_kernel", k_attn, 256, 512, 131072 + 8192, 112),
    ("oproj_kernel", k_oproj, 256, 512, 32768 + 32 * 528, 128),
    ("ln2_kernel", k_ln2, 256, 512, 0, 80),
    ("gateup_kernel", k_gateup, 112, 512, 33792, 72),
    ("down_kernel", k_down, 32, 512, 58368, 96),
]

def main(out):
    hdr = open("adaLN_cond__mha_block__moe_arch_mod__prompt.s.ref").read().split("; Override launch")[0]
    txt = hdr
    for name, fn, gx, bx, lds, vg in KERNELS:
        txt += f"; @launch kernel={name} grid=({gx},1,1) block=({bx},1,1) lds={lds}\n"
    txt += '.amdgcn_target "amdgcn-amd-amdhsa--gfx950"\n'
    a = Asm()
    for name, fn, gx, bx, lds, vg in KERNELS:
        fn(a)
    txt += a.text()
    for name, fn, gx, bx, lds, vg in KERNELS:
        txt += kernel_desc(name, vg)
    open(out, "w").write(txt)

if __name__ == "__main__":
    if len(sys.argv) > 2 and sys.argv[2] == "prof": PROF = True
    main(sys.argv[1] if len(sys.argv) > 1 else "adaLN_cond__mha_block__moe_arch_mod__prompt.s")
```

```python
import sys
from asmlib import *
import gen_v1 as G1
from gen_v1 import (f32, multi_allreduce, unpack8, layernorm_rows, rnd_pair, decode_hb, tr_addr_natural, dma_row_src,
                    stamp, stamp_begin, stamp_end, Prof, NLOG2E, QSCALE, WS_BYTES)

WS_MODF = 0
WS_MODB = 0x4000
WS_ZERO = 0x10000
WS_KEY = 0x10000
WS_F1 = 0x12000
WS_F2 = 0x14000
WS_F3 = 0x16000
WS_ST = 0x20000
WS_ZERO_END = 0x40000
WS_ACT = 0x40000
WS_XF = 0x100000
WS_KV = 0x500000
WS_OF = 0x900000
WS_X1 = 0xB00000
WS_H2 = 0xD00000
SPIN = 50000

def k_prep(a):
    kernel_begin(a, "prep_kernel")
    a("s_cmp_ge_u32 s2, 256")
    a("s_cbranch_scc1 prep_end")
    stamp_begin(a, 0)
    a("s_load_dwordx2 s[4:5], s[0:1], 96")
    a("v_mov_b32 v80, 0\nv_mov_b32 v81, 0\nv_mov_b32 v82, 0\nv_mov_b32 v83, 0")
    a("v_mov_b32 v84, -1\nv_mov_b32 v85, -1\nv_mov_b32 v86, -1\nv_mov_b32 v87, -1")
    a("v_lshlrev_b32 v88, 4, v0")
    a("s_mul_i32 s3, s2, 768")
    a(f"s_add_u32 s3, s3, {WS_ZERO}")
    a("v_add_u32 v89, s3, v88")
    a("s_lshl_b32 s3, s2, 13")
    a(f"s_add_u32 s3, s3, {WS_H2}")
    a("v_add_u32 v90, s3, v88")
    a("s_lshl_b32 s3, s2, 5")
    a(f"s_add_u32 s3, s3, {WS_ACT}")
    a("v_add_u32 v91, s3, v88")
    a("v_add_u32 v92, 4096, v90")
    a("s_waitcnt lgkmcnt(0)")
    a("global_store_dwordx4 v90, v[84:87], s[4:5]")
    a("global_store_dwordx4 v92, v[84:87], s[4:5]")
    a("v_cmp_gt_u32 vcc, 48, v0")
    a("s_and_saveexec_b64 s[22:23], vcc")
    a("s_cbranch_execz prep_r1")
    a("global_store_dwordx4 v89, v[80:83], s[4:5]")
    a("v_cmp_gt_u32 vcc, 2, v0")
    a("s_and_b64 exec, exec, vcc")
    a("global_store_dwordx4 v91, v[84:87], s[4:5]")
    a.label("prep_r1")
    a("s_mov_b64 exec, -1")
    a("s_cmp_ge_u32 s2, 224")
    a("s_cbranch_scc1 prep_end")
    a("s_cmp_ge_u32 s2, 96")
    a("s_cbranch_scc1 prep_xhat")
    b = Asm()
    G1.k_prep(b)
    t = b.text()
    i0 = t.index("  s_load_dwordx2 s[6:7], s[0:1], 64")
    i1 = t.index("prep_wo:")
    body = t[i0:i1]
    a.raw(body.rstrip("\n"))
    a.label("prep_end")
    a("s_endpgm")

def poll_loop(a, issue, check, name):
    l = a.newlabel(name); d = a.newlabel(name + "d")
    a(f"s_mov_b32 s60, {SPIN}")
    a.label(l)
    issue()
    a("s_waitcnt vmcnt(0)")
    check()
    a(f"s_cbranch_scc1 {d}")
    a("s_sub_u32 s60, s60, 1")
    a("s_cmp_lg_u32 s60, 0")
    a(f"s_cbranch_scc1 {l}")
    a.label(d)

Q = 16; C = 20; S = [36, 52]; O = 68; K = [84, 88]; V = [92, 100]; IDX = 108
WO = 112
MW = 176
XT = 204
GA = 208; SB = 216; CB = 224; GB = 232; WP = 240
STG = 131072

def top2(a, keys, lane):
    a(f"v_max_u32 v10, v{keys}, v{keys+1}")
    a(f"v_min_u32 v11, v{keys}, v{keys+1}")
    for i in range(2, 32):
        a(f"v_med3_u32 v11, v10, v11, v{keys+i}")
        a(f"v_max_u32 v10, v10, v{keys+i}")
    a("v_mov_b32 v12, v10")
    multi_allreduce(a, [12], [13], op="v_max_u32")
    a("v_cmp_eq_u32 vcc, v12, v10")
    a("s_nop 1")
    a("v_cndmask_b32 v14, v10, v11, vcc")
    multi_allreduce(a, [14], [13], op="v_max_u32")

def k_main(a):
    kernel_begin(a, "main_kernel")
    a("s_cmp_ge_u32 s2, 256")
    a("s_cbranch_scc1 main_end")
    stamp_begin(a, 1)
    a("s_load_dwordx2 s[4:5], s[0:1], 96")
    a("s_load_dwordx4 s[44:47], s[0:1], 8")
    a("s_load_dwordx2 s[48:49], s[0:1], 0")
    a("s_load_dwordx8 s[52:59], s[0:1], 32")
    a("s_load_dwordx2 s[50:51], s[0:1], 80")
    decode_hb(a, 30, 31)
    a("v_lshrrev_b32 v1, 6, v0")
    a("v_and_b32 v2, 63, v0")
    a("s_nop 0")
    a("v_readfirstlane_b32 s32, v1")
    a("v_lshrrev_b32 v3, 1, v0")
    a("v_lshlrev_b32 v4, 2, v3")
    a("v_mul_u32_u24 v5, 3072, v3")
    a("v_and_b32 v6, 1, v0")
    a("v_lshl_add_u32 v5, v6, 4, v5")
    a("s_lshl_b32 s33, s30, 5")
    a("v_add_u32 v5, s33, v5")
    a("s_waitcnt lgkmcnt(0)")
    srd(a, 12, 44, 512 * 3072)
    srd(a, 16, 4, WS_BYTES)
    WPB = 32768; WUB = 81920; BPB = 114688
    WR = 160
    for p in range(2):
        for t in range(3):
            a(f"s_mov_b32 s20, {p*256*3072 + t*1024}")
            r = WR + 4 * (3 * p + t)
            a(f"buffer_load_dwordx4 v[{r}:{r+3}], v5, s[12:15], s20 offen")
    a(f"buffer_load_dword v184, v4, s[16:19], 0 offen offset:{WS_MODF+2048}")
    a(f"buffer_load_dword v185, v4, s[16:19], 0 offen offset:{WS_MODF+2048+1024}")
    a("v_lshrrev_b32 v7, 4, v2")
    a("v_lshlrev_b32 v8, 4, v7")
    a("s_lshl_b32 s20, s32, 7")
    a(f"s_add_u32 s20, s20, {WS_MODB}")
    a("buffer_load_dwordx4 v[188:191], v8, s[16:19], s20 offen")
    a("buffer_load_dwordx4 v[192:195], v8, s[16:19], s20 offen offset:64")
    XR = 32
    a("v_lshlrev_b32 v9, 4, v2")
    a("s_lshl_b32 s20, s31, 18")
    a("s_lshl_b32 s21, s32, 15")
    a("s_add_u32 s20, s20, s21")
    a(f"s_add_u32 s20, s20, {WS_XF}")
    a("s_add_u32 s21, s20, 16384")
    for s in range(16):
        for u in range(2):
            r = XR + 4 * (16 * u + s)
            a(f"buffer_load_dwordx4 v[{r}:{r+3}], v9, s[16:19], s{20+u} offen offset:{1024*(s&3)}")
        if (s & 3) == 3 and s != 15:
            a("s_add_u32 s20, s20, 4096")
            a("s_add_u32 s21, s21, 4096")
    a("v_lshlrev_b32 v10, 5, v3")
    a("v_bfe_u32 v11, v3, 3, 1")
    a("v_lshlrev_b32 v11, 7, v11")
    a("v_xor_b32 v10, v10, v11")
    a("v_lshl_add_u32 v10, v6, 4, v10")
    a(f"v_add_u32 v11, {WUB}, v10")
    a(f"v_add_u32 v10, {WPB}, v10")
    tr_addr_natural(a, 12, 13, 2, 14, 15)
    a("s_lshl_b32 s21, s32, 11")
    a(f"s_add_u32 s21, s21, {WUB}")
    a("v_add_u32 v14, s21, v12")
    a("v_add_u32 v15, s21, v13")
    a(f"v_add_u32 v12, {WPB}, v12")
    a(f"v_add_u32 v13, {WPB}, v13")
    stamp(a)
    a("s_waitcnt vmcnt(36)")
    for p in range(2):
        a(f"ds_write_b128 v11, v[{WR+12*p}:{WR+12*p+3}] offset:{8192*p}")
        a(f"ds_write_b128 v11, v[{WR+12*p+8}:{WR+12*p+11}] offset:{16384+8192*p}")
    a("s_waitcnt vmcnt(34)")
    for p in range(2):
        for t in range(3):
            r = WR + 4 * (3 * p + t)
            d = 200 + 4 * ((3 * p + t) & 1)
            for i in range(4):
                a(f"v_lshlrev_b32 v16, 16, v{r+i}")
                a(f"v_and_b32 v17, 0xffff0000, v{r+i}")
                a(f"v_mul_f32 v16, v16, v{184+p}")
                a(f"v_mul_f32 v17, v17, v{184+p}")
                a(f"v_cvt_pk_bf16_f32 v{d+i}, v16, v17")
            a(f"ds_write_b128 v10, v[{d}:{d+3}] offset:{16384*t+8192*p}")
    a("s_waitcnt lgkmcnt(0)")
    a("s_barrier")
    stamp(a)
    for n in range(2):
        a(f"ds_read_b64_tr_b16 v[{160+8*n}:{161+8*n}], v14 offset:{1024*n}")
        a(f"ds_read_b64_tr_b16 v[{162+8*n}:{163+8*n}], v15 offset:{1024*n}")
        a(f"ds_read_b64_tr_b16 v[{164+8*n}:{165+8*n}], v14 offset:{16384+1024*n}")
        a(f"ds_read_b64_tr_b16 v[{166+8*n}:{167+8*n}], v15 offset:{16384+1024*n}")
    WF = [216, 228]
    def rd_w(s):
        b = WF[s & 1]
        for t in range(3):
            a(f"ds_read_b64_tr_b16 v[{b+4*t}:{b+4*t+1}], v12 offset:{16384*t+1024*s}")
            a(f"ds_read_b64_tr_b16 v[{b+4*t+2}:{b+4*t+3}], v13 offset:{16384*t+1024*s}")
    rd_w(0)
    a("s_waitcnt vmcnt(32) lgkmcnt(6)")
    a("v_mfma_f32_16x16x32_bf16 v[208:211], v[160:163], v[188:191], 0")
    a("v_mfma_f32_16x16x32_bf16 v[212:215], v[188:191], v[164:167], 0")
    a("v_mfma_f32_16x16x32_bf16 v[208:211], v[168:171], v[192:195], v[208:211]")
    a("v_mfma_f32_16x16x32_bf16 v[212:215], v[192:195], v[172:175], v[212:215]")
    a("s_lshl_b32 s21, s32, 7")
    a(f"s_add_u32 s21, s21, {BPB}")
    a("v_lshl_add_u32 v16, v7, 4, s21")
    a("v_and_b32 v17, 15, v2")
    a("v_lshl_add_u32 v17, v17, 2, s21")
    a("s_nop 4")
    a("ds_write_b128 v16, v[208:211]")
    a("ds_write_b32 v17, v212 offset:64")
    ACC = 176
    for s in range(16):
        if s < 15:
            rd_w(s + 1)
            a(f"s_waitcnt vmcnt({30-2*s}) lgkmcnt(6)")
        else:
            a("s_waitcnt vmcnt(0) lgkmcnt(0)")
        b = WF[s & 1]
        for u in range(2):
            x = XR + 4 * (16 * u + s)
            for t in range(3):
                acc = ACC + 8 * t + 4 * u
                c = "0" if s == 0 else f"v[{acc}:{acc+3}]"
                if t < 2:
                    a(f"v_mfma_f32_16x16x32_bf16 v[{acc}:{acc+3}], v[{b+4*t}:{b+4*t+3}], v[{x}:{x+3}], {c}")
                else:
                    a(f"v_mfma_f32_16x16x32_bf16 v[{acc}:{acc+3}], v[{x}:{x+3}], v[{b+4*t}:{b+4*t+3}], {c}")
    a("s_barrier")
    stamp(a)
    a("v_lshlrev_b32 v16, 4, v7")
    a(f"v_add_u32 v16, {BPB}, v16")
    a("v_and_b32 v17, 15, v2")
    a("v_lshlrev_b32 v18, 2, v17")
    a(f"v_add_u32 v18, {BPB}, v18")
    for w in range(8):
        a(f"ds_read_b128 v[{32+4*w}:{35+4*w}], v16 offset:{128*w}")
        a(f"ds_read_b32 v{64+w}, v18 offset:{128*w+64}")
    a("v_lshrrev_b32 v20, 1, v7")
    a("v_and_b32 v21, 1, v7")
    a("v_lshlrev_b32 v21, 3, v21")
    a("v_lshl_add_u32 v21, v17, 4, v21")
    a("v_lshl_add_u32 v22, v20, 9, v21")
    a("v_lshl_add_u32 v23, v20, 8, v21")
    a("s_lshl_b32 s34, s31, 3")
    a("s_add_u32 s34, s34, s32")
    a("s_lshl_b32 s22, s30, 17")
    a(f"s_add_u32 s35, s22, {WS_KV}")
    a("s_lshl_b32 s23, s34, 11")
    a("s_add_u32 s22, s35, s23")
    a("s_lshl_b32 s23, s32, 11")
    a("v_add_u32 v24, s23, v22")
    a("v_add_u32 v25, s23, v23")
    a("s_lshl_b32 s36, s32, 12")
    a(f"s_add_u32 s36, s36, {STG}")
    a("v_add_u32 v26, s36, v22")
    a("s_waitcnt lgkmcnt(0)")
    for w in range(1, 8):
        for r in range(4):
            a(f"v_add_f32 v{32+r}, v{32+r}, v{32+4*w+r}")
        a(f"v_add_f32 v64, v64, v{64+w}")
    a(f"s_mov_b32 s24, {f32(QSCALE)}")
    for u in range(2):
        q = ACC + 4 * u; k = ACC + 8 + 4 * u; v = ACC + 16 + 4 * u
        d = 200 + 6 * u
        a(f"v_cvt_pk_bf16_f32 v{d+2}, v{k}, v{k+1}")
        a(f"v_cvt_pk_bf16_f32 v{d+3}, v{k+2}, v{k+3}")
        for r in range(4):
            a(f"v_add_f32 v{v+r}, v{v+r}, v64")
        a(f"buffer_store_dwordx2 v[{d+2}:{d+3}], v22, s[16:19], s22 offen offset:{256*u} sc1")
        a(f"v_cvt_pk_bf16_f32 v{d+4}, v{v}, v{v+1}")
        a(f"v_cvt_pk_bf16_f32 v{d+5}, v{v+2}, v{v+3}")
        a(f"buffer_store_dwordx2 v[{d+4}:{d+5}], v23, s[16:19], s22 offen offset:{1024+512*u} sc1")
    for u in range(2):
        q = ACC + 4 * u
        d = 200 + 6 * u
        for r in range(4):
            a(f"v_add_f32 v{q+r}, v{q+r}, v{32+r}")
            a(f"v_mul_f32 v{q+r}, s24, v{q+r}")
        a(f"v_cvt_pk_bf16_f32 v{d}, v{q}, v{q+1}")
        a(f"v_cvt_pk_bf16_f32 v{d+1}, v{q+2}, v{q+3}")
        a(f"ds_write_b64 v26, v[{d}:{d+1}] offset:{256*u}")
        a(f"ds_write_b64 v24, v[{d+2}:{d+3}] offset:{256*u}")
        a(f"ds_write_b64 v25, v[{d+4}:{d+5}] offset:{1024+512*u}")
    a("v_mov_b32 v3, v9")
    a("v_lshrrev_b32 v4, 5, v2")
    a("v_lshlrev_b32 v4, 8, v4")
    a("v_lshl_add_u32 v4, v17, 4, v4")
    a("v_add_u32 v4, 1024, v4")
    a("v_add_u32 v5, s36, v9")
    a(f"v_mov_b32 v{IDX}, 0xdddddddd")
    a("v_and_b32 v6, 31, v2")
    a("v_cmp_eq_u32 vcc, 16, v6")
    a("v_mov_b32 v6, 0x3f803f80")
    a("s_nop 0")
    a("v_cndmask_b32 v6, 0, v6, vcc")
    a("s_waitcnt lgkmcnt(0)")
    a(f"ds_read_b128 v[{Q}:{Q+3}], v5")
    for i in range(16):
        a(f"v_mov_b32 v{V[0]+i}, v6")
        a(f"v_mov_b32 v{O+i}, 0")
    a("s_mov_b32 s38, 0x0000ffff")
    a("s_mov_b32 s39, 0x0000ffff")
    a("s_mov_b32 s37, 0")
    a("s_lshl_b32 s20, s30, 8")
    a("s_lshl_b32 s21, s32, 5")
    a("s_add_u32 s40, s20, s21")
    a(f"s_add_u32 s40, s40, {WS_F1}")
    a("s_barrier")
    stamp(a)
    a(f"ds_read_b128 v[{K[0]}:{K[0]+3}], v3")
    a(f"ds_read_b128 v[{K[1]}:{K[1]+3}], v3 offset:2048")
    a("s_cmp_lt_u32 s32, 4")
    a("s_cbranch_scc1 main_np")
    a("s_setprio 1")
    a.label("main_np")
    a("s_waitcnt lgkmcnt(1)")
    s0 = S[0]
    a(f"v_mfma_f32_32x32x16_bf16 v[{s0}:{s0+15}], v[{K[0]}:{K[0]+3}], v[{Q}:{Q+3}], 0")
    a("s_nop 11")
    a(f"v_max3_f32 v6, v{s0}, v{s0+1}, v{s0+2}")
    for i in range(3, 15, 2):
        a(f"v_max3_f32 v6, v6, v{s0+i}, v{s0+i+1}")
    a(f"v_max_f32 v6, v6, v{s0+15}")
    def setmax():
        a("v_mov_b32 v7, v6")
        a("s_nop 1")
        a("v_permlane32_swap_b32 v7, v6")
        a("s_nop 1")
        a("v_max_f32 v6, v6, v7")
        for i in range(16):
            a(f"v_sub_f32 v{C+i}, 0, v6")
    setmax()
    a("s_mov_b64 exec, s[38:39]")
    a(f"ds_read_b128 v[{V[0]}:{V[0]+3}], v4")
    a(f"ds_read_b128 v[{V[0]+4}:{V[0]+7}], v4 offset:512")
    a("s_mov_b64 exec, -1")
    a(f"v_mfma_f32_32x32x16_bf16 v[{s0}:{s0+15}], v[{K[0]}:{K[0]+3}], v[{Q}:{Q+3}], v[{C}:{C+15}]")
    for i in range(8):
        a(f"v_mov_b32 v{S[1]+8+i}, 0")
    a("s_nop 3")

    hooks = {}
    def hook(t, fn): hooks.setdefault(t, []).append(fn)
    def h_flag1():
        a("s_waitcnt vmcnt(0)")
        a("s_lshl_b32 s20, s31, 2")
        a("s_add_u32 s20, s20, s40")
        a("v_mov_b32 v5, 0")
        a("v_mov_b32 v6, 1")
        a("s_mov_b64 exec, 1")
        a("buffer_store_dword v6, v5, s[16:19], s20 offen sc1")
        a("s_mov_b64 exec, -1")
    def h_kvload():
        a("v_and_b32 v5, 7, v2")
        a("v_lshlrev_b32 v5, 2, v5")
        def issue(): a("buffer_load_dword v6, v5, s[16:19], s40 offen sc1")
        def check():
            a("v_cmp_eq_u32 vcc, 0, v6")
            a("s_cmp_eq_u64 vcc, 0")
        poll_loop(a, issue, check, "Lkv")
        a("s_lshl_b32 s23, s32, 11")
        for i in range(1, 8):
            a(f"s_add_u32 s20, s31, {i}")
            a("s_and_b32 s20, s20, 7")
            a("s_lshl_b32 s20, s20, 14")
            a("s_add_u32 s20, s20, s23")
            a("s_add_u32 s20, s20, s35")
            a(f"s_add_u32 s21, s23, {16384*i}")
            a("s_mov_b32 m0, s21")
            a("s_nop 0")
            a("buffer_load_dwordx4 v9, s[16:19], s20 offen sc1 lds")
            a("buffer_load_dwordx4 v9, s[16:19], s20 offen offset:1024 sc1 lds")
    hook(1, h_flag1)
    hook(4, h_kvload)
    def h_bar(n):
        def f():
            a(f"s_waitcnt vmcnt({n})")
            a("s_barrier")
        return f
    hook(6, h_bar(12))
    def h_pref():
        a("s_lshr_b32 s41, s30, 2")
        a("s_lshl_b32 s20, s31, 3")
        a("s_add_u32 s41, s41, s20")
        a("s_and_b32 s42, s30, 3")
        srd(a, 12, 46, 512 * 1024)
        a("v_lshrrev_b32 v5, 1, v2")
        a("v_lshlrev_b32 v5, 10, v5")
        a("v_and_b32 v6, 1, v2")
        a("v_lshl_add_u32 v109, v6, 4, v5")
        a("s_lshl_b32 s43, s42, 8")
        a("s_lshl_b32 s20, s32, 5")
        a("s_add_u32 s43, s43, s20")
        a("v_lshrrev_b32 v5, 5, v2")
        a("v_lshlrev_b32 v5, 9, v5")
        a("v_bfe_u32 v6, v2, 4, 1")
        a("v_lshl_add_u32 v5, v6, 7, v5")
        a("v_bfe_u32 v6, v2, 2, 2")
        a("v_lshl_add_u32 v5, v6, 5, v5")
        a("v_and_b32 v6, 3, v2")
        a("v_lshl_add_u32 v5, v6, 3, v5")
        a("v_add_u32 v110, s36, v5")
    def dma_round(srdb, voff, soff, step, n):
        def f():
            for i in range(n):
                if i == 0: a("s_mov_b32 m0, s36")
                else:
                    a(f"s_add_u32 s20, s36, {1024*i}")
                    a("s_mov_b32 m0, s20")
                a("s_nop 0")
                a(f"buffer_load_dwordx4 v{voff}, s[{srdb}:{srdb+3}], s{soff} offen lds")
                a(f"s_add_u32 s{soff}, s{soff}, {step}")
        return f
    def wo_read(r):
        def f():
            a("s_waitcnt vmcnt(0)")
            for n in range(4):
                b = WO + 16 * r + 4 * n
                a(f"ds_read_b64_tr_b16 v[{b}:{b+1}], v110 offset:{1024*n}")
                a(f"ds_read_b64_tr_b16 v[{b+2}:{b+3}], v110 offset:{1024*n+256}")
        return f
    hook(13, h_pref)
    hook(14, h_bar(0))
    hook(14, dma_round(12, 109, 43, 32768, 4))
    def h_tailloads():
        a("v_lshrrev_b32 v5, 4, v0")
        a("v_and_b32 v6, 15, v0")
        a("v_lshlrev_b32 v111, 10, v5")
        a("v_lshl_add_u32 v111, v6, 4, v111")
        a("s_lshl_b32 s20, s41, 15")
        a("s_lshl_b32 s21, s42, 8")
        a("s_add_u32 s20, s20, s21")
        a("v_add_u32 v111, s20, v111")
        a(f"global_load_dwordx4 v[{XT}:{XT+3}], v111, s[48:49]")
        a("v_lshlrev_b32 v5, 5, v6")
        a("s_lshl_b32 s20, s42, 9")
        for j, reg in enumerate((GA, SB, CB, GB)):
            a(f"s_add_u32 s22, s20, {WS_MODF + (2+j)*2048}")
            a(f"buffer_load_dwordx4 v[{reg}:{reg+3}], v5, s[16:19], s22 offen")
            a(f"buffer_load_dwordx4 v[{reg+4}:{reg+7}], v5, s[16:19], s22 offen offset:16")
        a("v_lshlrev_b32 v5, 4, v6")
        a("v_add_u32 v5, s21, v5")
        a(f"global_load_dwordx4 v[248:251], v5, s[52:53]")
    hook(15, h_tailloads)
    for r in range(4):
        hook(22 + 6 * r, wo_read(r))
        if r < 3: hook(23 + 6 * r, dma_round(12, 109, 43, 32768, 4))
    def h_wp():
        for i in range(4):
            a(f"v_lshlrev_b32 v{WP+2*i}, 16, v{248+i}")
            a(f"v_and_b32 v{WP+2*i+1}, 0xffff0000, v{248+i}")
        for i in range(8):
            a(f"v_mul_f32 v{WP+i}, v{WP+i}, v{CB+i}")
        a("v_lshlrev_b32 v5, 5, v2")
        a(f"s_mov_b32 s22, {WS_MODF + 3*2048}")
        a(f"buffer_load_dwordx4 v[{MW}:{MW+3}], v5, s[16:19], s22 offen")
        a(f"buffer_load_dwordx4 v[{MW+4}:{MW+7}], v5, s[16:19], s22 offen offset:16")
        a(f"buffer_load_dwordx4 v[{MW+8}:{MW+11}], v5, s[16:19], s22 offen offset:2048")
        a(f"buffer_load_dwordx4 v[{MW+12}:{MW+15}], v5, s[16:19], s22 offen offset:2064")
        a(f"global_load_dwordx4 v[{MW+16}:{MW+19}], v9, s[52:53]")
    hook(24, h_wp)
    def h_const():
        a("v_mov_b32 v252, 0")
        a("v_mov_b32 v253, 0")
        for i in range(4):
            a(f"v_lshlrev_b32 v5, 16, v{MW+16+i}")
            a(f"v_and_b32 v6, 0xffff0000, v{MW+16+i}")
            a(f"v_fmac_f32 v252, v5, v{MW+8+2*i}")
            a(f"v_fmac_f32 v253, v5, v{MW+2*i}")
            a(f"v_fmac_f32 v252, v6, v{MW+9+2*i}")
            a(f"v_fmac_f32 v253, v6, v{MW+1+2*i}")
        multi_allreduce(a, [252, 253], [5, 6])
    hook(30, h_const)
    def h_moe_setup():
        l = a.newlabel("Lms"); l2 = a.newlabel("Lms")
        a("s_cmp_ge_u32 s2, 112")
        a(f"s_cbranch_scc1 {l}")
        dma_row_src(a, 109, 2, 3584, 5, 6)
        a("s_and_b32 s20, s32, 1")
        a("s_cmp_eq_u32 s20, 0")
        a("s_cselect_b32 s12, s54, s56")
        a("s_cselect_b32 s13, s55, s57")
        a(f"s_mov_b32 s14, {512*3584}")
        a("s_lshr_b32 s20, s32, 1")
        a(f"s_mul_i32 s43, s20, {128*3584}")
        a("s_lshl_b32 s20, s2, 5")
        a("s_add_u32 s43, s43, s20")
        a(f"s_mov_b32 s61, {32*3584}")
        a(f"s_branch {l2}")
        a.label(l)
        dma_row_src(a, 109, 2, 1024, 5, 6)
        a("s_mov_b32 s12, s58")
        a("s_mov_b32 s13, s59")
        a(f"s_mov_b32 s14, {1792*1024}")
        a(f"s_mul_i32 s43, s32, {224*1024}")
        a("s_sub_u32 s20, s2, 112")
        a("s_and_b32 s20, s20, 31")
        a("s_lshl_b32 s20, s20, 5")
        a("s_add_u32 s43, s43, s20")
        a(f"s_mov_b32 s61, {32*1024}")
        a.label(l2)
        tr_addr_natural(a, 110, 254, 2, 5, 6)
        a("v_add_u32 v110, s36, v110")
        a("v_add_u32 v254, s36, v254")
    def moe_dma(n, lo):
        def f():
            l = a.newlabel("Lmd")
            a(f"s_cmp_ge_u32 s2, 144")
            a(f"s_cbranch_scc1 {l}")
            if lo:
                a(f"s_cmp_lt_u32 s2, {lo}")
                a(f"s_cbranch_scc1 {l}")
            dma_round(12, 109, 43, "s61", n)()
            a.label(l)
        return f
    def moe_read(base, n):
        def f():
            a("s_waitcnt vmcnt(0)")
            for i in range(n):
                b = MW + base + 4 * i
                a(f"ds_read_b64_tr_b16 v[{b}:{b+1}], v110 offset:{1024*i}")
                a(f"ds_read_b64_tr_b16 v[{b+2}:{b+3}], v254 offset:{1024*i}")
        return f
    hook(41, h_moe_setup)
    hook(41, moe_dma(4, 0))
    hook(50, moe_read(0, 4))
    hook(51, moe_dma(3, 112))
    hook(60, moe_read(16, 3))
    hook(48, lambda: a("s_setprio 0"))

    def tile(t, off, hooks):
        cur = S[t & 1]; nxt = S[(t + 1) & 1]
        e = lambda i: a(f"v_exp_f32 v{cur+i}, v{cur+i}")
        vp = V[(t + 1) & 1]; kn = K[(t + 1) & 1]; kc = K[t & 1]; vc = V[t & 1]
        a("s_waitcnt lgkmcnt(0)")
        for fn in hooks.get(t, []): fn()
        e(0); e(1); e(2)
        a(f"v_smfmac_f32_32x32x32_bf16 v[{O}:{O+15}], v[{vp+4}:{vp+7}], v[{nxt+8}:{nxt+15}], v{IDX}")
        e(3); e(4); e(5); e(6)
        a(f"v_mfma_f32_32x32x16_bf16 v[{nxt}:{nxt+15}], v[{kn}:{kn+3}], v[{Q}:{Q+3}], v[{C}:{C+15}]")
        a(f"ds_read_b128 v[{kc}:{kc+3}], v3 offset:{2048*(off+2)}")
        a("s_mov_b64 exec, s[38:39]")
        a(f"ds_read_b128 v[{vp}:{vp+3}], v4 offset:{2048*(off+1)}")
        a(f"ds_read_b128 v[{vp+4}:{vp+7}], v4 offset:{2048*(off+1)+512}")
        a("s_mov_b64 exec, -1")
        for i in range(7, 12): e(i)
        a(f"v_smfmac_f32_32x32x32_bf16 v[{O}:{O+15}], v[{vc}:{vc+3}], v[{cur}:{cur+7}], v{IDX}")
        for i in range(12, 16): e(i)
    for t in range(64):
        if t and t % 16 == 0:
            a("v_add_u32 v3, 0x8000, v3")
            a("v_add_u32 v4, 0x8000, v4")
        tile(t, t % 16, hooks)
    a("v_subrev_u32 v3, 0x18000, v3")
    a("v_subrev_u32 v4, 0x18000, v4")
    a.label("main_attn_tail")
    a(f"v_smfmac_f32_32x32x32_bf16 v[{O}:{O+15}], v[{V[1]+4}:{V[1]+7}], v[{S[1]+8}:{S[1]+15}], v{IDX}")
    stamp(a)
    a("s_waitcnt lgkmcnt(0)")
    a("s_nop 10")
    a(f"v_mov_b32 v7, v{O+8}")
    a(f"v_add_f32 v5, abs(v{O}), abs(v{O+1})")
    a(f"v_add_f32 v5, v5, abs(v{O+2})")
    a(f"v_permlane32_swap_b32 v{O+8}, v7")
    for i in range(3, 8):
        a(f"v_add_f32 v5, v5, abs(v{O+i})")
    a(f"v_mov_b32 v6, {f32(2.0**40)}")
    a(f"v_mov_b32 v7, {f32(3.0e38)}")
    a(f"v_cmp_nle_f32 vcc, v{O+8}, v6")
    a(f"v_cmp_nle_f32 s[20:21], v5, v7")
    a("s_or_b64 vcc, vcc, s[20:21]")
    a("s_cmp_lg_u32 s37, 0")
    a("s_cbranch_scc1 main_fin")
    a("s_cbranch_vccnz main_fallback")
    a.label("main_fin")
    a(f"v_rcp_f32 v6, v{O+8}")
    a("s_nop 0")
    for i in range(8):
        a(f"v_mul_f32 v{O+i}, v{O+i}, v6")
    for i in range(4):
        a(f"v_cvt_pk_bf16_f32 v{16+i}, v{O+2*i}, v{O+2*i+1}")
    a("s_lshl_b32 s21, s34, 15")
    a("s_lshl_b32 s22, s30, 10")
    a("s_add_u32 s21, s21, s22")
    a(f"s_add_u32 s21, s21, {WS_OF}")
    a("buffer_store_dwordx4 v[16:19], v9, s[16:19], s21 offen sc1")
    a("s_lshl_b32 s21, s34, 7")
    a("s_lshl_b32 s22, s30, 2")
    a("s_add_u32 s21, s21, s22")
    a(f"s_add_u32 s21, s21, {WS_F2}")
    a("v_mov_b32 v5, 0")
    a("v_mov_b32 v6, 1")
    a("v_lshrrev_b32 v20, 5, v2")
    a("v_lshlrev_b32 v20, 10, v20")
    a("v_bfe_u32 v21, v2, 4, 1")
    a("v_lshl_add_u32 v20, v21, 9, v20")
    a("v_and_b32 v21, 15, v2")
    a("v_lshl_add_u32 v20, v21, 4, v20")
    a("v_mul_u32_u24 v22, 528, v21")
    a("v_lshrrev_b32 v23, 4, v2")
    a("v_lshl_add_u32 v22, v23, 4, v22")
    a("s_lshl_b32 s22, s32, 6")
    a("s_add_u32 s22, s22, 32768")
    a("v_add_u32 v22, s22, v22")
    a("v_lshrrev_b32 v23, 4, v0")
    a("v_mul_u32_u24 v23, 528, v23")
    a("v_lshl_add_u32 v23, v21, 5, v23")
    a("v_add_u32 v23, 32768, v23")
    a("s_waitcnt vmcnt(0)")
    a("s_mov_b64 exec, 1")
    a("buffer_store_dword v6, v5, s[16:19], s21 offen sc1")
    a("s_mov_b64 exec, -1")
    a("s_barrier")
    stamp(a)
    a("v_and_b32 v5, 31, v2")
    a("v_lshlrev_b32 v5, 2, v5")
    a("s_lshl_b32 s21, s41, 7")
    a(f"s_add_u32 s21, s21, {WS_F2}")
    def issue(): a("buffer_load_dword v6, v5, s[16:19], s21 offen sc1")
    def check():
        a("v_cmp_eq_u32 vcc, 0, v6")
        a("s_cmp_eq_u64 vcc, 0")
    poll_loop(a, issue, check, "Lo")
    stamp(a)
    a("s_lshl_b32 s23, s32, 12")
    a("s_lshl_b32 s22, s41, 15")
    a("s_add_u32 s22, s22, s23")
    a(f"s_add_u32 s22, s22, {WS_OF}")
    a("s_mov_b32 m0, s23")
    a("s_nop 0")
    for n in range(4):
        a(f"buffer_load_dwordx4 v9, s[16:19], s22 offen offset:{1024*n} sc1 lds")
    unpack8(a, 40, XT)
    a("s_waitcnt vmcnt(0)")
    a("s_barrier")
    stamp(a)
    OFR = 48
    def rd(s):
        b = OFR + 8 * (s % 3)
        a(f"ds_read_b128 v[{b}:{b+3}], v20 offset:{2048*s}")
        a(f"ds_read_b128 v[{b+4}:{b+7}], v20 offset:{2048*s+256}")
    rd(0); rd(1)
    for s in range(16):
        if s < 14:
            rd(s + 2)
            a("s_waitcnt lgkmcnt(4)")
        else:
            a(f"s_waitcnt lgkmcnt({2*(15-s)})")
        b = OFR + 8 * (s % 3)
        for u in range(2):
            acc = 24 + 4 * u
            c = "0" if s == 0 else f"v[{acc}:{acc+3}]"
            a(f"v_mfma_f32_16x16x32_bf16 v[{acc}:{acc+3}], v[{WO+4*s}:{WO+4*s+3}], v[{b+4*u}:{b+4*u+3}], {c}")
    a("s_nop 7")
    a("ds_write_b128 v22, v[24:27]")
    a(f"ds_write_b128 v22, v[28:31] offset:{16*528}")
    a("s_waitcnt lgkmcnt(0)")
    a("s_barrier")
    a("ds_read_b128 v[32:35], v23")
    a("ds_read_b128 v[36:39], v23 offset:16")
    a("v_lshrrev_b32 v24, 4, v0")
    a("v_lshlrev_b32 v24, 4, v24")
    a("v_and_b32 v25, 3, v0")
    a("v_lshl_add_u32 v25, v25, 9, v24")
    a("s_lshl_b32 s21, s41, 11")
    a(f"s_add_u32 s21, s21, {WS_ST}")
    a("s_lshl_b32 s22, s42, 9")
    a("s_add_u32 s22, s22, s21")
    a("s_waitcnt lgkmcnt(0)")
    for i in range(0, 8, 2):
        rnd_pair(a, 32 + i, 33 + i, 26)
        a(f"v_mul_f32 v{32+i}, v{32+i}, v{GA+i}")
        a(f"v_mul_f32 v{33+i}, v{33+i}, v{GA+i+1}")
        rnd_pair(a, 32 + i, 33 + i, 26)
        a(f"v_add_f32 v{32+i}, v{32+i}, v{40+i}")
        a(f"v_add_f32 v{33+i}, v{33+i}, v{41+i}")
        a(f"v_cvt_pk_bf16_f32 v{48+i//2}, v{32+i}, v{33+i}")
        a(f"v_lshlrev_b32 v{32+i}, 16, v{48+i//2}")
        a(f"v_and_b32 v{33+i}, 0xffff0000, v{48+i//2}")
    a("v_add_f32 v52, v32, v33")
    a("v_mul_f32 v53, v32, v32")
    a(f"v_mul_f32 v54, v32, v{WP}")
    for i in range(1, 8):
        if i > 1: a(f"v_add_f32 v52, v52, v{32+i}")
        a(f"v_fmac_f32 v53, v{32+i}, v{32+i}")
        a(f"v_fmac_f32 v54, v{32+i}, v{WP+i}")
    a("v_mov_b32 v55, 1")
    for n in (8, 4, 2, 1):
        for r in (52, 53, 54):
            a(f"v_add_f32_dpp v{r}, v{r}, v{r} row_ror:{n} row_mask:0xf bank_mask:0xf")
    a("s_mov_b32 s24, 0x00010001")
    a("s_mov_b32 s25, 0x00010001")
    a("s_mov_b64 exec, s[24:25]")
    a("buffer_store_dwordx4 v[52:55], v24, s[16:19], s22 offen sc1")
    a("s_mov_b64 exec, -1")
    a(f"s_mov_b32 s23, {WS_X1}")
    a("buffer_store_dwordx4 v[48:51], v111, s[16:19], s23 offen sc1")
    stamp(a)
    def issue(): a("buffer_load_dwordx4 v[56:59], v25, s[16:19], s21 offen sc1")
    def check():
        a("v_cmp_eq_u32 vcc, 0, v59")
        a("s_cmp_eq_u64 vcc, 0")
    poll_loop(a, issue, check, "Ls")
    stamp(a)
    for qp in ("[1,0,3,2]", "[2,3,0,1]"):
        for r in (56, 57, 58):
            a(f"v_add_f32_dpp v{r}, v{r}, v{r} quad_perm:{qp} row_mask:0xf bank_mask:0xf")
    a(f"v_mul_f32 v56, {f32(1/512)}, v56")
    a(f"v_mul_f32 v57, {f32(1/512)}, v57")
    a("v_fma_f32 v57, -v56, v56, v57")
    a("v_max_f32 v57, 0, v57")
    rnd_pair(a, 56, 57, 26)
    a(f"v_add_f32 v57, {f32(1e-5)}, v57")
    rnd_bf16(a, 57)
    a("v_sqrt_f32 v57, v57")
    a("v_fma_f32 v58, -v56, v252, v58")
    rnd_bf16(a, 57)
    a("v_rcp_f32 v57, v57")
    a("s_nop 0")
    a("v_fma_f32 v58, v58, v57, v253")
    a("v_cvt_pk_bf16_f32 v58, v58, v58")
    a("v_and_b32 v58, 0xffff0000, v58")
    a("v_ashrrev_i32 v59, 31, v58")
    a("v_or_b32 v59, 0x80000000, v59")
    a("v_xor_b32 v58, v58, v59")
    a("v_and_b32 v58, 0xffff0000, v58")
    a("v_lshrrev_b32 v59, 10, v111")
    a("v_sub_u32 v60, 0xffff, v59")
    a("v_or_b32 v58, v58, v60")
    a("v_lshlrev_b32 v59, 2, v59")
    a("s_cmp_lg_u32 s42, 0")
    a("s_cbranch_scc1 main_nokey")
    a(f"s_mov_b32 s23, {WS_KEY}")
    a("s_mov_b64 exec, s[24:25]")
    a("buffer_store_dword v58, v59, s[16:19], s23 offen sc1")
    a("s_mov_b64 exec, -1")
    a.label("main_nokey")
    for i in range(0, 8, 2):
        a(f"v_sub_f32 v{40+i}, v{32+i}, v56")
        a(f"v_sub_f32 v{41+i}, v{33+i}, v56")
        rnd_pair(a, 40 + i, 41 + i, 26)
        a(f"v_mul_f32 v{40+i}, v{40+i}, v57")
        a(f"v_mul_f32 v{41+i}, v{41+i}, v57")
        rnd_pair(a, 40 + i, 41 + i, 26)
        a(f"v_mul_f32 v{40+i}, v{40+i}, v{CB+i}")
        a(f"v_mul_f32 v{41+i}, v{41+i}, v{CB+i+1}")
        rnd_pair(a, 40 + i, 41 + i, 26)
        a(f"v_add_f32 v{40+i}, v{40+i}, v{SB+i}")
        a(f"v_add_f32 v{41+i}, v{41+i}, v{SB+i+1}")
        a(f"v_cvt_pk_bf16_f32 v{60+i//2}, v{40+i}, v{41+i}")
    a(f"s_mov_b32 s23, {WS_H2}")
    a("buffer_store_dwordx4 v[60:63], v111, s[16:19], s23 offen sc1")
    for i in range(0, 8, 2):
        a(f"v_lshlrev_b32 v{40+i}, 16, v{60+i//2}")
        a(f"v_and_b32 v{41+i}, 0xffff0000, v{60+i//2}")
        a(f"v_mul_f32 v{40+i}, v{40+i}, v{GB+i}")
        a(f"v_mul_f32 v{41+i}, v{41+i}, v{GB+i+1}")
        rnd_pair(a, 40 + i, 41 + i, 26)
        a(f"v_add_f32 v{40+i}, v{40+i}, v{32+i}")
        a(f"v_add_f32 v{41+i}, v{41+i}, v{33+i}")
        a(f"v_cvt_pk_bf16_f32 v{64+i//2}, v{40+i}, v{41+i}")
    a("global_store_dwordx4 v111, v[64:67], s[50:51] sc1")
    a("s_lshl_b32 s21, s41, 7")
    a("s_lshl_b32 s22, s42, 5")
    a("s_add_u32 s21, s21, s22")
    a("s_lshl_b32 s22, s32, 2")
    a("s_add_u32 s21, s21, s22")
    a(f"s_add_u32 s21, s21, {WS_F3}")
    a("v_mov_b32 v5, 0")
    a("v_mov_b32 v6, 1")
    a("s_waitcnt vmcnt(0)")
    a("s_mov_b64 exec, 1")
    a("buffer_store_dword v6, v5, s[16:19], s21 offen sc1")
    a("s_mov_b64 exec, -1")
    stamp(a)
    a("s_cmp_ge_u32 s2, 144")
    a("s_cbranch_scc1 main_done")
    def issue():
        for n in range(8):
            if n % 4 == 0: a(f"s_mov_b32 s21, {WS_KEY + 1024*n}")
            a(f"buffer_load_dwordx4 v[{32+4*n}:{35+4*n}], v9, s[16:19], s21 offen offset:{1024*(n&3)} sc1")
    def check():
        a("v_min3_u32 v5, v32, v33, v34")
        for i in range(3, 31, 2):
            a(f"v_min3_u32 v5, v5, v{32+i}, v{33+i}")
        a("v_min_u32 v5, v5, v63")
        a("v_cmp_eq_u32 vcc, 0, v5")
        a("s_cmp_eq_u64 vcc, 0")
    poll_loop(a, issue, check, "Lk")
    stamp(a)
    top2(a, 32, 2)
    a("s_cmp_ge_u32 s2, 112")
    a("s_cbranch_scc1 main_down")
    a("v_and_b32 v15, 1, v2")
    a("v_cmp_eq_u32 vcc, 0, v15")
    a("s_nop 1")
    a("v_cndmask_b32 v16, v14, v12, vcc")
    a("v_and_b32 v17, 0xffff, v16")
    a("v_sub_u32 v17, 0xffff, v17")
    a("v_lshlrev_b32 v17, 10, v17")
    a("v_lshrrev_b32 v18, 4, v2")
    a("v_lshl_add_u32 v17, v18, 4, v17")
    a("s_lshr_b32 s21, s32, 1")
    a("s_lshl_b32 s21, s21, 8")
    a(f"s_add_u32 s21, s21, {WS_H2}")
    def issue():
        for n in range(4):
            a(f"buffer_load_dwordx4 v[{32+4*n}:{35+4*n}], v17, s[16:19], s21 offen offset:{64*n} sc1")
    def check():
        a("v_max3_u32 v5, v32, v36, v40")
        a("v_max_u32 v5, v5, v44")
        a("v_cmp_eq_u32 vcc, -1, v5")
        a("s_cmp_eq_u64 vcc, 0")
    poll_loop(a, issue, check, "Lh")
    stamp(a)
    for n in range(4):
        c = "0" if n == 0 else "v[20:23]"
        a(f"v_mfma_f32_16x16x32_bf16 v[20:23], v[{32+4*n}:{35+4*n}], v[{MW+4*n}:{MW+4*n+3}], {c}")
    PB = 65536
    def partial_and_gather():
        a("s_lshl_b32 s23, s32, 7")
        a(f"s_add_u32 s23, s23, {PB}")
        a("v_lshl_add_u32 v24, v2, 2, s23")
        a("s_mov_b64 exec, 0xffff")
        a("s_nop 4")
        a("ds_write_b32 v24, v20")
        a("ds_write_b32 v24, v21 offset:64")
        a("s_mov_b64 exec, -1")
        a("s_waitcnt lgkmcnt(0)")
        a("s_barrier")
        a("s_cmp_lg_u32 s32, 0")
        a("s_cbranch_scc1 main_done")
        a("v_and_b32 v24, 31, v0")
        a("v_lshlrev_b32 v24, 2, v24")
        a(f"v_add_u32 v24, {PB}, v24")
        for w in range(8):
            a(f"ds_read_b32 v{32+w}, v24 offset:{128*w}")
    partial_and_gather()
    a("s_waitcnt lgkmcnt(0)")
    for w in range(2, 8):
        a(f"v_add_f32 v{32+(w&1)}, v{32+(w&1)}, v{32+w}")
    rnd_pair(a, 32, 33, 40)
    a(f"v_mul_f32 v34, {NLOG2E:#x}, v32")
    a("v_exp_f32 v34, v34")
    a("s_nop 0")
    a("v_add_f32 v34, 1.0, v34")
    a("v_rcp_f32 v34, v34")
    a("s_nop 0")
    a("v_mul_f32 v32, v32, v34")
    rnd_bf16(a, 32)
    a("v_mul_f32 v32, v32, v33")
    a("s_nop 1")
    a("v_mov_b32_dpp v33, v32 quad_perm:[1,0,3,2] row_mask:0xf bank_mask:0xf")
    a("v_cvt_pk_bf16_f32 v32, v32, v33")
    a("v_bfe_u32 v25, v0, 4, 1")
    a("v_mul_u32_u24 v25, 3584, v25")
    a("v_and_b32 v26, 15, v0")
    a("v_lshl_add_u32 v25, v26, 1, v25")
    a("s_lshl_b32 s21, s2, 5")
    a(f"s_add_u32 s21, s21, {WS_ACT}")
    a("s_mov_b64 exec, 0x55555555")
    a("buffer_store_dword v32, v25, s[16:19], s21 offen sc1")
    a("s_mov_b64 exec, -1")
    a("s_branch main_done")
    a.label("main_down")
    Prof.n -= 1
    a("s_sub_u32 s33, s2, 112")
    a("v_bfe_u32 v15, v0, 4, 1")
    a("v_cmp_eq_u32 vcc, 0, v15")
    a("s_nop 1")
    a("v_cndmask_b32 v12, v14, v12, vcc")
    a("v_and_b32 v15, 0xffff, v12")
    a("v_sub_u32 v15, 0xffff, v15")
    a("v_lshrrev_b32 v16, 5, v15")
    a("v_lshlrev_b32 v16, 7, v16")
    a("v_bfe_u32 v17, v15, 2, 3")
    a("v_lshl_add_u32 v16, v17, 2, v16")
    a("s_lshr_b32 s21, s33, 3")
    a("s_lshl_b32 s21, s21, 5")
    a(f"s_add_u32 s21, s21, {WS_F3}")
    def issue(): a("buffer_load_dword v6, v16, s[16:19], s21 offen sc1")
    def check():
        a("v_cmp_eq_u32 vcc, 0, v6")
        a("s_cmp_eq_u64 vcc, 0")
    poll_loop(a, issue, check, "Lf")
    a("v_lshlrev_b32 v15, 10, v15")
    a("v_and_b32 v16, 15, v0")
    a("v_lshl_add_u32 v15, v16, 1, v15")
    a("s_lshl_b32 s21, s33, 5")
    a("v_add_u32 v15, s21, v15")
    a(f"s_mov_b32 s24, {WS_H2}")
    a(f"s_mov_b32 s25, {WS_X1}")
    a("buffer_load_ushort v17, v15, s[16:19], s24 offen sc1")
    a("buffer_load_ushort v18, v15, s[16:19], s25 offen sc1")
    a("v_lshlrev_b32 v19, 2, v16")
    a("s_lshl_b32 s21, s33, 6")
    a(f"s_add_u32 s21, s21, {WS_MODF+5*2048}")
    a("buffer_load_dword v19, v19, s[16:19], s21 offen")
    a("v_and_b32 v12, 0xffff0000, v12")
    a("v_ashrrev_i32 v25, 31, v12")
    a("v_not_b32 v25, v25")
    a("v_or_b32 v25, 0x80000000, v25")
    a("v_xor_b32 v12, v12, v25")
    a("v_and_b32 v12, 0xffff0000, v12")
    a(f"v_mul_f32 v25, {NLOG2E:#x}, v12")
    a("v_exp_f32 v25, v25")
    a("s_nop 0")
    a("v_add_f32 v25, 1.0, v25")
    a("v_rcp_f32 v25, v25")
    a("s_nop 0")
    rnd_bf16(a, 25)
    a("v_and_b32 v13, 1, v2")
    a("v_mul_u32_u24 v13, 3584, v13")
    a("v_lshrrev_b32 v14, 4, v2")
    a("v_lshl_add_u32 v13, v14, 4, v13")
    a("s_mul_i32 s21, s32, 448")
    a(f"s_add_u32 s21, s21, {WS_ACT}")
    def issue():
        for n in range(7):
            a(f"buffer_load_dwordx4 v[{32+4*n}:{35+4*n}], v13, s[16:19], s21 offen offset:{64*n} sc1")
    def check():
        a("v_max3_u32 v5, v32, v33, v34")
        for i in range(3, 27, 2):
            a(f"v_max3_u32 v5, v5, v{32+i}, v{33+i}")
        a("v_max_u32 v5, v5, v59")
        a("v_cmp_eq_u32 vcc, -1, v5")
        a("s_cmp_eq_u64 vcc, 0")
    poll_loop(a, issue, check, "La")
    stamp(a)
    for n in range(7):
        c = "0" if n == 0 else "v[20:23]"
        a(f"v_mfma_f32_16x16x32_bf16 v[20:23], v[{32+4*n}:{35+4*n}], v[{MW+4*n}:{MW+4*n+3}], {c}")
    partial_and_gather()
    a("s_waitcnt lgkmcnt(0)")
    for w in range(1, 8):
        a(f"v_add_f32 v32, v32, v{32+w}")
    rnd_bf16(a, 32)
    a("v_mul_f32 v32, v32, v25")
    rnd_bf16(a, 32)
    a("v_lshlrev_b32 v17, 16, v17")
    a("v_lshlrev_b32 v18, 16, v18")
    a("v_add_f32 v32, v32, v17")
    rnd_bf16(a, 32)
    a("v_mul_f32 v32, v32, v19")
    rnd_bf16(a, 32)
    a("v_add_f32 v32, v32, v18")
    a("v_cvt_pk_bf16_f32 v32, v32, v32")
    a("s_mov_b32 exec_hi, 0")
    a("global_store_short v15, v32, s[50:51] sc1")
    a("s_mov_b64 exec, -1")
    a.label("main_done")
    stamp_end(a)
    a.label("main_end")
    a("s_endpgm")
    a.label("main_fallback")
    a("s_mov_b32 s37, 1")
    a("s_mov_b32 s20, 64")
    a("v_mov_b32 v6, 0xff800000")
    a("v_mov_b32 v5, v3")
    a.label("main_fb_loop")
    a(f"ds_read_b128 v[{K[0]}:{K[0]+3}], v5")
    a("v_add_u32 v5, 0x800, v5")
    a("s_waitcnt lgkmcnt(0)")
    a(f"v_mfma_f32_32x32x16_bf16 v[{s0}:{s0+15}], v[{K[0]}:{K[0]+3}], v[{Q}:{Q+3}], 0")
    a("s_nop 11")
    for i in range(0, 16, 2):
        a(f"v_max3_f32 v6, v6, v{s0+i}, v{s0+i+1}")
    a("s_sub_u32 s20, s20, 1")
    a("s_cmp_lg_u32 s20, 0")
    a("s_cbranch_scc1 main_fb_loop")
    a(f"ds_read_b128 v[{K[0]}:{K[0]+3}], v3")
    a(f"ds_read_b128 v[{K[1]}:{K[1]+3}], v3 offset:2048")
    for i in range(16):
        a(f"v_mov_b32 v{O+i}, 0")
    setmax()
    a("s_mov_b64 exec, s[38:39]")
    a(f"ds_read_b128 v[{V[0]}:{V[0]+3}], v4")
    a(f"ds_read_b128 v[{V[0]+4}:{V[0]+7}], v4 offset:512")
    a("s_mov_b64 exec, -1")
    a("s_waitcnt lgkmcnt(0)")
    a(f"v_mfma_f32_32x32x16_bf16 v[{s0}:{s0+15}], v[{K[0]}:{K[0]+3}], v[{Q}:{Q+3}], v[{C}:{C+15}]")
    for i in range(8):
        a(f"v_mov_b32 v{S[1]+8+i}, 0")
    a("s_mov_b32 s20, 32")
    a("s_nop 3")
    a.label("main_fb2")
    tile(0, 0, {}); tile(1, 1, {})
    a("v_add_u32 v3, 0x1000, v3")
    a("v_add_u32 v4, 0x1000, v4")
    a("s_sub_u32 s20, s20, 1")
    a("s_cmp_lg_u32 s20, 0")
    a("s_cbranch_scc1 main_fb2")
    a("v_subrev_u32 v3, 0x20000, v3")
    a("v_subrev_u32 v4, 0x20000, v4")
    a("s_branch main_attn_tail")

KERNELS = [
    ("prep_kernel", k_prep, 256, 256, 16384, 96),
    ("main_kernel", k_main, 256, 512, 163840, 256),
]

def main(out):
    G1.KERNELS = KERNELS
    G1.main(out)

if __name__ == "__main__":
    if len(sys.argv) > 2 and sys.argv[2] in ("prof", "dbg"): G1.PROF = True
    if len(sys.argv) > 2 and sys.argv[2] == "dbg": G1.DBGOUT = True
    main(sys.argv[1])
```

```python
import sys
from asmlib import *

WS_MODF = 0
WS_MODB = 0x4000
WS_KEY = 0x8000
WS_ACT = 0xA000
WS_SEL = 0xC000
WS_XF = 0x100000
WS_QF = 0x300000
WS_KV = 0x500000
WS_OF = 0x900000
WS_X1 = 0xB00000
WS_H2 = 0xD00000
WS_WOF = 0xF00000
WS_BYTES = 268435456
LOG2E = 0x3fb8aa3b
NLOG2E = 0xbfb8aa3b
import struct
def f32(x): return "0x%08x" % struct.unpack("<I", struct.pack("<f", x))[0]


PROF = False
DBGOUT = False
WS_STAMP = 0x2000000
class Prof:
    kid = 0
    n = 0
def stamp(a):
    if not PROF: return
    i = Prof.n; Prof.n += 1
    a(f"s_memrealtime s[{70+2*i}:{71+2*i}]")
    a("s_waitcnt lgkmcnt(0)")
def stamp_begin(a, kid):
    Prof.kid = kid; Prof.n = 0
    if PROF:
        for i in range(1, 15): a(f"s_mov_b32 s{70+2*i}, 1")
        a("s_memtime s[64:65]")
    stamp(a)
def stamp_end(a):
    if not PROF: return
    a("s_waitcnt vmcnt(0)")
    a("s_memtime s[66:67]")
    stamp(a)
    a("s_mov_b64 exec, 1")
    a("v_readfirstlane_b32 s69, v0")
    a("s_and_b32 s69, s69, 0x1c0")
    a("s_lshl_b32 s68, s2, 9")
    a("s_add_u32 s69, s69, s68")
    a(f"s_add_u32 s69, s69, {WS_STAMP + Prof.kid*262144}")
    a("v_mov_b32 v1, s69")
    for i in range(Prof.n):
        a(f"v_mov_b32 v2, s{70+2*i}")
        a(f"global_store_dword v1, v2, s[4:5] offset:{4*i}")
    a("s_sub_u32 s66, s66, s64")
    a("v_mov_b32 v2, s66")
    a("global_store_dword v1, v2, s[4:5] offset:60")
    if DBGOUT:
        a("s_load_dwordx2 s[66:67], s[0:1], 88")
        a("s_waitcnt lgkmcnt(0)")
        a(f"s_sub_u32 s66, s66, {512*Prof.kid}")
        a("s_subb_u32 s67, s67, 0")
        a("v_mov_b32 v1, 0")
        base = 0 if Prof.kid == 0 else 8
        a("s_not_b32 s68, s70")
        a("v_mov_b32 v2, s68")
        a(f"global_atomic_umax v1, v2, s[66:67] offset:{base}")
        a(f"v_mov_b32 v2, s{70+2*(Prof.n-1)}")
        a(f"global_atomic_umax v1, v2, s[66:67] offset:{base+4}")
        if Prof.kid == 1:
            for i in range(1, 13):
                a(f"v_mov_b32 v2, s{70+2*i}")
                a(f"global_atomic_umax v1, v2, s[66:67] offset:{12+4*i}")

def multi_allreduce(a, vs, ts, op="v_add_f32"):
    pad = max(0, 3 - len(vs))
    a("s_nop 1")
    for n in (8, 4, 2, 1):
        for v in vs:
            a(f"{op}_dpp v{v}, v{v}, v{v} row_ror:{n} row_mask:0xf bank_mask:0xf")
        if pad: a(f"s_nop {pad-1}")
    for sw in ("v_permlane16_swap_b32", "v_permlane32_swap_b32"):
        for v, t in zip(vs, ts):
            a(f"v_mov_b32 v{t}, v{v}")
        a("s_nop 1")
        for v, t in zip(vs, ts):
            a(f"{sw} v{t}, v{v}")
        a("s_nop 1")
        for v, t in zip(vs, ts):
            a(f"{op} v{v}, v{v}, v{t}")

def unpack8(a, dst, src):
    for i in range(4):
        a(f"v_lshlrev_b32 v{dst+2*i}, 16, v{src+i}")
        a(f"v_and_b32 v{dst+2*i+1}, 0xffff0000, v{src+i}")

def layernorm_rows(a, rows, tmp):
    n = len(rows)
    S = [tmp + i for i in range(n)]
    T = [tmp + n + i for i in range(n)]
    M = [tmp + 2 * n + i for i in range(n)]
    for q, x in enumerate(rows):
        a(f"v_add_f32 v{S[q]}, v{x}, v{x+1}")
        for i in range(2, 8):
            a(f"v_add_f32 v{S[q]}, v{S[q]}, v{x+i}")
    multi_allreduce(a, S, T)
    for q, x in enumerate(rows):
        a(f"v_mul_f32 v{M[q]}, {f32(1/512)}, v{S[q]}")
        a(f"v_sub_f32 v{T[q]}, v{x}, v{M[q]}")
        a(f"v_mul_f32 v{S[q]}, v{T[q]}, v{T[q]}")
        for i in range(1, 8):
            a(f"v_sub_f32 v{T[q]}, v{x+i}, v{M[q]}")
            a(f"v_fmac_f32 v{S[q]}, v{T[q]}, v{T[q]}")
    multi_allreduce(a, S, T)
    for q, x in enumerate(rows):
        a(f"v_mul_f32 v{S[q]}, {f32(1/512)}, v{S[q]}")
        rnd_bf16(a, S[q])
        a(f"v_add_f32 v{S[q]}, {f32(1e-5)}, v{S[q]}")
        rnd_bf16(a, S[q])
        a(f"v_sqrt_f32 v{S[q]}, v{S[q]}")
        rnd_bf16(a, M[q])
        rnd_bf16(a, S[q])
        a(f"v_rcp_f32 v{S[q]}, v{S[q]}")
        for i in range(0, 8, 2):
            a(f"v_sub_f32 v{x+i}, v{x+i}, v{M[q]}")
            a(f"v_sub_f32 v{x+i+1}, v{x+i+1}, v{M[q]}")
            a(f"v_cvt_pk_bf16_f32 v{T[q]}, v{x+i}, v{x+i+1}")
            a(f"v_lshlrev_b32 v{x+i}, 16, v{T[q]}")
            a(f"v_and_b32 v{x+i+1}, 0xffff0000, v{T[q]}")
            a(f"v_mul_f32 v{x+i}, v{x+i}, v{S[q]}")
            a(f"v_mul_f32 v{x+i+1}, v{x+i+1}, v{S[q]}")

def rnd_pair(a, x, y, t):
    a(f"v_cvt_pk_bf16_f32 v{t}, v{x}, v{y}")
    a(f"v_lshlrev_b32 v{x}, 16, v{t}")
    a(f"v_and_b32 v{y}, 0xffff0000, v{t}")

def k_prep(a):
    kernel_begin(a, "prep_kernel")
    a("s_cmp_ge_u32 s2, 256")
    a("s_cbranch_scc1 prep_end")
    stamp_begin(a, 0)
    a("s_load_dwordx2 s[4:5], s[0:1], 96")
    a("s_cmp_ge_u32 s2, 224")
    a("s_cbranch_scc1 prep_wo")
    a("s_cmp_ge_u32 s2, 96")
    a("s_cbranch_scc1 prep_xhat")
    a("s_load_dwordx2 s[6:7], s[0:1], 64")
    a("s_load_dwordx2 s[8:9], s[0:1], 72")
    a("v_and_b32 v1, 3, v0")
    a("v_lshrrev_b32 v2, 2, v0")
    a("v_mul_u32_u24 v3, 6144, v2")
    a("v_lshl_add_u32 v3, v1, 4, v3")
    a("s_lshl_b32 s3, s2, 6")
    a("v_add_u32 v3, s3, v3")
    a("v_lshlrev_b32 v4, 1, v2")
    a("s_waitcnt lgkmcnt(0)")
    srd(a, 12, 8, 512 * 6144)
    srd(a, 16, 6, 1024)
    for p in range(8):
        a(f"buffer_load_ushort v{10+p}, v4, s[16:19], 0 offen offset:{128*p}")
    for p in range(8):
        a(f"s_mov_b32 s20, {p*393216}")
        a(f"buffer_load_dwordx4 v[{20+4*p}:{23+4*p}], v3, s[12:15], s20 offen")
    for i in range(8):
        a(f"v_mov_b32 v{60+i}, 0")
    stamp(a)
    a("s_waitcnt vmcnt(8)")
    stamp(a)
    for p in range(8):
        c = 10 + p
        a(f"v_lshlrev_b32 v{c}, 16, v{c}")
        a(f"v_mul_f32 v{70+p}, {NLOG2E:#x}, v{c}")
        a(f"v_exp_f32 v{70+p}, v{70+p}")
    for p in range(8):
        a(f"v_add_f32 v{70+p}, 1.0, v{70+p}")
        a(f"v_rcp_f32 v{70+p}, v{70+p}")
    for p in range(8):
        a(f"v_mul_f32 v{10+p}, v{10+p}, v{70+p}")
        rnd_bf16(a, 10 + p)
    for p in range(8):
        a(f"s_waitcnt vmcnt({7-p})")
        for i in range(4):
            w = 20 + 4 * p + i
            a(f"v_lshlrev_b32 v70, 16, v{w}")
            a(f"v_and_b32 v71, 0xffff0000, v{w}")
            a(f"v_fmac_f32 v{60+2*i}, v70, v{10+p}")
            a(f"v_fmac_f32 v{61+2*i}, v71, v{10+p}")
    stamp(a)
    a("s_nop 1")
    for n in (4, 8):
        for i in range(8):
            a(f"v_add_f32_dpp v{60+i}, v{60+i}, v{60+i} row_ror:{n} row_mask:0xf bank_mask:0xf")
    a("v_lshrrev_b32 v5, 4, v0")
    a("v_lshlrev_b32 v5, 7, v5")
    a("v_lshl_add_u32 v5, v1, 5, v5")
    a("v_and_b32 v6, 15, v0")
    a("v_cmp_gt_u32 vcc, 4, v6")
    a("s_and_saveexec_b64 s[22:23], vcc")
    a("ds_write_b128 v5, v[60:63]")
    a("ds_write_b128 v5, v[64:67] offset:16")
    a("s_mov_b64 exec, s[22:23]")
    a("s_waitcnt lgkmcnt(0)")
    a("s_barrier")
    a("v_cmp_gt_u32 vcc, 32, v0")
    a("s_and_saveexec_b64 s[22:23], vcc")
    a("s_cbranch_execz prep_end")
    a("v_lshlrev_b32 v5, 2, v0")
    for i in range(16):
        a(f"ds_read_b32 v{20+i}, v5 offset:{128*i}")
    a("s_waitcnt lgkmcnt(0)")
    for i in range(1, 16):
        a(f"v_add_f32 v20, v20, v{20+i}")
    rnd_bf16(a, 20)
    a("s_lshr_b32 s24, s2, 4")
    a("s_mov_b32 s25, 0")
    a("s_cmp_eq_u32 s24, 1")
    a("s_cselect_b32 s25, 1.0, s25")
    a("s_cmp_eq_u32 s24, 4")
    a("s_cselect_b32 s25, 1.0, s25")
    a("v_add_f32 v20, s25, v20")
    rnd_bf16(a, 20)
    a("s_lshl_b32 s3, s2, 7")
    a("v_add_u32 v5, s3, v5")
    a(f"global_store_dword v5, v20, s[4:5] offset:{WS_MODF}")
    a("v_lshrrev_b32 v5, 1, v5")
    a(f"v_add_u32 v5, {WS_MODB}, v5")
    a("global_store_short_d16_hi v5, v20, s[4:5]")
    stamp_end(a)
    a("s_endpgm")
    Prof.n = 1
    a.label("prep_xhat")
    a("s_load_dwordx2 s[6:7], s[0:1], 0")
    a("s_sub_u32 s3, s2, 96")
    a("v_lshrrev_b32 v1, 6, v0")
    a("v_and_b32 v2, 63, v0")
    a("v_lshlrev_b32 v3, 12, v1")
    a("v_lshl_add_u32 v3, v2, 4, v3")
    a("s_lshl_b32 s8, s3, 14")
    a("v_add_u32 v3, s8, v3")
    a("s_waitcnt lgkmcnt(0)")
    for q in range(4):
        a(f"global_load_dwordx4 v[{8+4*q}:{11+4*q}], v3, s[6:7] offset:{1024*q}")
    a("v_lshlrev_b32 v4, 8, v2")
    a("v_lshl_add_u32 v4, v1, 6, v4")
    a(f"s_add_u32 s8, s8, {WS_XF}")
    a("v_add_u32 v4, s8, v4")
    rows = [24 + 8 * q for q in range(4)]
    stamp(a)
    if PROF: a("s_waitcnt vmcnt(0)")
    stamp(a)
    for q in range(4):
        a(f"s_waitcnt vmcnt({3-q})")
        unpack8(a, rows[q], 8 + 4 * q)
    layernorm_rows(a, rows, 60)
    for q in range(4):
        for i in range(4):
            a(f"v_cvt_pk_bf16_f32 v{8+4*q+i}, v{rows[q]+2*i}, v{rows[q]+2*i+1}")
        if q == 0: stamp(a)
        a(f"global_store_dwordx4 v4, v[{8+4*q}:{11+4*q}], s[4:5] offset:{16*q}")
    stamp_end(a)
    a("s_endpgm")
    Prof.n = 1
    a.label("prep_wo")
    a("s_load_dwordx2 s[6:7], s[0:1], 16")
    a("s_sub_u32 s3, s2, 224")
    a("v_lshrrev_b32 v1, 1, v0")
    a("v_lshlrev_b32 v1, 10, v1")
    a("v_and_b32 v2, 1, v0")
    a("v_lshl_add_u32 v1, v2, 4, v1")
    a("s_lshl_b32 s8, s3, 5")
    a("v_add_u32 v1, s8, v1")
    a("s_waitcnt lgkmcnt(0)")
    srd(a, 12, 6, 512 * 1024)
    for p in range(4):
        a(f"s_mov_b32 s20, {p*131072}")
        a(f"buffer_load_dwordx4 v[{8+4*p}:{11+4*p}], v1, s[12:15], s20 offen")
    a("v_lshlrev_b32 v2, 4, v0")
    for p in range(4):
        a(f"s_waitcnt vmcnt({3-p})")
        a(f"ds_write_b128 v2, v[{8+4*p}:{11+4*p}] offset:{4096*p}")
    a("v_and_b32 v3, 63, v0")
    a("v_lshrrev_b32 v4, 5, v3")
    a("v_lshlrev_b32 v4, 9, v4")
    a("v_bfe_u32 v5, v3, 4, 1")
    a("v_lshl_add_u32 v4, v5, 7, v4")
    a("v_bfe_u32 v5, v3, 2, 2")
    a("v_lshl_add_u32 v4, v5, 5, v4")
    a("v_and_b32 v5, 3, v3")
    a("v_lshl_add_u32 v4, v5, 3, v4")
    a("v_lshrrev_b32 v5, 6, v0")
    a("v_lshl_add_u32 v4, v5, 12, v4")
    a("v_lshlrev_b32 v6, 12, v5")
    a("v_lshl_add_u32 v6, v3, 4, v6")
    a("s_lshl_b32 s8, s3, 14")
    a(f"s_add_u32 s8, s8, {WS_WOF}")
    a("v_add_u32 v6, s8, v6")
    a("s_waitcnt lgkmcnt(0)")
    a("s_barrier")
    for n in range(4):
        a(f"ds_read_b64_tr_b16 v[{8+4*n}:{9+4*n}], v4 offset:{1024*n}")
        a(f"ds_read_b64_tr_b16 v[{10+4*n}:{11+4*n}], v4 offset:{1024*n+256}")
    for n in range(4):
        a(f"s_waitcnt lgkmcnt({6-2*n})")
        a(f"global_store_dwordx4 v6, v[{8+4*n}:{11+4*n}], s[4:5] offset:{1024*n}")
    stamp_end(a)
    a.label("prep_end")
    a("s_endpgm")

def decode_hb(a, sh, sb):
    a("s_and_b32 s3, s2, 7")
    a("s_lshr_b32 s28, s2, 3")
    a(f"s_and_b32 s{sb}, s3, 3")
    a(f"s_lshl_b32 s{sb}, s{sb}, 1")
    a("s_and_b32 s29, s28, 1")
    a(f"s_add_u32 s{sb}, s{sb}, s29")
    a(f"s_lshr_b32 s{sh}, s3, 2")
    a(f"s_lshl_b32 s{sh}, s{sh}, 4")
    a("s_lshr_b32 s29, s28, 1")
    a(f"s_add_u32 s{sh}, s{sh}, s29")

QSCALE = 0.25 * 1.4426950408889634
def k_qkv(a):
    kernel_begin(a, "qkv_kernel")
    a("s_cmp_ge_u32 s2, 256")
    a("s_cbranch_scc1 qkv_end")
    stamp_begin(a, 1)
    a("s_load_dwordx2 s[4:5], s[0:1], 96")
    a("s_load_dwordx2 s[6:7], s[0:1], 8")
    decode_hb(a, 30, 31)
    a("v_lshrrev_b32 v1, 6, v0")
    a("v_and_b32 v2, 63, v0")
    a("s_nop 0")
    a("v_readfirstlane_b32 s32, v1")
    a("v_lshrrev_b32 v3, 1, v0")
    a("v_lshlrev_b32 v4, 2, v3")
    a("v_mul_u32_u24 v5, 3072, v3")
    a("v_and_b32 v6, 1, v0")
    a("v_lshl_add_u32 v5, v6, 4, v5")
    a("s_lshl_b32 s33, s30, 5")
    a("v_add_u32 v5, s33, v5")
    a("s_waitcnt lgkmcnt(0)")
    srd(a, 12, 6, 512 * 3072)
    srd(a, 16, 4, WS_BYTES)
    WR = 160
    for p in range(2):
        for t in range(3):
            a(f"s_mov_b32 s20, {p*256*3072 + t*1024}")
            r = WR + 4 * (3 * p + t)
            a(f"buffer_load_dwordx4 v[{r}:{r+3}], v5, s[12:15], s20 offen")
    a(f"buffer_load_dword v184, v4, s[16:19], 0 offen offset:{WS_MODF+2048}")
    a(f"buffer_load_dword v185, v4, s[16:19], 0 offen offset:{WS_MODF+2048+1024}")
    a("v_lshrrev_b32 v7, 4, v2")
    a("v_lshlrev_b32 v8, 4, v7")
    a("s_lshl_b32 s20, s32, 7")
    a(f"s_add_u32 s20, s20, {WS_MODB}")
    a("buffer_load_dwordx4 v[188:191], v8, s[16:19], s20 offen")
    a("buffer_load_dwordx4 v[192:195], v8, s[16:19], s20 offen offset:64")
    XR = 32
    a("v_lshlrev_b32 v9, 4, v2")
    a("s_lshl_b32 s20, s31, 18")
    a("s_lshl_b32 s21, s32, 15")
    a("s_add_u32 s20, s20, s21")
    a(f"s_add_u32 s20, s20, {WS_XF}")
    for grp in range(8):
        for n in range(4):
            r = XR + 4 * (4 * grp + n)
            a(f"buffer_load_dwordx4 v[{r}:{r+3}], v9, s[16:19], s20 offen offset:{1024*n}")
        if grp != 7:
            a("s_add_u32 s20, s20, 4096")
    a("v_lshlrev_b32 v10, 5, v3")
    a("v_bfe_u32 v11, v3, 3, 1")
    a("v_lshlrev_b32 v11, 7, v11")
    a("v_xor_b32 v10, v10, v11")
    a("v_lshl_add_u32 v10, v6, 4, v10")
    a("v_add_u32 v11, 49152, v10")
    a("v_bfe_u32 v12, v2, 2, 2")
    a("v_lshlrev_b32 v12, 5, v12")
    a("v_and_b32 v13, 1, v7")
    a("v_lshlrev_b32 v13, 7, v13")
    a("v_xor_b32 v12, v12, v13")
    a("v_lshl_add_u32 v12, v7, 8, v12")
    a("v_and_b32 v13, 3, v2")
    a("v_lshl_add_u32 v12, v13, 3, v12")
    a("v_xor_b32 v13, 0x80, v12")
    a("s_lshl_b32 s21, s32, 11")
    a("s_add_u32 s21, s21, 49152")
    a("v_add_u32 v14, s21, v12")
    a("v_add_u32 v15, s21, v13")
    stamp(a)
    a("s_waitcnt vmcnt(36)")
    stamp(a)
    for p in range(2):
        a(f"ds_write_b128 v11, v[{WR+12*p}:{WR+12*p+3}] offset:{8192*p}")
        a(f"ds_write_b128 v11, v[{WR+12*p+8}:{WR+12*p+11}] offset:{16384+8192*p}")
    a("s_waitcnt vmcnt(34)")
    for p in range(2):
        for t in range(3):
            r = WR + 4 * (3 * p + t)
            d = 200 + 4 * ((3 * p + t) & 1)
            for i in range(4):
                a(f"v_lshlrev_b32 v16, 16, v{r+i}")
                a(f"v_and_b32 v17, 0xffff0000, v{r+i}")
                a(f"v_mul_f32 v16, v16, v{184+p}")
                a(f"v_mul_f32 v17, v17, v{184+p}")
                a(f"v_cvt_pk_bf16_f32 v{d+i}, v16, v17")
            a(f"ds_write_b128 v10, v[{d}:{d+3}] offset:{16384*t+8192*p}")
    a("s_waitcnt lgkmcnt(0)")
    a("s_barrier")
    stamp(a)
    if PROF: a("s_waitcnt vmcnt(15)")
    stamp(a)
    if PROF: a("s_waitcnt vmcnt(0)")
    stamp(a)
    for n in range(2):
        a(f"ds_read_b64_tr_b16 v[{160+8*n}:{161+8*n}], v14 offset:{1024*n}")
        a(f"ds_read_b64_tr_b16 v[{162+8*n}:{163+8*n}], v15 offset:{1024*n}")
        a(f"ds_read_b64_tr_b16 v[{164+8*n}:{165+8*n}], v14 offset:{16384+1024*n}")
        a(f"ds_read_b64_tr_b16 v[{166+8*n}:{167+8*n}], v15 offset:{16384+1024*n}")
    WF = [216, 228]
    def rd_w(s):
        b = WF[s & 1]
        for t in range(3):
            a(f"ds_read_b64_tr_b16 v[{b+4*t}:{b+4*t+1}], v12 offset:{16384*t+1024*s}")
            a(f"ds_read_b64_tr_b16 v[{b+4*t+2}:{b+4*t+3}], v13 offset:{16384*t+1024*s}")
    rd_w(0)
    a("s_waitcnt vmcnt(32) lgkmcnt(6)")
    a("v_mfma_f32_16x16x32_bf16 v[208:211], v[160:163], v[188:191], 0")
    a("v_mfma_f32_16x16x32_bf16 v[212:215], v[188:191], v[164:167], 0")
    a("v_mfma_f32_16x16x32_bf16 v[208:211], v[168:171], v[192:195], v[208:211]")
    a("v_mfma_f32_16x16x32_bf16 v[212:215], v[192:195], v[172:175], v[212:215]")
    a("s_lshl_b32 s21, s32, 7")
    a("s_add_u32 s21, s21, 81920")
    a("v_lshl_add_u32 v16, v7, 4, s21")
    a("v_and_b32 v17, 15, v2")
    a("v_lshl_add_u32 v17, v17, 2, s21")
    a("s_nop 4")
    a("ds_write_b128 v16, v[208:211]")
    a("ds_write_b32 v17, v212 offset:64")
    ACC = 176
    for s in range(16):
        if s < 15:
            rd_w(s + 1)
            a(f"s_waitcnt vmcnt({15-s}) lgkmcnt(6)")
        else:
            a("s_waitcnt vmcnt(0) lgkmcnt(0)")
        b = WF[s & 1]
        for u in range(2):
            x = XR + 4 * (16 * u + s)
            for t in range(3):
                acc = ACC + 8 * t + 4 * u
                c = "0" if s == 0 else f"v[{acc}:{acc+3}]"
                if t < 2:
                    a(f"v_mfma_f32_16x16x32_bf16 v[{acc}:{acc+3}], v[{b+4*t}:{b+4*t+3}], v[{x}:{x+3}], {c}")
                else:
                    a(f"v_mfma_f32_16x16x32_bf16 v[{acc}:{acc+3}], v[{x}:{x+3}], v[{b+4*t}:{b+4*t+3}], {c}")
    a("s_barrier")
    stamp(a)
    a("v_lshlrev_b32 v16, 4, v7")
    a("v_add_u32 v16, 81920, v16")
    a("v_and_b32 v17, 15, v2")
    a("v_lshlrev_b32 v18, 2, v17")
    a("v_add_u32 v18, 81920, v18")
    for w in range(8):
        a(f"ds_read_b128 v[{32+4*w}:{35+4*w}], v16 offset:{128*w}")
        a(f"ds_read_b32 v{64+w}, v18 offset:{128*w+64}")
    a("v_lshrrev_b32 v20, 1, v7")
    a("v_and_b32 v21, 1, v7")
    a("v_lshlrev_b32 v21, 3, v21")
    a("v_lshl_add_u32 v21, v17, 4, v21")
    a("v_lshl_add_u32 v22, v20, 9, v21")
    a("v_lshl_add_u32 v23, v20, 8, v21")
    a("s_lshl_b32 s20, s31, 3")
    a("s_add_u32 s20, s20, s32")
    a("s_lshl_b32 s21, s30, 16")
    a("s_lshl_b32 s22, s20, 10")
    a("s_add_u32 s21, s21, s22")
    a(f"s_add_u32 s21, s21, {WS_QF}")
    a("s_lshl_b32 s22, s30, 17")
    a("s_lshl_b32 s23, s20, 11")
    a("s_add_u32 s22, s22, s23")
    a(f"s_add_u32 s22, s22, {WS_KV}")
    a("s_waitcnt lgkmcnt(0)")
    for w in range(1, 8):
        for r in range(4):
            a(f"v_add_f32 v{32+r}, v{32+r}, v{32+4*w+r}")
        a(f"v_add_f32 v64, v64, v{64+w}")
    a(f"s_mov_b32 s24, {f32(QSCALE)}")
    for u in range(2):
        q = ACC + 4 * u; k = ACC + 8 + 4 * u; v = ACC + 16 + 4 * u
        for r in range(4):
            a(f"v_add_f32 v{q+r}, v{q+r}, v{32+r}")
            a(f"v_mul_f32 v{q+r}, s24, v{q+r}")
            a(f"v_add_f32 v{v+r}, v{v+r}, v64")
        d = 80 + 6 * u
        a(f"v_cvt_pk_bf16_f32 v{d}, v{q}, v{q+1}")
        a(f"v_cvt_pk_bf16_f32 v{d+1}, v{q+2}, v{q+3}")
        a(f"v_cvt_pk_bf16_f32 v{d+2}, v{k}, v{k+1}")
        a(f"v_cvt_pk_bf16_f32 v{d+3}, v{k+2}, v{k+3}")
        a(f"v_cvt_pk_bf16_f32 v{d+4}, v{v}, v{v+1}")
        a(f"v_cvt_pk_bf16_f32 v{d+5}, v{v+2}, v{v+3}")
        a(f"buffer_store_dwordx2 v[{d}:{d+1}], v22, s[16:19], s21 offen offset:{256*u}")
        a(f"buffer_store_dwordx2 v[{d+2}:{d+3}], v22, s[16:19], s22 offen offset:{256*u}")
        a(f"buffer_store_dwordx2 v[{d+4}:{d+5}], v23, s[16:19], s22 offen offset:{1024+512*u}")
    stamp_end(a)
    a.label("qkv_end")
    a("s_endpgm")

def k_attn(a):
    kernel_begin(a, "attn_kernel")
    a("s_cmp_ge_u32 s2, 256")
    a("s_cbranch_scc1 attn_end")
    stamp_begin(a, 2)
    a("s_load_dwordx2 s[4:5], s[0:1], 96")
    decode_hb(a, 30, 31)
    a("v_lshrrev_b32 v1, 6, v0")
    a("v_and_b32 v2, 63, v0")
    a("s_nop 0")
    a("v_readfirstlane_b32 s32, v1")
    a("v_lshlrev_b32 v3, 4, v2")
    a("s_waitcnt lgkmcnt(0)")
    srd(a, 16, 4, WS_BYTES)
    Q = 8; C = 16; S = [32, 48]; O = 64; K = [80, 84]; V = [88, 96]; IDX = 104
    a("s_lshl_b32 s20, s31, 3")
    a("s_add_u32 s20, s20, s32")
    a("s_lshl_b32 s21, s30, 16")
    a("s_lshl_b32 s22, s20, 10")
    a("s_add_u32 s21, s21, s22")
    a(f"s_add_u32 s21, s21, {WS_QF}")
    a(f"buffer_load_dwordx4 v[{Q}:{Q+3}], v3, s[16:19], s21 offen")
    a("s_lshl_b32 s22, s30, 17")
    a("s_lshl_b32 s23, s32, 14")
    a("s_add_u32 s22, s22, s23")
    a(f"s_add_u32 s22, s22, {WS_KV}")
    for grp in range(4):
        a("s_mov_b32 m0, s23")
        a("s_nop 0")
        for n in range(4):
            a(f"buffer_load_dwordx4 v3, s[16:19], s22 offen offset:{1024*n} lds")
        if grp != 3:
            a("s_add_u32 s22, s22, 4096")
            a("s_add_u32 s23, s23, 4096")
    a("v_lshrrev_b32 v4, 5, v2")
    a("v_lshlrev_b32 v4, 8, v4")
    a("v_and_b32 v5, 15, v2")
    a("v_lshl_add_u32 v4, v5, 4, v4")
    a("v_add_u32 v4, 1024, v4")
    a(f"v_mov_b32 v{IDX}, 0xdddddddd")
    for i in range(16):
        a(f"v_mov_b32 v{V[0]+i}, 0x3f803f80")
        a(f"v_mov_b32 v{O+i}, 0")
    a("s_mov_b32 s34, 0x0000ffff")
    a("s_mov_b32 s35, 0x0000ffff")
    a("s_mov_b32 s36, 0")
    stamp(a)
    a("s_waitcnt vmcnt(0)")
    stamp(a)
    a("s_barrier")
    stamp(a)
    a(f"ds_read_b128 v[{K[0]}:{K[0]+3}], v3")
    a(f"ds_read_b128 v[{K[1]}:{K[1]+3}], v3 offset:2048")
    a("s_waitcnt lgkmcnt(1)")
    a(f"v_mfma_f32_32x32x16_bf16 v[{S[0]}:{S[0]+15}], v[{K[0]}:{K[0]+3}], v[{Q}:{Q+3}], 0")
    a("s_nop 11")
    s0 = S[0]
    a(f"v_max3_f32 v6, v{s0}, v{s0+1}, v{s0+2}")
    for i in range(3, 15, 2):
        a(f"v_max3_f32 v6, v6, v{s0+i}, v{s0+i+1}")
    a(f"v_max_f32 v6, v6, v{s0+15}")
    a.label("attn_setmax")
    a("v_mov_b32 v7, v6")
    a("s_nop 1")
    a("v_permlane32_swap_b32 v7, v6")
    a("s_nop 1")
    a("v_max_f32 v6, v6, v7")
    for i in range(16):
        a(f"v_sub_f32 v{C+i}, 0, v6")
    a("s_mov_b64 exec, s[34:35]")
    a(f"ds_read_b128 v[{V[0]}:{V[0]+3}], v4")
    a(f"ds_read_b128 v[{V[0]+4}:{V[0]+7}], v4 offset:512")
    a("s_mov_b64 exec, -1")
    a(f"v_mfma_f32_32x32x16_bf16 v[{S[0]}:{S[0]+15}], v[{K[0]}:{K[0]+3}], v[{Q}:{Q+3}], v[{C}:{C+15}]")
    for i in range(8):
        a(f"v_mov_b32 v{S[1]+8+i}, 0")
    a("s_mov_b32 s37, 8")
    a("s_nop 3")
    a.raw(".p2align 6")
    a.label("attn_loop")
    for t in range(8):
        cur = S[t & 1]; nxt = S[(t + 1) & 1]
        e = lambda i: a(f"v_exp_f32 v{cur+i}, v{cur+i}")
        a("s_waitcnt lgkmcnt(0)")
        e(0); e(1)
        vp = V[(t + 1) & 1]
        a(f"v_smfmac_f32_32x32x32_bf16 v[{O}:{O+15}], v[{vp+4}:{vp+7}], v[{nxt+8}:{nxt+15}], v{IDX}")
        e(2); e(3); e(4)
        kn = K[(t + 1) & 1]
        a(f"v_mfma_f32_32x32x16_bf16 v[{nxt}:{nxt+15}], v[{kn}:{kn+3}], v[{Q}:{Q+3}], v[{C}:{C+15}]")
        kc = K[t & 1]
        a(f"ds_read_b128 v[{kc}:{kc+3}], v3 offset:{2048*(t+2)}")
        a("s_mov_b64 exec, s[34:35]")
        a(f"ds_read_b128 v[{vp}:{vp+3}], v4 offset:{2048*(t+1)}")
        a(f"ds_read_b128 v[{vp+4}:{vp+7}], v4 offset:{2048*(t+1)+512}")
        a("s_mov_b64 exec, -1")
        for i in range(5, 10): e(i)
        vc = V[t & 1]
        a(f"v_smfmac_f32_32x32x32_bf16 v[{O}:{O+15}], v[{vc}:{vc+3}], v[{cur}:{cur+7}], v{IDX}")
        for i in range(10, 16): e(i)
    a("v_add_u32 v3, 0x4000, v3")
    a("v_add_u32 v4, 0x4000, v4")
    a("s_sub_u32 s37, s37, 1")
    a("s_cmp_lg_u32 s37, 0")
    a("s_cbranch_scc1 attn_loop")
    stamp(a)
    a(f"v_smfmac_f32_32x32x32_bf16 v[{O}:{O+15}], v[{V[1]+4}:{V[1]+7}], v[{S[1]+8}:{S[1]+15}], v{IDX}")
    a("s_waitcnt lgkmcnt(0)")
    a("v_subrev_u32 v3, 0x20000, v3")
    a("v_subrev_u32 v4, 0x20000, v4")
    a("s_nop 9")
    a(f"v_mov_b32 v6, {f32(2.0**40)}")
    a(f"v_add_f32 v7, abs(v{O}), abs(v{O+1})")
    for i in range(2, 8):
        a(f"v_add_f32 v7, v7, abs(v{O+i})")
    a(f"v_mov_b32 v5, {f32(3.0e38)}")
    a(f"v_cmp_nle_f32 vcc, v{O+8}, v6")
    a(f"v_cmp_nle_f32 s[38:39], v7, v5")
    a("s_or_b64 vcc, vcc, s[38:39]")
    a("s_cmp_lg_u32 s36, 0")
    a("s_cbranch_scc1 attn_fin")
    a("s_cbranch_vccnz attn_fallback")
    a.label("attn_fin")
    a(f"v_rcp_f32 v6, v{O+8}")
    a("s_nop 0")
    for i in range(8):
        a(f"v_mul_f32 v{O+i}, v{O+i}, v6")
    for i in range(4):
        a(f"v_cvt_pk_bf16_f32 v{8+i}, v{O+2*i}, v{O+2*i+1}")
    a("s_lshl_b32 s21, s20, 15")
    a("s_lshl_b32 s22, s30, 10")
    a("s_add_u32 s21, s21, s22")
    a(f"s_add_u32 s21, s21, {WS_OF}")
    a("buffer_store_dwordx4 v[8:11], v3, s[16:19], s21 offen")
    stamp_end(a)
    a.label("attn_end")
    a("s_endpgm")
    a.label("attn_fallback")
    a("s_mov_b32 s36, 1")
    a("s_mov_b32 s37, 64")
    a("v_mov_b32 v6, 0xff800000")
    a("v_mov_b32 v5, v3")
    a.label("attn_fb_loop")
    a(f"ds_read_b128 v[{K[0]}:{K[0]+3}], v5")
    a("v_add_u32 v5, 0x800, v5")
    a("s_waitcnt lgkmcnt(0)")
    a(f"v_mfma_f32_32x32x16_bf16 v[{S[0]}:{S[0]+15}], v[{K[0]}:{K[0]+3}], v[{Q}:{Q+3}], 0")
    a("s_nop 11")
    for i in range(0, 16, 2):
        a(f"v_max3_f32 v6, v6, v{s0+i}, v{s0+i+1}")
    a("s_sub_u32 s37, s37, 1")
    a("s_cmp_lg_u32 s37, 0")
    a("s_cbranch_scc1 attn_fb_loop")
    a(f"ds_read_b128 v[{K[0]}:{K[0]+3}], v3")
    a(f"ds_read_b128 v[{K[1]}:{K[1]+3}], v3 offset:2048")
    for i in range(16):
        a(f"v_mov_b32 v{O+i}, 0")
    a("s_waitcnt lgkmcnt(0)")
    a("s_branch attn_setmax")

def k_oproj(a):
    kernel_begin(a, "oproj_kernel")
    a("s_cmp_ge_u32 s2, 256")
    a("s_cbranch_scc1 oproj_end")
    stamp_begin(a, 3)
    a("s_load_dwordx2 s[4:5], s[0:1], 96")
    a("s_load_dwordx2 s[6:7], s[0:1], 0")
    a("s_lshr_b32 s30, s2, 2")
    a("s_and_b32 s31, s2, 3")
    a("v_lshrrev_b32 v1, 6, v0")
    a("v_and_b32 v2, 63, v0")
    a("s_nop 0")
    a("v_readfirstlane_b32 s32, v1")
    a("v_lshlrev_b32 v3, 4, v2")
    a("s_waitcnt lgkmcnt(0)")
    srd(a, 16, 4, WS_BYTES)
    a("s_lshl_b32 s23, s32, 12")
    a("s_lshl_b32 s22, s30, 15")
    a("s_add_u32 s22, s22, s23")
    a(f"s_add_u32 s22, s22, {WS_OF}")
    a("s_mov_b32 m0, s23")
    a("s_nop 0")
    for n in range(4):
        a(f"buffer_load_dwordx4 v3, s[16:19], s22 offen offset:{1024*n} lds")
    a("s_lshl_b32 s20, s31, 3")
    a("s_add_u32 s20, s20, s32")
    a("s_lshl_b32 s20, s20, 14")
    a(f"s_add_u32 s20, s20, {WS_WOF}")
    for grp in range(4):
        for n in range(4):
            r = 32 + 4 * (4 * grp + n)
            a(f"buffer_load_dwordx4 v[{r}:{r+3}], v3, s[16:19], s20 offen offset:{1024*n}")
        if grp != 3:
            a("s_add_u32 s20, s20, 4096")
    a("v_lshrrev_b32 v4, 4, v0")
    a("v_and_b32 v5, 15, v0")
    a("v_lshlrev_b32 v6, 10, v4")
    a("v_lshl_add_u32 v6, v5, 4, v6")
    a("s_lshl_b32 s20, s30, 15")
    a("s_lshl_b32 s21, s31, 8")
    a("s_add_u32 s20, s20, s21")
    a("v_add_u32 v6, s20, v6")
    a("global_load_dwordx4 v[96:99], v6, s[6:7]")
    a("v_lshlrev_b32 v7, 5, v5")
    a("s_lshl_b32 s21, s31, 9")
    a(f"s_add_u32 s21, s21, {WS_MODF+4096}")
    a("buffer_load_dwordx4 v[100:103], v7, s[16:19], s21 offen")
    a("buffer_load_dwordx4 v[104:107], v7, s[16:19], s21 offen offset:16")
    a("v_lshrrev_b32 v8, 5, v2")
    a("v_lshlrev_b32 v8, 10, v8")
    a("v_bfe_u32 v9, v2, 4, 1")
    a("v_lshl_add_u32 v8, v9, 9, v8")
    a("v_and_b32 v9, 15, v2")
    a("v_lshl_add_u32 v8, v9, 4, v8")
    a("v_mul_u32_u24 v10, 528, v9")
    a("v_lshrrev_b32 v11, 4, v2")
    a("v_lshl_add_u32 v10, v11, 4, v10")
    a("s_lshl_b32 s21, s32, 6")
    a("s_add_u32 s21, s21, 32768")
    a("v_add_u32 v10, s21, v10")
    a("v_mul_u32_u24 v11, 528, v4")
    a("v_lshl_add_u32 v11, v5, 5, v11")
    a("v_add_u32 v11, 32768, v11")
    stamp(a)
    a("s_waitcnt vmcnt(19)")
    stamp(a)
    a("s_barrier")
    if PROF: a("s_waitcnt vmcnt(0)")
    stamp(a)
    OFR = 112
    def rd(s):
        b = OFR + 8 * (s & 1)
        a(f"ds_read_b128 v[{b}:{b+3}], v8 offset:{2048*s}")
        a(f"ds_read_b128 v[{b+4}:{b+7}], v8 offset:{2048*s+256}")
    rd(0)
    for s in range(16):
        if s < 15:
            rd(s + 1)
            a(f"s_waitcnt vmcnt({18-s}) lgkmcnt(2)")
        else:
            a("s_waitcnt vmcnt(3) lgkmcnt(0)")
        b = OFR + 8 * (s & 1)
        for u in range(2):
            acc = 12 + 4 * u
            c = "0" if s == 0 else f"v[{acc}:{acc+3}]"
            a(f"v_mfma_f32_16x16x32_bf16 v[{acc}:{acc+3}], v[{32+4*s}:{35+4*s}], v[{b+4*u}:{b+4*u+3}], {c}")
    stamp(a)
    a("s_nop 7")
    a("ds_write_b128 v10, v[12:15]")
    a(f"ds_write_b128 v10, v[16:19] offset:{16*528}")
    a("s_waitcnt lgkmcnt(0)")
    a("s_barrier")
    a("ds_read_b128 v[32:35], v11")
    a("ds_read_b128 v[36:39], v11 offset:16")
    a("s_waitcnt vmcnt(0)")
    unpack8(a, 40, 96)
    a("s_waitcnt lgkmcnt(0)")
    for i in range(0, 8, 2):
        rnd_pair(a, 32 + i, 33 + i, 48)
        a(f"v_mul_f32 v{32+i}, v{32+i}, v{100+i}")
        a(f"v_mul_f32 v{33+i}, v{33+i}, v{101+i}")
        rnd_pair(a, 32 + i, 33 + i, 48)
        a(f"v_add_f32 v{32+i}, v{32+i}, v{40+i}")
        a(f"v_add_f32 v{33+i}, v{33+i}, v{41+i}")
        a(f"v_cvt_pk_bf16_f32 v{52+i//2}, v{32+i}, v{33+i}")
    a(f"s_mov_b32 s21, {WS_X1}")
    a("buffer_store_dwordx4 v[52:55], v6, s[16:19], s21 offen")
    stamp_end(a)
    a.label("oproj_end")
    a("s_endpgm")

def k_ln2(a):
    kernel_begin(a, "ln2_kernel")
    a("s_cmp_ge_u32 s2, 256")
    a("s_cbranch_scc1 ln2_end")
    stamp_begin(a, 4)
    a("s_load_dwordx2 s[4:5], s[0:1], 96")
    a("s_load_dwordx2 s[6:7], s[0:1], 32")
    a("s_load_dwordx2 s[8:9], s[0:1], 80")
    a("v_and_b32 v2, 63, v0")
    a("v_lshlrev_b32 v3, 4, v0")
    a("s_lshl_b32 s20, s2, 13")
    a("v_add_u32 v3, s20, v3")
    a("v_lshlrev_b32 v4, 5, v2")
    a("v_lshlrev_b32 v5, 4, v2")
    a("s_waitcnt lgkmcnt(0)")
    srd(a, 16, 4, WS_BYTES)
    a(f"s_mov_b32 s21, {WS_X1}")
    a("buffer_load_dwordx4 v[8:11], v3, s[16:19], s21 offen")
    for j, base in enumerate((3, 4, 5)):
        a(f"s_mov_b32 s22, {WS_MODF + base*2048}")
        a(f"buffer_load_dwordx4 v[{40+8*j}:{43+8*j}], v4, s[16:19], s22 offen")
        a(f"buffer_load_dwordx4 v[{44+8*j}:{47+8*j}], v4, s[16:19], s22 offen offset:16")
    a("global_load_dwordx4 v[12:15], v5, s[6:7]")
    a("s_waitcnt vmcnt(7)")
    unpack8(a, 16, 8)
    unpack8(a, 24, 8)
    layernorm_rows(a, [24], 64)
    a("s_waitcnt vmcnt(0)")
    unpack8(a, 32, 12)
    a("v_mov_b32 v70, 0")
    for i in range(0, 8, 2):
        rnd_pair(a, 24 + i, 25 + i, 68)
        a(f"v_mul_f32 v{24+i}, v{24+i}, v{48+i}")
        a(f"v_mul_f32 v{25+i}, v{25+i}, v{49+i}")
        rnd_pair(a, 24 + i, 25 + i, 68)
        a(f"v_add_f32 v{24+i}, v{24+i}, v{40+i}")
        a(f"v_add_f32 v{25+i}, v{25+i}, v{41+i}")
        a(f"v_cvt_pk_bf16_f32 v{8+i//2}, v{24+i}, v{25+i}")
        a(f"v_lshlrev_b32 v{24+i}, 16, v{8+i//2}")
        a(f"v_and_b32 v{25+i}, 0xffff0000, v{8+i//2}")
        a(f"v_fmac_f32 v70, v{24+i}, v{32+i}")
        a(f"v_fmac_f32 v70, v{25+i}, v{33+i}")
        a(f"v_mul_f32 v{24+i}, v{24+i}, v{56+i}")
        a(f"v_mul_f32 v{25+i}, v{25+i}, v{57+i}")
        rnd_pair(a, 24 + i, 25 + i, 68)
        a(f"v_add_f32 v{24+i}, v{24+i}, v{16+i}")
        a(f"v_add_f32 v{25+i}, v{25+i}, v{17+i}")
        a(f"v_cvt_pk_bf16_f32 v{12+i//2}, v{24+i}, v{25+i}")
    a(f"s_mov_b32 s21, {WS_H2}")
    a("buffer_store_dwordx4 v[8:11], v3, s[16:19], s21 offen")
    a("global_store_dwordx4 v3, v[12:15], s[8:9]")
    multi_allreduce(a, [70], [71])
    a("v_cvt_pk_bf16_f32 v70, v70, v70")
    a("v_and_b32 v70, 0xffff0000, v70")
    a("v_ashrrev_i32 v71, 31, v70")
    a("v_or_b32 v71, 0x80000000, v71")
    a("v_xor_b32 v70, v70, v71")
    a("v_and_b32 v70, 0xffff0000, v70")
    a("v_lshrrev_b32 v71, 10, v3")
    a("v_sub_u32 v72, 0xffff, v71")
    a("v_or_b32 v70, v70, v72")
    a("v_lshlrev_b32 v71, 2, v71")
    a("v_cmp_eq_u32 vcc, 0, v2")
    a("s_and_saveexec_b64 s[22:23], vcc")
    a(f"s_mov_b32 s21, {WS_KEY}")
    a("buffer_store_dword v70, v71, s[16:19], s21 offen")
    stamp_end(a)
    a.label("ln2_end")
    a("s_endpgm")

def tr_addr_natural(a, d1, d2, lane, t1, t2):
    a(f"v_lshrrev_b32 v{t1}, 4, v{lane}")
    a(f"v_bfe_u32 v{d1}, v{lane}, 2, 2")
    a(f"v_lshlrev_b32 v{d1}, 5, v{d1}")
    a(f"v_and_b32 v{t2}, 1, v{t1}")
    a(f"v_lshlrev_b32 v{t2}, 7, v{t2}")
    a(f"v_xor_b32 v{d1}, v{d1}, v{t2}")
    a(f"v_lshl_add_u32 v{d1}, v{t1}, 8, v{d1}")
    a(f"v_and_b32 v{t2}, 3, v{lane}")
    a(f"v_lshl_add_u32 v{d1}, v{t2}, 3, v{d1}")
    a(f"v_xor_b32 v{d2}, 0x80, v{d1}")

def dma_row_src(a, d, lane, pitch, t1, t2):
    a(f"v_lshrrev_b32 v{t1}, 1, v{lane}")
    a(f"v_bfe_u32 v{t2}, v{lane}, 4, 1")
    a(f"v_lshlrev_b32 v{t2}, 2, v{t2}")
    a(f"v_xor_b32 v{t1}, v{t1}, v{t2}")
    a(f"v_mul_u32_u24 v{d}, {pitch}, v{t1}")
    a(f"v_and_b32 v{t2}, 1, v{lane}")
    a(f"v_lshl_add_u32 v{d}, v{t2}, 4, v{d}")

def k_gateup(a):
    kernel_begin(a, "gateup_kernel")
    a("s_cmp_ge_u32 s2, 112")
    a("s_cbranch_scc1 gateup_end")
    stamp_begin(a, 5)
    a("s_load_dwordx2 s[4:5], s[0:1], 96")
    a("s_load_dwordx4 s[8:11], s[0:1], 40")
    a("v_lshrrev_b32 v1, 6, v0")
    a("v_and_b32 v2, 63, v0")
    a("s_nop 0")
    a("v_readfirstlane_b32 s32, v1")
    a("v_lshlrev_b32 v3, 4, v2")
    dma_row_src(a, 4, 2, 3584, 5, 6)
    a("s_and_b32 s33, s32, 1")
    a("s_lshr_b32 s34, s32, 1")
    a("s_waitcnt lgkmcnt(0)")
    srd(a, 16, 4, WS_BYTES)
    a(f"s_mov_b32 s21, {WS_KEY}")
    for n in range(8):
        if n == 4: a(f"s_mov_b32 s21, {WS_KEY+4096}")
        a(f"buffer_load_dwordx4 v[{32+4*n}:{35+4*n}], v3, s[16:19], s21 offen offset:{1024*(n&3)}")
    a("s_cmp_eq_u32 s33, 0")
    a("s_cselect_b32 s12, s8, s10")
    a("s_cselect_b32 s13, s9, s11")
    a(f"s_mov_b32 s14, {512*3584}")
    a("s_mov_b32 s15, 0x20000")
    a(f"s_mul_i32 s22, s34, {128*3584}")
    a("s_lshl_b32 s23, s2, 5")
    a("s_add_u32 s22, s22, s23")
    a("s_lshl_b32 s23, s32, 12")
    for n in range(4):
        a("s_mov_b32 m0, s23")
        a("s_nop 0")
        a("buffer_load_dwordx4 v4, s[12:15], s22 offen lds")
        if n != 3:
            a(f"s_add_u32 s22, s22, {32*3584}")
            a("s_add_u32 s23, s23, 1024")
    tr_addr_natural(a, 8, 9, 2, 5, 6)
    a("s_lshl_b32 s23, s32, 12")
    a("v_add_u32 v8, s23, v8")
    a("v_add_u32 v9, s23, v9")
    stamp(a)
    a("s_waitcnt vmcnt(4)")
    stamp(a)
    a("v_max_u32 v10, v32, v33")
    a("v_min_u32 v11, v32, v33")
    for i in range(2, 32):
        a(f"v_med3_u32 v11, v10, v11, v{32+i}")
        a(f"v_max_u32 v10, v10, v{32+i}")
    a("v_mov_b32 v12, v10")
    multi_allreduce(a, [12], [13], op="v_max_u32")
    a("v_cmp_eq_u32 vcc, v12, v10")
    a("s_nop 1")
    a("v_cndmask_b32 v14, v10, v11, vcc")
    multi_allreduce(a, [14], [13], op="v_max_u32")
    a("v_and_b32 v15, 1, v2")
    a("v_cmp_eq_u32 vcc, 0, v15")
    a("s_nop 1")
    a("v_cndmask_b32 v16, v14, v12, vcc")
    a("v_and_b32 v17, 0xffff, v16")
    a("v_sub_u32 v17, 0xffff, v17")
    a("v_lshlrev_b32 v17, 10, v17")
    a("v_lshrrev_b32 v18, 4, v2")
    a("v_lshl_add_u32 v17, v18, 4, v17")
    a("s_lshl_b32 s21, s34, 8")
    a(f"s_add_u32 s21, s21, {WS_H2}")
    for n in range(4):
        a(f"buffer_load_dwordx4 v[{32+4*n}:{35+4*n}], v17, s[16:19], s21 offen offset:{64*n}")
    a("s_or_b32 s24, s2, s32")
    a("s_cmp_lg_u32 s24, 0")
    a("s_cbranch_scc1 gateup_nosel")
    a("v_lshlrev_b32 v19, 2, v2")
    a("v_cmp_gt_u32 vcc, 2, v2")
    a("s_and_saveexec_b64 s[26:27], vcc")
    a(f"s_mov_b32 s24, {WS_SEL}")
    a("buffer_store_dword v16, v19, s[16:19], s24 offen")
    a("s_mov_b64 exec, s[26:27]")
    a("s_waitcnt vmcnt(0)")
    a.label("gateup_nosel")
    stamp(a)
    a("s_waitcnt vmcnt(4)")
    stamp(a)
    if PROF: a("s_waitcnt vmcnt(0)")
    stamp(a)
    for n in range(4):
        a(f"ds_read_b64_tr_b16 v[{48+4*n}:{49+4*n}], v8 offset:{1024*n}")
        a(f"ds_read_b64_tr_b16 v[{50+4*n}:{51+4*n}], v9 offset:{1024*n}")
    a("s_waitcnt vmcnt(0) lgkmcnt(0)")
    for n in range(4):
        c = "0" if n == 0 else "v[20:23]"
        a(f"v_mfma_f32_16x16x32_bf16 v[20:23], v[{32+4*n}:{35+4*n}], v[{48+4*n}:{51+4*n}], {c}")
    a("s_lshl_b32 s23, s32, 7")
    a("s_add_u32 s23, s23, 32768")
    a("v_lshl_add_u32 v24, v2, 2, s23")
    a("v_cmp_gt_u32 vcc, 16, v2")
    a("s_and_saveexec_b64 s[26:27], vcc")
    a("s_nop 4")
    a("ds_write_b32 v24, v20")
    a("ds_write_b32 v24, v21 offset:64")
    a("s_mov_b64 exec, s[26:27]")
    a("s_waitcnt lgkmcnt(0)")
    a("s_barrier")
    a("v_cmp_gt_u32 vcc, 32, v0")
    a("s_and_saveexec_b64 s[26:27], vcc")
    a("s_cbranch_execz gateup_end")
    a("v_lshlrev_b32 v24, 2, v0")
    for w in range(8):
        a(f"ds_read_b32 v{32+w}, v24 offset:{32768+128*w}")
    a("s_waitcnt lgkmcnt(0)")
    for w in range(2, 8):
        a(f"v_add_f32 v{32+(w&1)}, v{32+(w&1)}, v{32+w}")
    rnd_pair(a, 32, 33, 40)
    a(f"v_mul_f32 v34, {NLOG2E:#x}, v32")
    a("v_exp_f32 v34, v34")
    a("s_nop 0")
    a("v_add_f32 v34, 1.0, v34")
    a("v_rcp_f32 v34, v34")
    a("s_nop 0")
    a("v_mul_f32 v32, v32, v34")
    rnd_bf16(a, 32)
    a("v_mul_f32 v32, v32, v33")
    a("v_cvt_pk_bf16_f32 v32, v32, v32")
    a("v_lshrrev_b32 v25, 4, v0")
    a("v_mul_u32_u24 v25, 3584, v25")
    a("v_and_b32 v26, 15, v0")
    a("v_lshl_add_u32 v25, v26, 1, v25")
    a("s_lshl_b32 s21, s2, 5")
    a(f"s_add_u32 s21, s21, {WS_ACT}")
    a("buffer_store_short v32, v25, s[16:19], s21 offen")
    stamp_end(a)
    a.label("gateup_end")
    a("s_endpgm")

def k_down(a):
    kernel_begin(a, "down_kernel")
    a("s_cmp_ge_u32 s2, 32")
    a("s_cbranch_scc1 down_end")
    stamp_begin(a, 6)
    a("s_load_dwordx2 s[4:5], s[0:1], 96")
    a("s_load_dwordx2 s[6:7], s[0:1], 56")
    a("s_load_dwordx2 s[8:9], s[0:1], 80")
    a("v_lshrrev_b32 v1, 6, v0")
    a("v_and_b32 v2, 63, v0")
    a("s_nop 0")
    a("v_readfirstlane_b32 s32, v1")
    dma_row_src(a, 4, 2, 1024, 5, 6)
    a("s_waitcnt lgkmcnt(0)")
    srd(a, 16, 4, WS_BYTES)
    srd(a, 12, 6, 1792 * 1024)
    a("v_bfe_u32 v10, v0, 4, 1")
    a("v_lshlrev_b32 v11, 2, v10")
    a(f"s_mov_b32 s24, {WS_SEL}")
    a("buffer_load_dword v12, v11, s[16:19], s24 offen")
    a("v_and_b32 v13, 1, v2")
    a("v_mul_u32_u24 v13, 3584, v13")
    a("v_lshrrev_b32 v14, 4, v2")
    a("v_lshl_add_u32 v13, v14, 4, v13")
    a("s_mul_i32 s21, s32, 448")
    a(f"s_add_u32 s21, s21, {WS_ACT}")
    for n in range(7):
        a(f"buffer_load_dwordx4 v[{32+4*n}:{35+4*n}], v13, s[16:19], s21 offen offset:{64*n}")
    a(f"s_mul_i32 s22, s32, {224*1024}")
    a("s_lshl_b32 s23, s2, 5")
    a("s_add_u32 s22, s22, s23")
    a("s_mul_i32 s23, s32, 7168")
    for n in range(7):
        a("s_mov_b32 m0, s23")
        a("s_nop 0")
        a("buffer_load_dwordx4 v4, s[12:15], s22 offen lds")
        if n != 6:
            a(f"s_add_u32 s22, s22, {32*1024}")
            a("s_add_u32 s23, s23, 1024")
    tr_addr_natural(a, 8, 9, 2, 5, 6)
    a("s_mul_i32 s23, s32, 7168")
    a("v_add_u32 v8, s23, v8")
    a("v_add_u32 v9, s23, v9")
    stamp(a)
    a("s_waitcnt vmcnt(14)")
    stamp(a)
    a("v_and_b32 v15, 0xffff, v12")
    a("v_sub_u32 v15, 0xffff, v15")
    a("v_lshlrev_b32 v15, 10, v15")
    a("v_and_b32 v16, 15, v0")
    a("v_lshl_add_u32 v15, v16, 1, v15")
    a("s_lshl_b32 s21, s2, 5")
    a("v_add_u32 v15, s21, v15")
    a(f"s_mov_b32 s24, {WS_H2}")
    a(f"s_mov_b32 s25, {WS_X1}")
    a("buffer_load_ushort v17, v15, s[16:19], s24 offen")
    a("buffer_load_ushort v18, v15, s[16:19], s25 offen")
    a("v_lshlrev_b32 v19, 2, v16")
    a("s_lshl_b32 s21, s2, 6")
    a(f"s_add_u32 s21, s21, {WS_MODF+5*2048}")
    a("buffer_load_dword v19, v19, s[16:19], s21 offen")
    a("s_waitcnt vmcnt(3)")
    stamp(a)
    for n in range(7):
        a(f"ds_read_b64_tr_b16 v[{64+4*n}:{65+4*n}], v8 offset:{1024*n}")
        a(f"ds_read_b64_tr_b16 v[{66+4*n}:{67+4*n}], v9 offset:{1024*n}")
    a("s_waitcnt lgkmcnt(0)")
    for n in range(7):
        c = "0" if n == 0 else "v[20:23]"
        a(f"v_mfma_f32_16x16x32_bf16 v[20:23], v[{32+4*n}:{35+4*n}], v[{64+4*n}:{67+4*n}], {c}")
    a("s_lshl_b32 s23, s32, 7")
    a("s_add_u32 s23, s23, 57344")
    a("v_lshl_add_u32 v24, v2, 2, s23")
    a("v_cmp_gt_u32 vcc, 16, v2")
    a("s_and_saveexec_b64 s[26:27], vcc")
    a("s_nop 4")
    a("ds_write_b32 v24, v20")
    a("ds_write_b32 v24, v21 offset:64")
    a("s_mov_b64 exec, s[26:27]")
    a("s_waitcnt lgkmcnt(0)")
    a("s_barrier")
    a("v_cmp_gt_u32 vcc, 32, v0")
    a("s_and_saveexec_b64 s[26:27], vcc")
    a("s_cbranch_execz down_end")
    a("v_lshlrev_b32 v24, 2, v0")
    for w in range(8):
        a(f"ds_read_b32 v{32+w}, v24 offset:{57344+128*w}")
    a("v_and_b32 v12, 0xffff0000, v12")
    a("v_ashrrev_i32 v25, 31, v12")
    a("v_not_b32 v25, v25")
    a("v_or_b32 v25, 0x80000000, v25")
    a("v_xor_b32 v12, v12, v25")
    a("v_and_b32 v12, 0xffff0000, v12")
    a(f"v_mul_f32 v25, {NLOG2E:#x}, v12")
    a("v_exp_f32 v25, v25")
    a("s_nop 0")
    a("v_add_f32 v25, 1.0, v25")
    a("v_rcp_f32 v25, v25")
    a("s_nop 0")
    rnd_bf16(a, 25)
    a("s_waitcnt vmcnt(0) lgkmcnt(0)")
    for w in range(1, 8):
        a(f"v_add_f32 v32, v32, v{32+w}")
    rnd_bf16(a, 32)
    a("v_mul_f32 v32, v32, v25")
    rnd_bf16(a, 32)
    a("v_lshlrev_b32 v17, 16, v17")
    a("v_lshlrev_b32 v18, 16, v18")
    a("v_add_f32 v32, v32, v17")
    rnd_bf16(a, 32)
    a("v_mul_f32 v32, v32, v19")
    rnd_bf16(a, 32)
    a("v_add_f32 v32, v32, v18")
    a("v_cvt_pk_bf16_f32 v32, v32, v32")
    a("global_store_short v15, v32, s[8:9]")
    stamp_end(a)
    a.label("down_end")
    a("s_endpgm")

KERNELS = [
    ("prep_kernel", k_prep, 256, 256, 16384, 96),
    ("qkv_kernel", k_qkv, 256, 512, 83968, 240),
    ("attn_kernel", k_attn, 256, 512, 131072 + 8192, 112),
    ("oproj_kernel", k_oproj, 256, 512, 32768 + 32 * 528, 128),
    ("ln2_kernel", k_ln2, 256, 512, 0, 80),
    ("gateup_kernel", k_gateup, 112, 512, 33792, 72),
    ("down_kernel", k_down, 32, 512, 58368, 96),
]

def main(out):
    hdr = open("adaLN_cond__mha_block__moe_arch_mod__prompt.s.ref").read().split("; Override launch")[0]
    txt = hdr
    for name, fn, gx, bx, lds, vg in KERNELS:
        txt += f"; @launch kernel={name} grid=({gx},1,1) block=({bx},1,1) lds={lds}\n"
    txt += '.amdgcn_target "amdgcn-amd-amdhsa--gfx950"\n'
    a = Asm()
    for name, fn, gx, bx, lds, vg in KERNELS:
        fn(a)
    txt += a.text()
    for name, fn, gx, bx, lds, vg in KERNELS:
        txt += kernel_desc(name, vg)
    open(out, "w").write(txt)

if __name__ == "__main__":
    if len(sys.argv) > 2 and sys.argv[2] == "prof": PROF = True
    main(sys.argv[1] if len(sys.argv) > 1 else "adaLN_cond__mha_block__moe_arch_mod__prompt.s")
```

```python
import sys
from asmlib import *

WS_MODF = 0
WS_MODB = 0x4000
WS_KEY = 0x8000
WS_ACT = 0xA000
WS_SEL = 0xC000
WS_XF = 0x100000
WS_QF = 0x300000
WS_KV = 0x500000
WS_OF = 0x900000
WS_X1 = 0xB00000
WS_H2 = 0xD00000
WS_WOF = 0xF00000
WS_BYTES = 268435456
LOG2E = 0x3fb8aa3b
NLOG2E = 0xbfb8aa3b
import struct
def f32(x): return "0x%08x" % struct.unpack("<I", struct.pack("<f", x))[0]


PROF = False
import os
CYC = bool(os.environ.get('CYC'))
DBGOUT = False
WS_STAMP = 0x2000000
class Prof:
    kid = 0
    n = 0
def stamp(a):
    if not PROF: return
    i = Prof.n; Prof.n += 1
    a(f"{'s_memtime' if CYC else 's_memrealtime'} s[{70+2*i}:{71+2*i}]")
    if not os.environ.get('NOWAIT'): a("s_waitcnt lgkmcnt(0)")
def stamp_begin(a, kid):
    Prof.kid = kid; Prof.n = 0
    if PROF:
        for i in range(1, 15): a(f"s_mov_b32 s{70+2*i}, 1")
        a("s_memtime s[64:65]")
    stamp(a)
def stamp_end(a):
    if not PROF: return
    a("s_waitcnt vmcnt(0)")
    a("s_memtime s[66:67]")
    stamp(a)
    a("s_waitcnt lgkmcnt(0)")
    a("s_mov_b64 exec, 1")
    a("v_readfirstlane_b32 s69, v0")
    a("s_and_b32 s69, s69, 0x1c0")
    a("s_lshl_b32 s68, s2, 9")
    a("s_add_u32 s69, s69, s68")
    a(f"s_add_u32 s69, s69, {WS_STAMP + Prof.kid*262144}")
    a("v_mov_b32 v1, s69")
    for i in range(Prof.n):
        a(f"v_mov_b32 v2, s{70+2*i}")
        a(f"global_store_dword v1, v2, s[4:5] offset:{4*i}")
    a("s_sub_u32 s66, s66, s64")
    a("v_mov_b32 v2, s66")
    a("global_store_dword v1, v2, s[4:5] offset:60")
    if DBGOUT:
        a("s_load_dwordx2 s[66:67], s[0:1], 88")
        a("s_waitcnt lgkmcnt(0)")
        lsk = a.newlabel("Lsk")
        a("s_and_b32 s68, s2, 31")
        a("s_cmp_lg_u32 s68, 17")
        a(f"s_cbranch_scc1 {lsk}")
        a("v_mov_b32 v1, 0")
        base = 0 if Prof.kid == 0 else 8
        a("s_not_b32 s68, s70")
        a("v_mov_b32 v2, s68")
        a(f"global_atomic_umax v1, v2, s[66:67] offset:{base}")
        a(f"v_mov_b32 v2, s{70+2*(Prof.n-1)}")
        a(f"global_atomic_umax v1, v2, s[66:67] offset:{base+4}")
        if Prof.kid == 1:
            for i in range(1, 13):
                a(f"v_mov_b32 v2, s{70+2*i}")
                a(f"global_atomic_umax v1, v2, s[66:67] offset:{12+4*i}")
        a.label(lsk)

def multi_allreduce(a, vs, ts, op="v_add_f32"):
    pad = max(0, 3 - len(vs))
    a("s_nop 1")
    for n in (8, 4, 2, 1):
        for v in vs:
            a(f"{op}_dpp v{v}, v{v}, v{v} row_ror:{n} row_mask:0xf bank_mask:0xf")
        if pad: a(f"s_nop {pad-1}")
    for sw in ("v_permlane16_swap_b32", "v_permlane32_swap_b32"):
        for v, t in zip(vs, ts):
            a(f"v_mov_b32 v{t}, v{v}")
        a("s_nop 1")
        for v, t in zip(vs, ts):
            a(f"{sw} v{t}, v{v}")
        a("s_nop 1")
        for v, t in zip(vs, ts):
            a(f"{op} v{v}, v{v}, v{t}")

def unpack8(a, dst, src):
    for i in range(4):
        a(f"v_lshlrev_b32 v{dst+2*i}, 16, v{src+i}")
        a(f"v_and_b32 v{dst+2*i+1}, 0xffff0000, v{src+i}")

def layernorm_rows(a, rows, tmp):
    n = len(rows)
    S = [tmp + i for i in range(n)]
    T = [tmp + n + i for i in range(n)]
    M = [tmp + 2 * n + i for i in range(n)]
    for q, x in enumerate(rows):
        a(f"v_add_f32 v{S[q]}, v{x}, v{x+1}")
        for i in range(2, 8):
            a(f"v_add_f32 v{S[q]}, v{S[q]}, v{x+i}")
    multi_allreduce(a, S, T)
    for q, x in enumerate(rows):
        a(f"v_mul_f32 v{M[q]}, {f32(1/512)}, v{S[q]}")
        a(f"v_sub_f32 v{T[q]}, v{x}, v{M[q]}")
        a(f"v_mul_f32 v{S[q]}, v{T[q]}, v{T[q]}")
        for i in range(1, 8):
            a(f"v_sub_f32 v{T[q]}, v{x+i}, v{M[q]}")
            a(f"v_fmac_f32 v{S[q]}, v{T[q]}, v{T[q]}")
    multi_allreduce(a, S, T)
    for q, x in enumerate(rows):
        a(f"v_mul_f32 v{S[q]}, {f32(1/512)}, v{S[q]}")
        rnd_bf16(a, S[q])
        a(f"v_add_f32 v{S[q]}, {f32(1e-5)}, v{S[q]}")
        rnd_bf16(a, S[q])
        a(f"v_sqrt_f32 v{S[q]}, v{S[q]}")
        rnd_bf16(a, M[q])
        rnd_bf16(a, S[q])
        a(f"v_rcp_f32 v{S[q]}, v{S[q]}")
        for i in range(0, 8, 2):
            a(f"v_sub_f32 v{x+i}, v{x+i}, v{M[q]}")
            a(f"v_sub_f32 v{x+i+1}, v{x+i+1}, v{M[q]}")
            a(f"v_cvt_pk_bf16_f32 v{T[q]}, v{x+i}, v{x+i+1}")
            a(f"v_lshlrev_b32 v{x+i}, 16, v{T[q]}")
            a(f"v_and_b32 v{x+i+1}, 0xffff0000, v{T[q]}")
            a(f"v_mul_f32 v{x+i}, v{x+i}, v{S[q]}")
            a(f"v_mul_f32 v{x+i+1}, v{x+i+1}, v{S[q]}")

def rnd_pair(a, x, y, t):
    a(f"v_cvt_pk_bf16_f32 v{t}, v{x}, v{y}")
    a(f"v_lshlrev_b32 v{x}, 16, v{t}")
    a(f"v_and_b32 v{y}, 0xffff0000, v{t}")

def k_prep(a):
    kernel_begin(a, "prep_kernel")
    a("s_cmp_ge_u32 s2, 256")
    a("s_cbranch_scc1 prep_end")
    stamp_begin(a, 0)
    a("s_load_dwordx2 s[4:5], s[0:1], 96")
    a("s_cmp_ge_u32 s2, 224")
    a("s_cbranch_scc1 prep_wo")
    a("s_cmp_ge_u32 s2, 96")
    a("s_cbranch_scc1 prep_xhat")
    a("s_load_dwordx2 s[6:7], s[0:1], 64")
    a("s_load_dwordx2 s[8:9], s[0:1], 72")
    a("v_and_b32 v1, 3, v0")
    a("v_lshrrev_b32 v2, 2, v0")
    a("v_mul_u32_u24 v3, 6144, v2")
    a("v_lshl_add_u32 v3, v1, 4, v3")
    a("s_lshl_b32 s3, s2, 6")
    a("v_add_u32 v3, s3, v3")
    a("v_lshlrev_b32 v4, 1, v2")
    a("s_waitcnt lgkmcnt(0)")
    srd(a, 12, 8, 512 * 6144)
    srd(a, 16, 6, 1024)
    for p in range(8):
        a(f"buffer_load_ushort v{10+p}, v4, s[16:19], 0 offen offset:{128*p}")
    for p in range(8):
        a(f"s_mov_b32 s20, {p*393216}")
        a(f"buffer_load_dwordx4 v[{20+4*p}:{23+4*p}], v3, s[12:15], s20 offen")
    for i in range(8):
        a(f"v_mov_b32 v{60+i}, 0")
    stamp(a)
    a("s_waitcnt vmcnt(8)")
    stamp(a)
    for p in range(8):
        c = 10 + p
        a(f"v_lshlrev_b32 v{c}, 16, v{c}")
        a(f"v_mul_f32 v{70+p}, {NLOG2E:#x}, v{c}")
        a(f"v_exp_f32 v{70+p}, v{70+p}")
    for p in range(8):
        a(f"v_add_f32 v{70+p}, 1.0, v{70+p}")
        a(f"v_rcp_f32 v{70+p}, v{70+p}")
    for p in range(8):
        a(f"v_mul_f32 v{10+p}, v{10+p}, v{70+p}")
        rnd_bf16(a, 10 + p)
    for p in range(8):
        a(f"s_waitcnt vmcnt({7-p})")
        for i in range(4):
            w = 20 + 4 * p + i
            a(f"v_lshlrev_b32 v70, 16, v{w}")
            a(f"v_and_b32 v71, 0xffff0000, v{w}")
            a(f"v_fmac_f32 v{60+2*i}, v70, v{10+p}")
            a(f"v_fmac_f32 v{61+2*i}, v71, v{10+p}")
    stamp(a)
    a("s_nop 1")
    for n in (4, 8):
        for i in range(8):
            a(f"v_add_f32_dpp v{60+i}, v{60+i}, v{60+i} row_ror:{n} row_mask:0xf bank_mask:0xf")
    a("v_lshrrev_b32 v5, 4, v0")
    a("v_lshlrev_b32 v5, 7, v5")
    a("v_lshl_add_u32 v5, v1, 5, v5")
    a("v_and_b32 v6, 15, v0")
    a("v_cmp_gt_u32 vcc, 4, v6")
    a("s_and_saveexec_b64 s[22:23], vcc")
    a("ds_write_b128 v5, v[60:63]")
    a("ds_write_b128 v5, v[64:67] offset:16")
    a("s_mov_b64 exec, s[22:23]")
    a("s_waitcnt lgkmcnt(0)")
    a("s_barrier")
    a("v_cmp_gt_u32 vcc, 32, v0")
    a("s_and_saveexec_b64 s[22:23], vcc")
    a("s_cbranch_execz prep_end")
    a("v_lshlrev_b32 v5, 2, v0")
    for i in range(16):
        a(f"ds_read_b32 v{20+i}, v5 offset:{128*i}")
    a("s_waitcnt lgkmcnt(0)")
    for i in range(1, 16):
        a(f"v_add_f32 v20, v20, v{20+i}")
    rnd_bf16(a, 20)
    a("s_lshr_b32 s24, s2, 4")
    a("s_mov_b32 s25, 0")
    a("s_cmp_eq_u32 s24, 1")
    a("s_cselect_b32 s25, 1.0, s25")
    a("s_cmp_eq_u32 s24, 4")
    a("s_cselect_b32 s25, 1.0, s25")
    a("v_add_f32 v20, s25, v20")
    rnd_bf16(a, 20)
    a("s_lshl_b32 s3, s2, 7")
    a("v_add_u32 v5, s3, v5")
    a(f"global_store_dword v5, v20, s[4:5] offset:{WS_MODF}")
    a("v_lshrrev_b32 v5, 1, v5")
    a(f"v_add_u32 v5, {WS_MODB}, v5")
    a("global_store_short_d16_hi v5, v20, s[4:5]")
    stamp_end(a)
    a("s_endpgm")
    Prof.n = 1
    a.label("prep_xhat")
    a("s_load_dwordx2 s[6:7], s[0:1], 0")
    a("s_sub_u32 s3, s2, 96")
    a("v_lshrrev_b32 v1, 6, v0")
    a("v_and_b32 v2, 63, v0")
    a("v_lshlrev_b32 v3, 12, v1")
    a("v_lshl_add_u32 v3, v2, 4, v3")
    a("s_lshl_b32 s8, s3, 14")
    a("v_add_u32 v3, s8, v3")
    a("s_waitcnt lgkmcnt(0)")
    for q in range(4):
        a(f"global_load_dwordx4 v[{8+4*q}:{11+4*q}], v3, s[6:7] offset:{1024*q}")
    a("v_lshlrev_b32 v4, 8, v2")
    a("v_lshl_add_u32 v4, v1, 6, v4")
    a(f"s_add_u32 s8, s8, {WS_XF}")
    a("v_add_u32 v4, s8, v4")
    rows = [24 + 8 * q for q in range(4)]
    stamp(a)
    if PROF: a("s_waitcnt vmcnt(0)")
    stamp(a)
    for q in range(4):
        a(f"s_waitcnt vmcnt({3-q})")
        unpack8(a, rows[q], 8 + 4 * q)
    layernorm_rows(a, rows, 60)
    for q in range(4):
        for i in range(4):
            a(f"v_cvt_pk_bf16_f32 v{8+4*q+i}, v{rows[q]+2*i}, v{rows[q]+2*i+1}")
        if q == 0: stamp(a)
        a(f"global_store_dwordx4 v4, v[{8+4*q}:{11+4*q}], s[4:5] offset:{16*q}")
    stamp_end(a)
    a("s_endpgm")
    Prof.n = 1
    a.label("prep_wo")
    a("s_load_dwordx2 s[6:7], s[0:1], 16")
    a("s_sub_u32 s3, s2, 224")
    a("v_lshrrev_b32 v1, 1, v0")
    a("v_lshlrev_b32 v1, 10, v1")
    a("v_and_b32 v2, 1, v0")
    a("v_lshl_add_u32 v1, v2, 4, v1")
    a("s_lshl_b32 s8, s3, 5")
    a("v_add_u32 v1, s8, v1")
    a("s_waitcnt lgkmcnt(0)")
    srd(a, 12, 6, 512 * 1024)
    for p in range(4):
        a(f"s_mov_b32 s20, {p*131072}")
        a(f"buffer_load_dwordx4 v[{8+4*p}:{11+4*p}], v1, s[12:15], s20 offen")
    a("v_lshlrev_b32 v2, 4, v0")
    for p in range(4):
        a(f"s_waitcnt vmcnt({3-p})")
        a(f"ds_write_b128 v2, v[{8+4*p}:{11+4*p}] offset:{4096*p}")
    a("v_and_b32 v3, 63, v0")
    a("v_lshrrev_b32 v4, 5, v3")
    a("v_lshlrev_b32 v4, 9, v4")
    a("v_bfe_u32 v5, v3, 4, 1")
    a("v_lshl_add_u32 v4, v5, 7, v4")
    a("v_bfe_u32 v5, v3, 2, 2")
    a("v_lshl_add_u32 v4, v5, 5, v4")
    a("v_and_b32 v5, 3, v3")
    a("v_lshl_add_u32 v4, v5, 3, v4")
    a("v_lshrrev_b32 v5, 6, v0")
    a("v_lshl_add_u32 v4, v5, 12, v4")
    a("v_lshlrev_b32 v6, 12, v5")
    a("v_lshl_add_u32 v6, v3, 4, v6")
    a("s_lshl_b32 s8, s3, 14")
    a(f"s_add_u32 s8, s8, {WS_WOF}")
    a("v_add_u32 v6, s8, v6")
    a("s_waitcnt lgkmcnt(0)")
    a("s_barrier")
    for n in range(4):
        a(f"ds_read_b64_tr_b16 v[{8+4*n}:{9+4*n}], v4 offset:{1024*n}")
        a(f"ds_read_b64_tr_b16 v[{10+4*n}:{11+4*n}], v4 offset:{1024*n+256}")
    for n in range(4):
        a(f"s_waitcnt lgkmcnt({6-2*n})")
        a(f"global_store_dwordx4 v6, v[{8+4*n}:{11+4*n}], s[4:5] offset:{1024*n}")
    stamp_end(a)
    a.label("prep_end")
    a("s_endpgm")

def decode_hb(a, sh, sb):
    a("s_and_b32 s3, s2, 7")
    a("s_lshr_b32 s28, s2, 3")
    a(f"s_and_b32 s{sb}, s3, 3")
    a(f"s_lshl_b32 s{sb}, s{sb}, 1")
    a("s_and_b32 s29, s28, 1")
    a(f"s_add_u32 s{sb}, s{sb}, s29")
    a(f"s_lshr_b32 s{sh}, s3, 2")
    a(f"s_lshl_b32 s{sh}, s{sh}, 4")
    a("s_lshr_b32 s29, s28, 1")
    a(f"s_add_u32 s{sh}, s{sh}, s29")

QSCALE = 0.25 * 1.4426950408889634
def k_qkv(a):
    kernel_begin(a, "qkv_kernel")
    a("s_cmp_ge_u32 s2, 256")
    a("s_cbranch_scc1 qkv_end")
    stamp_begin(a, 1)
    a("s_load_dwordx2 s[4:5], s[0:1], 96")
    a("s_load_dwordx2 s[6:7], s[0:1], 8")
    decode_hb(a, 30, 31)
    a("v_lshrrev_b32 v1, 6, v0")
    a("v_and_b32 v2, 63, v0")
    a("s_nop 0")
    a("v_readfirstlane_b32 s32, v1")
    a("v_lshrrev_b32 v3, 1, v0")
    a("v_lshlrev_b32 v4, 2, v3")
    a("v_mul_u32_u24 v5, 3072, v3")
    a("v_and_b32 v6, 1, v0")
    a("v_lshl_add_u32 v5, v6, 4, v5")
    a("s_lshl_b32 s33, s30, 5")
    a("v_add_u32 v5, s33, v5")
    a("s_waitcnt lgkmcnt(0)")
    srd(a, 12, 6, 512 * 3072)
    srd(a, 16, 4, WS_BYTES)
    WR = 160
    for p in range(2):
        for t in range(3):
            a(f"s_mov_b32 s20, {p*256*3072 + t*1024}")
            r = WR + 4 * (3 * p + t)
            a(f"buffer_load_dwordx4 v[{r}:{r+3}], v5, s[12:15], s20 offen")
    a(f"buffer_load_dword v184, v4, s[16:19], 0 offen offset:{WS_MODF+2048}")
    a(f"buffer_load_dword v185, v4, s[16:19], 0 offen offset:{WS_MODF+2048+1024}")
    a("v_lshrrev_b32 v7, 4, v2")
    a("v_lshlrev_b32 v8, 4, v7")
    a("s_lshl_b32 s20, s32, 7")
    a(f"s_add_u32 s20, s20, {WS_MODB}")
    a("buffer_load_dwordx4 v[188:191], v8, s[16:19], s20 offen")
    a("buffer_load_dwordx4 v[192:195], v8, s[16:19], s20 offen offset:64")
    XR = 32
    a("v_lshlrev_b32 v9, 4, v2")
    a("s_lshl_b32 s20, s31, 18")
    a("s_lshl_b32 s21, s32, 15")
    a("s_add_u32 s20, s20, s21")
    a(f"s_add_u32 s20, s20, {WS_XF}")
    for grp in range(8):
        for n in range(4):
            r = XR + 4 * (4 * grp + n)
            a(f"buffer_load_dwordx4 v[{r}:{r+3}], v9, s[16:19], s20 offen offset:{1024*n}")
        if grp != 7:
            a("s_add_u32 s20, s20, 4096")
    a("v_lshlrev_b32 v10, 5, v3")
    a("v_bfe_u32 v11, v3, 3, 1")
    a("v_lshlrev_b32 v11, 7, v11")
    a("v_xor_b32 v10, v10, v11")
    a("v_lshl_add_u32 v10, v6, 4, v10")
    a("v_add_u32 v11, 49152, v10")
    a("v_bfe_u32 v12, v2, 2, 2")
    a("v_lshlrev_b32 v12, 5, v12")
    a("v_and_b32 v13, 1, v7")
    a("v_lshlrev_b32 v13, 7, v13")
    a("v_xor_b32 v12, v12, v13")
    a("v_lshl_add_u32 v12, v7, 8, v12")
    a("v_and_b32 v13, 3, v2")
    a("v_lshl_add_u32 v12, v13, 3, v12")
    a("v_xor_b32 v13, 0x80, v12")
    a("s_lshl_b32 s21, s32, 11")
    a("s_add_u32 s21, s21, 49152")
    a("v_add_u32 v14, s21, v12")
    a("v_add_u32 v15, s21, v13")
    stamp(a)
    a("s_waitcnt vmcnt(36)")
    stamp(a)
    for p in range(2):
        a(f"ds_write_b128 v11, v[{WR+12*p}:{WR+12*p+3}] offset:{8192*p}")
        a(f"ds_write_b128 v11, v[{WR+12*p+8}:{WR+12*p+11}] offset:{16384+8192*p}")
    a("s_waitcnt vmcnt(34)")
    for p in range(2):
        for t in range(3):
            r = WR + 4 * (3 * p + t)
            d = 200 + 4 * ((3 * p + t) & 1)
            for i in range(4):
                a(f"v_lshlrev_b32 v16, 16, v{r+i}")
                a(f"v_and_b32 v17, 0xffff0000, v{r+i}")
                a(f"v_mul_f32 v16, v16, v{184+p}")
                a(f"v_mul_f32 v17, v17, v{184+p}")
                a(f"v_cvt_pk_bf16_f32 v{d+i}, v16, v17")
            a(f"ds_write_b128 v10, v[{d}:{d+3}] offset:{16384*t+8192*p}")
    a("s_waitcnt lgkmcnt(0)")
    a("s_barrier")
    stamp(a)
    if PROF: a("s_waitcnt vmcnt(15)")
    stamp(a)
    if PROF: a("s_waitcnt vmcnt(0)")
    stamp(a)
    for n in range(2):
        a(f"ds_read_b64_tr_b16 v[{160+8*n}:{161+8*n}], v14 offset:{1024*n}")
        a(f"ds_read_b64_tr_b16 v[{162+8*n}:{163+8*n}], v15 offset:{1024*n}")
        a(f"ds_read_b64_tr_b16 v[{164+8*n}:{165+8*n}], v14 offset:{16384+1024*n}")
        a(f"ds_read_b64_tr_b16 v[{166+8*n}:{167+8*n}], v15 offset:{16384+1024*n}")
    WF = [216, 228]
    def rd_w(s):
        b = WF[s & 1]
        for t in range(3):
            a(f"ds_read_b64_tr_b16 v[{b+4*t}:{b+4*t+1}], v12 offset:{16384*t+1024*s}")
            a(f"ds_read_b64_tr_b16 v[{b+4*t+2}:{b+4*t+3}], v13 offset:{16384*t+1024*s}")
    rd_w(0)
    a("s_waitcnt vmcnt(32) lgkmcnt(6)")
    a("v_mfma_f32_16x16x32_bf16 v[208:211], v[160:163], v[188:191], 0")
    a("v_mfma_f32_16x16x32_bf16 v[212:215], v[188:191], v[164:167], 0")
    a("v_mfma_f32_16x16x32_bf16 v[208:211], v[168:171], v[192:195], v[208:211]")
    a("v_mfma_f32_16x16x32_bf16 v[212:215], v[192:195], v[172:175], v[212:215]")
    a("s_lshl_b32 s21, s32, 7")
    a("s_add_u32 s21, s21, 81920")
    a("v_lshl_add_u32 v16, v7, 4, s21")
    a("v_and_b32 v17, 15, v2")
    a("v_lshl_add_u32 v17, v17, 2, s21")
    a("s_nop 4")
    a("ds_write_b128 v16, v[208:211]")
    a("ds_write_b32 v17, v212 offset:64")
    ACC = 176
    for s in range(16):
        if s < 15:
            rd_w(s + 1)
            a(f"s_waitcnt vmcnt({15-s}) lgkmcnt(6)")
        else:
            a("s_waitcnt vmcnt(0) lgkmcnt(0)")
        b = WF[s & 1]
        for u in range(2):
            x = XR + 4 * (16 * u + s)
            for t in range(3):
                acc = ACC + 8 * t + 4 * u
                c = "0" if s == 0 else f"v[{acc}:{acc+3}]"
                if t < 2:
                    a(f"v_mfma_f32_16x16x32_bf16 v[{acc}:{acc+3}], v[{b+4*t}:{b+4*t+3}], v[{x}:{x+3}], {c}")
                else:
                    a(f"v_mfma_f32_16x16x32_bf16 v[{acc}:{acc+3}], v[{x}:{x+3}], v[{b+4*t}:{b+4*t+3}], {c}")
    a("s_barrier")
    stamp(a)
    a("v_lshlrev_b32 v16, 4, v7")
    a("v_add_u32 v16, 81920, v16")
    a("v_and_b32 v17, 15, v2")
    a("v_lshlrev_b32 v18, 2, v17")
    a("v_add_u32 v18, 81920, v18")
    for w in range(8):
        a(f"ds_read_b128 v[{32+4*w}:{35+4*w}], v16 offset:{128*w}")
        a(f"ds_read_b32 v{64+w}, v18 offset:{128*w+64}")
    a("v_lshrrev_b32 v20, 1, v7")
    a("v_and_b32 v21, 1, v7")
    a("v_lshlrev_b32 v21, 3, v21")
    a("v_lshl_add_u32 v21, v17, 4, v21")
    a("v_lshl_add_u32 v22, v20, 9, v21")
    a("v_lshl_add_u32 v23, v20, 8, v21")
    a("s_lshl_b32 s20, s31, 3")
    a("s_add_u32 s20, s20, s32")
    a("s_lshl_b32 s21, s30, 16")
    a("s_lshl_b32 s22, s20, 10")
    a("s_add_u32 s21, s21, s22")
    a(f"s_add_u32 s21, s21, {WS_QF}")
    a("s_lshl_b32 s22, s30, 17")
    a("s_lshl_b32 s23, s20, 11")
    a("s_add_u32 s22, s22, s23")
    a(f"s_add_u32 s22, s22, {WS_KV}")
    a("s_waitcnt lgkmcnt(0)")
    for w in range(1, 8):
        for r in range(4):
            a(f"v_add_f32 v{32+r}, v{32+r}, v{32+4*w+r}")
        a(f"v_add_f32 v64, v64, v{64+w}")
    a(f"s_mov_b32 s24, {f32(QSCALE)}")
    for u in range(2):
        q = ACC + 4 * u; k = ACC + 8 + 4 * u; v = ACC + 16 + 4 * u
        for r in range(4):
            a(f"v_add_f32 v{q+r}, v{q+r}, v{32+r}")
            a(f"v_mul_f32 v{q+r}, s24, v{q+r}")
            a(f"v_add_f32 v{v+r}, v{v+r}, v64")
        d = 80 + 6 * u
        a(f"v_cvt_pk_bf16_f32 v{d}, v{q}, v{q+1}")
        a(f"v_cvt_pk_bf16_f32 v{d+1}, v{q+2}, v{q+3}")
        a(f"v_cvt_pk_bf16_f32 v{d+2}, v{k}, v{k+1}")
        a(f"v_cvt_pk_bf16_f32 v{d+3}, v{k+2}, v{k+3}")
        a(f"v_cvt_pk_bf16_f32 v{d+4}, v{v}, v{v+1}")
        a(f"v_cvt_pk_bf16_f32 v{d+5}, v{v+2}, v{v+3}")
        a(f"buffer_store_dwordx2 v[{d}:{d+1}], v22, s[16:19], s21 offen offset:{256*u}")
        a(f"buffer_store_dwordx2 v[{d+2}:{d+3}], v22, s[16:19], s22 offen offset:{256*u}")
        a(f"buffer_store_dwordx2 v[{d+4}:{d+5}], v23, s[16:19], s22 offen offset:{1024+512*u}")
    stamp_end(a)
    a.label("qkv_end")
    a("s_endpgm")

def k_attn(a):
    kernel_begin(a, "attn_kernel")
    a("s_cmp_ge_u32 s2, 256")
    a("s_cbranch_scc1 attn_end")
    stamp_begin(a, 2)
    a("s_load_dwordx2 s[4:5], s[0:1], 96")
    decode_hb(a, 30, 31)
    a("v_lshrrev_b32 v1, 6, v0")
    a("v_and_b32 v2, 63, v0")
    a("s_nop 0")
    a("v_readfirstlane_b32 s32, v1")
    a("v_lshlrev_b32 v3, 4, v2")
    a("s_waitcnt lgkmcnt(0)")
    srd(a, 16, 4, WS_BYTES)
    Q = 8; C = 16; S = [32, 48]; O = 64; K = [80, 84]; V = [88, 96]; IDX = 104
    a("s_lshl_b32 s20, s31, 3")
    a("s_add_u32 s20, s20, s32")
    a("s_lshl_b32 s21, s30, 16")
    a("s_lshl_b32 s22, s20, 10")
    a("s_add_u32 s21, s21, s22")
    a(f"s_add_u32 s21, s21, {WS_QF}")
    a(f"buffer_load_dwordx4 v[{Q}:{Q+3}], v3, s[16:19], s21 offen")
    a("s_lshl_b32 s22, s30, 17")
    a("s_lshl_b32 s23, s32, 14")
    a("s_add_u32 s22, s22, s23")
    a(f"s_add_u32 s22, s22, {WS_KV}")
    for grp in range(4):
        a("s_mov_b32 m0, s23")
        a("s_nop 0")
        for n in range(4):
            a(f"buffer_load_dwordx4 v3, s[16:19], s22 offen offset:{1024*n} lds")
        if grp != 3:
            a("s_add_u32 s22, s22, 4096")
            a("s_add_u32 s23, s23, 4096")
    a("v_lshrrev_b32 v4, 5, v2")
    a("v_lshlrev_b32 v4, 8, v4")
    a("v_and_b32 v5, 15, v2")
    a("v_lshl_add_u32 v4, v5, 4, v4")
    a("v_add_u32 v4, 1024, v4")
    a(f"v_mov_b32 v{IDX}, 0xdddddddd")
    for i in range(16):
        a(f"v_mov_b32 v{V[0]+i}, 0x3f803f80")
        a(f"v_mov_b32 v{O+i}, 0")
    a("s_mov_b32 s34, 0x0000ffff")
    a("s_mov_b32 s35, 0x0000ffff")
    a("s_mov_b32 s36, 0")
    stamp(a)
    a("s_waitcnt vmcnt(0)")
    stamp(a)
    a("s_barrier")
    stamp(a)
    a(f"ds_read_b128 v[{K[0]}:{K[0]+3}], v3")
    a(f"ds_read_b128 v[{K[1]}:{K[1]+3}], v3 offset:2048")
    a("s_waitcnt lgkmcnt(1)")
    a(f"v_mfma_f32_32x32x16_bf16 v[{S[0]}:{S[0]+15}], v[{K[0]}:{K[0]+3}], v[{Q}:{Q+3}], 0")
    a("s_nop 11")
    s0 = S[0]
    a(f"v_max3_f32 v6, v{s0}, v{s0+1}, v{s0+2}")
    for i in range(3, 15, 2):
        a(f"v_max3_f32 v6, v6, v{s0+i}, v{s0+i+1}")
    a(f"v_max_f32 v6, v6, v{s0+15}")
    a.label("attn_setmax")
    a("v_mov_b32 v7, v6")
    a("s_nop 1")
    a("v_permlane32_swap_b32 v7, v6")
    a("s_nop 1")
    a("v_max_f32 v6, v6, v7")
    for i in range(16):
        a(f"v_sub_f32 v{C+i}, 0, v6")
    a("s_mov_b64 exec, s[34:35]")
    a(f"ds_read_b128 v[{V[0]}:{V[0]+3}], v4")
    a(f"ds_read_b128 v[{V[0]+4}:{V[0]+7}], v4 offset:512")
    a("s_mov_b64 exec, -1")
    a(f"v_mfma_f32_32x32x16_bf16 v[{S[0]}:{S[0]+15}], v[{K[0]}:{K[0]+3}], v[{Q}:{Q+3}], v[{C}:{C+15}]")
    for i in range(8):
        a(f"v_mov_b32 v{S[1]+8+i}, 0")
    a("s_mov_b32 s37, 8")
    a("s_nop 3")
    a.raw(".p2align 6")
    a.label("attn_loop")
    for t in range(8):
        cur = S[t & 1]; nxt = S[(t + 1) & 1]
        e = lambda i: a(f"v_exp_f32 v{cur+i}, v{cur+i}")
        a("s_waitcnt lgkmcnt(0)")
        e(0); e(1)
        vp = V[(t + 1) & 1]
        a(f"v_smfmac_f32_32x32x32_bf16 v[{O}:{O+15}], v[{vp+4}:{vp+7}], v[{nxt+8}:{nxt+15}], v{IDX}")
        e(2); e(3); e(4)
        kn = K[(t + 1) & 1]
        a(f"v_mfma_f32_32x32x16_bf16 v[{nxt}:{nxt+15}], v[{kn}:{kn+3}], v[{Q}:{Q+3}], v[{C}:{C+15}]")
        kc = K[t & 1]
        a(f"ds_read_b128 v[{kc}:{kc+3}], v3 offset:{2048*(t+2)}")
        a("s_mov_b64 exec, s[34:35]")
        a(f"ds_read_b128 v[{vp}:{vp+3}], v4 offset:{2048*(t+1)}")
        a(f"ds_read_b128 v[{vp+4}:{vp+7}], v4 offset:{2048*(t+1)+512}")
        a("s_mov_b64 exec, -1")
        for i in range(5, 10): e(i)
        vc = V[t & 1]
        a(f"v_smfmac_f32_32x32x32_bf16 v[{O}:{O+15}], v[{vc}:{vc+3}], v[{cur}:{cur+7}], v{IDX}")
        for i in range(10, 16): e(i)
    a("v_add_u32 v3, 0x4000, v3")
    a("v_add_u32 v4, 0x4000, v4")
    a("s_sub_u32 s37, s37, 1")
    a("s_cmp_lg_u32 s37, 0")
    a("s_cbranch_scc1 attn_loop")
    stamp(a)
    a(f"v_smfmac_f32_32x32x32_bf16 v[{O}:{O+15}], v[{V[1]+4}:{V[1]+7}], v[{S[1]+8}:{S[1]+15}], v{IDX}")
    a("s_waitcnt lgkmcnt(0)")
    a("v_subrev_u32 v3, 0x20000, v3")
    a("v_subrev_u32 v4, 0x20000, v4")
    a("s_nop 9")
    a(f"v_mov_b32 v6, {f32(2.0**40)}")
    a(f"v_add_f32 v7, abs(v{O}), abs(v{O+1})")
    for i in range(2, 8):
        a(f"v_add_f32 v7, v7, abs(v{O+i})")
    a(f"v_mov_b32 v5, {f32(3.0e38)}")
    a(f"v_cmp_nle_f32 vcc, v{O+8}, v6")
    a(f"v_cmp_nle_f32 s[38:39], v7, v5")
    a("s_or_b64 vcc, vcc, s[38:39]")
    a("s_cmp_lg_u32 s36, 0")
    a("s_cbranch_scc1 attn_fin")
    a("s_cbranch_vccnz attn_fallback")
    a.label("attn_fin")
    a(f"v_rcp_f32 v6, v{O+8}")
    a("s_nop 0")
    for i in range(8):
        a(f"v_mul_f32 v{O+i}, v{O+i}, v6")
    for i in range(4):
        a(f"v_cvt_pk_bf16_f32 v{8+i}, v{O+2*i}, v{O+2*i+1}")
    a("s_lshl_b32 s21, s20, 15")
    a("s_lshl_b32 s22, s30, 10")
    a("s_add_u32 s21, s21, s22")
    a(f"s_add_u32 s21, s21, {WS_OF}")
    a("buffer_store_dwordx4 v[8:11], v3, s[16:19], s21 offen")
    stamp_end(a)
    a.label("attn_end")
    a("s_endpgm")
    a.label("attn_fallback")
    a("s_mov_b32 s36, 1")
    a("s_mov_b32 s37, 64")
    a("v_mov_b32 v6, 0xff800000")
    a("v_mov_b32 v5, v3")
    a.label("attn_fb_loop")
    a(f"ds_read_b128 v[{K[0]}:{K[0]+3}], v5")
    a("v_add_u32 v5, 0x800, v5")
    a("s_waitcnt lgkmcnt(0)")
    a(f"v_mfma_f32_32x32x16_bf16 v[{S[0]}:{S[0]+15}], v[{K[0]}:{K[0]+3}], v[{Q}:{Q+3}], 0")
    a("s_nop 11")
    for i in range(0, 16, 2):
        a(f"v_max3_f32 v6, v6, v{s0+i}, v{s0+i+1}")
    a("s_sub_u32 s37, s37, 1")
    a("s_cmp_lg_u32 s37, 0")
    a("s_cbranch_scc1 attn_fb_loop")
    a(f"ds_read_b128 v[{K[0]}:{K[0]+3}], v3")
    a(f"ds_read_b128 v[{K[1]}:{K[1]+3}], v3 offset:2048")
    for i in range(16):
        a(f"v_mov_b32 v{O+i}, 0")
    a("s_waitcnt lgkmcnt(0)")
    a("s_branch attn_setmax")

def k_oproj(a):
    kernel_begin(a, "oproj_kernel")
    a("s_cmp_ge_u32 s2, 256")
    a("s_cbranch_scc1 oproj_end")
    stamp_begin(a, 3)
    a("s_load_dwordx2 s[4:5], s[0:1], 96")
    a("s_load_dwordx2 s[6:7], s[0:1], 0")
    a("s_lshr_b32 s30, s2, 2")
    a("s_and_b32 s31, s2, 3")
    a("v_lshrrev_b32 v1, 6, v0")
    a("v_and_b32 v2, 63, v0")
    a("s_nop 0")
    a("v_readfirstlane_b32 s32, v1")
    a("v_lshlrev_b32 v3, 4, v2")
    a("s_waitcnt lgkmcnt(0)")
    srd(a, 16, 4, WS_BYTES)
    a("s_lshl_b32 s23, s32, 12")
    a("s_lshl_b32 s22, s30, 15")
    a("s_add_u32 s22, s22, s23")
    a(f"s_add_u32 s22, s22, {WS_OF}")
    a("s_mov_b32 m0, s23")
    a("s_nop 0")
    for n in range(4):
        a(f"buffer_load_dwordx4 v3, s[16:19], s22 offen offset:{1024*n} lds")
    a("s_lshl_b32 s20, s31, 3")
    a("s_add_u32 s20, s20, s32")
    a("s_lshl_b32 s20, s20, 14")
    a(f"s_add_u32 s20, s20, {WS_WOF}")
    for grp in range(4):
        for n in range(4):
            r = 32 + 4 * (4 * grp + n)
            a(f"buffer_load_dwordx4 v[{r}:{r+3}], v3, s[16:19], s20 offen offset:{1024*n}")
        if grp != 3:
            a("s_add_u32 s20, s20, 4096")
    a("v_lshrrev_b32 v4, 4, v0")
    a("v_and_b32 v5, 15, v0")
    a("v_lshlrev_b32 v6, 10, v4")
    a("v_lshl_add_u32 v6, v5, 4, v6")
    a("s_lshl_b32 s20, s30, 15")
    a("s_lshl_b32 s21, s31, 8")
    a("s_add_u32 s20, s20, s21")
    a("v_add_u32 v6, s20, v6")
    a("global_load_dwordx4 v[96:99], v6, s[6:7]")
    a("v_lshlrev_b32 v7, 5, v5")
    a("s_lshl_b32 s21, s31, 9")
    a(f"s_add_u32 s21, s21, {WS_MODF+4096}")
    a("buffer_load_dwordx4 v[100:103], v7, s[16:19], s21 offen")
    a("buffer_load_dwordx4 v[104:107], v7, s[16:19], s21 offen offset:16")
    a("v_lshrrev_b32 v8, 5, v2")
    a("v_lshlrev_b32 v8, 10, v8")
    a("v_bfe_u32 v9, v2, 4, 1")
    a("v_lshl_add_u32 v8, v9, 9, v8")
    a("v_and_b32 v9, 15, v2")
    a("v_lshl_add_u32 v8, v9, 4, v8")
    a("v_mul_u32_u24 v10, 528, v9")
    a("v_lshrrev_b32 v11, 4, v2")
    a("v_lshl_add_u32 v10, v11, 4, v10")
    a("s_lshl_b32 s21, s32, 6")
    a("s_add_u32 s21, s21, 32768")
    a("v_add_u32 v10, s21, v10")
    a("v_mul_u32_u24 v11, 528, v4")
    a("v_lshl_add_u32 v11, v5, 5, v11")
    a("v_add_u32 v11, 32768, v11")
    stamp(a)
    a("s_waitcnt vmcnt(19)")
    stamp(a)
    a("s_barrier")
    if PROF: a("s_waitcnt vmcnt(0)")
    stamp(a)
    OFR = 112
    def rd(s):
        b = OFR + 8 * (s & 1)
        a(f"ds_read_b128 v[{b}:{b+3}], v8 offset:{2048*s}")
        a(f"ds_read_b128 v[{b+4}:{b+7}], v8 offset:{2048*s+256}")
    rd(0)
    for s in range(16):
        if s < 15:
            rd(s + 1)
            a(f"s_waitcnt vmcnt({18-s}) lgkmcnt(2)")
        else:
            a("s_waitcnt vmcnt(3) lgkmcnt(0)")
        b = OFR + 8 * (s & 1)
        for u in range(2):
            acc = 12 + 4 * u
            c = "0" if s == 0 else f"v[{acc}:{acc+3}]"
            a(f"v_mfma_f32_16x16x32_bf16 v[{acc}:{acc+3}], v[{32+4*s}:{35+4*s}], v[{b+4*u}:{b+4*u+3}], {c}")
    stamp(a)
    a("s_nop 7")
    a("ds_write_b128 v10, v[12:15]")
    a(f"ds_write_b128 v10, v[16:19] offset:{16*528}")
    a("s_waitcnt lgkmcnt(0)")
    a("s_barrier")
    a("ds_read_b128 v[32:35], v11")
    a("ds_read_b128 v[36:39], v11 offset:16")
    a("s_waitcnt vmcnt(0)")
    unpack8(a, 40, 96)
    a("s_waitcnt lgkmcnt(0)")
    for i in range(0, 8, 2):
        rnd_pair(a, 32 + i, 33 + i, 48)
        a(f"v_mul_f32 v{32+i}, v{32+i}, v{100+i}")
        a(f"v_mul_f32 v{33+i}, v{33+i}, v{101+i}")
        rnd_pair(a, 32 + i, 33 + i, 48)
        a(f"v_add_f32 v{32+i}, v{32+i}, v{40+i}")
        a(f"v_add_f32 v{33+i}, v{33+i}, v{41+i}")
        a(f"v_cvt_pk_bf16_f32 v{52+i//2}, v{32+i}, v{33+i}")
    a(f"s_mov_b32 s21, {WS_X1}")
    a("buffer_store_dwordx4 v[52:55], v6, s[16:19], s21 offen")
    stamp_end(a)
    a.label("oproj_end")
    a("s_endpgm")

def k_ln2(a):
    kernel_begin(a, "ln2_kernel")
    a("s_cmp_ge_u32 s2, 256")
    a("s_cbranch_scc1 ln2_end")
    stamp_begin(a, 4)
    a("s_load_dwordx2 s[4:5], s[0:1], 96")
    a("s_load_dwordx2 s[6:7], s[0:1], 32")
    a("s_load_dwordx2 s[8:9], s[0:1], 80")
    a("v_and_b32 v2, 63, v0")
    a("v_lshlrev_b32 v3, 4, v0")
    a("s_lshl_b32 s20, s2, 13")
    a("v_add_u32 v3, s20, v3")
    a("v_lshlrev_b32 v4, 5, v2")
    a("v_lshlrev_b32 v5, 4, v2")
    a("s_waitcnt lgkmcnt(0)")
    srd(a, 16, 4, WS_BYTES)
    a(f"s_mov_b32 s21, {WS_X1}")
    a("buffer_load_dwordx4 v[8:11], v3, s[16:19], s21 offen")
    for j, base in enumerate((3, 4, 5)):
        a(f"s_mov_b32 s22, {WS_MODF + base*2048}")
        a(f"buffer_load_dwordx4 v[{40+8*j}:{43+8*j}], v4, s[16:19], s22 offen")
        a(f"buffer_load_dwordx4 v[{44+8*j}:{47+8*j}], v4, s[16:19], s22 offen offset:16")
    a("global_load_dwordx4 v[12:15], v5, s[6:7]")
    a("s_waitcnt vmcnt(7)")
    unpack8(a, 16, 8)
    unpack8(a, 24, 8)
    layernorm_rows(a, [24], 64)
    a("s_waitcnt vmcnt(0)")
    unpack8(a, 32, 12)
    a("v_mov_b32 v70, 0")
    for i in range(0, 8, 2):
        rnd_pair(a, 24 + i, 25 + i, 68)
        a(f"v_mul_f32 v{24+i}, v{24+i}, v{48+i}")
        a(f"v_mul_f32 v{25+i}, v{25+i}, v{49+i}")
        rnd_pair(a, 24 + i, 25 + i, 68)
        a(f"v_add_f32 v{24+i}, v{24+i}, v{40+i}")
        a(f"v_add_f32 v{25+i}, v{25+i}, v{41+i}")
        a(f"v_cvt_pk_bf16_f32 v{8+i//2}, v{24+i}, v{25+i}")
        a(f"v_lshlrev_b32 v{24+i}, 16, v{8+i//2}")
        a(f"v_and_b32 v{25+i}, 0xffff0000, v{8+i//2}")
        a(f"v_fmac_f32 v70, v{24+i}, v{32+i}")
        a(f"v_fmac_f32 v70, v{25+i}, v{33+i}")
        a(f"v_mul_f32 v{24+i}, v{24+i}, v{56+i}")
        a(f"v_mul_f32 v{25+i}, v{25+i}, v{57+i}")
        rnd_pair(a, 24 + i, 25 + i, 68)
        a(f"v_add_f32 v{24+i}, v{24+i}, v{16+i}")
        a(f"v_add_f32 v{25+i}, v{25+i}, v{17+i}")
        a(f"v_cvt_pk_bf16_f32 v{12+i//2}, v{24+i}, v{25+i}")
    a(f"s_mov_b32 s21, {WS_H2}")
    a("buffer_store_dwordx4 v[8:11], v3, s[16:19], s21 offen")
    a("global_store_dwordx4 v3, v[12:15], s[8:9]")
    multi_allreduce(a, [70], [71])
    a("v_cvt_pk_bf16_f32 v70, v70, v70")
    a("v_and_b32 v70, 0xffff0000, v70")
    a("v_ashrrev_i32 v71, 31, v70")
    a("v_or_b32 v71, 0x80000000, v71")
    a("v_xor_b32 v70, v70, v71")
    a("v_and_b32 v70, 0xffff0000, v70")
    a("v_lshrrev_b32 v71, 10, v3")
    a("v_sub_u32 v72, 0xffff, v71")
    a("v_or_b32 v70, v70, v72")
    a("v_lshlrev_b32 v71, 2, v71")
    a("v_cmp_eq_u32 vcc, 0, v2")
    a("s_and_saveexec_b64 s[22:23], vcc")
    a(f"s_mov_b32 s21, {WS_KEY}")
    a("buffer_store_dword v70, v71, s[16:19], s21 offen")
    stamp_end(a)
    a.label("ln2_end")
    a("s_endpgm")

def tr_addr_natural(a, d1, d2, lane, t1, t2):
    a(f"v_lshrrev_b32 v{t1}, 4, v{lane}")
    a(f"v_bfe_u32 v{d1}, v{lane}, 2, 2")
    a(f"v_lshlrev_b32 v{d1}, 5, v{d1}")
    a(f"v_and_b32 v{t2}, 1, v{t1}")
    a(f"v_lshlrev_b32 v{t2}, 7, v{t2}")
    a(f"v_xor_b32 v{d1}, v{d1}, v{t2}")
    a(f"v_lshl_add_u32 v{d1}, v{t1}, 8, v{d1}")
    a(f"v_and_b32 v{t2}, 3, v{lane}")
    a(f"v_lshl_add_u32 v{d1}, v{t2}, 3, v{d1}")
    a(f"v_xor_b32 v{d2}, 0x80, v{d1}")

def dma_row_src(a, d, lane, pitch, t1, t2):
    a(f"v_lshrrev_b32 v{t1}, 1, v{lane}")
    a(f"v_bfe_u32 v{t2}, v{lane}, 4, 1")
    a(f"v_lshlrev_b32 v{t2}, 2, v{t2}")
    a(f"v_xor_b32 v{t1}, v{t1}, v{t2}")
    a(f"v_mul_u32_u24 v{d}, {pitch}, v{t1}")
    a(f"v_and_b32 v{t2}, 1, v{lane}")
    a(f"v_lshl_add_u32 v{d}, v{t2}, 4, v{d}")

def k_gateup(a):
    kernel_begin(a, "gateup_kernel")
    a("s_cmp_ge_u32 s2, 112")
    a("s_cbranch_scc1 gateup_end")
    stamp_begin(a, 5)
    a("s_load_dwordx2 s[4:5], s[0:1], 96")
    a("s_load_dwordx4 s[8:11], s[0:1], 40")
    a("v_lshrrev_b32 v1, 6, v0")
    a("v_and_b32 v2, 63, v0")
    a("s_nop 0")
    a("v_readfirstlane_b32 s32, v1")
    a("v_lshlrev_b32 v3, 4, v2")
    dma_row_src(a, 4, 2, 3584, 5, 6)
    a("s_and_b32 s33, s32, 1")
    a("s_lshr_b32 s34, s32, 1")
    a("s_waitcnt lgkmcnt(0)")
    srd(a, 16, 4, WS_BYTES)
    a(f"s_mov_b32 s21, {WS_KEY}")
    for n in range(8):
        if n == 4: a(f"s_mov_b32 s21, {WS_KEY+4096}")
        a(f"buffer_load_dwordx4 v[{32+4*n}:{35+4*n}], v3, s[16:19], s21 offen offset:{1024*(n&3)}")
    a("s_cmp_eq_u32 s33, 0")
    a("s_cselect_b32 s12, s8, s10")
    a("s_cselect_b32 s13, s9, s11")
    a(f"s_mov_b32 s14, {512*3584}")
    a("s_mov_b32 s15, 0x20000")
    a(f"s_mul_i32 s22, s34, {128*3584}")
    a("s_lshl_b32 s23, s2, 5")
    a("s_add_u32 s22, s22, s23")
    a("s_lshl_b32 s23, s32, 12")
    for n in range(4):
        a("s_mov_b32 m0, s23")
        a("s_nop 0")
        a("buffer_load_dwordx4 v4, s[12:15], s22 offen lds")
        if n != 3:
            a(f"s_add_u32 s22, s22, {32*3584}")
            a("s_add_u32 s23, s23, 1024")
    tr_addr_natural(a, 8, 9, 2, 5, 6)
    a("s_lshl_b32 s23, s32, 12")
    a("v_add_u32 v8, s23, v8")
    a("v_add_u32 v9, s23, v9")
    stamp(a)
    a("s_waitcnt vmcnt(4)")
    stamp(a)
    a("v_max_u32 v10, v32, v33")
    a("v_min_u32 v11, v32, v33")
    for i in range(2, 32):
        a(f"v_med3_u32 v11, v10, v11, v{32+i}")
        a(f"v_max_u32 v10, v10, v{32+i}")
    a("v_mov_b32 v12, v10")
    multi_allreduce(a, [12], [13], op="v_max_u32")
    a("v_cmp_eq_u32 vcc, v12, v10")
    a("s_nop 1")
    a("v_cndmask_b32 v14, v10, v11, vcc")
    multi_allreduce(a, [14], [13], op="v_max_u32")
    a("v_and_b32 v15, 1, v2")
    a("v_cmp_eq_u32 vcc, 0, v15")
    a("s_nop 1")
    a("v_cndmask_b32 v16, v14, v12, vcc")
    a("v_and_b32 v17, 0xffff, v16")
    a("v_sub_u32 v17, 0xffff, v17")
    a("v_lshlrev_b32 v17, 10, v17")
    a("v_lshrrev_b32 v18, 4, v2")
    a("v_lshl_add_u32 v17, v18, 4, v17")
    a("s_lshl_b32 s21, s34, 8")
    a(f"s_add_u32 s21, s21, {WS_H2}")
    for n in range(4):
        a(f"buffer_load_dwordx4 v[{32+4*n}:{35+4*n}], v17, s[16:19], s21 offen offset:{64*n}")
    a("s_or_b32 s24, s2, s32")
    a("s_cmp_lg_u32 s24, 0")
    a("s_cbranch_scc1 gateup_nosel")
    a("v_lshlrev_b32 v19, 2, v2")
    a("v_cmp_gt_u32 vcc, 2, v2")
    a("s_and_saveexec_b64 s[26:27], vcc")
    a(f"s_mov_b32 s24, {WS_SEL}")
    a("buffer_store_dword v16, v19, s[16:19], s24 offen")
    a("s_mov_b64 exec, s[26:27]")
    a("s_waitcnt vmcnt(0)")
    a.label("gateup_nosel")
    stamp(a)
    a("s_waitcnt vmcnt(4)")
    stamp(a)
    if PROF: a("s_waitcnt vmcnt(0)")
    stamp(a)
    for n in range(4):
        a(f"ds_read_b64_tr_b16 v[{48+4*n}:{49+4*n}], v8 offset:{1024*n}")
        a(f"ds_read_b64_tr_b16 v[{50+4*n}:{51+4*n}], v9 offset:{1024*n}")
    a("s_waitcnt vmcnt(0) lgkmcnt(0)")
    for n in range(4):
        c = "0" if n == 0 else "v[20:23]"
        a(f"v_mfma_f32_16x16x32_bf16 v[20:23], v[{32+4*n}:{35+4*n}], v[{48+4*n}:{51+4*n}], {c}")
    a("s_lshl_b32 s23, s32, 7")
    a("s_add_u32 s23, s23, 32768")
    a("v_lshl_add_u32 v24, v2, 2, s23")
    a("v_cmp_gt_u32 vcc, 16, v2")
    a("s_and_saveexec_b64 s[26:27], vcc")
    a("s_nop 4")
    a("ds_write_b32 v24, v20")
    a("ds_write_b32 v24, v21 offset:64")
    a("s_mov_b64 exec, s[26:27]")
    a("s_waitcnt lgkmcnt(0)")
    a("s_barrier")
    a("v_cmp_gt_u32 vcc, 32, v0")
    a("s_and_saveexec_b64 s[26:27], vcc")
    a("s_cbranch_execz gateup_end")
    a("v_lshlrev_b32 v24, 2, v0")
    for w in range(8):
        a(f"ds_read_b32 v{32+w}, v24 offset:{32768+128*w}")
    a("s_waitcnt lgkmcnt(0)")
    for w in range(2, 8):
        a(f"v_add_f32 v{32+(w&1)}, v{32+(w&1)}, v{32+w}")
    rnd_pair(a, 32, 33, 40)
    a(f"v_mul_f32 v34, {NLOG2E:#x}, v32")
    a("v_exp_f32 v34, v34")
    a("s_nop 0")
    a("v_add_f32 v34, 1.0, v34")
    a("v_rcp_f32 v34, v34")
    a("s_nop 0")
    a("v_mul_f32 v32, v32, v34")
    rnd_bf16(a, 32)
    a("v_mul_f32 v32, v32, v33")
    a("v_cvt_pk_bf16_f32 v32, v32, v32")
    a("v_lshrrev_b32 v25, 4, v0")
    a("v_mul_u32_u24 v25, 3584, v25")
    a("v_and_b32 v26, 15, v0")
    a("v_lshl_add_u32 v25, v26, 1, v25")
    a("s_lshl_b32 s21, s2, 5")
    a(f"s_add_u32 s21, s21, {WS_ACT}")
    a("buffer_store_short v32, v25, s[16:19], s21 offen")
    stamp_end(a)
    a.label("gateup_end")
    a("s_endpgm")

def k_down(a):
    kernel_begin(a, "down_kernel")
    a("s_cmp_ge_u32 s2, 32")
    a("s_cbranch_scc1 down_end")
    stamp_begin(a, 6)
    a("s_load_dwordx2 s[4:5], s[0:1], 96")
    a("s_load_dwordx2 s[6:7], s[0:1], 56")
    a("s_load_dwordx2 s[8:9], s[0:1], 80")
    a("v_lshrrev_b32 v1, 6, v0")
    a("v_and_b32 v2, 63, v0")
    a("s_nop 0")
    a("v_readfirstlane_b32 s32, v1")
    dma_row_src(a, 4, 2, 1024, 5, 6)
    a("s_waitcnt lgkmcnt(0)")
    srd(a, 16, 4, WS_BYTES)
    srd(a, 12, 6, 1792 * 1024)
    a("v_bfe_u32 v10, v0, 4, 1")
    a("v_lshlrev_b32 v11, 2, v10")
    a(f"s_mov_b32 s24, {WS_SEL}")
    a("buffer_load_dword v12, v11, s[16:19], s24 offen")
    a("v_and_b32 v13, 1, v2")
    a("v_mul_u32_u24 v13, 3584, v13")
    a("v_lshrrev_b32 v14, 4, v2")
    a("v_lshl_add_u32 v13, v14, 4, v13")
    a("s_mul_i32 s21, s32, 448")
    a(f"s_add_u32 s21, s21, {WS_ACT}")
    for n in range(7):
        a(f"buffer_load_dwordx4 v[{32+4*n}:{35+4*n}], v13, s[16:19], s21 offen offset:{64*n}")
    a(f"s_mul_i32 s22, s32, {224*1024}")
    a("s_lshl_b32 s23, s2, 5")
    a("s_add_u32 s22, s22, s23")
    a("s_mul_i32 s23, s32, 7168")
    for n in range(7):
        a("s_mov_b32 m0, s23")
        a("s_nop 0")
        a("buffer_load_dwordx4 v4, s[12:15], s22 offen lds")
        if n != 6:
            a(f"s_add_u32 s22, s22, {32*1024}")
            a("s_add_u32 s23, s23, 1024")
    tr_addr_natural(a, 8, 9, 2, 5, 6)
    a("s_mul_i32 s23, s32, 7168")
    a("v_add_u32 v8, s23, v8")
    a("v_add_u32 v9, s23, v9")
    stamp(a)
    a("s_waitcnt vmcnt(14)")
    stamp(a)
    a("v_and_b32 v15, 0xffff, v12")
    a("v_sub_u32 v15, 0xffff, v15")
    a("v_lshlrev_b32 v15, 10, v15")
    a("v_and_b32 v16, 15, v0")
    a("v_lshl_add_u32 v15, v16, 1, v15")
    a("s_lshl_b32 s21, s2, 5")
    a("v_add_u32 v15, s21, v15")
    a(f"s_mov_b32 s24, {WS_H2}")
    a(f"s_mov_b32 s25, {WS_X1}")
    a("buffer_load_ushort v17, v15, s[16:19], s24 offen")
    a("buffer_load_ushort v18, v15, s[16:19], s25 offen")
    a("v_lshlrev_b32 v19, 2, v16")
    a("s_lshl_b32 s21, s2, 6")
    a(f"s_add_u32 s21, s21, {WS_MODF+5*2048}")
    a("buffer_load_dword v19, v19, s[16:19], s21 offen")
    a("s_waitcnt vmcnt(3)")
    stamp(a)
    for n in range(7):
        a(f"ds_read_b64_tr_b16 v[{64+4*n}:{65+4*n}], v8 offset:{1024*n}")
        a(f"ds_read_b64_tr_b16 v[{66+4*n}:{67+4*n}], v9 offset:{1024*n}")
    a("s_waitcnt lgkmcnt(0)")
    for n in range(7):
        c = "0" if n == 0 else "v[20:23]"
        a(f"v_mfma_f32_16x16x32_bf16 v[20:23], v[{32+4*n}:{35+4*n}], v[{64+4*n}:{67+4*n}], {c}")
    a("s_lshl_b32 s23, s32, 7")
    a("s_add_u32 s23, s23, 57344")
    a("v_lshl_add_u32 v24, v2, 2, s23")
    a("v_cmp_gt_u32 vcc, 16, v2")
    a("s_and_saveexec_b64 s[26:27], vcc")
    a("s_nop 4")
    a("ds_write_b32 v24, v20")
    a("ds_write_b32 v24, v21 offset:64")
    a("s_mov_b64 exec, s[26:27]")
    a("s_waitcnt lgkmcnt(0)")
    a("s_barrier")
    a("v_cmp_gt_u32 vcc, 32, v0")
    a("s_and_saveexec_b64 s[26:27], vcc")
    a("s_cbranch_execz down_end")
    a("v_lshlrev_b32 v24, 2, v0")
    for w in range(8):
        a(f"ds_read_b32 v{32+w}, v24 offset:{57344+128*w}")
    a("v_and_b32 v12, 0xffff0000, v12")
    a("v_ashrrev_i32 v25, 31, v12")
    a("v_not_b32 v25, v25")
    a("v_or_b32 v25, 0x80000000, v25")
    a("v_xor_b32 v12, v12, v25")
    a("v_and_b32 v12, 0xffff0000, v12")
    a(f"v_mul_f32 v25, {NLOG2E:#x}, v12")
    a("v_exp_f32 v25, v25")
    a("s_nop 0")
    a("v_add_f32 v25, 1.0, v25")
    a("v_rcp_f32 v25, v25")
    a("s_nop 0")
    rnd_bf16(a, 25)
    a("s_waitcnt vmcnt(0) lgkmcnt(0)")
    for w in range(1, 8):
        a(f"v_add_f32 v32, v32, v{32+w}")
    rnd_bf16(a, 32)
    a("v_mul_f32 v32, v32, v25")
    rnd_bf16(a, 32)
    a("v_lshlrev_b32 v17, 16, v17")
    a("v_lshlrev_b32 v18, 16, v18")
    a("v_add_f32 v32, v32, v17")
    rnd_bf16(a, 32)
    a("v_mul_f32 v32, v32, v19")
    rnd_bf16(a, 32)
    a("v_add_f32 v32, v32, v18")
    a("v_cvt_pk_bf16_f32 v32, v32, v32")
    a("global_store_short v15, v32, s[8:9]")
    stamp_end(a)
    a.label("down_end")
    a("s_endpgm")

KERNELS = [
    ("prep_kernel", k_prep, 256, 256, 16384, 96),
    ("qkv_kernel", k_qkv, 256, 512, 83968, 240),
    ("attn_kernel", k_attn, 256, 512, 131072 + 8192, 112),
    ("oproj_kernel", k_oproj, 256, 512, 32768 + 32 * 528, 128),
    ("ln2_kernel", k_ln2, 256, 512, 0, 80),
    ("gateup_kernel", k_gateup, 112, 512, 33792, 72),
    ("down_kernel", k_down, 32, 512, 58368, 96),
]

def main(out):
    hdr = open("adaLN_cond__mha_block__moe_arch_mod__prompt.s.ref").read().split("; Override launch")[0]
    txt = hdr
    for name, fn, gx, bx, lds, vg in KERNELS:
        txt += f"; @launch kernel={name} grid=({gx},1,1) block=({bx},1,1) lds={lds}\n"
    txt += '.amdgcn_target "amdgcn-amd-amdhsa--gfx950"\n'
    a = Asm()
    for name, fn, gx, bx, lds, vg in KERNELS:
        fn(a)
    txt += a.text()
    for name, fn, gx, bx, lds, vg in KERNELS:
        txt += kernel_desc(name, vg)
    open(out, "w").write(txt)

if __name__ == "__main__":
    if len(sys.argv) > 2 and sys.argv[2] == "prof": PROF = True
    main(sys.argv[1] if len(sys.argv) > 1 else "adaLN_cond__mha_block__moe_arch_mod__prompt.s")
```

```python
import sys
from asmlib import *
import gen_v1 as G1
from gen_v1 import (f32, multi_allreduce, unpack8, rnd_pair, tr_addr_natural, dma_row_src,
                    stamp_begin, stamp_end, Prof, NLOG2E, QSCALE, WS_BYTES)

KNAME = "adaLN_cond__mha_block__moe_arch_mod__prompt_kernel"
WS_EPOCH = 0
WS_MP = 0x1000
WS_ST1 = 0x10000
WS_MODF = 0x18000
WS_FM = 0x1A000
WS_F1 = 0x1C000
WS_F2 = 0x1E000
WS_ST2 = 0x20000
WS_TOP = 0x40000
WS_ACT = 0x41000
WS_CAND = 0x50000
WS_KV = 0x500000
WS_OF = 0x900000
SPIN = 50000
STAMPS = None
ORDER = []

def stamp(a, name):
    if STAMPS is not None and name in STAMPS:
        if name not in ORDER: ORDER.append(name)
        G1.stamp(a)

def poll_loop(a, issue, check, name, first_issued=False, sleep=4):
    l = a.newlabel(name); d = a.newlabel(name + "d"); w = a.newlabel(name + "w")
    a(f"s_mov_b32 s60, {SPIN}")
    if first_issued: a(f"s_branch {w}")
    a.label(l)
    issue()
    if first_issued: a.label(w)
    a("s_waitcnt vmcnt(0)")
    check()
    a(f"s_cbranch_scc1 {d}")
    a("s_sub_u32 s60, s60, 1")
    if sleep: a(f"s_sleep {sleep}")
    a("s_cmp_lg_u32 s60, 0")
    a(f"s_cbranch_scc1 {l}")
    a.label(d)

def chk_ne(a, regs):
    a(f"v_cmp_ne_u32 vcc, s48, v{regs[0]}")
    for r in regs[1:]:
        a(f"v_cmp_ne_u32 s[20:21], s48, v{r}")
        a("s_or_b64 vcc, vcc, s[20:21]")
    a("s_cmp_eq_u64 vcc, 0")

def silu(a, x, t):
    a(f"v_mul_f32 v{t}, {NLOG2E:#x}, v{x}")
    a(f"v_exp_f32 v{t}, v{t}")
    a("s_nop 0")
    a(f"v_add_f32 v{t}, 1.0, v{t}")
    a(f"v_rcp_f32 v{t}, v{t}")
    a("s_nop 0")
    a(f"v_mul_f32 v{x}, v{x}, v{t}")

def mf16(a, d, A, B, c):
    cs = "0" if c is None else f"v[{c}:{c+3}]"
    a(f"v_mfma_f32_16x16x32_bf16 v[{d}:{d+3}], v[{A}:{A+3}], v[{B}:{B+3}], {cs}")

def trr(a, d, a1, a2, off):
    a(f"ds_read_b64_tr_b16 v[{d}:{d+1}], v{a1} offset:{off}")
    a(f"ds_read_b64_tr_b16 v[{d+2}:{d+3}], v{a2} offset:{off}")

WUB = 0; WPB = 32768; RING = 81920
EMB = 147456; SAT = 151552; CTE = 152576; CAT = 152832; REC = 154880; STT = 157440
STG = 131072
LREC = STG + 7 * 4096 + 3072
Q = 16; C = 20; S = [36, 52]; O = 68; K = [84, 88]; V = [92, 100]; IDX = 108
WO = 112; MW = 176; XT = 204
GA = 208; SB = 216; CB = 224; GB = 232; WP = 240
FLIP = 48
XR = 32; WR = 160; ACC = 184; QA = 176; WF = [236, 244]

def k_main(a):
    kernel_begin(a, KNAME)
    a("s_cmp_ge_u32 s2, 256")
    a("s_cbranch_scc1 main_end")
    if STAMPS is not None: stamp_begin(a, 0)
    a("s_setprio 3")
    a("s_load_dwordx2 s[4:5], s[0:1], 96")
    a("s_load_dwordx4 s[44:47], s[0:1], 64")
    a("s_load_dwordx2 s[6:7], s[0:1], 0")
    a("s_load_dwordx4 s[8:11], s[0:1], 8")
    a("s_load_dwordx8 s[52:59], s[0:1], 32")
    a("s_load_dwordx2 s[50:51], s[0:1], 80")
    a("v_lshrrev_b32 v1, 6, v0")
    a("v_and_b32 v2, 63, v0")
    a("s_and_b32 s31, s2, 1")
    a("s_lshl_b32 s31, s31, 2")
    a("v_readfirstlane_b32 s32, v1")
    a("s_bfe_u32 s20, s2, 0x20003")
    a("s_add_u32 s31, s31, s20")
    a("s_and_b32 s30, s2, 6")
    a("s_lshl_b32 s30, s30, 2")
    a("s_lshr_b32 s20, s2, 5")
    a("s_add_u32 s30, s30, s20")
    a("s_lshl_b32 s33, s20, 1")
    a("v_lshlrev_b32 v9, 4, v2")
    a("v_lshrrev_b32 v17, 3, v2")
    a("v_and_b32 v16, 6, v17")
    a("v_xor_b32 v16, v16, v2")
    a("v_and_b32 v16, 7, v16")
    a("v_lshlrev_b32 v200, 10, v17")
    a("v_lshl_add_u32 v200, v16, 4, v200")
    for q in range(1, 4): a(f"v_add_u32 v{200+q}, {7168*q}, v200")
    dma_row_src(a, 255, 2, 6144, 16, 17)
    a("s_lshl_b32 s28, s31, 18")
    a("s_lshl_b32 s21, s32, 15")
    a("s_add_u32 s28, s28, s21")
    a("s_lshl_b32 s29, s33, 6")
    a("s_lshl_b32 s49, s32, 13")
    a(f"s_add_u32 s49, s49, {RING}")
    a("s_lshl_b32 s34, s32, 12")
    a("s_lshl_b32 s39, s2, 3")
    a("s_add_u32 s39, s39, s32")
    a("s_waitcnt lgkmcnt(0)")
    stamp(a, "karg")
    a("s_load_dword s48, s[4:5], 0")
    srd(a, 24, 6, 2048 * 1024)
    srd(a, 16, 4, WS_BYTES)
    a("s_cmp_lg_u32 s32, 0")
    a("s_cbranch_scc1 main_w0a")
    a("s_lshr_b32 s21, s2, 6")
    a("s_lshl_b32 s22, s21, 8")
    a("v_lshl_add_u32 v16, v2, 2, s22")
    a("global_load_dword v252, v16, s[44:45]")
    srd(a, 40, 46, 512 * 6144)
    a(f"s_mul_i32 s22, s21, {128*6144}")
    a("s_and_b32 s62, s2, 7")
    a("s_lshl_b32 s62, s62, 3")
    a("s_bfe_u32 s23, s2, 0x30003")
    a("s_add_u32 s62, s62, s23")
    a("s_lshl_b32 s23, s62, 5")
    a("s_add_u32 s22, s22, s23")
    for n in range(4):
        a(f"s_mov_b32 m0, {EMB + 1024*n}")
        if n: a(f"s_add_u32 s22, s22, {32*6144}")
        else: a("s_nop 0")
        a("buffer_load_dwordx4 v255, s[40:43], s22 offen lds")
    a.label("main_w0a")
    a("s_lshl_b32 s22, s39, 10")
    a("buffer_load_dwordx4 v[204:207], v9, s[24:27], s22 offen")
    def dstep_issue(base, add):
        a("s_add_u32 s20, s28, s29")
        if add: a(f"s_add_u32 s21, s{base}, {add}")
        a(f"s_mov_b32 m0, s{21 if add else base}")
        a("s_add_u32 s29, s29, 128")
        for q in range(4):
            a(f"buffer_load_dwordx4 v{200+q}, s[24:27], s20 offen offset:{1024*q} lds")
        a("s_and_b32 s29, s29, 0x3ff")
    dstep_issue(34, 0); dstep_issue(34, 32768); dstep_issue(49, 0)
    srd(a, 12, 8, 512 * 3072)
    a("s_bfe_u32 s20, s2, 0x10003")
    a("v_and_b32 v3, 0x1fe, v0")
    a("v_xor_b32 v3, s20, v3")
    a("s_lshr_b32 s23, s2, 4")
    a("s_mul_i32 s20, s23, 11")
    a("s_lshr_b32 s20, s20, 5")
    a("s_mul_i32 s20, s20, 3")
    a("s_sub_u32 s20, s23, s20")
    a("s_lshl_b32 s36, s20, 10")
    for j in (37, 38):
        a(f"s_add_u32 s{j}, s{j-1}, 1024")
        a(f"s_cmp_eq_u32 s{j}, 3072")
        a(f"s_cselect_b32 s{j}, 0, s{j}")
    a("v_lshrrev_b32 v7, 4, v2")
    a("v_and_b32 v8, 15, v2")
    a("v_and_b32 v6, 1, v0")
    a("s_lshl_b32 s20, s30, 5")
    a("v_lshl_add_u32 v16, v6, 4, s20")
    a("v_mad_u32_u24 v5, v3, s61, v16") if False else None
    a("v_mul_u32_u24 v5, 3072, v3")
    a("v_add_u32 v5, v5, v16")
    a("v_xor_b32 v4, 1, v3")
    a("v_mul_u32_u24 v4, 3072, v4")
    a("v_add_u32 v4, v4, v16")
    tr_addr_natural(a, 12, 13, 2, 14, 15)
    a("s_cmp_lg_u32 s32, 0")
    a("s_cbranch_scc1 main_w0c")
    a(f"v_add_u32 v28, {EMB}, v12")
    a(f"v_add_u32 v29, {EMB}, v13")
    a("s_waitcnt vmcnt(17)")
    a("v_lshlrev_b32 v253, 16, v252")
    a("v_and_b32 v254, 0xffff0000, v252")
    silu(a, 253, 16); silu(a, 254, 16)
    a("v_cvt_pk_bf16_f32 v252, v253, v254")
    a("v_lshlrev_b32 v16, 2, v2")
    a(f"v_add_u32 v16, {CTE}, v16")
    a("ds_write_b32 v16, v252")
    a("v_lshlrev_b32 v17, 4, v7")
    a(f"v_add_u32 v17, {CTE}, v17")
    for n in range(4):
        a(f"ds_read_b128 v[{236+4*n}:{239+4*n}], v17 offset:{64*n}")
    a("s_lshr_b32 s21, s2, 6")
    a("s_lshl_b32 s21, s21, 13")
    a("s_lshl_b32 s22, s62, 7")
    a("s_add_u32 s21, s21, s22")
    a(f"s_add_u32 s21, s21, {WS_MP}")
    a("v_lshlrev_b32 v16, 3, v2")
    a("s_waitcnt vmcnt(13)")
    stamp(a, "emland")
    for n in range(4):
        trr(a, 220 + 4 * n, 28, 29, 1024 * n)
    a("s_waitcnt lgkmcnt(0)")
    a("s_add_u32 s22, s48, 1")
    for n in range(4):
        mf16(a, 252, 236 + 4 * n, 220 + 4 * n, None if n == 0 else 252)
    a("s_mov_b64 exec, 0xffff")
    a("s_nop 6")
    a("v_mov_b32 v253, s22")
    a("buffer_store_dwordx2 v[252:253], v16, s[16:19], s21 offen sc1")
    a("s_mov_b64 exec, -1")
    stamp(a, "mp")
    a.label("main_w0c")
    a("s_setprio 2")
    for p in range(2):
        for t in range(3):
            r = WR + 4 * (3 * p + t)
            a(f"buffer_load_dwordx4 v[{r}:{r+3}], v{5-p}, s[12:15], s{36+t} offen")
    dstep_issue(49, 4096)
    a("s_setprio 1")
    stamp(a, "issued")
    a("s_lshl_b32 s21, s33, 10")
    a("v_lshlrev_b32 v10, 5, v3")
    a("v_subrev_u32 v10, s21, v10")
    a("v_bfe_u32 v11, v3, 3, 1")
    a("v_lshlrev_b32 v11, 7, v11")
    a("v_xor_b32 v10, v10, v11")
    a("v_lshl_add_u32 v10, v6, 4, v10")
    a("v_and_b32 v10, 0x3fff, v10")
    a("v_xor_b32 v11, 32, v10")
    a("s_lshl_b32 s21, s32, 11")
    a("v_add_u32 v14, s21, v12")
    a("v_add_u32 v15, s21, v13")
    a(f"v_add_u32 v12, {WPB}, v12")
    a(f"v_add_u32 v13, {WPB}, v13")
    a(f"v_add_u32 v26, {WPB}, v14")
    a(f"v_add_u32 v27, {WPB}, v15")
    a(f"v_add_u32 v30, {WPB}, v10")
    a(f"v_add_u32 v31, {WPB}, v11")
    a("v_and_b32 v16, 6, v8")
    a("v_xor_b32 v16, v16, v7")
    a("v_lshlrev_b32 v16, 4, v16")
    a("v_and_b32 v17, 7, v8")
    a("v_lshl_add_u32 v16, v17, 7, v16")
    a("v_lshrrev_b32 v17, 3, v8")
    a("v_lshl_add_u32 v16, v17, 10, v16")
    a("v_xor_b32 v17, 64, v16")
    a("v_add_u32 v252, s34, v16")
    a("v_add_u32 v253, s34, v17")
    a("v_add_u32 v254, s49, v16")
    a("v_add_u32 v255, s49, v17")
    a("v_lshlrev_b32 v25, 4, v0")
    a("v_and_b32 v24, 31, v2")
    a("v_lshlrev_b32 v24, 4, v24")
    a("s_lshr_b32 s63, s28, 6")
    a(f"s_add_u32 s63, s63, {WS_ST1}")
    def rd_x2(d, reg, off):
        for e in range(2):
            for u in range(2):
                r = XR + 4 * (16 * u + 2 * d + e)
                a(f"ds_read_b128 v[{r}:{r+3}], v{reg+e} offset:{off + 2048*u}")
    def g_issue():
        for rg in range(4):
            a(f"s_mov_b32 s22, {WS_MP + 8192*rg}")
            a(f"buffer_load_dwordx4 v[{184+4*rg}:{187+4*rg}], v25, s[16:19], s22 offen sc1")
    def g_check(): chk_ne(a, [185, 187, 189, 191, 193, 195, 197, 199])
    a("s_waitcnt vmcnt(18)")
    rd_x2(0, 252, 0)
    a("s_waitcnt lgkmcnt(0)")
    dstep_issue(34, 0)
    a("s_add_u32 s48, s48, 1")
    a("s_waitcnt vmcnt(18)")
    rd_x2(1, 252, 32768)
    a("s_waitcnt lgkmcnt(0)")
    dstep_issue(34, 32768)
    a("s_waitcnt vmcnt(18)")
    rd_x2(2, 254, 0)
    stamp(a, "d2")
    g_issue()
    a("s_setprio 0")
    a("s_waitcnt lgkmcnt(0)")
    dstep_issue(49, 0)
    a("s_waitcnt vmcnt(16)")
    rd_x2(3, 254, 4096)
    a("s_waitcnt lgkmcnt(0)")
    dstep_issue(49, 4096)
    stamp(a, "d7")
    unpack8(a, 208, 204)
    a("v_add_f32 v216, v208, v209")
    for i in range(2, 8): a(f"v_add_f32 v216, v216, v{208+i}")
    multi_allreduce(a, [216], [217])
    a(f"v_mul_f32 v216, {f32(1/512)}, v216")
    a("v_sub_f32 v217, v208, v216")
    a("v_mul_f32 v218, v217, v217")
    for i in range(1, 8):
        a(f"v_sub_f32 v217, v{208+i}, v216")
        a("v_fmac_f32 v218, v217, v217")
    multi_allreduce(a, [218], [217])
    a(f"v_mul_f32 v217, {f32(1/512)}, v218")
    rnd_pair(a, 216, 217, 218)
    a(f"v_add_f32 v217, {f32(1e-5)}, v217")
    rnd_bf16(a, 217)
    a("v_sqrt_f32 v217, v217")
    a("s_lshl_b32 s21, s39, 4")
    rnd_bf16(a, 217)
    a("v_rcp_f32 v217, v217")
    a("v_mov_b32 v218, s48")
    a("v_mov_b32 v219, s48")
    a(f"s_add_u32 s21, s21, {WS_ST1}")
    a("v_mov_b32 v16, 0")
    a("s_mov_b64 exec, 1")
    a("buffer_store_dwordx4 v[216:219], v16, s[16:19], s21 offen sc1")
    a("s_mov_b64 exec, -1")
    a("s_waitcnt vmcnt(17)")
    rd_x2(4, 252, 0)
    a("s_waitcnt vmcnt(13)")
    rd_x2(5, 252, 32768)
    stamp(a, "gath0")
    a("s_waitcnt vmcnt(9)")
    g_check()
    a("s_cbranch_scc1 main_gok")
    poll_loop(a, g_issue, g_check, "Lm")
    a.label("main_gok")
    stamp(a, "gath1")
    for c in range(2):
        a(f"v_add_f32 v{184+2*c}, v{184+2*c}, v{188+2*c}")
        a(f"v_add_f32 v{192+2*c}, v{192+2*c}, v{196+2*c}")
        a(f"v_add_f32 v{184+2*c}, v{184+2*c}, v{192+2*c}")
    a("v_cvt_pk_bf16_f32 v188, v184, v186")
    a("s_cmp_gt_u32 s32, 3")
    a("s_cbranch_scc1 main_gca")
    a("s_lshl_b32 s21, s33, 6")
    a("v_lshlrev_b32 v16, 2, v0")
    a("v_subrev_u32 v16, s21, v16")
    a("v_and_b32 v16, 0x3ff, v16")
    a(f"v_add_u32 v16, {SAT}, v16")
    a("ds_write_b32 v16, v188")
    a("s_branch main_gdn")
    a.label("main_gca")
    a("v_lshlrev_b32 v184, 16, v188")
    a("v_and_b32 v185, 0xffff0000, v188")
    a("v_add_f32 v184, 1.0, v184")
    a("v_add_f32 v185, 1.0, v185")
    rnd_pair(a, 184, 185, 188)
    a("v_lshlrev_b32 v16, 3, v0")
    a(f"v_add_u32 v16, {CAT - 2048}, v16")
    a("ds_write_b64 v16, v[184:185]")
    a.label("main_gdn")
    a("v_lshlrev_b32 v16, 2, v3")
    a(f"v_add_u32 v16, {CAT}, v16")
    a("v_xor_b32 v17, 4, v16")
    a("s_waitcnt lgkmcnt(0)")
    a("s_barrier")
    stamp(a, "barx")
    a("ds_read_b32 v188, v16")
    a("ds_read_b32 v189, v17")
    a("buffer_load_dwordx4 v[20:23], v24, s[16:19], s63 offen sc1")
    for j in range(3):
        l = a.newlabel("Lwu")
        a(f"s_cmp_eq_u32 s{36+j}, 1024")
        a(f"s_cbranch_scc1 {l}")
        a(f"s_lshl_b32 s20, s{36+j}, 3")
        a(f"s_sub_u32 s20, {WUB+16384}, s20")
        for p in range(2):
            a(f"v_add_u32 v18, s20, v{10+p}")
            a(f"ds_write_b128 v18, v[{WR+12*p+4*j}:{WR+12*p+4*j+3}]")
        a.label(l)
    a("s_waitcnt lgkmcnt(4)")
    for p in range(2):
        for t in range(3):
            r = WR + 4 * (3 * p + t)
            d = 208 + 4 * ((3 * p + t) & 1)
            a(f"s_lshl_b32 s20, s{36+t}, 4")
            a(f"v_add_u32 v18, s20, v{30+p}")
            for i in range(4):
                a(f"v_lshlrev_b32 v16, 16, v{r+i}")
                a(f"v_and_b32 v17, 0xffff0000, v{r+i}")
                a(f"v_mul_f32 v16, v16, v{188+p}")
                a(f"v_mul_f32 v17, v17, v{188+p}")
                a(f"v_cvt_pk_bf16_f32 v{d+i}, v16, v17")
            a(f"ds_write_b128 v18, v[{d}:{d+3}]")
    for i in range(4): a(f"v_mov_b32 v{216+i}, 0x3f803f80")
    a("s_lshl_b32 s21, s32, 7")
    a(f"s_add_u32 s21, s21, {SAT}")
    a("v_lshl_add_u32 v16, v7, 4, s21")
    a("s_waitcnt lgkmcnt(0)")
    a("s_barrier")
    stamp(a, "bar1")
    def rd_kv(s):
        b = WF[s & 1]
        trr(a, b, 12, 13, 16384 + 1024 * s)
        trr(a, b + 4, 12, 13, 32768 + 1024 * s)
    rd_kv(0)
    DR = {5: 6, 9: 7}
    CSR = [144, 148, 152, 156, 88, 92]
    for s in range(16):
        if s in DR:
            a(f"s_waitcnt vmcnt({6 if DR[s] < 7 else 2})")
            rd_x2(DR[s], 254, 4096 * (DR[s] & 1))
        if s == 1:
            for n in range(2):
                for t in range(3):
                    trr(a, CSR[3 * n + t], 26, 27, 16384 * t + 1024 * n)
        if s == 3:
            for n in range(2):
                trr(a, 144 + 8 * n, 14, 15, WUB + 16384 + 1024 * n)
                trr(a, 148 + 8 * n, 14, 15, WUB + 1024 * n)
                a(f"ds_read_b128 v[{204+4*n}:{207+4*n}], v16 offset:{64*n}")
        if 8 <= s < 12:
            for w in (2 * (s - 8), 2 * (s - 8) + 1):
                a(f"ds_read_b128 v[{160+8*(w&1)}:{163+8*(w&1)}], v16 offset:{320*w+128}") if w > 0 else a(f"ds_read_b128 v[220:223], v16 offset:128")
                a(f"ds_read_b64 v[{164+8*(w&1)}:{165+8*(w&1)}], v17 offset:{320*w+192}") if w > 0 else a(f"ds_read_b64 v[224:225], v17 offset:192")
        if s < 15:
            rd_kv(s + 1)
            a("s_waitcnt lgkmcnt(4)")
        else:
            a("s_waitcnt lgkmcnt(0)")
        if s in (1, 5, 10): stamp(a, f"p{s}")
        b = WF[s & 1]
        adds = []
        if 8 <= s < 12:
            for w in (2 * (s - 8), 2 * (s - 8) + 1):
                if w > 0:
                    adds += [f"v_add_f32 v{220+r}, v{220+r}, v{160+8*(w&1)+r}" for r in range(6)]
        for u in range(2):
            x = XR + 4 * (16 * u + s)
            mf16(a, ACC + 4 * u, b, x, None if s == 0 else ACC + 4 * u)
            for q in adds[6*u:6*u+3]: a(q)
            mf16(a, ACC + 8 + 4 * u, x, b + 4, None if s == 0 else ACC + 8 + 4 * u)
            for q in adds[6*u+3:6*u+6]: a(q)
        if s == 1:
            for n in range(2):
                mf16(a, 224, CSR[3 * n], 216, None if n == 0 else 224)
                mf16(a, 228, CSR[3 * n + 1], 216, None if n == 0 else 228)
                mf16(a, 232, 216, CSR[3 * n + 2], None if n == 0 else 232)
        if s == 3:
            for n in range(2):
                mf16(a, 212, 144 + 8 * n, 204 + 4 * n, None if n == 0 else 212)
                mf16(a, 220, 204 + 4 * n, 148 + 8 * n, None if n == 0 else 220)
            a("s_mul_i32 s21, s32, 320")
            a(f"s_add_u32 s21, s21, {REC}")
            a("v_lshl_add_u32 v16, v7, 4, s21")
            a("v_lshl_add_u32 v17, v8, 3, s21")
        if s == 4:
            a("v_mov_b32 v233, v220")
            a("ds_write_b128 v16, v[212:215]")
            a("ds_write_b128 v16, v[224:227] offset:64")
            a("ds_write_b128 v16, v[228:231] offset:128")
            a("ds_write_b64 v17, v[232:233] offset:192")
            a("v_lshlrev_b32 v16, 4, v7")
            a(f"v_add_u32 v16, {REC}, v16")
            a("v_lshlrev_b32 v17, 3, v8")
            a(f"v_add_u32 v17, {REC}, v17")
        if s == 7:
            a("s_barrier")
        if s == 12:
            poll_loop(a, lambda: a("buffer_load_dwordx4 v[20:23], v24, s[16:19], s63 offen sc1"),
                      lambda: chk_ne(a, [22]), "Lst", first_issued=True)
            a("s_lshl_b32 s21, s32, 8")
            a(f"s_add_u32 s21, s21, {STT}")
            a("v_lshrrev_b32 v18, 1, v24")
            a("v_add_u32 v18, s21, v18")
            a("ds_write_b64 v18, v[20:21]")
            a("v_lshl_add_u32 v18, v8, 3, s21")
            a("v_lshl_add_u32 v19, v7, 5, s21")
            for u in range(2):
                a(f"ds_read_b64 v[{204+2*u}:{205+2*u}], v18 offset:{128*u}")
                a(f"ds_read_b128 v[{160+8*u}:{163+8*u}], v19 offset:{128*u}")
                a(f"ds_read_b128 v[{164+8*u}:{167+8*u}], v19 offset:{128*u+16}")
        if s == 13:
            a("s_lshl_b32 s34, s31, 3")
            a("s_add_u32 s34, s34, s32")
            a("s_lshl_b32 s22, s30, 17")
            a(f"s_add_u32 s35, s22, {WS_KV}")
            a("s_lshl_b32 s23, s34, 11")
            a("s_add_u32 s22, s35, s23")
            a("v_and_b32 v18, 1, v7")
            a("v_lshlrev_b32 v18, 9, v18")
            a("v_lshrrev_b32 v19, 1, v7")
            a("v_lshl_add_u32 v18, v19, 8, v18")
            a("v_lshl_add_u32 v18, v8, 4, v18")
            a("s_lshl_b32 s23, s32, 11")
            a("v_add_u32 v19, s23, v9")
            a("v_add_u32 v20, s23, v18")
    stamp(a, "pass1")
    def rd_q(s):
        trr(a, WF[s & 1], 12, 13, 1024 * s)
    rd_q(0)
    a("s_nop 4")
    for u in range(2):
        for r in range(4):
            k = ACC + 4 * u + r
            a(f"v_fma_f32 v{k}, -v{204+2*u}, v{220+r}, v{k}")
            a(f"v_mul_f32 v{k}, v{k}, v{205+2*u}")
        a(f"v_cvt_pk_bf16_f32 v{228+2*u}, v{ACC+4*u}, v{ACC+4*u+1}")
        a(f"v_cvt_pk_bf16_f32 v{229+2*u}, v{ACC+4*u+2}, v{ACC+4*u+3}")
    for u in range(2):
        for r in range(4):
            v = ACC + 8 + 4 * u + r
            a(f"v_fma_f32 v{v}, -v{160+8*u+2*r}, v224, v{v}")
            a(f"v_fma_f32 v{v}, v{v}, v{161+8*u+2*r}, v225")
        if u == 0:
            a("v_permlane16_swap_b32 v228, v230")
            a("v_permlane16_swap_b32 v229, v231")
            a("buffer_store_dwordx4 v[228:231], v9, s[16:19], s22 offen sc1")
        a(f"v_cvt_pk_bf16_f32 v{232+2*u}, v{ACC+8+4*u}, v{ACC+8+4*u+1}")
        a(f"v_cvt_pk_bf16_f32 v{233+2*u}, v{ACC+8+4*u+2}, v{ACC+8+4*u+3}")
    a("ds_write_b128 v19, v[228:231]")
    a("s_nop 0")
    a("v_permlane16_swap_b32 v232, v234")
    a("v_permlane16_swap_b32 v233, v235")
    a("buffer_store_dwordx4 v[232:235], v18, s[16:19], s22 offen offset:1024 sc1")
    a("ds_write_b128 v20, v[232:235] offset:1024")
    l = a.newlabel("Lrz")
    a("s_sub_u32 s20, s32, 1")
    a("s_cmp_gt_u32 s20, 1")
    a(f"s_cbranch_scc1 {l}")
    for i in range(4): a(f"v_mov_b32 v{208+i}, -1")
    a("s_lshl_b32 s22, s2, 10")
    a(f"s_add_u32 s22, s22, {WS_CAND}")
    a("s_lshl_b32 s23, s2, 5")
    a(f"s_add_u32 s23, s23, {WS_ACT}")
    a("s_cmp_eq_u32 s32, 1")
    a("s_cselect_b32 s22, s22, s23")
    a("s_cselect_b32 s20, -1, 3")
    a("s_cselect_b32 s21, -1, 0")
    a("s_mov_b64 exec, s[20:21]")
    a("buffer_store_dwordx4 v[208:211], v9, s[16:19], s22 offen sc1")
    a("s_mov_b64 exec, -1")
    a.label(l)
    stamp(a, "kvpub")
    side = []
    sd = side.append
    sd("s_lshl_b32 s20, s30, 8"); sd("s_lshl_b32 s21, s32, 5"); sd("s_add_u32 s40, s20, s21")
    sd(f"s_add_u32 s40, s40, {WS_F1}")
    sd("v_and_b32 v25, 31, v2"); sd("v_cmp_eq_u32 vcc, 16, v25"); sd("v_mov_b32 v25, 0x3f803f80")
    sd("s_lshl_b32 s36, s32, 12"); sd(f"s_add_u32 s36, s36, {STG}")
    sd("v_cndmask_b32 v25, 0, v25, vcc")
    sd("s_lshr_b32 s41, s30, 2"); sd("s_lshl_b32 s20, s31, 3"); sd("s_add_u32 s41, s41, s20")
    sd("s_and_b32 s42, s30, 3")
    sd("v_mov_b32 v3, v9")
    sd("v_lshrrev_b32 v4, 5, v2"); sd("v_lshlrev_b32 v4, 8, v4"); sd("v_lshl_add_u32 v4, v8, 4, v4"); sd("v_add_u32 v4, 1024, v4")
    sd("s_mov_b32 s38, 0x0000ffff"); sd("s_mov_b32 s39, 0x0000ffff"); sd("s_mov_b32 s37, 0")
    for i in range(12): sd(f"v_mov_b32 v{V[0]+4+i}, v25")
    sd(f"v_mov_b32 v{IDX}, 0xdddddddd")
    sd("v_lshrrev_b32 v5, 1, v2"); sd("v_lshlrev_b32 v5, 10, v5"); sd("v_and_b32 v6, 1, v2"); sd("v_lshl_add_u32 v109, v6, 4, v5")
    sd("s_lshl_b32 s43, s42, 8"); sd("s_lshl_b32 s20, s32, 5"); sd("s_add_u32 s43, s43, s20")
    sd("v_lshrrev_b32 v5, 5, v2"); sd("v_lshlrev_b32 v5, 9, v5"); sd("v_bfe_u32 v6, v2, 4, 1"); sd("v_lshl_add_u32 v5, v6, 7, v5")
    sd("v_bfe_u32 v6, v2, 2, 2"); sd("v_lshl_add_u32 v5, v6, 5, v5"); sd("v_and_b32 v6, 3, v2"); sd("v_lshl_add_u32 v5, v6, 3, v5")
    sd("v_add_u32 v110, s36, v5")
    sd("v_lshrrev_b32 v5, 4, v0"); sd("v_lshlrev_b32 v111, 10, v5"); sd("v_lshl_add_u32 v111, v8, 4, v111")
    sd("s_lshl_b32 s20, s41, 15"); sd("s_lshl_b32 s21, s42, 8"); sd("s_add_u32 s20, s20, s21"); sd("v_add_u32 v111, s20, v111")
    sd("s_lshl_b32 s20, s32, 11"); sd("s_sub_u32 s20, s36, s20"); sd("v_add_u32 v14, s20, v14"); sd("v_add_u32 v15, s20, v15")
    sd("v_lshrrev_b32 v11, 1, v2"); sd("v_bfe_u32 v5, v2, 4, 1"); sd("v_lshlrev_b32 v5, 2, v5"); sd("v_xor_b32 v11, v11, v5")
    sd("v_and_b32 v10, 1, v2"); sd("v_lshlrev_b32 v10, 4, v10")
    per = (len(side) + 11) // 12
    for s in range(16):
        if s < 8:
            a(f"ds_read_b128 v[{208+8*(s&1) if s else 160}:{211+8*(s&1) if s else 163}], v16 offset:{320*s}")
            a(f"ds_read_b128 v[{212+8*(s&1) if s else 164}:{215+8*(s&1) if s else 167}], v16 offset:{320*s+64}")
        if s < 15:
            rd_q(s + 1)
            a("s_waitcnt lgkmcnt(2)")
        else:
            a("s_waitcnt lgkmcnt(0)")
        extra = []
        if 1 <= s < 8: extra += [f"v_add_f32 v{160+r}, v{160+r}, v{208+8*(s&1)+r}" for r in range(8)]
        if s >= 4: extra += side[per*(s-4):per*(s-3)]
        if s >= 12: extra += [f"v_mov_b32 v{O+4*(s-12)+i}, 0" for i in range(4)]
        h = (len(extra) + 1) // 2
        for u in range(2):
            mf16(a, QA + 4 * u, WF[s & 1], XR + 4 * (16 * u + s), None if s == 0 else QA + 4 * u)
            for q in (extra[:h] if u == 0 else extra[h:]): a(q)
    a(f"s_mov_b32 s24, {f32(QSCALE)}")
    for r in range(4): a(f"v_mul_f32 v{160+r}, s24, v{160+r}")
    for i in range(4): a(f"v_mov_b32 v{V[0]+i}, v25")
    for u in range(2):
        a(f"v_mul_f32 v{205+2*u}, s24, v{205+2*u}")
        for r in range(4):
            q = QA + 4 * u + r
            a(f"v_fma_f32 v{q}, -v{204+2*u}, v{164+r}, v{q}")
            a(f"v_fma_f32 v{q}, v{q}, v{205+2*u}, v{160+r}")
        a(f"v_cvt_pk_bf16_f32 v{Q+2*u}, v{QA+4*u}, v{QA+4*u+1}")
        a(f"v_cvt_pk_bf16_f32 v{Q+1+2*u}, v{QA+4*u+2}, v{QA+4*u+3}")
    a("s_lshl_b32 s20, s31, 2")
    a("s_add_u32 s20, s20, s40")
    a("v_mov_b32 v5, 0")
    a("v_mov_b32 v6, s48")
    a(f"v_permlane16_swap_b32 v{Q}, v{Q+2}")
    a(f"v_permlane16_swap_b32 v{Q+1}, v{Q+3}")
    a("s_waitcnt vmcnt(0)")
    a("s_mov_b64 exec, 1")
    a("buffer_store_dword v6, v5, s[16:19], s20 offen sc1")
    a("s_mov_b64 exec, -1")
    stamp(a, "f1")
    a("s_barrier")
    stamp(a, "att0")
    a(f"ds_read_b128 v[{K[0]}:{K[0]+3}], v3")
    a(f"ds_read_b128 v[{K[1]}:{K[1]+3}], v3 offset:2048")
    a("s_lshl_b32 s20, s32, 5")
    a("s_add_u32 s40, s40, s20")
    a("v_lshlrev_b32 v12, 2, v8")
    a("s_cmp_gt_u32 s32, 3")
    a("s_cbranch_scc1 main_nokv")
    a("buffer_load_dword v13, v12, s[16:19], s40 offen sc1")
    a.label("main_nokv")
    a("s_waitcnt lgkmcnt(1)")
    s0 = S[0]
    a(f"v_mfma_f32_32x32x16_bf16 v[{s0}:{s0+15}], v[{K[0]}:{K[0]+3}], v[{Q}:{Q+3}], 0")
    a("s_nop 11")
    a(f"v_max3_f32 v6, v{s0}, v{s0+1}, v{s0+2}")
    for i in range(3, 15, 2):
        a(f"v_max3_f32 v6, v6, v{s0+i}, v{s0+i+1}")
    a(f"v_max_f32 v6, v6, v{s0+15}")
    def setmax():
        a("v_mov_b32 v7, v6")
        a("s_nop 1")
        a("v_permlane32_swap_b32 v7, v6")
        a("s_nop 1")
        a("v_max_f32 v6, v6, v7")
        for i in range(16):
            a(f"v_sub_f32 v{C+i}, 0, v6")
    setmax()
    a("s_mov_b64 exec, s[38:39]")
    a(f"ds_read_b128 v[{V[0]}:{V[0]+3}], v4")
    a(f"ds_read_b128 v[{V[0]+4}:{V[0]+7}], v4 offset:512")
    a("s_mov_b64 exec, -1")
    a(f"v_mfma_f32_32x32x16_bf16 v[{s0}:{s0+15}], v[{K[0]}:{K[0]+3}], v[{Q}:{Q+3}], v[{C}:{C+15}]")
    for i in range(8):
        a(f"v_mov_b32 v{S[1]+8+i}, 0")
    a("s_nop 3")

    hooks = {}
    def hook(t, fn): hooks.setdefault(t, []).append(fn)
    def old_only(fn):
        def f():
            l = a.newlabel("Lold")
            a("s_cmp_gt_u32 s32, 3")
            a(f"s_cbranch_scc1 {l}")
            fn()
            a.label(l)
        return f
    def late_only(fn):
        def f():
            l = a.newlabel("Llate")
            a("s_cmp_lt_u32 s2, 128")
            a(f"s_cbranch_scc1 {l}")
            fn()
            a.label(l)
        return f
    def kv_dma(lo, hi):
        a("s_lshl_b32 s23, s32, 12")
        for i in range(lo, hi):
            a(f"s_add_u32 s20, s31, {i}")
            a("s_and_b32 s20, s20, 7")
            a("s_lshl_b32 s20, s20, 14")
            a("s_add_u32 s20, s20, s23")
            a(f"s_add_u32 s21, s23, {16384*i}")
            a("s_mov_b32 m0, s21")
            a("s_add_u32 s20, s20, s35")
            for n in range(4):
                a(f"buffer_load_dwordx4 v9, s[16:19], s20 offen offset:{1024*n} sc1 lds")
    def h_kvload():
        poll_loop(a, lambda: a("buffer_load_dword v13, v12, s[16:19], s40 offen sc1"),
                  lambda: chk_ne(a, [13]), "Lkv", first_issued=True, sleep=1)
        stamp(a, "kvok")
        kv_dma(1, 3)
    def h_bar(n, name):
        def f():
            a(f"s_waitcnt vmcnt({n})")
            a("s_barrier")
            stamp(a, name)
        return f
    def h_late_issue():
        srd(a, 12, 46, 512 * 6144)
        a("v_mul_u32_u24 v5, 6144, v11")
        a("v_add_u32 v5, v5, v10")
        a(f"s_mul_i32 s22, s32, {64*6144}")
        a("s_lshl_b32 s23, s2, 5")
        a("s_add_u32 s22, s22, s23")
        a("s_mov_b32 m0, s36")
        a("s_sub_u32 s22, s22, 2048")
        a("buffer_load_dwordx4 v5, s[12:15], s22 offen lds")
        a("s_add_u32 s23, s36, 1024")
        a("s_mov_b32 m0, s23")
        a(f"s_add_u32 s22, s22, {32*6144}")
        a("buffer_load_dwordx4 v5, s[12:15], s22 offen lds")
        a("v_lshlrev_b32 v5, 1, v0")
        a(f"global_load_ushort v{WO}, v5, s[44:45]")
    def h_late_a():
        a("s_waitcnt vmcnt(0)")
        a(f"v_lshlrev_b32 v{WO}, 16, v{WO}")
        silu(a, WO, 5)
        a(f"v_cvt_pk_bf16_f32 v{WO}, v{WO}, v{WO}")
        a("v_lshl_add_u32 v5, v2, 1, s36")
        a(f"ds_write_b16 v5, v{WO} offset:2048")
        a("v_and_b32 v5, 48, v2")
        a("v_add_u32 v5, s36, v5")
        for n in range(2):
            a(f"ds_read_b128 v[{WO+4+4*n}:{WO+7+4*n}], v5 offset:{2048+64*n}")
            trr(a, WO + 12 + 4 * n, 14, 15, 1024 * n)
    def h_late_b():
        mf16(a, WO, WO + 4, WO + 12, None)
        mf16(a, WO, WO + 8, WO + 16, WO)
    def h_late_c():
        a("s_lshl_b32 s21, s32, 6")
        a(f"s_add_u32 s21, s21, {LREC}")
        a("v_lshl_add_u32 v5, v8, 2, s21")
        a(f"ds_write_b32 v5, v{WO}")
    def w7_only(fn):
        def f():
            l = a.newlabel("Lw7")
            a("s_cmp_lg_u32 s32, 7")
            a(f"s_cbranch_scc1 {l}")
            fn()
            a.label(l)
        return f
    def h_late_d():
        a("v_lshlrev_b32 v5, 2, v8")
        a(f"v_add_u32 v6, {LREC}, v5")
        for w in range(8):
            a(f"ds_read_b32 v{MW+w}, v6 offset:{64*w}")
    def h_late_e():
        a("s_lshr_b32 s20, s2, 5")
        a("s_cmp_eq_u32 s20, 6")
        a("s_cselect_b32 s20, 1.0, 0")
        a("s_lshl_b32 s21, s2, 6")
        a(f"s_add_u32 s21, s21, {WS_MODF - 128*64}")
        for w in range(1, 8): a(f"v_add_f32 v{MW}, v{MW}, v{MW+w}")
        rnd_bf16(a, MW)
        a(f"v_add_f32 v{MW}, s20, v{MW}")
        rnd_bf16(a, MW)
        a("v_lshlrev_b32 v5, 2, v8")
        a("s_mov_b64 exec, 0xffff")
        a(f"buffer_store_dword v{MW}, v5, s[16:19], s21 offen sc1")
        a("s_mov_b64 exec, -1")
    def h_late_f():
        a("s_lshl_b32 s21, s2, 2")
        a(f"s_add_u32 s21, s21, {WS_FM - 128*4}")
        a("v_mov_b32 v5, 0")
        a("v_mov_b32 v6, s48")
        a("s_mov_b64 exec, 1")
        a("buffer_store_dword v6, v5, s[16:19], s21 offen sc1")
        a("s_mov_b64 exec, -1")
    hook(0, old_only(h_kvload))
    hook(2, old_only(lambda: kv_dma(3, 8)))
    hook(3, late_only(h_late_issue))
    hook(6, h_bar(20, "bar6"))
    hook(11, late_only(h_late_a))
    hook(12, late_only(h_late_b))
    hook(13, late_only(h_late_c))
    hook(14, h_bar(0, "bar14"))
    hook(14, late_only(w7_only(h_late_d)))
    hook(15, late_only(w7_only(h_late_e)))
    def h_prio():
        l = a.newlabel("Lpr")
        a("s_cmp_lt_u32 s32, 4")
        a(f"s_cbranch_scc1 {l}")
        a("s_setprio 1")
        a.label(l)
    hook(14, h_prio)
    hook(FLIP, lambda: a("s_setprio 0"))
    def dma_round(srdb, voff, soff, step, n):
        def f():
            for i in range(n):
                if i == 0:
                    a("s_mov_b32 m0, s36")
                    a("s_nop 0")
                else:
                    a(f"s_add_u32 s20, s36, {1024*i}")
                    a("s_mov_b32 m0, s20")
                    a(f"s_add_u32 s{soff}, s{soff}, {step}")
                a(f"buffer_load_dwordx4 v{voff}, s[{srdb}:{srdb+3}], s{soff} offen lds")
            a(f"s_add_u32 s{soff}, s{soff}, {step}")
        return f
    def wo_read(r):
        def f():
            a("s_waitcnt vmcnt(0)")
            for n in range(4):
                b = WO + 16 * r + 4 * n
                a(f"ds_read_b64_tr_b16 v[{b}:{b+1}], v110 offset:{1024*n}")
                a(f"ds_read_b64_tr_b16 v[{b+2}:{b+3}], v110 offset:{1024*n+256}")
        return f
    hook(15, lambda: srd(a, 12, 10, 512 * 1024))
    WOT = [15, 21, 27, 33, 39]
    for r in range(4):
        hook(WOT[r], dma_round(12, 109, 43, 32768, 4))
        hook(WOT[r + 1] - 1, wo_read(r))
    hook(20, late_only(w7_only(h_late_f)))
    def fm_issue():
        a("v_lshlrev_b32 v5, 3, v2")
        a("buffer_load_dwordx2 v[12:13], v5, s[16:19], s22 offen sc1")
    def h_fm_issue():
        a(f"s_mov_b32 s22, {WS_FM}")
        fm_issue()
        a(f"global_load_dwordx4 v[{XT}:{XT+3}], v111, s[6:7]")
        a("s_lshl_b32 s21, s42, 8")
        a("v_lshl_add_u32 v5, v8, 4, s21")
        a("global_load_dwordx4 v[248:251], v5, s[52:53]")
        a("global_load_dwordx4 v[252:255], v9, s[52:53]")
    def h_tailloads():
        a(f"s_mov_b32 s22, {WS_FM}")
        poll_loop(a, fm_issue, lambda: chk_ne(a, [12, 13]), "Lfm", first_issued=True, sleep=16)
        a("v_lshlrev_b32 v5, 5, v8")
        a("s_lshl_b32 s20, s42, 9")
        for j, reg in enumerate((GA, SB, CB, GB)):
            a(f"s_add_u32 s22, s20, {WS_MODF + j*2048}")
            a(f"buffer_load_dwordx4 v[{reg}:{reg+3}], v5, s[16:19], s22 offen sc1")
            a(f"buffer_load_dwordx4 v[{reg+4}:{reg+7}], v5, s[16:19], s22 offen offset:16 sc1")
    hook(33, h_fm_issue)
    hook(38, h_tailloads)
    def h_moe_setup():
        l = a.newlabel("Lms"); l2 = a.newlabel("Lms")
        a("s_cmp_ge_u32 s2, 112")
        a(f"s_cbranch_scc1 {l}")
        a("v_mul_u32_u24 v109, 3584, v11")
        a("s_and_b32 s20, s32, 1")
        a("s_cmp_eq_u32 s20, 0")
        a("s_cselect_b32 s12, s54, s56")
        a("s_cselect_b32 s13, s55, s57")
        a(f"s_mov_b32 s14, {512*3584}")
        a("s_lshr_b32 s20, s32, 1")
        a(f"s_mul_i32 s43, s20, {128*3584}")
        a("s_lshl_b32 s20, s2, 5")
        a("s_add_u32 s43, s43, s20")
        a(f"s_mov_b32 s61, {32*3584}")
        a(f"s_branch {l2}")
        a.label(l)
        a("v_lshlrev_b32 v109, 10, v11")
        a("s_mov_b32 s12, s58")
        a("s_mov_b32 s13, s59")
        a(f"s_mov_b32 s14, {1792*1024}")
        a(f"s_mul_i32 s43, s32, {224*1024}")
        a("s_sub_u32 s20, s2, 112")
        a("s_and_b32 s20, s20, 31")
        a("s_lshl_b32 s20, s20, 5")
        a("s_add_u32 s43, s43, s20")
        a(f"s_mov_b32 s61, {32*1024}")
        a.label(l2)
        a("v_add_u32 v109, v109, v10")
    def moe_dma(n, lo):
        def f():
            l = a.newlabel("Lmd")
            a(f"s_cmp_ge_u32 s2, 144")
            a(f"s_cbranch_scc1 {l}")
            if lo:
                a(f"s_cmp_lt_u32 s2, {lo}")
                a(f"s_cbranch_scc1 {l}")
            dma_round(12, 109, 43, "s61", n)()
            a.label(l)
        return f
    def moe_read(base, n):
        def f():
            a("s_waitcnt vmcnt(0)")
            for i in range(n):
                trr(a, MW + base + 4 * i, 14, 15, 1024 * i)
        return f
    hook(39, h_moe_setup)
    hook(39, moe_dma(4, 0))
    hook(50, moe_read(0, 4))
    hook(51, moe_dma(3, 112))
    hook(62, moe_read(16, 3))
    for t, nm in ((23, "t23"), (42, "t42")):
        hook(t, lambda nm=nm: stamp(a, nm))

    def tile(t, off, hooks):
        cur = S[t & 1]; nxt = S[(t + 1) & 1]
        e = lambda i: a(f"v_exp_f32 v{cur+i}, v{cur+i}")
        vp = V[(t + 1) & 1]; kn = K[(t + 1) & 1]; kc = K[t & 1]; vc = V[t & 1]
        a("s_waitcnt lgkmcnt(0)")
        for fn in hooks.get(t, []): fn()
        e(0); e(1); e(2)
        a(f"v_smfmac_f32_32x32x32_bf16 v[{O}:{O+15}], v[{vp+4}:{vp+7}], v[{nxt+8}:{nxt+15}], v{IDX}")
        e(3); e(4); e(5); e(6)
        a(f"v_mfma_f32_32x32x16_bf16 v[{nxt}:{nxt+15}], v[{kn}:{kn+3}], v[{Q}:{Q+3}], v[{C}:{C+15}]")
        a(f"ds_read_b128 v[{kc}:{kc+3}], v3 offset:{2048*(off+2)}")
        a("s_mov_b64 exec, s[38:39]")
        a(f"ds_read_b128 v[{vp}:{vp+3}], v4 offset:{2048*(off+1)}")
        a(f"ds_read_b128 v[{vp+4}:{vp+7}], v4 offset:{2048*(off+1)+512}")
        a("s_mov_b64 exec, -1")
        for i in range(7, 12): e(i)
        a(f"v_smfmac_f32_32x32x32_bf16 v[{O}:{O+15}], v[{vc}:{vc+3}], v[{cur}:{cur+7}], v{IDX}")
        for i in range(12, 16): e(i)
    for t in range(64):
        if t and t % 16 == 0:
            a("v_add_u32 v3, 0x8000, v3")
            a("v_add_u32 v4, 0x8000, v4")
        tile(t, t % 16, hooks)
    a("v_subrev_u32 v3, 0x18000, v3")
    a("v_subrev_u32 v4, 0x18000, v4")
    a.label("main_attn_tail")
    a(f"v_smfmac_f32_32x32x32_bf16 v[{O}:{O+15}], v[{V[1]+4}:{V[1]+7}], v[{S[1]+8}:{S[1]+15}], v{IDX}")
    stamp(a, "att1")
    a("s_lshl_b32 s21, s34, 15")
    a("s_lshl_b32 s22, s30, 10")
    a("s_add_u32 s21, s21, s22")
    a(f"s_add_u32 s21, s21, {WS_OF}")
    a(f"v_mov_b32 v6, {f32(2.0**40)}")
    a("s_waitcnt lgkmcnt(0)")
    a("s_nop 5")
    a(f"v_mov_b32 v7, v{O+8}")
    a(f"v_add_f32 v5, abs(v{O}), abs(v{O+1})")
    a(f"v_add_f32 v5, v5, abs(v{O+2})")
    a(f"v_permlane32_swap_b32 v{O+8}, v7")
    for i in range(3, 8):
        a(f"v_add_f32 v5, v5, abs(v{O+i})")
    a(f"v_mov_b32 v7, {f32(3.0e38)}")
    a(f"v_cmp_nle_f32 vcc, v{O+8}, v6")
    a(f"v_cmp_nle_f32 s[22:23], v5, v7")
    a("s_or_b64 vcc, vcc, s[22:23]")
    a("s_cmp_lg_u32 s37, 0")
    a("s_cbranch_scc1 main_fin")
    a("s_cbranch_vccnz main_fallback")
    a.label("main_fin")
    a(f"v_rcp_f32 v6, v{O+8}")
    a("s_nop 0")
    for i in range(8):
        a(f"v_mul_f32 v{O+i}, v{O+i}, v6")
    for i in range(4):
        a(f"v_cvt_pk_bf16_f32 v{16+i}, v{O+2*i}, v{O+2*i+1}")
    a("buffer_store_dwordx4 v[16:19], v9, s[16:19], s21 offen sc1")
    a("s_lshl_b32 s21, s34, 7")
    a("s_lshl_b32 s22, s30, 2")
    a("s_add_u32 s21, s21, s22")
    a(f"s_add_u32 s21, s21, {WS_F2}")
    a("v_mov_b32 v5, 0")
    a("v_mov_b32 v6, s48")
    a("v_lshrrev_b32 v20, 5, v2")
    a("v_lshlrev_b32 v20, 10, v20")
    a("v_bfe_u32 v21, v2, 4, 1")
    a("v_lshl_add_u32 v20, v21, 9, v20")
    a("v_lshl_add_u32 v20, v8, 4, v20")
    a("v_mul_u32_u24 v22, 528, v8")
    a("v_lshrrev_b32 v23, 4, v2")
    a("v_lshl_add_u32 v22, v23, 4, v22")
    a("s_lshl_b32 s22, s32, 6")
    a("s_add_u32 s22, s22, 32768")
    a("v_add_u32 v22, s22, v22")
    a("v_lshrrev_b32 v24, 4, v0")
    a("v_mul_u32_u24 v23, 528, v24")
    a("v_lshl_add_u32 v23, v8, 5, v23")
    a("v_add_u32 v23, 32768, v23")
    a("v_lshlrev_b32 v12, 4, v24")
    a("v_and_b32 v13, 3, v0")
    a("v_lshl_add_u32 v13, v13, 9, v12")
    a("v_lshrrev_b32 v14, 10, v111")
    a("v_sub_u32 v14, 2047, v14")
    a("v_lshl_or_b32 v14, v14, 1, 1")
    a("v_lshlrev_b32 v15, 2, v24")
    a("v_add_u32 v15, 65536, v15")
    unpack8(a, 40, XT)
    a("s_waitcnt vmcnt(0)")
    a("s_mov_b64 exec, 1")
    a("buffer_store_dword v6, v5, s[16:19], s21 offen sc1")
    a("s_mov_b64 exec, -1")
    stamp(a, "f2")
    a("v_lshlrev_b32 v5, 5, v2")
    a(f"s_mov_b32 s22, {WS_MODF + 2048}")
    a("buffer_load_dwordx4 v[56:59], v5, s[16:19], s22 offen sc1")
    a("buffer_load_dwordx4 v[60:63], v5, s[16:19], s22 offen offset:16 sc1")
    a("buffer_load_dwordx4 v[64:67], v5, s[16:19], s22 offen offset:2048 sc1")
    a("buffer_load_dwordx4 v[68:71], v5, s[16:19], s22 offen offset:2064 sc1")
    for i in range(4):
        a(f"v_lshlrev_b32 v{WP+2*i}, 16, v{248+i}")
        a(f"v_and_b32 v{WP+2*i+1}, 0xffff0000, v{248+i}")
    for i in range(8):
        a(f"v_mul_f32 v{WP+i}, v{WP+i}, v{CB+i}")
    unpack8(a, 72, 252)
    a("s_waitcnt vmcnt(0)")
    a("v_mul_f32 v252, v72, v64")
    a("v_mul_f32 v253, v72, v56")
    for i in range(1, 8):
        a(f"v_fmac_f32 v252, v{72+i}, v{64+i}")
        a(f"v_fmac_f32 v253, v{72+i}, v{56+i}")
    multi_allreduce(a, [252, 253], [5, 6])
    a("s_cmp_lg_u32 s32, 0")
    a("s_cbranch_scc1 main_s2")
    a("v_and_b32 v5, 31, v2")
    a("v_lshlrev_b32 v5, 2, v5")
    a("s_lshl_b32 s22, s41, 7")
    a(f"s_add_u32 s22, s22, {WS_F2}")
    poll_loop(a, lambda: a("buffer_load_dword v6, v5, s[16:19], s22 offen sc1"), lambda: chk_ne(a, [6]), "Lo", sleep=1)
    a.label("main_s2")
    a("s_lshl_b32 s23, s32, 12")
    a("s_lshl_b32 s22, s41, 15")
    a("s_add_u32 s22, s22, s23")
    a(f"s_add_u32 s22, s22, {WS_OF}")
    a("s_mov_b32 m0, s23")
    a("s_barrier")
    stamp(a, "s2")
    for n in range(4):
        a(f"buffer_load_dwordx4 v9, s[16:19], s22 offen offset:{1024*n} sc1 lds")
    a("s_lshl_b32 s21, s41, 11")
    a(f"s_add_u32 s21, s21, {WS_ST2}")
    a("s_lshl_b32 s22, s42, 9")
    a("s_add_u32 s22, s22, s21")
    a("s_mov_b32 s24, 0x00010001")
    a("s_mov_b32 s25, 0x00010001")
    a("v_mov_b32 v55, s48")
    a("s_waitcnt vmcnt(0)")
    a("s_barrier")
    stamp(a, "olan")
    OFR = 56
    def rd(s):
        b = OFR + 8 * (s % 4)
        a(f"ds_read_b128 v[{b}:{b+3}], v20 offset:{2048*s}")
        a(f"ds_read_b128 v[{b+4}:{b+7}], v20 offset:{2048*s+256}")
    rd(0); rd(1); rd(2)
    for s in range(16):
        if s < 13:
            rd(s + 3)
            a("s_waitcnt lgkmcnt(6)")
        else:
            a(f"s_waitcnt lgkmcnt({2*(15-s)})")
        b = OFR + 8 * (s % 4)
        for u in range(2):
            mf16(a, 24 + 4 * u, WO + 4 * s, b + 4 * u, None if s == 0 else 24 + 4 * u)
    a("s_nop 6")
    a("ds_write_b128 v22, v[24:27]")
    a(f"ds_write_b128 v22, v[28:31] offset:{16*528}")
    a("s_waitcnt lgkmcnt(0)")
    a("s_barrier")
    a("ds_read_b128 v[32:35], v23")
    a("ds_read_b128 v[36:39], v23 offset:16")
    for i in range(0, 8, 2):
        if i % 4 == 0: a(f"s_waitcnt lgkmcnt({1 - i//4})")
        rnd_pair(a, 32 + i, 33 + i, 26)
        a(f"v_mul_f32 v{32+i}, v{32+i}, v{GA+i}")
        a(f"v_mul_f32 v{33+i}, v{33+i}, v{GA+i+1}")
        rnd_pair(a, 32 + i, 33 + i, 26)
        a(f"v_add_f32 v{32+i}, v{32+i}, v{40+i}")
        a(f"v_add_f32 v{33+i}, v{33+i}, v{41+i}")
        a(f"v_cvt_pk_bf16_f32 v{48+i//2}, v{32+i}, v{33+i}")
        a(f"v_lshlrev_b32 v{32+i}, 16, v{48+i//2}")
        a(f"v_and_b32 v{33+i}, 0xffff0000, v{48+i//2}")
    a("v_add_f32 v52, v32, v33")
    a("v_mul_f32 v53, v32, v32")
    a(f"v_mul_f32 v54, v32, v{WP}")
    for i in range(1, 8):
        if i > 1: a(f"v_add_f32 v52, v52, v{32+i}")
        a(f"v_fmac_f32 v53, v{32+i}, v{32+i}")
        a(f"v_fmac_f32 v54, v{32+i}, v{WP+i}")
    a("s_nop 0")
    for n in (8, 4, 2, 1):
        for r in (52, 53, 54):
            a(f"v_add_f32_dpp v{r}, v{r}, v{r} row_ror:{n} row_mask:0xf bank_mask:0xf")
    a("s_mov_b64 exec, s[24:25]")
    a("buffer_store_dwordx4 v[52:55], v12, s[16:19], s22 offen sc1")
    a("s_mov_b64 exec, -1")
    stamp(a, "st2")
    poll_loop(a, lambda: a("buffer_load_dwordx4 v[56:59], v13, s[16:19], s21 offen sc1"), lambda: chk_ne(a, [59]), "Ls", sleep=1)
    stamp(a, "s3")
    for qp in ("[1,0,3,2]", "[2,3,0,1]"):
        for r in (56, 57, 58):
            a(f"v_add_f32_dpp v{r}, v{r}, v{r} quad_perm:{qp} row_mask:0xf bank_mask:0xf")
    a(f"v_mul_f32 v56, {f32(1/512)}, v56")
    a(f"v_mul_f32 v57, {f32(1/512)}, v57")
    a("v_fma_f32 v57, -v56, v56, v57")
    a("v_max_f32 v57, 0, v57")
    rnd_pair(a, 56, 57, 26)
    a(f"v_add_f32 v57, {f32(1e-5)}, v57")
    rnd_bf16(a, 57)
    a("v_sqrt_f32 v57, v57")
    a("v_fma_f32 v58, -v56, v252, v58")
    rnd_bf16(a, 57)
    a("v_rcp_f32 v57, v57")
    a("s_nop 0")
    a("v_fma_f32 v58, v58, v57, v253")
    a("v_cvt_pk_bf16_f32 v58, v58, v58")
    a("v_ashrrev_i32 v59, 31, v58")
    a("v_or_b32 v59, 0x80000000, v59")
    a("v_xor_b32 v58, v58, v59")
    a("v_and_b32 v58, 0xffff0000, v58")
    a("v_or_b32 v58, v58, v14")
    a("ds_write_b32 v15, v58")
    a("v_and_b32 v5, 31, v2")
    a("v_lshlrev_b32 v5, 2, v5")
    a("v_add_u32 v5, 65536, v5")
    a("s_waitcnt lgkmcnt(0)")
    a("s_barrier")
    a("ds_read_b32 v10, v5")
    def h2_math(i):
        a(f"v_sub_f32 v{40+i}, v{32+i}, v56")
        a(f"v_sub_f32 v{41+i}, v{33+i}, v56")
        rnd_pair(a, 40 + i, 41 + i, 26)
        a(f"v_mul_f32 v{40+i}, v{40+i}, v57")
        a(f"v_mul_f32 v{41+i}, v{41+i}, v57")
        rnd_pair(a, 40 + i, 41 + i, 26)
        a(f"v_mul_f32 v{40+i}, v{40+i}, v{CB+i}")
        a(f"v_mul_f32 v{41+i}, v{41+i}, v{CB+i+1}")
        rnd_pair(a, 40 + i, 41 + i, 26)
        a(f"v_add_f32 v{40+i}, v{40+i}, v{SB+i}")
        a(f"v_add_f32 v{41+i}, v{41+i}, v{SB+i+1}")
        a(f"v_cvt_pk_bf16_f32 v{60+i//2}, v{40+i}, v{41+i}")
    h2_math(0)
    a("s_waitcnt lgkmcnt(0)")
    a("v_mov_b32 v64, v10")
    multi_allreduce(a, [64], [11], op="v_max_u32")
    a("v_cmp_eq_u32 vcc, v64, v10")
    a("s_nop 1")
    a("v_cndmask_b32 v65, v10, 0, vcc")
    multi_allreduce(a, [65], [11], op="v_max_u32")
    a("v_cmp_eq_u32 s[26:27], v64, v58")
    a("v_cmp_eq_u32 s[28:29], v65, v58")
    a("s_or_b32 s20, s42, s32")
    a("s_cmp_lg_u32 s20, 0")
    a("s_cbranch_scc1 main_notop")
    a("v_and_b32 v65, -2, v65")
    a("v_mov_b32 v66, s48")
    a("v_mov_b32 v67, s48")
    a("s_lshl_b32 s20, s41, 4")
    a(f"s_add_u32 s20, s20, {WS_TOP}")
    a("v_mov_b32 v5, 0")
    a("s_mov_b64 exec, 1")
    a("buffer_store_dwordx4 v[64:67], v5, s[16:19], s20 offen sc1")
    a("s_mov_b64 exec, -1")
    a.label("main_notop")
    stamp(a, "top")
    for i in (2, 4, 6): h2_math(i)
    a("s_or_b64 s[62:63], s[26:27], s[28:29]")
    a("s_cmp_eq_u64 s[62:63], 0")
    a("s_cbranch_scc1 main_nocand")
    a("v_mov_b32 v5, 2048")
    a("v_cndmask_b32 v5, 0, v5, s[28:29]")
    a("v_lshl_add_u32 v5, v8, 4, v5")
    a("s_lshl_b32 s20, s41, 12")
    a("s_lshl_b32 s21, s42, 8")
    a("s_add_u32 s20, s20, s21")
    a(f"s_add_u32 s20, s20, {WS_CAND}")
    a("s_mov_b64 exec, s[62:63]")
    a("buffer_store_dwordx4 v[60:63], v5, s[16:19], s20 offen sc1")
    a("buffer_store_dwordx4 v[48:51], v5, s[16:19], s20 offen offset:1024 sc1")
    a("s_mov_b64 exec, -1")
    a.label("main_nocand")
    a("s_cmp_lg_u32 s32, 0")
    a("s_cbranch_scc1 main_notp")
    a(f"s_mov_b32 s22, {WS_TOP}")
    a("buffer_load_dwordx4 v[68:71], v9, s[16:19], s22 offen sc1")
    a.label("main_notp")
    for i in range(0, 8, 2):
        a(f"v_lshlrev_b32 v{40+i}, 16, v{60+i//2}")
        a(f"v_and_b32 v{41+i}, 0xffff0000, v{60+i//2}")
        a(f"v_mul_f32 v{40+i}, v{40+i}, v{GB+i}")
        a(f"v_mul_f32 v{41+i}, v{41+i}, v{GB+i+1}")
        rnd_pair(a, 40 + i, 41 + i, 26)
        a(f"v_add_f32 v{40+i}, v{40+i}, v{32+i}")
        a(f"v_add_f32 v{41+i}, v{41+i}, v{33+i}")
        a(f"v_cvt_pk_bf16_f32 v{72+i//2}, v{40+i}, v{41+i}")
    a("s_cmp_lg_u32 s32, 0")
    a("s_cbranch_scc1 main_w0e")
    poll_loop(a, lambda: a("buffer_load_dwordx4 v[68:71], v9, s[16:19], s22 offen sc1"), lambda: chk_ne(a, [70]), "Lt", first_issued=True, sleep=2)
    a("v_mov_b32 v64, v68")
    multi_allreduce(a, [64], [11], op="v_max_u32")
    a("v_cmp_eq_u32 vcc, v64, v68")
    a("s_nop 1")
    a("v_cndmask_b32 v65, v68, v69, vcc")
    multi_allreduce(a, [65], [11], op="v_max_u32")
    a("v_mov_b32 v5, 65792")
    a("ds_write_b64 v5, v[64:65]")
    a("s_waitcnt lgkmcnt(0)")
    a.label("main_w0e")
    a("s_andn2_b64 exec, -1, s[62:63]")
    a("global_store_dwordx4 v111, v[72:75], s[50:51]")
    a("s_mov_b64 exec, -1")
    a("s_barrier")
    stamp(a, "s4")
    a("v_mov_b32 v5, 65792")
    a("ds_read_b64 v[64:65], v5")
    a("s_waitcnt lgkmcnt(0)")
    a("s_cmp_eq_u64 s[62:63], 0")
    a("s_cbranch_scc1 main_nodef")
    a("v_or_b32 v5, 1, v64")
    a("v_or_b32 v6, 1, v65")
    a("v_cmp_ne_u32 vcc, v5, v58")
    a("v_cmp_ne_u32 s[20:21], v6, v58")
    a("s_and_b64 vcc, vcc, s[20:21]")
    a("s_and_b64 exec, vcc, s[62:63]")
    a("s_cbranch_execz main_nodef")
    a("global_store_dwordx4 v111, v[72:75], s[50:51]")
    a.label("main_nodef")
    a("s_mov_b64 exec, -1")
    a("s_cmp_ge_u32 s2, 144")
    a("s_cbranch_scc1 main_done")
    def cand_off(key, d, t):
        a(f"v_bfe_u32 v{d}, v{key}, 6, 6")
        a(f"v_sub_u32 v{d}, 63, v{d}")
        a(f"v_lshlrev_b32 v{d}, 12, v{d}")
        a(f"v_not_b32 v{t}, v{key}")
        a(f"v_and_b32 v{t}, 1, v{t}")
        a(f"v_lshl_add_u32 v{d}, v{t}, 11, v{d}")
    a("s_cmp_ge_u32 s2, 112")
    a("s_cbranch_scc1 main_down")
    a("v_and_b32 v15, 1, v2")
    a("v_cmp_eq_u32 vcc, 0, v15")
    a("s_lshr_b32 s21, s32, 1")
    a("s_lshl_b32 s21, s21, 8")
    a("v_cndmask_b32 v16, v65, v64, vcc")
    cand_off(16, 17, 18)
    a("v_lshrrev_b32 v18, 4, v2")
    a("v_lshl_add_u32 v17, v18, 4, v17")
    a(f"s_add_u32 s22, s21, {WS_CAND}")
    def issue():
        for n in range(4):
            a(f"buffer_load_dwordx4 v[{32+4*n}:{35+4*n}], v17, s[16:19], s22 offen offset:{64*n} sc1")
    def check():
        a("v_max3_u32 v5, v32, v36, v40")
        a("v_max_u32 v5, v5, v44")
        a("v_cmp_eq_u32 vcc, -1, v5")
        a("s_cmp_eq_u64 vcc, 0")
    poll_loop(a, issue, check, "Lh", sleep=2)
    stamp(a, "moe")
    for n in range(4):
        mf16(a, 20, 32 + 4 * n, MW + 4 * n, None if n == 0 else 20)
    PB = 66560
    def partial_and_gather():
        a("s_lshl_b32 s23, s32, 7")
        a(f"s_add_u32 s23, s23, {PB}")
        a("v_lshl_add_u32 v24, v2, 2, s23")
        a("s_mov_b64 exec, 0xffff")
        a("s_nop 4")
        a("ds_write_b32 v24, v20")
        a("ds_write_b32 v24, v21 offset:64")
        a("s_mov_b64 exec, -1")
        a("s_waitcnt lgkmcnt(0)")
        a("s_barrier")
        a("s_cmp_lg_u32 s32, 0")
        a("s_cbranch_scc1 main_done")
        a("v_and_b32 v24, 31, v0")
        a("v_lshlrev_b32 v24, 2, v24")
        a(f"v_add_u32 v24, {PB}, v24")
        for w in range(8):
            a(f"ds_read_b32 v{32+w}, v24 offset:{128*w}")
    partial_and_gather()
    a("v_bfe_u32 v25, v0, 4, 1")
    a("v_mul_u32_u24 v25, 3584, v25")
    a("v_lshl_add_u32 v25, v8, 1, v25")
    a("s_lshl_b32 s21, s2, 5")
    a(f"s_add_u32 s21, s21, {WS_ACT}")
    a("s_waitcnt lgkmcnt(0)")
    for w in range(2, 8):
        a(f"v_add_f32 v{32+(w&1)}, v{32+(w&1)}, v{32+w}")
    rnd_pair(a, 32, 33, 40)
    silu(a, 32, 34)
    rnd_bf16(a, 32)
    a("v_mul_f32 v32, v32, v33")
    a("s_nop 1")
    a("v_mov_b32_dpp v33, v32 quad_perm:[1,0,3,2] row_mask:0xf bank_mask:0xf")
    a("v_cvt_pk_bf16_f32 v32, v32, v33")
    a("s_mov_b64 exec, 0x55555555")
    a("buffer_store_dword v32, v25, s[16:19], s21 offen sc1")
    a("s_mov_b64 exec, -1")
    a("s_branch main_done")
    a.label("main_down")
    if STAMPS is not None and "moe" in STAMPS: Prof.n -= 1
    a("s_sub_u32 s33, s2, 112")
    a("v_bfe_u32 v15, v0, 4, 1")
    a("v_cmp_eq_u32 vcc, 0, v15")
    a("s_lshl_b32 s21, s33, 5")
    a(f"s_add_u32 s22, s21, {WS_CAND}")
    a("v_cndmask_b32 v12, v65, v64, vcc")
    cand_off(12, 16, 17)
    a("v_and_b32 v17, 14, v8")
    a("v_lshl_add_u32 v16, v17, 1, v16")
    def issue():
        a("buffer_load_dword v17, v16, s[16:19], s22 offen sc1")
        a("buffer_load_dword v18, v16, s[16:19], s22 offen offset:1024 sc1")
    def check():
        a("v_max_u32 v5, v17, v18")
        a("v_cmp_eq_u32 vcc, -1, v5")
        a("s_cmp_eq_u64 vcc, 0")
    a("v_lshlrev_b32 v19, 2, v8")
    a("s_lshl_b32 s23, s33, 6")
    a(f"s_add_u32 s23, s23, {WS_MODF+3*2048}")
    a("buffer_load_dword v19, v19, s[16:19], s23 offen sc1")
    poll_loop(a, issue, check, "Lf", sleep=2)
    a("v_bfe_u32 v15, v12, 1, 11")
    a("v_sub_u32 v15, 2047, v15")
    a("v_lshlrev_b32 v15, 10, v15")
    a("v_lshl_add_u32 v15, v8, 1, v15")
    a("v_add_u32 v15, s21, v15")
    a("v_and_b32 v16, 1, v0")
    a("v_lshlrev_b32 v16, 4, v16")
    a("v_lshrrev_b32 v17, v16, v17")
    a("v_lshrrev_b32 v18, v16, v18")
    a("v_lshlrev_b32 v17, 16, v17")
    a("v_lshlrev_b32 v18, 16, v18")
    a("v_and_b32 v12, 0xffff0000, v12")
    a("v_ashrrev_i32 v25, 31, v12")
    a("v_not_b32 v25, v25")
    a("v_or_b32 v25, 0x80000000, v25")
    a("v_xor_b32 v12, v12, v25")
    a("v_and_b32 v12, 0xffff0000, v12")
    a(f"v_mul_f32 v25, {NLOG2E:#x}, v12")
    a("v_exp_f32 v25, v25")
    a("s_nop 0")
    a("v_add_f32 v25, 1.0, v25")
    a("v_rcp_f32 v25, v25")
    a("s_nop 0")
    rnd_bf16(a, 25)
    a("v_and_b32 v13, 1, v2")
    a("v_mul_u32_u24 v13, 3584, v13")
    a("v_lshrrev_b32 v14, 4, v2")
    a("v_lshl_add_u32 v13, v14, 4, v13")
    a("s_mul_i32 s22, s32, 448")
    a(f"s_add_u32 s22, s22, {WS_ACT}")
    def issue():
        for n in range(7):
            a(f"buffer_load_dwordx4 v[{32+4*n}:{35+4*n}], v13, s[16:19], s22 offen offset:{64*n} sc1")
    def check():
        a("v_max3_u32 v5, v32, v33, v34")
        for i in range(3, 27, 2):
            a(f"v_max3_u32 v5, v5, v{32+i}, v{33+i}")
        a("v_max_u32 v5, v5, v59")
        a("v_cmp_eq_u32 vcc, -1, v5")
        a("s_cmp_eq_u64 vcc, 0")
    poll_loop(a, issue, check, "La", sleep=2)
    stamp(a, "moe")
    for n in range(7):
        mf16(a, 20, 32 + 4 * n, MW + 4 * n, None if n == 0 else 20)
    partial_and_gather()
    a("s_waitcnt lgkmcnt(0)")
    for w in range(1, 8):
        a(f"v_add_f32 v32, v32, v{32+w}")
    rnd_bf16(a, 32)
    a("v_mul_f32 v32, v32, v25")
    rnd_bf16(a, 32)
    a("v_add_f32 v32, v32, v17")
    rnd_bf16(a, 32)
    a("v_mul_f32 v32, v32, v19")
    rnd_bf16(a, 32)
    a("v_add_f32 v32, v32, v18")
    a("v_cvt_pk_bf16_f32 v32, v32, v32")
    a("s_mov_b32 exec_hi, 0")
    a("global_store_short v15, v32, s[50:51]")
    a("s_cmp_lg_u32 s33, 0")
    a("s_cbranch_scc1 main_done")
    a("v_mov_b32 v5, 0")
    a("v_mov_b32 v6, s48")
    a("s_mov_b64 exec, 1")
    a("global_store_dword v5, v6, s[4:5]")
    a.label("main_done")
    if STAMPS is not None: stamp_end(a)
    a.label("main_end")
    a("s_endpgm")
    a.label("main_fallback")
    a("s_mov_b32 s37, 1")
    a("s_mov_b32 s20, 64")
    a("v_mov_b32 v6, 0xff800000")
    a("v_mov_b32 v5, v3")
    a.label("main_fb_loop")
    a(f"ds_read_b128 v[{K[0]}:{K[0]+3}], v5")
    a("v_add_u32 v5, 0x800, v5")
    a("s_waitcnt lgkmcnt(0)")
    a(f"v_mfma_f32_32x32x16_bf16 v[{s0}:{s0+15}], v[{K[0]}:{K[0]+3}], v[{Q}:{Q+3}], 0")
    a("s_nop 11")
    for i in range(0, 16, 2):
        a(f"v_max3_f32 v6, v6, v{s0+i}, v{s0+i+1}")
    a("s_sub_u32 s20, s20, 1")
    a("s_cmp_lg_u32 s20, 0")
    a("s_cbranch_scc1 main_fb_loop")
    a(f"ds_read_b128 v[{K[0]}:{K[0]+3}], v3")
    a(f"ds_read_b128 v[{K[1]}:{K[1]+3}], v3 offset:2048")
    for i in range(16):
        a(f"v_mov_b32 v{O+i}, 0")
    setmax()
    a("s_mov_b64 exec, s[38:39]")
    a(f"ds_read_b128 v[{V[0]}:{V[0]+3}], v4")
    a(f"ds_read_b128 v[{V[0]+4}:{V[0]+7}], v4 offset:512")
    a("s_mov_b64 exec, -1")
    a("s_waitcnt lgkmcnt(0)")
    a(f"v_mfma_f32_32x32x16_bf16 v[{s0}:{s0+15}], v[{K[0]}:{K[0]+3}], v[{Q}:{Q+3}], v[{C}:{C+15}]")
    for i in range(8):
        a(f"v_mov_b32 v{S[1]+8+i}, 0")
    a("s_mov_b32 s20, 32")
    a("s_nop 3")
    a.label("main_fb2")
    tile(0, 0, {}); tile(1, 1, {})
    a("v_add_u32 v3, 0x1000, v3")
    a("v_add_u32 v4, 0x1000, v4")
    a("s_sub_u32 s20, s20, 1")
    a("s_cmp_lg_u32 s20, 0")
    a("s_cbranch_scc1 main_fb2")
    a("v_subrev_u32 v3, 0x20000, v3")
    a("v_subrev_u32 v4, 0x20000, v4")
    a("s_branch main_attn_tail")

def main(out, aslist=False):
    hdr = open("adaLN_cond__mha_block__moe_arch_mod__prompt.s.ref").read().split("; Override launch")[0]
    txt = hdr
    if aslist:
        txt += f"; @launch kernel={KNAME} grid=(256,1,1) block=(512,1,1) lds=163840\n"
    else:
        txt += "; @launch grid=(256,1,1) block=(512,1,1) lds=163840\n"
    txt += '.amdgcn_target "amdgcn-amd-amdhsa--gfx950"\n'
    a = Asm()
    k_main(a)
    txt += a.text()
    txt += kernel_desc(KNAME, 256)
    open(out, "w").write(txt)

SETS = {
    "f0": ["karg", "emland", "mp", "issued", "d2", "d7", "gath0", "gath1", "barx", "bar1", "pass1", "f1", "att0"],
    "f1": ["barx", "bar1", "p1", "p5", "p10", "pass1", "kvpub", "f1", "att0", "kvok", "bar6", "bar14", "att1"],
    "tail": ["att0", "t23", "t42", "att1", "f2", "s2", "olan", "st2", "s3", "top", "s4", "moe"],
}
if __name__ == "__main__":
    if len(sys.argv) > 2 and sys.argv[2] in SETS:
        G1.PROF = True
        STAMPS = set(SETS[sys.argv[2]])
    main(sys.argv[1], aslist=(len(sys.argv) > 2 and sys.argv[2] != "final"))
    if STAMPS: print(" ".join(["start"] + ORDER + ["end"]))
```

```python
import sys
from asmlib import *
import gen_v1 as G1
from gen_v1 import (f32, multi_allreduce, unpack8, rnd_pair, tr_addr_natural, dma_row_src,
                    stamp_begin, stamp_end, Prof, NLOG2E, QSCALE, WS_BYTES)

KNAME = "adaLN_cond__mha_block__moe_arch_mod__prompt_kernel"
WS_EPOCH = 0
WS_MP = 0x1000
WS_ST1 = 0x10000
WS_MPL = 0x20000
WS_ST2 = 0x40000
WS_TOP = 0x60000
WS_ACT = 0x64000
WS_CAND = 0x80000
WS_F1 = 0x100000
WS_F2 = 0x140000
WS_WP = 0x200000
WS_KV = 0x500000
WS_OF = 0x900000
SPIN = 50000
STAMPS = None
ORDER = []

def stamp(a, name):
    if STAMPS is not None and name in STAMPS:
        if name not in ORDER: ORDER.append(name)
        G1.stamp(a)

def poll_loop(a, issue, check, name, first_issued=False, sleep=4):
    l = a.newlabel(name); d = a.newlabel(name + "d"); w = a.newlabel(name + "w")
    a(f"s_mov_b32 s60, {SPIN}")
    if first_issued: a(f"s_branch {w}")
    a.label(l)
    issue()
    if first_issued: a.label(w)
    a("s_waitcnt vmcnt(0)")
    check()
    a(f"s_cbranch_scc1 {d}")
    a("s_sub_u32 s60, s60, 1")
    if sleep: a(f"s_sleep {sleep}")
    a("s_cmp_lg_u32 s60, 0")
    a(f"s_cbranch_scc1 {l}")
    a.label(d)

def chk_ne(a, regs):
    a(f"v_cmp_ne_u32 vcc, s48, v{regs[0]}")
    for r in regs[1:]:
        a(f"v_cmp_ne_u32 s[20:21], s48, v{r}")
        a("s_or_b64 vcc, vcc, s[20:21]")
    a("s_cmp_eq_u64 vcc, 0")

def silu(a, x, t):
    a(f"v_mul_f32 v{t}, {NLOG2E:#x}, v{x}")
    a(f"v_exp_f32 v{t}, v{t}")
    a("s_nop 0")
    a(f"v_add_f32 v{t}, 1.0, v{t}")
    a(f"v_rcp_f32 v{t}, v{t}")
    a("s_nop 0")
    a(f"v_mul_f32 v{x}, v{x}, v{t}")

def mf16(a, d, A, B, c):
    cs = "0" if c is None else f"v[{c}:{c+3}]"
    a(f"v_mfma_f32_16x16x32_bf16 v[{d}:{d+3}], v[{A}:{A+3}], v[{B}:{B+3}], {cs}")

def trr(a, d, a1, a2, off):
    a(f"ds_read_b64_tr_b16 v[{d}:{d+1}], v{a1} offset:{off}")
    a(f"ds_read_b64_tr_b16 v[{d+2}:{d+3}], v{a2} offset:{off}")

WPB = 0; RING = 49152
REG = {0: 32768, 1: 0, 2: 16384}
EMB = 147456; SAT = 151552; CTE = 152576; CAT = 152832; REC = 154880; STT = 157440
STG = 131072
EM2 = 159744
Q = 16; C = 20; S = [36, 52]; O = 68; K = [84, 88]; V = [92, 100]; IDX = 108
WO = 112; MW = 176; XT = 204
GA = 208; SB = 216; CB = 224; GB = 232; WP = 240
FLIP = 48
TOUCH = 0
WPS = 16384 + 384
F1STEP = 10
XR = 32; WR = 160; ACC = 184; QA = 176; WF = [236, 244]

def k_main(a):
    kernel_begin(a, KNAME)
    a("s_cmp_ge_u32 s2, 256")
    a("s_cbranch_scc1 main_end")
    if STAMPS is not None: stamp_begin(a, 0)
    a("s_setprio 3")
    a("s_load_dwordx2 s[4:5], s[0:1], 96")
    a("s_load_dwordx4 s[44:47], s[0:1], 64")
    a("s_load_dwordx2 s[6:7], s[0:1], 0")
    a("s_load_dwordx4 s[8:11], s[0:1], 8")
    a("s_load_dwordx8 s[52:59], s[0:1], 32")
    a("s_load_dwordx2 s[50:51], s[0:1], 80")
    a("v_lshrrev_b32 v1, 6, v0")
    a("v_and_b32 v2, 63, v0")
    a("s_and_b32 s31, s2, 1")
    a("s_lshl_b32 s31, s31, 2")
    a("v_readfirstlane_b32 s32, v1")
    a("s_bfe_u32 s20, s2, 0x20003")
    a("s_add_u32 s31, s31, s20")
    a("s_and_b32 s30, s2, 6")
    a("s_lshl_b32 s30, s30, 2")
    a("s_lshr_b32 s20, s2, 5")
    a("s_add_u32 s30, s30, s20")
    a("s_lshl_b32 s33, s20, 1")
    a("v_lshlrev_b32 v9, 4, v2")
    a("v_lshrrev_b32 v17, 3, v2")
    a("v_and_b32 v16, 6, v17")
    a("v_xor_b32 v16, v16, v2")
    a("v_and_b32 v16, 7, v16")
    a("v_lshlrev_b32 v200, 10, v17")
    a("v_lshl_add_u32 v200, v16, 4, v200")
    for q in range(1, 4): a(f"v_add_u32 v{200+q}, {7168*q}, v200")
    dma_row_src(a, 255, 2, 6144, 16, 17)
    a("s_lshl_b32 s28, s31, 18")
    a("s_lshl_b32 s21, s32, 15")
    a("s_add_u32 s28, s28, s21")
    a("s_lshl_b32 s29, s33, 6")
    a("s_mul_i32 s49, s32, 12288")
    a(f"s_add_u32 s49, s49, {RING}")
    a("v_lshrrev_b32 v3, 1, v2")
    a("v_lshl_add_u32 v3, v1, 6, v3")
    a("s_and_b32 s20, s2, 8")
    a("s_lshl_b32 s20, s20, 2")
    a("v_xor_b32 v3, s20, v3")
    a("v_and_b32 v6, 1, v0")
    a("s_lshl_b32 s20, s30, 5")
    a("v_lshl_add_u32 v16, v6, 4, s20")
    a("v_mul_u32_u24 v5, 3072, v3")
    a("v_add_u32 v5, v5, v16")
    a("v_xor_b32 v4, 32, v3")
    a("v_mul_u32_u24 v4, 3072, v4")
    a("v_add_u32 v4, v4, v16")
    a("s_lshl_b32 s39, s2, 3")
    a("s_add_u32 s39, s39, s32")
    a("s_and_b32 s62, s2, 7")
    a("s_lshl_b32 s62, s62, 3")
    a("s_bfe_u32 s23, s2, 0x30003")
    a("s_add_u32 s62, s62, s23")
    a("s_waitcnt lgkmcnt(0)")
    stamp(a, "karg")
    a("s_load_dword s48, s[4:5], 0")
    srd(a, 24, 6, 2048 * 1024)
    srd(a, 16, 4, WS_BYTES)
    srd(a, 12, 8, 512 * 3072)
    a("s_cmp_lg_u32 s32, 0")
    a("s_cbranch_scc1 main_w0a")
    a("s_lshr_b32 s21, s2, 6")
    a("s_lshl_b32 s22, s21, 8")
    a("v_lshl_add_u32 v16, v2, 2, s22")
    a("global_load_dword v252, v16, s[44:45]")
    srd(a, 40, 46, 512 * 6144)
    a(f"s_mul_i32 s22, s21, {128*6144}")
    a("s_lshl_b32 s23, s62, 5")
    a("s_add_u32 s22, s22, s23")
    for n in range(4):
        a(f"s_mov_b32 m0, {EMB + 1024*n}")
        if n: a(f"s_add_u32 s22, s22, {32*6144}")
        else: a("s_nop 0")
        a("buffer_load_dwordx4 v255, s[40:43], s22 offen lds")
    tr_addr_natural(a, 28, 29, 2, 17, 18)
    a(f"v_add_u32 v28, {EMB}, v28")
    a(f"v_add_u32 v29, {EMB}, v29")
    a("s_waitcnt vmcnt(4)")
    a("v_lshlrev_b32 v253, 16, v252")
    a("v_and_b32 v254, 0xffff0000, v252")
    silu(a, 253, 16); silu(a, 254, 16)
    a("v_cvt_pk_bf16_f32 v252, v253, v254")
    a("v_lshlrev_b32 v16, 2, v2")
    a(f"v_add_u32 v16, {CTE}, v16")
    a("ds_write_b32 v16, v252")
    a("v_and_b32 v17, 48, v2")
    a(f"v_add_u32 v17, {CTE}, v17")
    for n in range(4):
        a(f"ds_read_b128 v[{236+4*n}:{239+4*n}], v17 offset:{64*n}")
    a("s_lshr_b32 s38, s2, 6")
    a("s_lshl_b32 s38, s38, 13")
    a("s_lshl_b32 s22, s62, 7")
    a("s_add_u32 s38, s38, s22")
    a(f"s_add_u32 s38, s38, {WS_MP}")
    a("v_lshlrev_b32 v27, 3, v2")
    a("s_waitcnt vmcnt(0)")
    stamp(a, "emland")
    for n in range(4):
        trr(a, 220 + 4 * n, 28, 29, 1024 * n)
    a("s_waitcnt lgkmcnt(0)")
    a("s_add_u32 s22, s48, 1")
    for n in range(4):
        mf16(a, 252, 236 + 4 * n, 220 + 4 * n, None if n == 0 else 252)
    a("s_mov_b64 exec, 0xffff")
    a("s_nop 6")
    a("v_mov_b32 v253, s22")
    a("buffer_store_dwordx2 v[252:253], v27, s[16:19], s38 offen sc1")
    a("s_mov_b64 exec, -1")
    stamp(a, "mp")
    a.label("main_w0a")
    a("s_lshl_b32 s22, s39, 10")
    a("buffer_load_dwordx4 v[204:207], v9, s[24:27], s22 offen")
    def dstep_issue(base, add):
        a("s_add_u32 s20, s28, s29")
        if add: a(f"s_add_u32 s21, s{base}, {add}")
        a(f"s_mov_b32 m0, s{21 if add else base}")
        a("s_add_u32 s29, s29, 128")
        for q in range(4):
            a(f"buffer_load_dwordx4 v{200+q}, s[24:27], s20 offen offset:{1024*q} lds")
        a("s_and_b32 s29, s29, 0x3ff")
    a("s_lshr_b32 s23, s2, 4")
    a("s_mul_i32 s20, s23, 11")
    a("s_lshr_b32 s20, s20, 5")
    a("s_mul_i32 s20, s20, 3")
    a("s_sub_u32 s20, s23, s20")
    a("s_cmp_eq_u32 s20, 1")
    a("s_cbranch_scc1 main_wo1")
    a("s_cmp_eq_u32 s20, 2")
    a("s_cbranch_scc1 main_wo2")
    for r in range(3):
        if r: a.label(f"main_wo{r}")
        for p in range(2):
            for j in range(3):
                t = (j + r) % 3
                q = WR + 4 * (3 * p + t)
                a(f"buffer_load_dwordx4 v[{q}:{q+3}], v{5-p}, s[12:15], 0 offen offset:{1024*t}")
        if r < 2: a("s_branch main_wo3")
    a.label("main_wo3")
    stamp(a, "iw")
    a("s_setprio 2")
    dstep_issue(49, 0); dstep_issue(49, 4096); dstep_issue(49, 8192)
    a("s_setprio 1")
    a("v_lshlrev_b32 v25, 4, v0")
    def g_issue():
        for rg in range(4):
            a(f"s_mov_b32 s22, {WS_MP + 8192*rg}")
            a(f"buffer_load_dwordx4 v[{184+4*rg}:{187+4*rg}], v25, s[16:19], s22 offen sc1")
    g_issue()
    a("s_setprio 0")
    stamp(a, "i2")
    a("v_lshrrev_b32 v7, 4, v2")
    a("v_and_b32 v8, 15, v2")
    tr_addr_natural(a, 12, 13, 2, 14, 15)
    a("s_lshl_b32 s21, s33, 10")
    a("v_lshlrev_b32 v10, 5, v3")
    a("v_subrev_u32 v10, s21, v10")
    a("v_bfe_u32 v11, v3, 3, 1")
    a("v_lshlrev_b32 v11, 7, v11")
    a("v_xor_b32 v10, v10, v11")
    a("v_lshl_add_u32 v10, v6, 4, v10")
    a("v_and_b32 v10, 0x3fff, v10")
    a("v_xor_b32 v11, 1024, v10")
    a("s_lshl_b32 s20, s32, 11")
    a("s_sub_u32 s20, s20, s21")
    a("s_and_b32 s20, s20, 0x3fff")
    a("v_add_u32 v26, s20, v12")
    a("v_add_u32 v27, s20, v13")
    a("s_lshr_b32 s20, s20, 4")
    a(f"s_add_u32 s20, s20, {SAT}")
    a("v_lshl_add_u32 v30, v7, 4, s20")
    a("s_lshl_b32 s21, s32, 12")
    a(f"s_add_u32 s21, s21, {STG}")
    a("v_add_u32 v14, s21, v12")
    a("v_add_u32 v15, s21, v13")
    a("v_and_b32 v16, 6, v8")
    a("v_xor_b32 v16, v16, v7")
    a("v_lshlrev_b32 v16, 4, v16")
    a("v_and_b32 v17, 7, v8")
    a("v_lshl_add_u32 v16, v17, 7, v16")
    a("v_lshrrev_b32 v17, 3, v8")
    a("v_lshl_add_u32 v16, v17, 10, v16")
    a("v_xor_b32 v17, 64, v16")
    a("v_add_u32 v254, s49, v16")
    a("v_add_u32 v255, s49, v17")
    a("v_and_b32 v24, 31, v2")
    a("v_lshlrev_b32 v24, 4, v24")
    a("s_lshr_b32 s63, s28, 6")
    a(f"s_add_u32 s63, s63, {WS_ST1}")
    def rd_x2(d, reg, off):
        for e in range(2):
            for u in range(2):
                r = XR + 4 * (16 * u + 2 * d + e)
                a(f"ds_read_b128 v[{r}:{r+3}], v{reg+e} offset:{off + 2048*u}")
    def g_check(): chk_ne(a, [185, 187, 189, 191, 193, 195, 197, 199])
    a("s_waitcnt vmcnt(22) lgkmcnt(0)")
    a("s_add_u32 s48, s48, 1")
    stamp(a, "d7")
    def w56(fn):
        l = a.newlabel("Lw56")
        a("s_sub_u32 s20, s32, 5")
        a("s_cmp_gt_u32 s20, 1")
        a(f"s_cbranch_scc1 {l}")
        fn()
        a.label(l)
    def le_issue():
        srd(a, 12, 46, 512 * 6144)
        dma_row_src(a, 16, 2, 6144, 17, 18)
        a("s_lshr_b32 s21, s2, 6")
        a(f"s_mul_i32 s22, s21, {128*6144}")
        a("s_lshl_b32 s23, s62, 6")
        a("s_add_u32 s22, s22, s23")
        a("s_lshl_b32 s23, s20, 5")
        a("s_add_u32 s22, s22, s23")
        a("s_add_u32 s22, s22, 2048")
        a(f"s_mul_i32 s23, s20, {EM2 - EMB}")
        a(f"s_add_u32 s23, s23, {EMB}")
        for n in range(4):
            a("s_mov_b32 m0, s23")
            if n: a(f"s_add_u32 s22, s22, {32*6144}")
            else: a("s_nop 0")
            a("buffer_load_dwordx4 v16, s[12:15], s22 offen lds")
            a("s_add_u32 s23, s23, 1024")
    a("s_lshr_b32 s41, s30, 2"); a("s_lshl_b32 s20, s31, 3"); a("s_add_u32 s41, s41, s20")
    a("s_and_b32 s42, s30, 3")
    a("v_and_b32 v29, 1, v2"); a("v_lshlrev_b32 v29, 4, v29")
    a("v_lshrrev_b32 v28, 1, v2"); a("v_lshl_add_u32 v1, v28, 10, v29")
    a("s_lshl_b32 s20, s42, 8"); a("s_lshl_b32 s21, s32, 5"); a("s_add_u32 s21, s21, s20"); a("v_add_u32 v1, s21, v1")
    a("v_bfe_u32 v16, v2, 4, 1"); a("v_lshlrev_b32 v17, 2, v16"); a("v_xor_b32 v28, v28, v17")
    a("v_lshrrev_b32 v5, 5, v2"); a("v_lshlrev_b32 v5, 9, v5"); a("v_lshl_add_u32 v5, v16, 7, v5")
    a("v_bfe_u32 v16, v2, 2, 2"); a("v_lshl_add_u32 v5, v16, 5, v5"); a("v_and_b32 v16, 3, v2"); a("v_lshl_add_u32 v5, v16, 3, v5")
    a("s_lshl_b32 s21, s32, 12"); a(f"s_add_u32 s21, s21, {STG}"); a("v_add_u32 v5, s21, v5")
    a("v_lshrrev_b32 v4, 4, v0"); a("v_lshlrev_b32 v4, 10, v4"); a("v_lshl_add_u32 v4, v8, 4, v4")
    a("s_lshl_b32 s21, s41, 15"); a("s_add_u32 s20, s20, s21"); a("v_add_u32 v4, s20, v4")
    a("s_lshl_b32 s20, s30, 13"); a("s_lshl_b32 s21, s32, 10"); a("s_add_u32 s40, s20, s21"); a(f"s_add_u32 s40, s40, {WS_F1}")
    unpack8(a, 208, 204)
    a("v_add_f32 v216, v208, v209")
    for i in range(2, 8): a(f"v_add_f32 v216, v216, v{208+i}")
    multi_allreduce(a, [216], [217])
    a(f"v_mul_f32 v216, {f32(1/512)}, v216")
    a("v_sub_f32 v217, v208, v216")
    a("v_mul_f32 v218, v217, v217")
    for i in range(1, 8):
        a(f"v_sub_f32 v217, v{208+i}, v216")
        a("v_fmac_f32 v218, v217, v217")
    multi_allreduce(a, [218], [217])
    a(f"v_mul_f32 v217, {f32(1/512)}, v218")
    rnd_pair(a, 216, 217, 218)
    a(f"v_add_f32 v217, {f32(1e-5)}, v217")
    rnd_bf16(a, 217)
    a("v_sqrt_f32 v217, v217")
    a("s_lshl_b32 s21, s39, 4")
    rnd_bf16(a, 217)
    a("v_rcp_f32 v217, v217")
    a("v_mov_b32 v218, s48")
    a("v_mov_b32 v219, s48")
    a(f"s_add_u32 s21, s21, {WS_ST1}")
    a("v_mov_b32 v16, 0")
    a("s_mov_b64 exec, 1")
    a("buffer_store_dwordx4 v[216:219], v16, s[16:19], s21 offen sc1")
    a("s_mov_b64 exec, -1")
    a("s_waitcnt vmcnt(17)")
    for t in (0, 2):
        for p in range(2):
            r = WR + 4 * (3 * p + t)
            a(f"ds_write_b128 v{10+p}, v[{r}:{r+3}] offset:{REG[t]}")
    for n in range(2):
        trr(a, 144 + 8 * n, 26, 27, REG[0] + 1024 * n)
        trr(a, 148 + 8 * n, 26, 27, REG[2] + 1024 * n)
    for i in range(4): a(f"v_mov_b32 v{88+i}, 0x3f803f80")
    a("s_waitcnt vmcnt(5)")
    stamp(a, "l0")
    for d in range(3): rd_x2(d, 254, 4096 * d)
    a("s_waitcnt vmcnt(1)")
    stamp(a, "gath0")
    g_check()
    a("s_cbranch_scc1 main_gok")
    poll_loop(a, g_issue, g_check, "Lm")
    a.label("main_gok")
    stamp(a, "gath1")
    for c in range(2):
        a(f"v_add_f32 v{184+2*c}, v{184+2*c}, v{188+2*c}")
        a(f"v_add_f32 v{192+2*c}, v{192+2*c}, v{196+2*c}")
        a(f"v_add_f32 v{184+2*c}, v{184+2*c}, v{192+2*c}")
    a("v_cvt_pk_bf16_f32 v188, v184, v186")
    a("s_cmp_gt_u32 s32, 3")
    a("s_cbranch_scc1 main_gca")
    a("s_lshl_b32 s21, s33, 6")
    a("v_lshlrev_b32 v16, 2, v0")
    a("v_subrev_u32 v16, s21, v16")
    a("v_and_b32 v16, 0x3ff, v16")
    a(f"v_add_u32 v16, {SAT}, v16")
    a("ds_write_b32 v16, v188")
    a("s_branch main_gdn")
    a.label("main_gca")
    a("v_lshlrev_b32 v184, 16, v188")
    a("v_and_b32 v185, 0xffff0000, v188")
    a("v_add_f32 v184, 1.0, v184")
    a("v_add_f32 v185, 1.0, v185")
    rnd_pair(a, 184, 185, 188)
    a("v_lshlrev_b32 v16, 3, v0")
    a(f"v_add_u32 v16, {CAT - 2048}, v16")
    a("ds_write_b64 v16, v[184:185]")
    a.label("main_gdn")
    a("v_lshlrev_b32 v16, 2, v3")
    a(f"v_add_u32 v16, {CAT}, v16")
    a("v_xor_b32 v17, 128, v16")
    a("s_waitcnt lgkmcnt(0)")
    for d in range(3): dstep_issue(49, 4096 * d)
    a("buffer_load_dwordx4 v[20:23], v24, s[16:19], s63 offen sc1")
    a("s_barrier")
    stamp(a, "barx")
    a("ds_read_b32 v188, v16")
    a("ds_read_b32 v189, v17")
    for n in range(2): a(f"ds_read_b128 v[{80+4*n}:{83+4*n}], v30 offset:{64*n}")
    a("s_mul_i32 s21, s32, 320")
    a(f"s_add_u32 s21, s21, {REC}")
    a("v_lshl_add_u32 v30, v7, 4, s21")
    a("v_lshl_add_u32 v31, v8, 3, s21")
    a("s_waitcnt lgkmcnt(2)")
    for j, t in enumerate((1, 2, 0)):
        for p in range(2):
            r = WR + 4 * (3 * p + t)
            d = 208 + 4 * p
            for i in range(4):
                a(f"v_lshlrev_b32 v16, 16, v{r+i}")
                a(f"v_and_b32 v17, 0xffff0000, v{r+i}")
                a(f"v_pk_mul_f32 v[16:17], v[16:17], v[188:189] " + ("op_sel_hi:[1,0]" if p == 0 else "op_sel:[0,1] op_sel_hi:[1,1]"))
                a(f"v_cvt_pk_bf16_f32 v{d+i}, v16, v17")
            a(f"ds_write_b128 v{10+p}, v[{d}:{d+3}] offset:{REG[t]}")
        for n in range(2): trr(a, 120 + 8 * t + 4 * n, 26, 27, REG[t] + 1024 * n)
        if j == 0:
            a("s_waitcnt lgkmcnt(6)")
            for n in range(2):
                mf16(a, 216, 144 + 8 * n, 80 + 4 * n, None if n == 0 else 216)
                mf16(a, 220, 80 + 4 * n, 148 + 8 * n, None if n == 0 else 220)
    w56(le_issue)
    a("s_waitcnt lgkmcnt(0)")
    for n in range(2):
        mf16(a, 228, 128 + 4 * n, 88, None if n == 0 else 228)
        mf16(a, 232, 88, 136 + 4 * n, None if n == 0 else 232)
        mf16(a, 224, 120 + 4 * n, 88, None if n == 0 else 224)
    a("v_lshlrev_b32 v16, 4, v7")
    a(f"v_add_u32 v16, {REC}, v16")
    a("v_lshlrev_b32 v17, 3, v8")
    a(f"v_add_u32 v17, {REC}, v17")
    a("ds_write_b128 v30, v[216:219]")
    a("s_nop 1")
    a("v_mov_b32 v233, v220")
    a("ds_write_b128 v30, v[228:231] offset:128")
    a("ds_write_b64 v31, v[232:233] offset:192")
    a("ds_write_b128 v30, v[224:227] offset:64")
    a("s_waitcnt lgkmcnt(0)")
    a("s_barrier")
    stamp(a, "bar1")
    WF3 = [236, 244, 176]
    def rd_kv(s):
        b = WF3[s % 3]
        trr(a, b, 12, 13, REG[1] + 1024 * s)
        trr(a, b + 4, 12, 13, REG[2] + 1024 * s)
    rd_kv(0); rd_kv(1)
    DR = {0: 3, 2: 4, 5: 5, 8: 6, 11: 7}
    def rec_rd(w):
        d = (208, 212, 220, 224) if w == 0 else (228, 232, 216, 226)
        a(f"ds_read_b128 v[{d[0]}:{d[0]+3}], v16 offset:{320*w}")
        a(f"ds_read_b128 v[{d[1]}:{d[1]+3}], v16 offset:{320*w+64}")
        a(f"ds_read_b128 v[{d[2]}:{d[2]+3}], v16 offset:{320*w+128}")
        a(f"ds_read_b64 v[{d[3]}:{d[3]+1}], v17 offset:{320*w+192}")
    for s in range(16):
        if s < 14:
            rd_kv(s + 2)
            a(f"s_waitcnt lgkmcnt({8 if s == 0 else 4})")
        else:
            a(f"s_waitcnt lgkmcnt({4 * (15 - s)})")
        stamp(a, f"p{s}")
        if s - 1 in DR and DR[s - 1] + 3 < 8: dstep_issue(49, 4096 * (DR[s - 1] % 3))
        b = WF3[s % 3]
        adds = []
        if 2 <= s < 9:
            pk = lambda d, x: f"v_pk_add_f32 v[{d}:{d+1}], v[{d}:{d+1}], v[{x}:{x+1}]"
            adds = [pk(208 + r, 228 + r) for r in range(0, 8, 2)] + [pk(220, 216), pk(222, 218), pk(224, 226)]
        for u in range(2):
            x = XR + 4 * (16 * u + s)
            mf16(a, ACC + 4 * u, b, x, None if s == 0 else ACC + 4 * u)
            for q in adds[4*u:4*u+2]: a(q)
            mf16(a, ACC + 8 + 4 * u, x, b + 4, None if s == 0 else ACC + 8 + 4 * u)
            for q in adds[4*u+2:4*u+4]: a(q)
        if s < 8: rec_rd(s)
        if s in DR:
            a(f"s_waitcnt vmcnt({ {3: 9, 4: 9, 5: 9, 6: 4, 7: 0}[DR[s]] })")
            rd_x2(DR[s], 254, 4096 * (DR[s] % 3))
        if s == 9:
            chk_ne(a, [22])
            a("s_cbranch_scc1 main_stok")
            poll_loop(a, lambda: a("buffer_load_dwordx4 v[20:23], v24, s[16:19], s63 offen sc1"),
                      lambda: chk_ne(a, [22]), "Lst")
            a.label("main_stok")
            a("s_lshl_b32 s21, s32, 8")
            a(f"s_add_u32 s21, s21, {STT}")
            a("v_lshrrev_b32 v18, 1, v24")
            a("v_add_u32 v18, s21, v18")
            a("ds_write_b64 v18, v[20:21]")
            a("v_lshl_add_u32 v18, v8, 3, s21")
            a("v_lshl_add_u32 v19, v7, 5, s21")
            for u in range(2):
                a(f"ds_read_b64 v[{204+2*u}:{205+2*u}], v18 offset:{128*u}")
                a(f"ds_read_b128 v[{160+8*u}:{163+8*u}], v19 offset:{128*u}")
                a(f"ds_read_b128 v[{164+8*u}:{167+8*u}], v19 offset:{128*u+16}")
        if s == 13:
            a("s_lshl_b32 s34, s31, 3")
            a("s_add_u32 s34, s34, s32")
            a("s_lshl_b32 s22, s30, 17")
            a(f"s_add_u32 s35, s22, {WS_KV}")
            a("s_lshl_b32 s23, s34, 11")
            a("s_add_u32 s22, s35, s23")
            a("v_and_b32 v18, 1, v7")
            a("v_lshlrev_b32 v18, 9, v18")
            a("v_lshrrev_b32 v19, 1, v7")
            a("v_lshl_add_u32 v18, v19, 8, v18")
            a("v_lshl_add_u32 v18, v8, 4, v18")
            a("s_lshl_b32 s23, s32, 11")
            a("v_add_u32 v19, s23, v9")
            a("v_add_u32 v20, s23, v18")
    stamp(a, "pass1")
    def rd_q(s):
        trr(a, 236 + 4 * (s & 3), 12, 13, REG[0] + 1024 * s)
    rd_q(0); rd_q(1)
    a("s_nop 2")
    for u in range(2):
        for r in range(4):
            k = ACC + 4 * u + r
            a(f"v_fma_f32 v{k}, -v{204+2*u}, v{220+r}, v{k}")
            a(f"v_mul_f32 v{k}, v{k}, v{205+2*u}")
        a(f"v_cvt_pk_bf16_f32 v{228+2*u}, v{ACC+4*u}, v{ACC+4*u+1}")
        a(f"v_cvt_pk_bf16_f32 v{229+2*u}, v{ACC+4*u+2}, v{ACC+4*u+3}")
    for u in range(2):
        for r in range(4):
            v = ACC + 8 + 4 * u + r
            a(f"v_fma_f32 v{v}, -v{160+8*u+2*r}, v224, v{v}")
            a(f"v_fma_f32 v{v}, v{v}, v{161+8*u+2*r}, v225")
        if u == 0:
            a("v_permlane16_swap_b32 v228, v230")
            a("v_permlane16_swap_b32 v229, v231")
            a("buffer_store_dwordx4 v[228:231], v9, s[16:19], s22 offen sc1")
        a(f"v_cvt_pk_bf16_f32 v{232+2*u}, v{ACC+8+4*u}, v{ACC+8+4*u+1}")
        a(f"v_cvt_pk_bf16_f32 v{233+2*u}, v{ACC+8+4*u+2}, v{ACC+8+4*u+3}")
    a("s_nop 1")
    a("v_permlane16_swap_b32 v232, v234")
    a("v_permlane16_swap_b32 v233, v235")
    a("buffer_store_dwordx4 v[232:235], v18, s[16:19], s22 offen offset:1024 sc1")
    l = a.newlabel("Lrz")
    a("s_sub_u32 s20, s32, 1")
    a("s_cmp_gt_u32 s20, 1")
    a(f"s_cbranch_scc1 {l}")
    for i in range(4): a(f"v_mov_b32 v{216+i}, -1")
    a("s_lshl_b32 s22, s2, 10")
    a(f"s_add_u32 s22, s22, {WS_CAND}")
    a("s_lshl_b32 s23, s2, 6")
    a(f"s_add_u32 s23, s23, {WS_ACT}")
    a("s_cmp_eq_u32 s32, 1")
    a("s_cselect_b32 s22, s22, s23")
    a("s_cselect_b32 s20, -1, 15")
    a("s_cselect_b32 s21, -1, 0")
    a("s_mov_b64 exec, s[20:21]")
    a("buffer_store_dwordx4 v[216:219], v9, s[16:19], s22 offen sc1")
    a("s_mov_b64 exec, -1")
    a.label(l)
    stamp(a, "kvpub")
    rd_q(2)
    side = []
    sd = side.append
    sd("v_and_b32 v25, 31, v2"); sd("v_cmp_eq_u32 vcc, 16, v25"); sd("v_mov_b32 v25, 0x3f803f80")
    sd("s_lshl_b32 s36, s32, 12"); sd(f"s_add_u32 s36, s36, {STG}")
    sd("v_cndmask_b32 v25, 0, v25, vcc")
    sd("v_mov_b32 v110, v5"); sd("v_mov_b32 v111, v4"); sd("v_mov_b32 v10, v29"); sd("v_mov_b32 v11, v28")
    sd("v_mov_b32 v3, v9")
    sd("v_lshrrev_b32 v4, 5, v2"); sd("v_lshlrev_b32 v4, 8, v4"); sd("v_lshl_add_u32 v4, v8, 4, v4"); sd("v_add_u32 v4, 1024, v4")
    sd("s_mov_b32 s38, 0x0000ffff"); sd("s_mov_b32 s39, 0x0000ffff"); sd("s_mov_b32 s37, 0")
    for i in range(12): sd(f"v_mov_b32 v{V[0]+4+i}, v25")
    sd(f"v_mov_b32 v{IDX}, 0xdddddddd")
    sd(f"s_mov_b32 s24, {f32(QSCALE)}")
    for r in range(4): sd(f"v_mul_f32 v{208+r}, s24, v{208+r}")
    for u in range(2): sd(f"v_mul_f32 v{205+2*u}, s24, v{205+2*u}")
    per = (len(side) + 7) // 8
    for s in range(16):
        if s < 13:
            rd_q(s + 3)
            a("s_waitcnt lgkmcnt(6)")
        else:
            a(f"s_waitcnt lgkmcnt({2 * (15 - s)})")
        extra = []
        if 4 <= s < 12: extra += side[per*(s-4):per*(s-3)]
        if s >= 12: extra += [f"v_mov_b32 v{O+4*(s-12)+i}, 0" for i in range(4)]
        h = (len(extra) + 1) // 2
        for u in range(2):
            mf16(a, QA + 4 * u, 236 + 4 * (s & 3), XR + 4 * (16 * u + s), None if s == 0 else QA + 4 * u)
            for q in (extra[:h] if u == 0 else extra[h:]): a(q)
        if s == 1:
            def le_rd():
                a(f"s_mul_i32 s23, s20, {EM2 - EMB}")
                a(f"s_add_u32 s23, s23, {EMB - WPB}")
                a("v_add_u32 v26, s23, v12")
                a("v_add_u32 v27, s23, v13")
                a("v_lshlrev_b32 v220, 4, v7")
                a(f"v_add_u32 v220, {CTE}, v220")
                a("s_waitcnt vmcnt(2)")
                for n in range(4):
                    trr(a, 160 + 4 * n, 26, 27, 1024 * n)
                    a(f"ds_read_b128 v[{184+4*n}:{187+4*n}], v220 offset:{64*n}")
                a("s_waitcnt lgkmcnt(0)")
                for n in range(4): mf16(a, 224, 184 + 4 * n, 160 + 4 * n, None if n == 0 else 224)
                a("s_lshr_b32 s21, s2, 6")
                a("s_lshl_b32 s21, s21, 14")
                a("s_lshl_b32 s22, s62, 8")
                a("s_add_u32 s21, s21, s22")
                a("s_lshl_b32 s22, s20, 7")
                a("s_add_u32 s21, s21, s22")
                a(f"s_add_u32 s21, s21, {WS_MPL}")
                a("v_lshlrev_b32 v18, 3, v2")
                a("s_mov_b64 exec, 0xffff")
                a("v_mov_b32 v225, s48")
                a("buffer_store_dwordx2 v[224:225], v18, s[16:19], s21 offen sc1")
                a("s_mov_b64 exec, -1")
            w56(le_rd)
        if s == 13:
            a("s_barrier")
            a("ds_write_b128 v19, v[228:231]")
            a("ds_write_b128 v20, v[232:235] offset:1024")
        if s == F1STEP:
            a("s_lshl_b32 s20, s31, 7")
            a("s_add_u32 s20, s20, s40")
            a("v_mov_b32 v6, 0")
            a("v_mov_b32 v7, s48")
            a("s_waitcnt vmcnt(0)")
            a("s_mov_b64 exec, 1")
            a("buffer_store_dword v7, v6, s[16:19], s20 offen sc1")
            a("s_mov_b64 exec, -1")
            stamp(a, "f1")
    for i in range(4): a(f"v_mov_b32 v{V[0]+i}, v25")
    for u in range(2):
        for r in range(4):
            q = QA + 4 * u + r
            a(f"v_fma_f32 v{q}, -v{204+2*u}, v{212+r}, v{q}")
            a(f"v_fma_f32 v{q}, v{q}, v{205+2*u}, v{208+r}")
        a(f"v_cvt_pk_bf16_f32 v{Q+2*u}, v{QA+4*u}, v{QA+4*u+1}")
        a(f"v_cvt_pk_bf16_f32 v{Q+1+2*u}, v{QA+4*u+2}, v{QA+4*u+3}")
    a("s_nop 1")
    a(f"v_permlane16_swap_b32 v{Q}, v{Q+2}")
    a(f"v_permlane16_swap_b32 v{Q+1}, v{Q+3}")
    a("s_barrier")
    stamp(a, "att0")
    a(f"ds_read_b128 v[{K[0]}:{K[0]+3}], v3")
    a(f"ds_read_b128 v[{K[1]}:{K[1]+3}], v3 offset:2048")
    a("s_lshl_b32 s21, s32, 10")
    a("s_add_u32 s40, s40, s21")
    a("v_lshlrev_b32 v12, 7, v8")
    a("s_lshl_b32 s43, 1, s31")
    a("s_lshl_b32 s61, s32, 12")
    a("s_cmp_gt_u32 s32, 3")
    a("s_cbranch_scc1 main_nokv")
    a("buffer_load_dword v13, v12, s[16:19], s40 offen sc1")
    a.label("main_nokv")
    a("s_waitcnt lgkmcnt(1)")
    s0 = S[0]
    a(f"v_mfma_f32_32x32x16_bf16 v[{s0}:{s0+15}], v[{K[0]}:{K[0]+3}], v[{Q}:{Q+3}], 0")
    a("s_nop 11")
    a(f"v_max3_f32 v6, v{s0}, v{s0+1}, v{s0+2}")
    for i in range(3, 15, 2):
        a(f"v_max3_f32 v6, v6, v{s0+i}, v{s0+i+1}")
    a(f"v_max_f32 v6, v6, v{s0+15}")
    def setmax():
        a("v_mov_b32 v7, v6")
        a("s_nop 1")
        a("v_permlane32_swap_b32 v7, v6")
        a("s_nop 1")
        a("v_max_f32 v6, v6, v7")
        for i in range(16):
            a(f"v_sub_f32 v{C+i}, 0, v6")
    setmax()
    a("s_mov_b64 exec, s[38:39]")
    a(f"ds_read_b128 v[{V[0]}:{V[0]+3}], v4")
    a(f"ds_read_b128 v[{V[0]+4}:{V[0]+7}], v4 offset:512")
    a("s_mov_b64 exec, -1")
    a(f"v_mfma_f32_32x32x16_bf16 v[{s0}:{s0+15}], v[{K[0]}:{K[0]+3}], v[{Q}:{Q+3}], v[{C}:{C+15}]")
    for i in range(8):
        a(f"v_mov_b32 v{S[1]+8+i}, 0")
    a("s_nop 3")

    hooks = {}
    def hook(t, fn): hooks.setdefault(t, []).append(fn)
    def old_only(fn):
        def f():
            l = a.newlabel("Lold")
            a("s_cmp_gt_u32 s32, 3")
            a(f"s_cbranch_scc1 {l}")
            fn()
            a.label(l)
        return f
    def late_only(fn):
        def f():
            l = a.newlabel("Llate")
            a("s_cmp_lt_u32 s2, 128")
            a(f"s_cbranch_scc1 {l}")
            fn()
            a.label(l)
        return f
    def kv_phase(need, cap, name):
        def f():
            top = a.newlabel("Lkv"); pick = a.newlabel("Lkp"); more = a.newlabel("Lkm"); done = a.newlabel("Lkd")
            a(f"s_mov_b32 s60, {SPIN}")
            a("s_lshl_b32 s23, s32, 12")
            a.label(top)
            a("s_waitcnt vmcnt(0)")
            a("v_cmp_eq_u32 vcc, s48, v13")
            a("s_lshr_b32 s21, vcc_lo, 8")
            a("s_and_b32 s20, vcc_lo, s21")
            a("s_and_b32 s20, s20, 0xff")
            a("s_andn2_b32 s20, s20, s43")
            a.label(pick)
            a(f"s_cmp_ge_u32 s61, {16384 * cap}")
            a(f"s_cbranch_scc1 {done}")
            a("s_cmp_eq_u32 s20, 0")
            a(f"s_cbranch_scc1 {more}")
            a("s_ff1_i32_b32 s21, s20")
            a("s_bitset1_b32 s43, s21")
            a("s_bitset0_b32 s20, s21")
            a("s_add_u32 s61, s61, 16384")
            a("s_mov_b32 m0, s61")
            a("s_lshl_b32 s21, s21, 14")
            a("s_add_u32 s21, s21, s23")
            a("s_add_u32 s21, s21, s35")
            for n in range(4):
                a(f"buffer_load_dwordx4 v9, s[16:19], s21 offen offset:{1024*n} sc1 lds")
            a(f"s_branch {pick}")
            a.label(more)
            a(f"s_cmp_ge_u32 s61, {16384 * need}")
            a(f"s_cbranch_scc1 {done}")
            a("buffer_load_dword v13, v12, s[16:19], s40 offen sc1")
            a("s_sub_u32 s60, s60, 1")
            a("s_cmp_lg_u32 s60, 0")
            a(f"s_cbranch_scc1 {top}")
            a.label(done)
            a("buffer_load_dword v13, v12, s[16:19], s40 offen sc1")
            stamp(a, name)
        return f
    def h_bar(n, name):
        def f():
            a(f"s_waitcnt vmcnt({n})")
            a("s_barrier")
            stamp(a, name)
        return f
    hook(0, old_only(kv_phase(1, 7, "kvok")))
    def h_slot1():
        done = a.newlabel("Ls1")
        for k in range(6, 0, -1):
            nx = a.newlabel("Ls1n")
            a(f"s_cmp_lt_u32 s61, {16384 * (k + 1)}")
            a(f"s_cbranch_scc1 {nx}")
            a(f"s_waitcnt vmcnt({4 * k + 1})")
            a(f"s_branch {done}")
            a.label(nx)
        a("s_waitcnt vmcnt(1)")
        a.label(done)
    hook(6, old_only(h_slot1))
    hook(6, h_bar(63, "bar6"))
    hook(7, old_only(kv_phase(7, 7, "kv3")))
    hook(14, h_bar(0, "bar14"))
    def h_prio():
        l = a.newlabel("Lpr")
        a("s_cmp_lt_u32 s32, 4")
        a(f"s_cbranch_scc1 {l}")
        a("s_setprio 1")
        a.label(l)
    hook(14, h_prio)
    hook(FLIP, lambda: a("s_setprio 0"))
    def h_wo(n0, n1):
        def f():
            if n0 == 0: srd(a, 12, 10, 512 * 1024)
            for n in range(n0, n1):
                a(f"s_mov_b32 s20, {32768*n}")
                a(f"buffer_load_dwordx4 v[{WO+4*n}:{WO+4*n+3}], v1, s[12:15], s20 offen")
        return f
    def h_misc():
        a(f"global_load_dwordx4 v[{XT}:{XT+3}], v111, s[6:7]")
        a("s_lshl_b32 s21, s42, 8")
        a("v_lshl_add_u32 v5, v8, 4, s21")
        a("global_load_dwordx4 v[248:251], v5, s[52:53]")
        a("global_load_dwordx4 v[252:255], v9, s[52:53]")
    def h_moe_setup():
        l = a.newlabel("Lms"); l2 = a.newlabel("Lms")
        a("s_cmp_ge_u32 s2, 112")
        a(f"s_cbranch_scc1 {l}")
        a("v_mul_u32_u24 v109, 3584, v11")
        a("v_add_u32 v109, v109, v10")
        a("s_and_b32 s20, s32, 1")
        a("s_cmp_eq_u32 s20, 0")
        a("s_cselect_b32 s24, s54, s56")
        a("s_cselect_b32 s25, s55, s57")
        a(f"s_mov_b32 s26, {512*3584}")
        a("s_lshr_b32 s20, s32, 1")
        a(f"s_mul_i32 s43, s20, {128*3584}")
        a("s_and_b32 s33, s2, 7")
        a("s_mul_i32 s33, s33, 14")
        a("s_lshr_b32 s20, s2, 3")
        a("s_add_u32 s33, s33, s20")
        a("s_lshl_b32 s20, s33, 5")
        a("s_add_u32 s43, s43, s20")
        a(f"s_mov_b32 s61, {32*3584}")
        a(f"s_branch {l2}")
        a.label(l)
        a("v_lshl_add_u32 v109, v11, 10, v10")
        a("s_mov_b32 s24, s58")
        a("s_mov_b32 s25, s59")
        a(f"s_mov_b32 s26, {1792*1024}")
        a(f"s_mul_i32 s43, s32, {224*1024}")
        a("s_and_b32 s33, s2, 7")
        a("s_lshl_b32 s33, s33, 2")
        a("s_sub_u32 s20, s2, 112")
        a("s_bfe_u32 s20, s20, 0x20003")
        a("s_add_u32 s33, s33, s20")
        a("s_lshl_b32 s20, s33, 5")
        a("s_add_u32 s43, s43, s20")
        a(f"s_mov_b32 s61, {32*1024}")
        a.label(l2)
    def h_moe(n):
        def f():
            l = a.newlabel("Lmd")
            a("s_cmp_ge_u32 s2, 144")
            a(f"s_cbranch_scc1 {l}")
            if n >= 4:
                a("s_cmp_lt_u32 s2, 112")
                a(f"s_cbranch_scc1 {l}")
            a(f"buffer_load_dwordx4 v[{MW+4*n}:{MW+4*n+3}], v109, s[24:27], s43 offen")
            a("s_add_u32 s43, s43, s61")
            a.label(l)
        return f
    def cv_write(base, n):
        def f():
            for i in range(n): a(f"ds_write_b128 v1, v[{base+4*i}:{base+4*i+3}] offset:{1024*i}")
        return f
    def cv_wo(r):
        def f():
            for n in range(4):
                b = WO + 16 * r + 4 * n
                a(f"ds_read_b64_tr_b16 v[{b}:{b+1}], v110 offset:{1024*n}")
                a(f"ds_read_b64_tr_b16 v[{b+2}:{b+3}], v110 offset:{1024*n+256}")
        return f
    def cv_moe(base, n):
        def f():
            for i in range(n): trr(a, MW + base + 4 * i, 14, 15, 1024 * i)
        return f
    def lg_issue(lo=0, hi=4):
        a("v_lshlrev_b32 v5, 5, v0")
        for rg in range(lo, hi):
            a(f"s_mov_b32 s22, {WS_MPL + 16384*rg}")
            a(f"buffer_load_dwordx4 v[{GA+8*rg}:{GA+8*rg+3}], v5, s[16:19], s22 offen sc1")
            a(f"buffer_load_dwordx4 v[{GA+8*rg+4}:{GA+8*rg+7}], v5, s[16:19], s22 offen offset:16 sc1")
    MT = [16, 21, 26, 31, 36, 47, 52]
    WT = [t for t in range(15, 40) if t not in MT][:16]
    hook(15, h_moe_setup)
    for n in range(16): hook(WT[n], h_wo(n, n + 1))
    hook(38, h_misc)
    for n in range(7): hook(MT[n], h_moe(n))
    hook(39, lambda: a("v_add_u32 v1, s36, v9"))
    for rg in range(4): hook(40 + rg, lambda rg=rg: lg_issue(rg, rg + 1))
    hook(46, lambda: a("s_waitcnt vmcnt(8)"))
    for r in range(4):
        hook(46 + 2 * r, cv_write(WO + 16 * r, 4))
        hook(47 + 2 * r, cv_wo(r))
    for t, nm in ((23, "t23"), (42, "t42")):
        hook(t, lambda nm=nm: stamp(a, nm))

    def tile(t, off, hooks):
        cur = S[t & 1]; nxt = S[(t + 1) & 1]
        e = lambda i: a(f"v_exp_f32 v{cur+i}, v{cur+i}")
        vp = V[(t + 1) & 1]; kn = K[(t + 1) & 1]; kc = K[t & 1]; vc = V[t & 1]
        a("s_waitcnt lgkmcnt(0)")
        for fn in hooks.get(t, []): fn()
        e(0); e(1); e(2)
        a(f"v_smfmac_f32_32x32x32_bf16 v[{O}:{O+15}], v[{vp+4}:{vp+7}], v[{nxt+8}:{nxt+15}], v{IDX}")
        e(3); e(4); e(5); e(6)
        a(f"v_mfma_f32_32x32x16_bf16 v[{nxt}:{nxt+15}], v[{kn}:{kn+3}], v[{Q}:{Q+3}], v[{C}:{C+15}]")
        a(f"ds_read_b128 v[{kc}:{kc+3}], v3 offset:{2048*(off+2)}")
        a("s_mov_b64 exec, s[38:39]")
        a(f"ds_read_b128 v[{vp}:{vp+3}], v4 offset:{2048*(off+1)}")
        a(f"ds_read_b128 v[{vp+4}:{vp+7}], v4 offset:{2048*(off+1)+512}")
        a("s_mov_b64 exec, -1")
        for i in range(7, 12): e(i)
        a(f"v_smfmac_f32_32x32x32_bf16 v[{O}:{O+15}], v[{vc}:{vc+3}], v[{cur}:{cur+7}], v{IDX}")
        for i in range(12, 16): e(i)
    for t in range(64):
        if t and t % 16 == 0:
            a("v_add_u32 v3, 0x8000, v3")
            a("v_add_u32 v4, 0x8000, v4")
        tile(t, t % 16, hooks)
    a("v_subrev_u32 v3, 0x18000, v3")
    a("v_subrev_u32 v4, 0x18000, v4")
    a.label("main_attn_tail")
    a(f"v_smfmac_f32_32x32x32_bf16 v[{O}:{O+15}], v[{V[1]+4}:{V[1]+7}], v[{S[1]+8}:{S[1]+15}], v{IDX}")
    stamp(a, "att1")
    a("s_lshl_b32 s21, s34, 15")
    a("s_lshl_b32 s22, s30, 10")
    a("s_add_u32 s21, s21, s22")
    a(f"s_add_u32 s21, s21, {WS_OF}")
    a(f"v_mov_b32 v6, {f32(2.0**40)}")
    a("s_waitcnt lgkmcnt(0)")
    a("s_nop 5")
    a(f"v_mov_b32 v7, v{O+8}")
    a(f"v_add_f32 v5, abs(v{O}), abs(v{O+1})")
    a(f"v_add_f32 v5, v5, abs(v{O+2})")
    a(f"v_permlane32_swap_b32 v{O+8}, v7")
    for i in range(3, 8):
        a(f"v_add_f32 v5, v5, abs(v{O+i})")
    a(f"v_mov_b32 v7, {f32(3.0e38)}")
    a(f"v_cmp_nle_f32 vcc, v{O+8}, v6")
    a(f"v_cmp_nle_f32 s[22:23], v5, v7")
    a("s_or_b64 vcc, vcc, s[22:23]")
    a("s_cmp_lg_u32 s37, 0")
    a("s_cbranch_scc1 main_fin")
    a("s_cbranch_vccnz main_fallback")
    a.label("main_fin")
    a(f"v_rcp_f32 v6, v{O+8}")
    a("s_nop 0")
    for i in range(8):
        a(f"v_mul_f32 v{O+i}, v{O+i}, v6")
    for i in range(4):
        a(f"v_cvt_pk_bf16_f32 v{16+i}, v{O+2*i}, v{O+2*i+1}")
    a("buffer_store_dwordx4 v[16:19], v9, s[16:19], s21 offen sc1")
    a("s_lshl_b32 s21, s34, 12")
    a("s_lshl_b32 s22, s30, 7")
    a("s_add_u32 s21, s21, s22")
    a(f"s_add_u32 s21, s21, {WS_F2}")
    a("v_mov_b32 v5, 0")
    a("v_mov_b32 v6, s48")
    a("v_lshrrev_b32 v20, 5, v2")
    a("v_lshlrev_b32 v20, 10, v20")
    a("v_bfe_u32 v21, v2, 4, 1")
    a("v_lshl_add_u32 v20, v21, 9, v20")
    a("v_lshl_add_u32 v20, v8, 4, v20")
    a("v_mul_u32_u24 v22, 528, v8")
    a("v_lshrrev_b32 v23, 4, v2")
    a("v_lshl_add_u32 v22, v23, 4, v22")
    a("s_lshl_b32 s22, s32, 6")
    a("s_add_u32 s22, s22, 32768")
    a("v_add_u32 v22, s22, v22")
    a("v_lshrrev_b32 v24, 4, v0")
    a("v_mul_u32_u24 v23, 528, v24")
    a("v_lshl_add_u32 v23, v8, 5, v23")
    a("v_add_u32 v23, 32768, v23")
    a("v_lshlrev_b32 v12, 4, v24")
    a("v_and_b32 v13, 3, v0")
    a("v_lshl_add_u32 v13, v13, 9, v12")
    a("v_lshrrev_b32 v109, 10, v111")
    a("v_sub_u32 v109, 2047, v109")
    a("v_lshl_or_b32 v109, v109, 1, 1")
    a("v_lshlrev_b32 v110, 2, v24")
    a("v_add_u32 v110, 65536, v110")
    unpack8(a, 40, XT)
    a("s_waitcnt vmcnt(0)")
    a("s_mov_b64 exec, 1")
    a("buffer_store_dword v6, v5, s[16:19], s21 offen sc1")
    a("s_mov_b64 exec, -1")
    stamp(a, "f2")
    cv_write(MW, 4)(); cv_moe(0, 4)(); cv_write(MW + 16, 3)(); cv_moe(16, 3)()
    lchk = lambda: chk_ne(a, [GA + 2 * i + 1 for i in range(16)])
    lchk()
    a("s_cbranch_scc1 main_lok")
    poll_loop(a, lg_issue, lchk, "Ll")
    a.label("main_lok")
    for c in range(4):
        a(f"v_add_f32 v{GA+2*c}, v{GA+2*c}, v{GA+8+2*c}")
        a(f"v_add_f32 v{GA+16+2*c}, v{GA+16+2*c}, v{GA+24+2*c}")
        a(f"v_add_f32 v{56+c}, v{GA+2*c}, v{GA+16+2*c}")
    a("s_lshr_b32 s20, s32, 1")
    a("s_cmp_eq_u32 s20, 2")
    a("s_cselect_b32 s20, 1.0, 0")
    rnd_pair(a, 56, 57, 5); rnd_pair(a, 58, 59, 5)
    for c in range(4): a(f"v_add_f32 v{56+c}, s20, v{56+c}")
    rnd_pair(a, 56, 57, 5); rnd_pair(a, 58, 59, 5)
    a("ds_write_b128 v1, v[56:59]")
    a("s_lshr_b32 s20, s42, 1")
    a("s_lshl_b32 s20, s20, 12")
    a("s_and_b32 s21, s42, 1")
    a("s_lshl_b32 s21, s21, 9")
    a("s_add_u32 s20, s20, s21")
    a(f"s_add_u32 s20, s20, {STG}")
    a("v_lshl_add_u32 v10, v8, 5, s20")
    a("v_lshrrev_b32 v11, 5, v2")
    a("v_lshlrev_b32 v11, 12, v11")
    a("v_and_b32 v5, 31, v2")
    a("v_lshl_add_u32 v11, v5, 5, v11")
    a(f"v_add_u32 v11, {STG}, v11")
    unpack8(a, 72, 252)
    for i in range(4):
        a(f"v_lshlrev_b32 v{WP+2*i}, 16, v{248+i}")
        a(f"v_and_b32 v{WP+2*i+1}, 0xffff0000, v{248+i}")
    a("s_waitcnt lgkmcnt(0)")
    a("s_cmp_lg_u32 s32, 0")
    a("s_cbranch_scc1 main_s2")
    a("v_and_b32 v5, 31, v2")
    a("v_lshlrev_b32 v5, 7, v5")
    a("s_lshl_b32 s22, s41, 12")
    a(f"s_add_u32 s22, s22, {WS_F2}")
    poll_loop(a, lambda: a("buffer_load_dword v6, v5, s[16:19], s22 offen sc1"), lambda: chk_ne(a, [6]), "Lo", sleep=1)
    a.label("main_s2")
    a("s_lshl_b32 s23, s32, 12")
    a("s_lshl_b32 s22, s41, 15")
    a("s_add_u32 s22, s22, s23")
    a(f"s_add_u32 s22, s22, {WS_OF}")
    a("s_mov_b32 m0, s23")
    a("s_barrier")
    stamp(a, "s2")
    for n in range(4):
        a(f"buffer_load_dwordx4 v9, s[16:19], s22 offen offset:{1024*n} sc1 lds")
    a("s_lshl_b32 s21, s41, 11")
    a(f"s_add_u32 s21, s21, {WS_ST2}")
    a("s_lshl_b32 s22, s42, 9")
    a("s_add_u32 s22, s22, s21")
    a("s_mov_b32 s24, 0x00010001")
    a("s_mov_b32 s25, 0x00010001")
    a("v_mov_b32 v55, s48")
    for j, reg in enumerate((GA, SB, CB, GB)):
        a(f"ds_read_b128 v[{reg}:{reg+3}], v10 offset:{8192*j}")
        a(f"ds_read_b128 v[{reg+4}:{reg+7}], v10 offset:{8192*j+16}")
    for j in range(2):
        a(f"ds_read_b128 v[{56+8*j}:{59+8*j}], v11 offset:{8192*(j+1)}")
        a(f"ds_read_b128 v[{60+8*j}:{63+8*j}], v11 offset:{8192*(j+1)+16}")
    a("s_waitcnt lgkmcnt(0)")
    for i in range(8):
        a(f"v_mul_f32 v{WP+i}, v{WP+i}, v{CB+i}")
    a("v_mul_f32 v252, v72, v64")
    a("v_mul_f32 v253, v72, v56")
    for i in range(1, 8):
        a(f"v_fmac_f32 v252, v{72+i}, v{64+i}")
        a(f"v_fmac_f32 v253, v{72+i}, v{56+i}")
    multi_allreduce(a, [252, 253], [5, 6])
    a("s_waitcnt vmcnt(0)")
    a("s_barrier")
    stamp(a, "olan")
    OFR = 56
    def rd(s):
        b = OFR + 8 * (s % 4)
        a(f"ds_read_b128 v[{b}:{b+3}], v20 offset:{2048*s}")
        a(f"ds_read_b128 v[{b+4}:{b+7}], v20 offset:{2048*s+256}")
    rd(0); rd(1); rd(2)
    for s in range(16):
        if s < 13:
            rd(s + 3)
            a("s_waitcnt lgkmcnt(6)")
        else:
            a(f"s_waitcnt lgkmcnt({2*(15-s)})")
        b = OFR + 8 * (s % 4)
        for u in range(2):
            mf16(a, 24 + 4 * u, WO + 4 * s, b + 4 * u, None if s == 0 else 24 + 4 * u)
    a("s_nop 6")
    a("ds_write_b128 v22, v[24:27]")
    a(f"ds_write_b128 v22, v[28:31] offset:{16*528}")
    a("s_waitcnt lgkmcnt(0)")
    a("s_barrier")
    a("ds_read_b128 v[32:35], v23")
    a("ds_read_b128 v[36:39], v23 offset:16")
    for i in range(0, 8, 2):
        if i % 4 == 0: a(f"s_waitcnt lgkmcnt({1 - i//4})")
        rnd_pair(a, 32 + i, 33 + i, 26)
        a(f"v_mul_f32 v{32+i}, v{32+i}, v{GA+i}")
        a(f"v_mul_f32 v{33+i}, v{33+i}, v{GA+i+1}")
        rnd_pair(a, 32 + i, 33 + i, 26)
        a(f"v_add_f32 v{32+i}, v{32+i}, v{40+i}")
        a(f"v_add_f32 v{33+i}, v{33+i}, v{41+i}")
        a(f"v_cvt_pk_bf16_f32 v{48+i//2}, v{32+i}, v{33+i}")
        a(f"v_lshlrev_b32 v{32+i}, 16, v{48+i//2}")
        a(f"v_and_b32 v{33+i}, 0xffff0000, v{48+i//2}")
    a("v_add_f32 v52, v32, v33")
    a("v_mul_f32 v53, v32, v32")
    a(f"v_mul_f32 v54, v32, v{WP}")
    for i in range(1, 8):
        if i > 1: a(f"v_add_f32 v52, v52, v{32+i}")
        a(f"v_fmac_f32 v53, v{32+i}, v{32+i}")
        a(f"v_fmac_f32 v54, v{32+i}, v{WP+i}")
    a("s_nop 0")
    for n in (8, 4, 2, 1):
        for r in (52, 53, 54):
            a(f"v_add_f32_dpp v{r}, v{r}, v{r} row_ror:{n} row_mask:0xf bank_mask:0xf")
    a("s_mov_b64 exec, s[24:25]")
    a("buffer_store_dwordx4 v[52:55], v12, s[16:19], s22 offen sc1")
    a("s_mov_b64 exec, -1")
    stamp(a, "st2")
    poll_loop(a, lambda: a("buffer_load_dwordx4 v[56:59], v13, s[16:19], s21 offen sc1"), lambda: chk_ne(a, [59]), "Ls", sleep=1)
    stamp(a, "s3")
    for qp in ("[1,0,3,2]", "[2,3,0,1]"):
        for r in (56, 57, 58):
            a(f"v_add_f32_dpp v{r}, v{r}, v{r} quad_perm:{qp} row_mask:0xf bank_mask:0xf")
    a(f"v_mul_f32 v56, {f32(1/512)}, v56")
    a(f"v_mul_f32 v57, {f32(1/512)}, v57")
    a("v_fma_f32 v57, -v56, v56, v57")
    a("v_max_f32 v57, 0, v57")
    rnd_pair(a, 56, 57, 26)
    a(f"v_add_f32 v57, {f32(1e-5)}, v57")
    rnd_bf16(a, 57)
    a("v_sqrt_f32 v57, v57")
    a("v_fma_f32 v58, -v56, v252, v58")
    rnd_bf16(a, 57)
    a("v_rcp_f32 v57, v57")
    a("s_nop 0")
    a("v_fma_f32 v58, v58, v57, v253")
    a("v_cvt_pk_bf16_f32 v58, v58, v58")
    a("v_ashrrev_i32 v59, 31, v58")
    a("v_or_b32 v59, 0x80000000, v59")
    a("v_xor_b32 v58, v58, v59")
    a("v_and_b32 v58, 0xffff0000, v58")
    a("v_or_b32 v58, v58, v109")
    a("ds_write_b32 v110, v58")
    a("v_and_b32 v5, 31, v2")
    a("v_lshlrev_b32 v5, 2, v5")
    a("v_add_u32 v5, 65536, v5")
    a("s_waitcnt lgkmcnt(0)")
    a("s_barrier")
    a("ds_read_b32 v10, v5")
    def h2_math(i):
        a(f"v_sub_f32 v{40+i}, v{32+i}, v56")
        a(f"v_sub_f32 v{41+i}, v{33+i}, v56")
        rnd_pair(a, 40 + i, 41 + i, 26)
        a(f"v_mul_f32 v{40+i}, v{40+i}, v57")
        a(f"v_mul_f32 v{41+i}, v{41+i}, v57")
        rnd_pair(a, 40 + i, 41 + i, 26)
        a(f"v_mul_f32 v{40+i}, v{40+i}, v{CB+i}")
        a(f"v_mul_f32 v{41+i}, v{41+i}, v{CB+i+1}")
        rnd_pair(a, 40 + i, 41 + i, 26)
        a(f"v_add_f32 v{40+i}, v{40+i}, v{SB+i}")
        a(f"v_add_f32 v{41+i}, v{41+i}, v{SB+i+1}")
        a(f"v_cvt_pk_bf16_f32 v{60+i//2}, v{40+i}, v{41+i}")
    h2_math(0)
    a("s_waitcnt lgkmcnt(0)")
    a("v_mov_b32 v64, v10")
    multi_allreduce(a, [64], [11], op="v_max_u32")
    a("v_cmp_eq_u32 vcc, v64, v10")
    a("s_nop 1")
    a("v_cndmask_b32 v65, v10, 0, vcc")
    multi_allreduce(a, [65], [11], op="v_max_u32")
    a("v_cmp_eq_u32 s[26:27], v64, v58")
    a("v_cmp_eq_u32 s[28:29], v65, v58")
    a("s_or_b32 s20, s42, s32")
    a("s_cmp_lg_u32 s20, 0")
    a("s_cbranch_scc1 main_notop")
    a("v_and_b32 v65, -2, v65")
    a("v_mov_b32 v66, s48")
    a("v_mov_b32 v67, s48")
    a("s_lshl_b32 s20, s41, 7")
    a(f"s_add_u32 s20, s20, {WS_TOP}")
    a("v_mov_b32 v5, 0")
    a("s_mov_b64 exec, 1")
    a("buffer_store_dwordx4 v[64:67], v5, s[16:19], s20 offen sc1")
    a("s_mov_b64 exec, -1")
    a.label("main_notop")
    stamp(a, "top")
    for i in (2, 4, 6): h2_math(i)
    a("s_or_b64 s[62:63], s[26:27], s[28:29]")
    a("s_cmp_eq_u64 s[62:63], 0")
    a("s_cbranch_scc1 main_nocand")
    a("v_mov_b32 v5, 2048")
    a("v_cndmask_b32 v5, 0, v5, s[28:29]")
    a("v_lshl_add_u32 v5, v8, 4, v5")
    a("s_lshl_b32 s20, s41, 12")
    a("s_lshl_b32 s21, s42, 8")
    a("s_add_u32 s20, s20, s21")
    a(f"s_add_u32 s20, s20, {WS_CAND}")
    a("s_mov_b64 exec, s[62:63]")
    a("buffer_store_dwordx4 v[60:63], v5, s[16:19], s20 offen sc1")
    a("buffer_store_dwordx4 v[48:51], v5, s[16:19], s20 offen offset:1024 sc1")
    a("s_mov_b64 exec, -1")
    a.label("main_nocand")
    a("s_cmp_lg_u32 s32, 0")
    a("s_cbranch_scc1 main_notp")
    a(f"s_mov_b32 s22, {WS_TOP}")
    a("v_lshlrev_b32 v76, 7, v2")
    a("buffer_load_dwordx4 v[68:71], v76, s[16:19], s22 offen sc1")
    a.label("main_notp")
    for i in range(0, 8, 2):
        a(f"v_lshlrev_b32 v{40+i}, 16, v{60+i//2}")
        a(f"v_and_b32 v{41+i}, 0xffff0000, v{60+i//2}")
        a(f"v_mul_f32 v{40+i}, v{40+i}, v{GB+i}")
        a(f"v_mul_f32 v{41+i}, v{41+i}, v{GB+i+1}")
        rnd_pair(a, 40 + i, 41 + i, 26)
        a(f"v_add_f32 v{40+i}, v{40+i}, v{32+i}")
        a(f"v_add_f32 v{41+i}, v{41+i}, v{33+i}")
        a(f"v_cvt_pk_bf16_f32 v{72+i//2}, v{40+i}, v{41+i}")
    a("s_cmp_lg_u32 s32, 0")
    a("s_cbranch_scc1 main_w0e")
    poll_loop(a, lambda: a("buffer_load_dwordx4 v[68:71], v76, s[16:19], s22 offen sc1"), lambda: chk_ne(a, [70]), "Lt", first_issued=True, sleep=2)
    a("v_mov_b32 v64, v68")
    multi_allreduce(a, [64], [11], op="v_max_u32")
    a("v_cmp_eq_u32 vcc, v64, v68")
    a("s_nop 1")
    a("v_cndmask_b32 v65, v68, v69, vcc")
    multi_allreduce(a, [65], [11], op="v_max_u32")
    a("v_mov_b32 v5, 65792")
    a("ds_write_b64 v5, v[64:65]")
    a("s_waitcnt lgkmcnt(0)")
    a.label("main_w0e")
    a("s_andn2_b64 exec, -1, s[62:63]")
    a("global_store_dwordx4 v111, v[72:75], s[50:51]")
    a("s_mov_b64 exec, -1")
    a("s_barrier")
    stamp(a, "s4")
    a("v_mov_b32 v5, 65792")
    a("ds_read_b64 v[64:65], v5")
    a("s_waitcnt lgkmcnt(0)")
    a("s_cmp_eq_u64 s[62:63], 0")
    a("s_cbranch_scc1 main_nodef")
    a("v_or_b32 v5, 1, v64")
    a("v_or_b32 v6, 1, v65")
    a("v_cmp_ne_u32 vcc, v5, v58")
    a("v_cmp_ne_u32 s[20:21], v6, v58")
    a("s_and_b64 vcc, vcc, s[20:21]")
    a("s_and_b64 exec, vcc, s[62:63]")
    a("s_cbranch_execz main_nodef")
    a("global_store_dwordx4 v111, v[72:75], s[50:51]")
    a.label("main_nodef")
    a("s_mov_b64 exec, -1")
    a("s_cmp_ge_u32 s2, 144")
    a("s_cbranch_scc1 main_done")
    def cand_off(key, d, t):
        a(f"v_bfe_u32 v{d}, v{key}, 6, 6")
        a(f"v_sub_u32 v{d}, 63, v{d}")
        a(f"v_lshlrev_b32 v{d}, 12, v{d}")
        a(f"v_not_b32 v{t}, v{key}")
        a(f"v_and_b32 v{t}, 1, v{t}")
        a(f"v_lshl_add_u32 v{d}, v{t}, 11, v{d}")
    a("s_cmp_ge_u32 s2, 112")
    a("s_cbranch_scc1 main_down")
    a("v_and_b32 v15, 1, v2")
    a("v_cmp_eq_u32 vcc, 0, v15")
    a("s_lshr_b32 s21, s32, 1")
    a("s_lshl_b32 s21, s21, 8")
    a("v_cndmask_b32 v16, v65, v64, vcc")
    cand_off(16, 17, 18)
    a("v_lshrrev_b32 v18, 4, v2")
    a("v_lshl_add_u32 v17, v18, 4, v17")
    a(f"s_add_u32 s22, s21, {WS_CAND}")
    def issue():
        for n in range(4):
            a(f"buffer_load_dwordx4 v[{32+4*n}:{35+4*n}], v17, s[16:19], s22 offen offset:{64*n} sc1")
    def check():
        a("v_max3_u32 v5, v32, v36, v40")
        a("v_max_u32 v5, v5, v44")
        a("v_cmp_eq_u32 vcc, -1, v5")
        a("s_cmp_eq_u64 vcc, 0")
    poll_loop(a, issue, check, "Lh", sleep=2)
    stamp(a, "moe")
    for n in range(4):
        mf16(a, 20, 32 + 4 * n, MW + 4 * n, None if n == 0 else 20)
    PB = 66560
    def partial_and_gather():
        a("s_lshl_b32 s23, s32, 7")
        a(f"s_add_u32 s23, s23, {PB}")
        a("v_lshl_add_u32 v24, v2, 2, s23")
        a("s_mov_b64 exec, 0xffff")
        a("s_nop 4")
        a("ds_write_b32 v24, v20")
        a("ds_write_b32 v24, v21 offset:64")
        a("s_mov_b64 exec, -1")
        a("s_waitcnt lgkmcnt(0)")
        a("s_barrier")
        a("s_cmp_lg_u32 s32, 0")
        a("s_cbranch_scc1 main_done")
        a("v_and_b32 v24, 31, v0")
        a("v_lshlrev_b32 v24, 2, v24")
        a(f"v_add_u32 v24, {PB}, v24")
        for w in range(8):
            a(f"ds_read_b32 v{32+w}, v24 offset:{128*w}")
    partial_and_gather()
    a("v_lshlrev_b32 v25, 1, v0")
    a("s_lshl_b32 s21, s33, 7")
    a(f"s_add_u32 s21, s21, {WS_ACT}")
    a("s_waitcnt lgkmcnt(0)")
    for w in range(2, 8):
        a(f"v_add_f32 v{32+(w&1)}, v{32+(w&1)}, v{32+w}")
    rnd_pair(a, 32, 33, 40)
    silu(a, 32, 34)
    rnd_bf16(a, 32)
    a("v_mul_f32 v32, v32, v33")
    a("s_nop 1")
    a("v_mov_b32_dpp v33, v32 quad_perm:[1,0,3,2] row_mask:0xf bank_mask:0xf")
    a("v_cvt_pk_bf16_f32 v32, v32, v33")
    a("s_mov_b64 exec, 0x55555555")
    a("buffer_store_dword v32, v25, s[16:19], s21 offen sc1")
    a("s_mov_b64 exec, -1")
    a("s_branch main_done")
    a.label("main_down")
    if STAMPS is not None and "moe" in STAMPS: Prof.n -= 1
    a("v_bfe_u32 v15, v0, 4, 1")
    a("v_cmp_eq_u32 vcc, 0, v15")
    a("s_lshl_b32 s21, s33, 5")
    a(f"s_add_u32 s22, s21, {WS_CAND}")
    a("v_cndmask_b32 v12, v65, v64, vcc")
    cand_off(12, 16, 17)
    a("v_and_b32 v17, 14, v8")
    a("v_lshl_add_u32 v16, v17, 1, v16")
    def issue():
        a("buffer_load_dword v17, v16, s[16:19], s22 offen sc1")
        a("buffer_load_dword v18, v16, s[16:19], s22 offen offset:1024 sc1")
    def check():
        a("v_max_u32 v5, v17, v18")
        a("v_cmp_eq_u32 vcc, -1, v5")
        a("s_cmp_eq_u64 vcc, 0")
    a("s_lshr_b32 s23, s33, 4")
    a("s_lshl_b32 s23, s23, 12")
    a("s_and_b32 s20, s33, 15")
    a("s_lshl_b32 s20, s20, 6")
    a("s_add_u32 s23, s23, s20")
    a(f"s_add_u32 s23, s23, {STG + 3*8192}")
    a("v_lshl_add_u32 v19, v8, 2, s23")
    a("ds_read_b32 v19, v19")
    poll_loop(a, issue, check, "Lf", sleep=2)
    a("v_bfe_u32 v15, v12, 1, 11")
    a("v_sub_u32 v15, 2047, v15")
    a("v_lshlrev_b32 v15, 10, v15")
    a("v_lshl_add_u32 v15, v8, 1, v15")
    a("v_add_u32 v15, s21, v15")
    a("v_and_b32 v16, 1, v0")
    a("v_lshlrev_b32 v16, 4, v16")
    a("v_lshrrev_b32 v17, v16, v17")
    a("v_lshrrev_b32 v18, v16, v18")
    a("v_lshlrev_b32 v17, 16, v17")
    a("v_lshlrev_b32 v18, 16, v18")
    a("v_and_b32 v12, 0xffff0000, v12")
    a("v_ashrrev_i32 v25, 31, v12")
    a("v_not_b32 v25, v25")
    a("v_or_b32 v25, 0x80000000, v25")
    a("v_xor_b32 v12, v12, v25")
    a("v_and_b32 v12, 0xffff0000, v12")
    a(f"v_mul_f32 v25, {NLOG2E:#x}, v12")
    a("v_exp_f32 v25, v25")
    a("s_nop 0")
    a("v_add_f32 v25, 1.0, v25")
    a("v_rcp_f32 v25, v25")
    a("s_nop 0")
    rnd_bf16(a, 25)
    a("v_and_b32 v13, 1, v2")
    a("v_lshlrev_b32 v13, 5, v13")
    a("v_bfe_u32 v14, v2, 4, 1")
    a("v_lshl_add_u32 v13, v14, 4, v13")
    a("v_lshrrev_b32 v14, 5, v2")
    a("v_lshl_add_u32 v13, v14, 7, v13")
    a("s_mul_i32 s22, s32, 1792")
    a(f"s_add_u32 s22, s22, {WS_ACT}")
    def issue():
        for n in range(7):
            a(f"buffer_load_dwordx4 v[{32+4*n}:{35+4*n}], v13, s[16:19], s22 offen offset:{256*n} sc1")
    def check():
        a("v_max3_u32 v5, v32, v33, v34")
        for i in range(3, 27, 2):
            a(f"v_max3_u32 v5, v5, v{32+i}, v{33+i}")
        a("v_max_u32 v5, v5, v59")
        a("v_cmp_eq_u32 vcc, -1, v5")
        a("s_cmp_eq_u64 vcc, 0")
    poll_loop(a, issue, check, "La", sleep=2)
    stamp(a, "moe")
    for n in range(7):
        mf16(a, 20, 32 + 4 * n, MW + 4 * n, None if n == 0 else 20)
    partial_and_gather()
    a("s_waitcnt lgkmcnt(0)")
    for w in range(1, 8):
        a(f"v_add_f32 v32, v32, v{32+w}")
    rnd_bf16(a, 32)
    a("v_mul_f32 v32, v32, v25")
    rnd_bf16(a, 32)
    a("v_add_f32 v32, v32, v17")
    rnd_bf16(a, 32)
    a("v_mul_f32 v32, v32, v19")
    rnd_bf16(a, 32)
    a("v_add_f32 v32, v32, v18")
    a("v_cvt_pk_bf16_f32 v32, v32, v32")
    a("s_mov_b32 exec_hi, 0")
    a("global_store_short v15, v32, s[50:51]")
    a("s_cmp_lg_u32 s33, 0")
    a("s_cbranch_scc1 main_done")
    a("v_mov_b32 v5, 0")
    a("v_mov_b32 v6, s48")
    a("s_mov_b64 exec, 1")
    a("global_store_dword v5, v6, s[4:5]")
    a.label("main_done")
    if STAMPS is not None: stamp_end(a)
    a.label("main_end")
    a("s_endpgm")
    a.label("main_fallback")
    a("s_mov_b32 s37, 1")
    a("s_mov_b32 s20, 64")
    a("v_mov_b32 v6, 0xff800000")
    a("v_mov_b32 v5, v3")
    a.label("main_fb_loop")
    a(f"ds_read_b128 v[{K[0]}:{K[0]+3}], v5")
    a("v_add_u32 v5, 0x800, v5")
    a("s_waitcnt lgkmcnt(0)")
    a(f"v_mfma_f32_32x32x16_bf16 v[{s0}:{s0+15}], v[{K[0]}:{K[0]+3}], v[{Q}:{Q+3}], 0")
    a("s_nop 11")
    for i in range(0, 16, 2):
        a(f"v_max3_f32 v6, v6, v{s0+i}, v{s0+i+1}")
    a("s_sub_u32 s20, s20, 1")
    a("s_cmp_lg_u32 s20, 0")
    a("s_cbranch_scc1 main_fb_loop")
    a(f"ds_read_b128 v[{K[0]}:{K[0]+3}], v3")
    a(f"ds_read_b128 v[{K[1]}:{K[1]+3}], v3 offset:2048")
    for i in range(16):
        a(f"v_mov_b32 v{O+i}, 0")
    setmax()
    a("s_mov_b64 exec, s[38:39]")
    a(f"ds_read_b128 v[{V[0]}:{V[0]+3}], v4")
    a(f"ds_read_b128 v[{V[0]+4}:{V[0]+7}], v4 offset:512")
    a("s_mov_b64 exec, -1")
    a("s_waitcnt lgkmcnt(0)")
    a(f"v_mfma_f32_32x32x16_bf16 v[{s0}:{s0+15}], v[{K[0]}:{K[0]+3}], v[{Q}:{Q+3}], v[{C}:{C+15}]")
    for i in range(8):
        a(f"v_mov_b32 v{S[1]+8+i}, 0")
    a("s_mov_b32 s20, 32")
    a("s_nop 3")
    a.label("main_fb2")
    tile(0, 0, {}); tile(1, 1, {})
    a("v_add_u32 v3, 0x1000, v3")
    a("v_add_u32 v4, 0x1000, v4")
    a("s_sub_u32 s20, s20, 1")
    a("s_cmp_lg_u32 s20, 0")
    a("s_cbranch_scc1 main_fb2")
    a("v_subrev_u32 v3, 0x20000, v3")
    a("v_subrev_u32 v4, 0x20000, v4")
    a("s_branch main_attn_tail")

def main(out, aslist=False):
    hdr = open("adaLN_cond__mha_block__moe_arch_mod__prompt.s.ref").read().split("; Override launch")[0]
    txt = hdr
    if aslist:
        txt += f"; @launch kernel={KNAME} grid=(256,1,1) block=(512,1,1) lds=163840\n"
    else:
        txt += "; @launch grid=(256,1,1) block=(512,1,1) lds=163840\n"
    txt += '.amdgcn_target "amdgcn-amd-amdhsa--gfx950"\n'
    a = Asm()
    k_main(a)
    txt += a.text()
    txt += kernel_desc(KNAME, 256)
    open(out, "w").write(txt)

SETS = {
    "ld": ["karg", "mp", "iw", "i2", "l0", "l1", "l2", "gath1", "barx", "bar1", "p3", "p6", "p9"],
    "p1": ["bar1", "p0", "p1", "p2", "p3", "p4", "p5", "p6", "p7", "p8", "p10", "p12", "p14"],
    "p2": ["p8", "p9", "p10", "p11", "p12", "p13", "p14", "p15", "pass1", "kvpub", "att0", "f1", "kvok"],
    "f0": ["karg", "mp", "i2", "l0", "gath0", "gath1", "barx", "bar1", "p6", "p12", "pass1", "f1", "att0"],
    "f1": ["barx", "bar1", "p5", "pass1", "kvpub", "att0", "f1", "kvok", "bar6", "kv3", "bar14", "att1"],
    "tail": ["att0", "t23", "t42", "att1", "f2", "s2", "olan", "st2", "s3", "top", "s4", "moe"],
}
if __name__ == "__main__":
    if len(sys.argv) > 2 and sys.argv[2] in SETS:
        G1.PROF = True
        STAMPS = set(SETS[sys.argv[2]])
    main(sys.argv[1], aslist=(len(sys.argv) > 2 and sys.argv[2] != "final"))
    if STAMPS: print(" ".join(["start"] + ORDER + ["end"]))
```

```python
import sys, os
from asmlib import *
import gen_v1 as G1
from gen_v1 import (f32, multi_allreduce, unpack8, rnd_pair, tr_addr_natural, dma_row_src,
                    stamp_begin, stamp_end, Prof, NLOG2E, QSCALE, WS_BYTES)

KNAME = "adaLN_cond__mha_block__moe_arch_mod__prompt_kernel"
WS_EPOCH = 0
WS_MP = 0x1000
WS_ST1 = 0x10000
WS_MPL = 0x20000
WS_ST2 = 0x40000
WS_TOP = 0x60000
WS_ACT = 0x64000
WS_CAND = 0x80000
WS_F1 = 0x100000
WS_F2 = 0x140000
WS_WP = 0x200000
WS_KV = 0x500000
WS_OF = 0x900000
SPIN = 50000
STAMPS = None
ORDER = []

def stamp(a, name):
    if STAMPS is not None and name in STAMPS:
        if name not in ORDER: ORDER.append(name)
        G1.stamp(a)

def poll_loop(a, issue, check, name, first_issued=False, sleep=4):
    l = a.newlabel(name); d = a.newlabel(name + "d"); w = a.newlabel(name + "w")
    a(f"s_mov_b32 s60, {SPIN}")
    if first_issued: a(f"s_branch {w}")
    a.label(l)
    issue()
    if first_issued: a.label(w)
    a("s_waitcnt vmcnt(0)")
    check()
    a(f"s_cbranch_scc1 {d}")
    a("s_sub_u32 s60, s60, 1")
    if sleep: a(f"s_sleep {sleep}")
    a("s_cmp_lg_u32 s60, 0")
    a(f"s_cbranch_scc1 {l}")
    a.label(d)

def chk_ne(a, regs):
    a(f"v_cmp_ne_u32 vcc, s48, v{regs[0]}")
    for r in regs[1:]:
        a(f"v_cmp_ne_u32 s[20:21], s48, v{r}")
        a("s_or_b64 vcc, vcc, s[20:21]")
    a("s_cmp_eq_u64 vcc, 0")

def silu(a, x, t):
    a(f"v_mul_f32 v{t}, {NLOG2E:#x}, v{x}")
    a(f"v_exp_f32 v{t}, v{t}")
    a("s_nop 0")
    a(f"v_add_f32 v{t}, 1.0, v{t}")
    a(f"v_rcp_f32 v{t}, v{t}")
    a("s_nop 0")
    a(f"v_mul_f32 v{x}, v{x}, v{t}")

def mf16(a, d, A, B, c):
    cs = "0" if c is None else f"v[{c}:{c+3}]"
    a(f"v_mfma_f32_16x16x32_bf16 v[{d}:{d+3}], v[{A}:{A+3}], v[{B}:{B+3}], {cs}")

def trr(a, d, a1, a2, off):
    a(f"ds_read_b64_tr_b16 v[{d}:{d+1}], v{a1} offset:{off}")
    a(f"ds_read_b64_tr_b16 v[{d+2}:{d+3}], v{a2} offset:{off}")

WPB = 0; RING = 49152
REG = {0: 32768, 1: 0, 2: 16384}
EMB = 147456; SAT = 151552; CTE = 152576; CAT = 152832; REC = 154880; STT = 157440; FINR = 152576 - 0
STG = 131072
EM2 = 159744
FIN = 159488 - 320 + 64 - 64
Q = 16; C = 20; S = [36, 52]; O = 68; K = [84, 88]; V = [92, 100]; IDX = 108
WO = 112; MW = 176; XT = 204
GA = 208; SB = 216; CB = 224; GB = 232; WP = 240
FLIP = int(os.environ.get('FLIP', 54))
RBAR = int(os.environ.get('RBAR', 12))
TILEV = int(os.environ.get('TILEV', 0))
YK = int(os.environ.get('YK', 4))
TOUCHD = int(os.environ.get('TOUCHD', 16))
TOUCHG = int(os.environ.get('TOUCHG', 0))
TOUCHW = int(os.environ.get('TOUCHW', 7))
P1FLIP = int(os.environ.get('P1FLIP', 11))
TOUCH = 0
WPS = 16384 + 384
F1STEP = 10
XR = 32; WR = 160; ACC = 184; QA = 176; WF = [236, 244]

def k_main(a):
    kernel_begin(a, KNAME)
    a("s_cmp_ge_u32 s2, 256")
    a("s_cbranch_scc1 main_end")
    if STAMPS is not None: stamp_begin(a, 0)
    a("s_setprio 3")
    a("s_load_dwordx2 s[4:5], s[0:1], 96")
    a("s_load_dwordx4 s[44:47], s[0:1], 64")
    a("s_load_dwordx2 s[6:7], s[0:1], 0")
    a("s_load_dwordx4 s[8:11], s[0:1], 8")
    a("s_load_dwordx8 s[52:59], s[0:1], 32")
    a("s_load_dwordx2 s[50:51], s[0:1], 80")
    a("v_lshrrev_b32 v1, 6, v0")
    a("v_and_b32 v2, 63, v0")
    a("s_and_b32 s31, s2, 1")
    a("s_lshl_b32 s31, s31, 2")
    a("v_readfirstlane_b32 s32, v1")
    a("s_bfe_u32 s20, s2, 0x20003")
    a("s_add_u32 s31, s31, s20")
    a("s_and_b32 s30, s2, 6")
    a("s_lshl_b32 s30, s30, 2")
    a("s_lshr_b32 s20, s2, 5")
    a("s_add_u32 s30, s30, s20")
    a("s_lshl_b32 s33, s20, 1")
    a("v_lshlrev_b32 v9, 4, v2")
    a("v_lshrrev_b32 v17, 3, v2")
    a("v_and_b32 v16, 6, v17")
    a("v_xor_b32 v16, v16, v2")
    a("v_and_b32 v16, 7, v16")
    a("v_lshlrev_b32 v200, 10, v17")
    a("v_lshl_add_u32 v200, v16, 4, v200")
    for q in range(1, 4): a(f"v_add_u32 v{200+q}, {7168*q}, v200")
    dma_row_src(a, 255, 2, 6144, 16, 17)
    a("s_lshl_b32 s28, s31, 18")
    a("s_lshl_b32 s21, s32, 15")
    a("s_add_u32 s28, s28, s21")
    a("s_lshl_b32 s29, s33, 6")
    a("s_mul_i32 s49, s32, 12288")
    a(f"s_add_u32 s49, s49, {RING}")
    a("v_lshrrev_b32 v3, 1, v2")
    a("v_lshl_add_u32 v3, v1, 6, v3")
    a("v_and_b32 v6, 1, v0")
    a("v_bfe_u32 v22, v2, 1, 2")
    a("v_mul_u32_u24 v22, 3072, v22")
    a("v_lshrrev_b32 v17, 3, v2")
    a("v_lshl_add_u32 v22, v17, 5, v22")
    a("v_lshl_add_u32 v22, v6, 4, v22")
    a(f"v_mul_u32_u24 v23, {WPS}, v17")
    a("v_and_b32 v17, 7, v2")
    a("v_lshl_add_u32 v23, v17, 4, v23")
    a("s_and_b32 s36, s2, 7")
    a("s_lshl_b32 s36, s36, 4")
    a("s_lshr_b32 s20, s2, 4")
    a("s_add_u32 s36, s36, s20")
    a("s_bfe_u32 s37, s2, 0x10003")
    a("v_lshlrev_b32 v19, 3, v2")
    a("s_lshl_b32 s39, s2, 3")
    a("s_add_u32 s39, s39, s32")
    a("s_and_b32 s62, s2, 7")
    a("s_lshl_b32 s62, s62, 3")
    a("s_bfe_u32 s23, s2, 0x30003")
    a("s_add_u32 s62, s62, s23")
    a("s_waitcnt lgkmcnt(0)")
    stamp(a, "karg")
    a("s_load_dword s48, s[4:5], 0")
    srd(a, 24, 6, 2048 * 1024)
    srd(a, 16, 4, WS_BYTES)
    srd(a, 12, 8, 512 * 3072)
    a("s_cmp_lg_u32 s32, 0")
    a("s_cbranch_scc1 main_w0a")
    a("s_lshr_b32 s21, s2, 6")
    a("s_lshl_b32 s22, s21, 8")
    a("v_lshl_add_u32 v16, v2, 2, s22")
    a("global_load_dword v232, v16, s[44:45]")
    srd(a, 40, 46, 512 * 6144)
    a(f"s_mul_i32 s22, s21, {128*6144}")
    a("s_lshl_b32 s23, s62, 5")
    a("s_add_u32 s22, s22, s23")
    for n in range(4):
        a(f"s_mov_b32 m0, {EMB + 1024*n}")
        if n: a(f"s_add_u32 s22, s22, {32*6144}")
        else: a("s_nop 0")
        a("buffer_load_dwordx4 v255, s[40:43], s22 offen lds")
    a("s_branch main_w0i")
    a.label("main_w0a")
    a("s_cmp_eq_u32 s32, 7")
    a("s_cbranch_scc1 main_w0i")
    a(f"s_mul_i32 s20, s36, {4*3072}")
    a("s_mul_i32 s21, s37, 1536")
    a("s_add_u32 s20, s20, s21")
    a("s_lshl_b32 s21, s32, 8")
    a("s_add_u32 s20, s20, s21")
    a("s_sub_u32 s20, s20, 256")
    a(f"buffer_load_dwordx4 v[{WR}:{WR+3}], v22, s[12:15], s20 offen")
    a.label("main_w0i")
    a("s_lshl_b32 s22, s39, 10")
    a("buffer_load_dwordx4 v[204:207], v9, s[24:27], s22 offen")
    def dstep_issue(base, add):
        a("s_add_u32 s20, s28, s29")
        if add: a(f"s_add_u32 s21, s{base}, {add}")
        a(f"s_mov_b32 m0, s{21 if add else base}")
        a("s_add_u32 s29, s29, 128")
        for q in range(4):
            a(f"buffer_load_dwordx4 v{200+q}, s[24:27], s20 offen offset:{1024*q} lds")
        a("s_and_b32 s29, s29, 0x3ff")
    a("v_lshlrev_b32 v25, 4, v0")
    def g_issue():
        for rg in range(4):
            a(f"s_mov_b32 s22, {WS_MP + 8192*rg}")
            a(f"buffer_load_dwordx4 v[{184+4*rg}:{187+4*rg}], v25, s[16:19], s22 offen sc1")
    a("v_lshrrev_b32 v7, 4, v2")
    a("v_and_b32 v8, 15, v2")
    tr_addr_natural(a, 12, 13, 2, 14, 15)
    a("s_lshl_b32 s21, s33, 10")
    a("v_lshlrev_b32 v10, 5, v3")
    a("v_subrev_u32 v10, s21, v10")
    a("v_bfe_u32 v11, v3, 3, 1")
    a("v_lshlrev_b32 v11, 7, v11")
    a("v_xor_b32 v10, v10, v11")
    a("v_lshl_add_u32 v10, v6, 4, v10")
    a("v_and_b32 v10, 0x3fff, v10")
    a("v_xor_b32 v11, 1024, v10")
    a("s_lshl_b32 s20, s32, 11")
    a("s_sub_u32 s20, s20, s21")
    a("s_and_b32 s20, s20, 0x3fff")
    a("v_add_u32 v26, s20, v12")
    a("v_add_u32 v27, s20, v13")
    a("s_lshr_b32 s20, s20, 4")
    a(f"s_add_u32 s20, s20, {SAT}")
    a("v_lshl_add_u32 v30, v7, 4, s20")
    a("s_lshl_b32 s21, s32, 12")
    a(f"s_add_u32 s21, s21, {STG}")
    a("v_add_u32 v14, s21, v12")
    a("v_add_u32 v15, s21, v13")
    a("v_and_b32 v16, 6, v8")
    a("v_xor_b32 v16, v16, v7")
    a("v_lshlrev_b32 v16, 4, v16")
    a("v_and_b32 v17, 7, v8")
    a("v_lshl_add_u32 v16, v17, 7, v16")
    a("v_lshrrev_b32 v17, 3, v8")
    a("v_lshl_add_u32 v16, v17, 10, v16")
    a("v_xor_b32 v17, 64, v16")
    a("v_add_u32 v254, s49, v16")
    a("v_add_u32 v255, s49, v17")
    a("v_and_b32 v24, 31, v2")
    a("v_lshlrev_b32 v24, 4, v24")
    a("s_lshr_b32 s63, s28, 6")
    a(f"s_add_u32 s63, s63, {WS_ST1}")
    def rd_x2(d, reg, off):
        for e in range(2):
            for u in range(2):
                r = XR + 4 * (16 * u + 2 * d + e)
                a(f"ds_read_b128 v[{r}:{r+3}], v{reg+e} offset:{off + 2048*u}")
    def g_check(): chk_ne(a, [185, 187, 189, 191, 193, 195, 197, 199])
    stamp(a, "d7")
    def w56(fn):
        l = a.newlabel("Lw56")
        a("s_sub_u32 s20, s32, 5")
        a("s_cmp_gt_u32 s20, 1")
        a(f"s_cbranch_scc1 {l}")
        fn()
        a.label(l)
    def w12(fn):
        l = a.newlabel("Lw12")
        a("s_sub_u32 s20, s32, 1")
        a("s_cmp_gt_u32 s20, 1")
        a(f"s_cbranch_scc1 {l}")
        fn()
        a.label(l)
    def le_issue():
        srd(a, 12, 46, 512 * 6144)
        a("v_mul_u32_u24 v5, 6144, v11")
        a("v_add_u32 v5, v5, v10")
        a("s_lshr_b32 s21, s2, 6")
        a(f"s_mul_i32 s22, s21, {128*6144}")
        a("s_lshl_b32 s23, s62, 6")
        a("s_add_u32 s22, s22, s23")
        a("s_lshl_b32 s23, s20, 5")
        a("s_add_u32 s22, s22, s23")
        a("s_add_u32 s22, s22, 2048")
        a("s_mov_b32 s23, s36")
        a("s_lshl_b32 s21, s21, 8")
        a("v_lshl_add_u32 v6, v2, 2, s21")
        a(f"global_load_dword v{WO}, v6, s[44:45]")
        for n in range(4):
            a("s_mov_b32 m0, s23")
            if n: a(f"s_add_u32 s22, s22, {32*6144}")
            else: a("s_nop 0")
            a("buffer_load_dwordx4 v5, s[12:15], s22 offen lds")
            a("s_add_u32 s23, s23, 1024")
    a("s_lshr_b32 s41, s30, 2"); a("s_lshl_b32 s20, s31, 3"); a("s_add_u32 s41, s41, s20")
    a("s_and_b32 s42, s30, 3")
    a("v_and_b32 v29, 1, v2"); a("v_lshlrev_b32 v29, 4, v29")
    a("v_lshrrev_b32 v28, 1, v2"); a("v_lshl_add_u32 v1, v28, 10, v29")
    a("s_lshl_b32 s20, s42, 8"); a("s_lshl_b32 s21, s32, 5"); a("s_add_u32 s21, s21, s20"); a("v_add_u32 v1, s21, v1")
    a("v_bfe_u32 v16, v2, 4, 1"); a("v_lshlrev_b32 v17, 2, v16"); a("v_xor_b32 v28, v28, v17")
    a("v_lshrrev_b32 v5, 5, v2"); a("v_lshlrev_b32 v5, 9, v5"); a("v_lshl_add_u32 v5, v16, 7, v5")
    a("v_bfe_u32 v16, v2, 2, 2"); a("v_lshl_add_u32 v5, v16, 5, v5"); a("v_and_b32 v16, 3, v2"); a("v_lshl_add_u32 v5, v16, 3, v5")
    a("s_lshl_b32 s21, s32, 12"); a(f"s_add_u32 s21, s21, {STG}"); a("v_add_u32 v5, s21, v5")
    a("v_lshrrev_b32 v4, 4, v0"); a("v_lshlrev_b32 v4, 10, v4"); a("v_lshl_add_u32 v4, v8, 4, v4")
    a("s_lshl_b32 s21, s41, 15"); a("s_add_u32 s20, s20, s21"); a("v_add_u32 v4, s20, v4")
    a("s_lshl_b32 s20, s30, 13"); a("s_lshl_b32 s21, s32, 10"); a("s_add_u32 s40, s20, s21"); a(f"s_add_u32 s40, s40, {WS_F1}")
    a("s_cmp_lg_u32 s32, 0")
    a("s_cbranch_scc1 main_w0j")
    a(f"v_add_u32 v20, {EMB}, v12")
    a(f"v_add_u32 v21, {EMB}, v13")
    a("s_waitcnt vmcnt(5)")
    a("v_lshlrev_b32 v233, 16, v232")
    a("v_and_b32 v234, 0xffff0000, v232")
    silu(a, 233, 16); silu(a, 234, 16)
    a("v_cvt_pk_bf16_f32 v232, v233, v234")
    a("v_lshlrev_b32 v16, 2, v2")
    a(f"v_add_u32 v16, {CTE}, v16")
    a("ds_write_b32 v16, v232")
    a("v_and_b32 v17, 48, v2")
    a(f"v_add_u32 v17, {CTE}, v17")
    for n in range(4):
        a(f"ds_read_b128 v[{236+4*n}:{239+4*n}], v17 offset:{64*n}")
    a("s_lshr_b32 s38, s2, 6")
    a("s_lshl_b32 s38, s38, 13")
    a("s_lshl_b32 s22, s62, 7")
    a("s_add_u32 s38, s38, s22")
    a(f"s_add_u32 s38, s38, {WS_MP}")
    a("s_waitcnt vmcnt(0)")
    stamp(a, "emland")
    for n in range(4):
        trr(a, 216 + 4 * n, 20, 21, 1024 * n)
    a("s_waitcnt lgkmcnt(0)")
    a("s_add_u32 s22, s48, 1")
    for n in range(4):
        mf16(a, 232, 236 + 4 * n, 216 + 4 * n, None if n == 0 else 232)
    a("s_nop 7")
    a("v_mov_b32 v184, v232")
    a("v_mov_b32 v185, s22")
    a("s_branch main_w0b")
    a.label("main_w0j")
    a("s_waitcnt vmcnt(0)")
    a("s_cmp_eq_u32 s32, 7")
    a("s_cbranch_scc1 main_w0b")
    a("s_mul_i32 s20, s37, 6")
    a("s_add_u32 s20, s20, s32")
    a(f"s_mul_i32 s20, s20, {8*WPS}")
    a("s_lshl_b32 s21, s36, 7")
    a("s_add_u32 s20, s20, s21")
    a(f"s_add_u32 s20, s20, {WS_WP - 8*WPS}")
    a(f"buffer_store_dwordx4 v[{WR}:{WR+3}], v23, s[16:19], s20 offen sc1")
    a.label("main_w0b")
    stamp(a, "pk")
    a("s_barrier")
    dstep_issue(49, 0)
    a("s_waitcnt lgkmcnt(0)")
    a("s_add_u32 s48, s48, 1")
    unpack8(a, 208, 204)
    a("v_add_f32 v216, v208, v209")
    for i in range(2, 8): a(f"v_add_f32 v216, v216, v{208+i}")
    multi_allreduce(a, [216], [217])
    a(f"v_mul_f32 v216, {f32(1/512)}, v216")
    a("v_sub_f32 v217, v208, v216")
    a("v_mul_f32 v218, v217, v217")
    for i in range(1, 8):
        a(f"v_sub_f32 v217, v{208+i}, v216")
        a("v_fmac_f32 v218, v217, v217")
    multi_allreduce(a, [218], [217])
    a(f"v_mul_f32 v217, {f32(1/512)}, v218")
    rnd_pair(a, 216, 217, 218)
    a(f"v_add_f32 v217, {f32(1e-5)}, v217")
    rnd_bf16(a, 217)
    a("v_sqrt_f32 v217, v217")
    a("s_lshl_b32 s21, s39, 4")
    rnd_bf16(a, 217)
    a("v_rcp_f32 v217, v217")
    a("v_mov_b32 v218, s48")
    a("v_mov_b32 v219, s48")
    a(f"s_add_u32 s21, s21, {WS_ST1}")
    a("v_mov_b32 v16, 0")
    a("s_mov_b64 exec, 1")
    a("buffer_store_dwordx4 v[216:219], v16, s[16:19], s21 offen sc1")
    a("s_mov_b64 exec, -1")
    a("s_waitcnt vmcnt(5)")
    stamp(a, "ack")
    a("s_barrier")
    a("s_cmp_lg_u32 s32, 0")
    a("s_cbranch_scc1 main_w0c")
    a("s_mov_b64 exec, 0xffff")
    a("buffer_store_dwordx2 v[184:185], v19, s[16:19], s38 offen sc1")
    a("s_mov_b64 exec, -1")
    stamp(a, "mp")
    a.label("main_w0c")
    dstep_issue(49, 4096); dstep_issue(49, 8192)
    a("s_setprio 0")
    stamp(a, "i2")
    a("s_waitcnt vmcnt(9)")
    stamp(a, "l0")
    rd_x2(0, 254, 0)
    a("s_waitcnt lgkmcnt(0)")
    dstep_issue(49, 0)
    a("s_waitcnt vmcnt(8)")
    a("s_setprio 3")
    g_issue()
    rd_x2(1, 254, 4096)
    a("s_waitcnt vmcnt(8)")
    stamp(a, "l2")
    rd_x2(2, 254, 8192)
    a("s_waitcnt vmcnt(0)")
    stamp(a, "gath0")
    g_check()
    a("s_cbranch_scc1 main_gok")
    poll_loop(a, g_issue, g_check, "Lm")
    a.label("main_gok")
    stamp(a, "gath1")
    a(f"s_mul_i32 s20, s30, {WPS}")
    a("s_lshl_b32 s21, s32, 11")
    a("s_add_u32 s20, s20, s21")
    a(f"s_add_u32 s20, s20, {WS_WP}")
    for t in (0, 2, 1):
        a(f"s_add_u32 s21, s20, {32*WPS*t}")
        for p in range(2):
            r = WR + 4 * (3 * p + t)
            a(f"buffer_load_dwordx4 v[{r}:{r+3}], v9, s[16:19], s21 offen offset:{1024*p} sc1")
    a("s_setprio 0")
    rd_x2(3, 254, 0)
    for c in range(2):
        a(f"v_add_f32 v{184+2*c}, v{184+2*c}, v{188+2*c}")
        a(f"v_add_f32 v{192+2*c}, v{192+2*c}, v{196+2*c}")
        a(f"v_add_f32 v{184+2*c}, v{184+2*c}, v{192+2*c}")
    a("v_cvt_pk_bf16_f32 v188, v184, v186")
    a("s_cmp_gt_u32 s32, 3")
    a("s_cbranch_scc1 main_gca")
    a("s_lshl_b32 s21, s33, 6")
    a("v_lshlrev_b32 v16, 2, v0")
    a("v_subrev_u32 v16, s21, v16")
    a("v_and_b32 v16, 0x3ff, v16")
    a(f"v_add_u32 v16, {SAT}, v16")
    a("ds_write_b32 v16, v188")
    a("s_branch main_gdn")
    a.label("main_gca")
    a("v_lshlrev_b32 v184, 16, v188")
    a("v_and_b32 v185, 0xffff0000, v188")
    a("v_add_f32 v184, 1.0, v184")
    a("v_add_f32 v185, 1.0, v185")
    rnd_pair(a, 184, 185, 188)
    a("v_lshlrev_b32 v16, 3, v0")
    a(f"v_add_u32 v16, {CAT - 2048}, v16")
    a("ds_write_b64 v16, v[184:185]")
    a.label("main_gdn")
    a("v_lshlrev_b32 v16, 2, v3")
    a(f"v_add_u32 v16, {CAT}, v16")
    a("v_xor_b32 v17, 128, v16")
    a("s_waitcnt lgkmcnt(0)")
    dstep_issue(49, 4096)
    a("s_waitcnt vmcnt(6)")
    stamp(a, "wland")
    for t in (0, 2):
        for p in range(2):
            r = WR + 4 * (3 * p + t)
            a(f"ds_write_b128 v{10+p}, v[{r}:{r+3}] offset:{REG[t]}")
    for n in range(2):
        trr(a, 236 + 8 * n, 26, 27, REG[0] + 1024 * n)
        trr(a, 240 + 8 * n, 26, 27, REG[2] + 1024 * n)
    for i in range(4): a(f"v_mov_b32 v{204+i}, 0x3f803f80")
    a("s_waitcnt lgkmcnt(0)")
    a("s_barrier")
    stamp(a, "barx")
    a("ds_read_b32 v188, v16")
    a("ds_read_b32 v189, v17")
    for n in range(2): a(f"ds_read_b128 v[{192+4*n}:{195+4*n}], v30 offset:{64*n}")
    a("s_mul_i32 s21, s32, 320")
    a(f"s_add_u32 s21, s21, {REC}")
    a("v_lshl_add_u32 v30, v7, 4, s21")
    a("v_lshl_add_u32 v31, v8, 3, s21")
    a("s_waitcnt vmcnt(4) lgkmcnt(2)")
    CSF = [80, 84, 88, 92, 144, 148]
    stamp(a, "sc0")
    for j, t in enumerate((1, 2, 0)):
        for p in range(2):
            r = WR + 4 * (3 * p + t)
            d = 208 + 4 * p
            T = 64 + 8 * p
            for i in range(4):
                a(f"v_lshlrev_b32 v{T+2*i}, 16, v{r+i}")
                a(f"v_and_b32 v{T+2*i+1}, 0xffff0000, v{r+i}")
            for i in range(4):
                a(f"v_pk_mul_f32 v[{T+2*i}:{T+2*i+1}], v[{T+2*i}:{T+2*i+1}], v[188:189] " + ("op_sel_hi:[1,0]" if p == 0 else "op_sel:[0,1] op_sel_hi:[1,1]"))
            for i in range(4):
                a(f"v_cvt_pk_bf16_f32 v{d+i}, v{T+2*i}, v{T+2*i+1}")
            a(f"ds_write_b128 v{10+p}, v[{d}:{d+3}] offset:{REG[t]}")
        for n in range(2): trr(a, CSF[2 * t + n], 26, 27, REG[t] + 1024 * n)
        stamp(a, f"sc{j+1}")
        if j == 2: a("buffer_load_dwordx4 v[20:23], v24, s[16:19], s63 offen sc1")
        if j == 0:
            a("s_waitcnt lgkmcnt(6)")
            for n in range(2):
                mf16(a, 216, 236 + 8 * n, 192 + 4 * n, None if n == 0 else 216)
                mf16(a, 220, 192 + 4 * n, 240 + 8 * n, None if n == 0 else 220)
    a("s_waitcnt lgkmcnt(0)")
    for n in range(2):
        mf16(a, 228, CSF[2 + n], 204, None if n == 0 else 228)
        mf16(a, 232, 204, CSF[4 + n], None if n == 0 else 232)
        mf16(a, 224, CSF[n], 204, None if n == 0 else 224)
    a("v_lshlrev_b32 v16, 4, v7")
    a(f"v_add_u32 v16, {REC}, v16")
    a("v_lshlrev_b32 v17, 3, v8")
    a(f"v_add_u32 v17, {REC}, v17")
    stamp(a, "sc4")
    a("ds_write_b128 v30, v[216:219]")
    a("s_nop 1")
    a("v_mov_b32 v233, v220")
    a("ds_write_b128 v30, v[228:231] offset:128")
    a("ds_write_b64 v31, v[232:233] offset:192")
    a("ds_write_b128 v30, v[224:227] offset:64")
    a("s_waitcnt lgkmcnt(0)")
    stamp(a, "sc5")
    a("s_barrier")
    stamp(a, "bar1")
    WF3 = [236, 244, 176]
    def rd_kv(s):
        b = WF3[s % 3]
        trr(a, b, 12, 13, REG[1] + 1024 * s)
        trr(a, b + 4, 12, 13, REG[2] + 1024 * s)
    rd_kv(0); rd_kv(1)
    a("s_lshr_b32 s20, s32, 2")
    a("s_cmp_eq_u32 s20, 0")
    a("s_cbranch_scc1 main_p1o")
    a("s_setprio 1")
    a.label("main_p1o")
    DR = {2: 4, 7: 5, 9: 6, 11: 7}
    def rec_rd(w):
        d = (208, 212, 220, 224) if w == 0 else (228, 232, 216, 226)
        a(f"ds_read_b128 v[{d[0]}:{d[0]+3}], v16 offset:{320*w}")
        a(f"ds_read_b128 v[{d[1]}:{d[1]+3}], v16 offset:{320*w+64}")
        a(f"ds_read_b128 v[{d[2]}:{d[2]+3}], v16 offset:{320*w+128}")
        a(f"ds_read_b64 v[{d[3]}:{d[3]+1}], v17 offset:{320*w+192}")
    for s in range(16):
        if s < 14:
            rd_kv(s + 2)
            a(f"s_waitcnt lgkmcnt({8 if s == 0 else 4})")
        else:
            a(f"s_waitcnt lgkmcnt({4 * (15 - s)})")
        stamp(a, f"p{s}")
        if s == 0: dstep_issue(49, 8192)
        if s == 1: dstep_issue(49, 0)
        if s == 3: dstep_issue(49, 4096)
        b = WF3[s % 3]
        adds = []
        for u in range(2):
            x = XR + 4 * (16 * u + s)
            mf16(a, ACC + 4 * u, b, x, None if s == 0 else ACC + 4 * u)
            for q in adds[4*u:4*u+2]: a(q)
            mf16(a, ACC + 8 + 4 * u, x, b + 4, None if s == 0 else ACC + 8 + 4 * u)
            for q in adds[4*u+2:4*u+4]: a(q)
        if s == 0:
            l = a.newlabel("Lrs")
            a("s_cmp_lt_u32 s32, 6")
            a(f"s_cbranch_scc1 {l}")
            a("v_lshlrev_b32 v18, 2, v0")
            a(f"v_add_u32 v18, {REC - 1536}, v18")
            for w in range(8): a(f"ds_read_b32 v{208+w}, v18 offset:{320*w}")
            a("s_waitcnt lgkmcnt(0)")
            for w in range(1, 8): a(f"v_add_f32 v208, v208, v{208+w}")
            a(f"v_cmp_gt_u32 vcc, {384+80}, v0")
            a("s_nop 0")
            a("s_and_saveexec_b64 s[20:21], vcc")
            a("ds_write_b32 v18, v208")
            a("s_mov_b64 exec, -1")
            a.label(l)
        if s == P1FLIP: a("s_setprio 0")
        if s in DR:
            a(f"s_waitcnt vmcnt({ {4: 9, 5: 8, 6: 4, 7: 0}[DR[s]] })")
            rd_x2(DR[s], 254, 4096 * (DR[s] % 3))
        if s == 8:
            chk_ne(a, [22])
            a("s_cbranch_scc1 main_stok")
            poll_loop(a, lambda: a("buffer_load_dwordx4 v[20:23], v24, s[16:19], s63 offen sc1"),
                      lambda: chk_ne(a, [22]), "Lst")
            a.label("main_stok")
            a("s_lshl_b32 s21, s32, 8")
            a(f"s_add_u32 s21, s21, {STT}")
            a("v_lshrrev_b32 v18, 1, v24")
            a("v_add_u32 v18, s21, v18")
            a("ds_write_b64 v18, v[20:21]")
            a("v_lshl_add_u32 v18, v8, 3, s21")
            a("v_lshl_add_u32 v19, v7, 5, s21")
            for u in range(2):
                a(f"ds_read_b64 v[{204+2*u}:{205+2*u}], v18 offset:{128*u}")
                a(f"ds_read_b128 v[{160+8*u}:{163+8*u}], v19 offset:{128*u}")
                a(f"ds_read_b128 v[{164+8*u}:{167+8*u}], v19 offset:{128*u+16}")
        if s == 13:
            a("s_lshl_b32 s34, s31, 3")
            a("s_add_u32 s34, s34, s32")
            a("s_lshl_b32 s22, s30, 17")
            a(f"s_add_u32 s35, s22, {WS_KV}")
            a("s_lshl_b32 s23, s34, 11")
            a("s_add_u32 s22, s35, s23")
            a("v_and_b32 v18, 1, v7")
            a("v_lshlrev_b32 v18, 9, v18")
            a("v_lshrrev_b32 v19, 1, v7")
            a("v_lshl_add_u32 v18, v19, 8, v18")
            a("v_lshl_add_u32 v18, v8, 4, v18")
            a("s_lshl_b32 s23, s32, 11")
            a("v_add_u32 v19, s23, v9")
            a("v_add_u32 v20, s23, v18")
    stamp(a, "pass1")
    def rd_q(s):
        trr(a, 236 + 4 * (s & 3), 12, 13, REG[0] + 1024 * s)
    rd_q(0); rd_q(1)
    a("s_barrier")
    rec_rd(0)
    a("s_waitcnt lgkmcnt(0)")
    for u in range(2):
        for r in range(4):
            k = ACC + 4 * u + r
            a(f"v_fma_f32 v{k}, -v{204+2*u}, v{220+r}, v{k}")
            a(f"v_mul_f32 v{k}, v{k}, v{205+2*u}")
        a(f"v_cvt_pk_bf16_f32 v{228+2*u}, v{ACC+4*u}, v{ACC+4*u+1}")
        a(f"v_cvt_pk_bf16_f32 v{229+2*u}, v{ACC+4*u+2}, v{ACC+4*u+3}")
    for u in range(2):
        for r in range(4):
            v = ACC + 8 + 4 * u + r
            a(f"v_fma_f32 v{v}, -v{160+8*u+2*r}, v224, v{v}")
            a(f"v_fma_f32 v{v}, v{v}, v{161+8*u+2*r}, v225")
        if u == 0:
            a("v_permlane16_swap_b32 v228, v230")
            a("v_permlane16_swap_b32 v229, v231")
            a("buffer_store_dwordx4 v[228:231], v9, s[16:19], s22 offen sc1")
        a(f"v_cvt_pk_bf16_f32 v{232+2*u}, v{ACC+8+4*u}, v{ACC+8+4*u+1}")
        a(f"v_cvt_pk_bf16_f32 v{233+2*u}, v{ACC+8+4*u+2}, v{ACC+8+4*u+3}")
    a("ds_write_b128 v19, v[228:231]")
    a("s_nop 0")
    a("v_permlane16_swap_b32 v232, v234")
    a("v_permlane16_swap_b32 v233, v235")
    a("buffer_store_dwordx4 v[232:235], v18, s[16:19], s22 offen offset:1024 sc1")
    a("ds_write_b128 v20, v[232:235] offset:1024")
    l = a.newlabel("Lrz")
    a("s_sub_u32 s20, s32, 1")
    a("s_cmp_gt_u32 s20, 1")
    a(f"s_cbranch_scc1 {l}")
    for i in range(4): a(f"v_mov_b32 v{216+i}, -1")
    a("s_lshl_b32 s22, s2, 10")
    a(f"s_add_u32 s22, s22, {WS_CAND}")
    a("s_lshl_b32 s23, s2, 6")
    a(f"s_add_u32 s23, s23, {WS_ACT}")
    a("s_cmp_eq_u32 s32, 1")
    a("s_cselect_b32 s22, s22, s23")
    a("s_cselect_b32 s20, -1, 15")
    a("s_cselect_b32 s21, -1, 0")
    a("s_mov_b64 exec, s[20:21]")
    a("buffer_store_dwordx4 v[216:219], v9, s[16:19], s22 offen sc1")
    a("s_mov_b64 exec, -1")
    a.label(l)
    stamp(a, "kvpub")
    rd_q(2)
    side = []
    sd = side.append
    sd("v_and_b32 v25, 31, v2"); sd("v_cmp_eq_u32 vcc, 16, v25"); sd("v_mov_b32 v25, 0x3f803f80")
    sd("s_lshl_b32 s36, s32, 12"); sd(f"s_add_u32 s36, s36, {STG}")
    sd("v_cndmask_b32 v25, 0, v25, vcc")
    sd("v_mov_b32 v110, v5"); sd("v_mov_b32 v111, v4"); sd("v_mov_b32 v10, v29"); sd("v_mov_b32 v11, v28")
    sd("v_mov_b32 v3, v9")
    sd("v_lshrrev_b32 v4, 5, v2"); sd("v_lshlrev_b32 v4, 8, v4"); sd("v_lshl_add_u32 v4, v8, 4, v4"); sd("v_add_u32 v4, 1024, v4")
    sd("s_mov_b32 s38, 0x0000ffff"); sd("s_mov_b32 s39, 0x0000ffff"); sd("s_mov_b32 s37, 0")
    for i in range(12): sd(f"v_mov_b32 v{V[0]+4+i}, v25")
    sd(f"v_mov_b32 v{IDX}, 0xdddddddd")
    sd(f"s_mov_b32 s24, {f32(QSCALE)}")
    for r in range(4): sd(f"v_mul_f32 v{208+r}, s24, v{208+r}")
    for u in range(2): sd(f"v_mul_f32 v{205+2*u}, s24, v{205+2*u}")
    per = (len(side) + 7) // 8
    for s in range(16):
        if s < 13:
            rd_q(s + 3)
            a("s_waitcnt lgkmcnt(6)")
        else:
            a(f"s_waitcnt lgkmcnt({2 * (15 - s)})")
        stamp(a, f"q{s}")
        extra = []
        if 4 <= s < 12: extra += side[per*(s-4):per*(s-3)]
        if s >= 12: extra += [f"v_mov_b32 v{O+4*(s-12)+i}, 0" for i in range(4)]
        h = (len(extra) + 1) // 2
        for u in range(2):
            mf16(a, QA + 4 * u, 236 + 4 * (s & 3), XR + 4 * (16 * u + s), None if s == 0 else QA + 4 * u)
            for q in (extra[:h] if u == 0 else extra[h:]): a(q)
        if s == F1STEP:
            a("s_lshl_b32 s20, s31, 7")
            a("s_add_u32 s20, s20, s40")
            a("v_mov_b32 v6, 0")
            a("v_mov_b32 v7, s48")
            a("s_waitcnt vmcnt(0)")
            a("s_mov_b64 exec, 1")
            a("buffer_store_dword v7, v6, s[16:19], s20 offen sc1")
            a("s_mov_b64 exec, -1")
            stamp(a, "f1")
    for i in range(4): a(f"v_mov_b32 v{V[0]+i}, v25")
    for u in range(2):
        for r in range(4):
            q = QA + 4 * u + r
            a(f"v_fma_f32 v{q}, -v{204+2*u}, v{212+r}, v{q}")
            a(f"v_fma_f32 v{q}, v{q}, v{205+2*u}, v{208+r}")
        a(f"v_cvt_pk_bf16_f32 v{Q+2*u}, v{QA+4*u}, v{QA+4*u+1}")
        a(f"v_cvt_pk_bf16_f32 v{Q+1+2*u}, v{QA+4*u+2}, v{QA+4*u+3}")
    a("s_nop 1")
    a(f"v_permlane16_swap_b32 v{Q}, v{Q+2}")
    a(f"v_permlane16_swap_b32 v{Q+1}, v{Q+3}")
    a("s_barrier")
    stamp(a, "att0")
    a(f"ds_read_b128 v[{K[0]}:{K[0]+3}], v3")
    a(f"ds_read_b128 v[{K[1]}:{K[1]+3}], v3 offset:2048")
    a("s_and_b32 s28, s32, 3")
    a("s_lshl_b32 s20, s30, 13")
    a("s_lshl_b32 s21, s28, 11")
    a("s_add_u32 s40, s20, s21")
    a(f"s_add_u32 s40, s40, {WS_F1}")
    a("v_lshlrev_b32 v12, 7, v8")
    a("buffer_load_dword v13, v12, s[16:19], s40 offen sc1")
    a("s_lshl_b32 s28, s28, 12")
    a("s_lshl_b32 s20, 6, s31")
    a("s_lshr_b32 s21, s20, 8")
    a("s_or_b32 s20, s20, s21")
    a("s_and_b32 s20, s20, 0xff")
    a("s_lshl_b32 s21, 1, s31")
    a("s_or_b32 s21, s21, s20")
    a("s_xor_b32 s20, s20, 0xff")
    a("s_add_u32 s22, s28, 32768")
    a("s_cmp_gt_u32 s32, 3")
    a("s_cselect_b32 s43, s21, s20")
    a("s_cselect_b32 s61, s22, s28")
    a("s_waitcnt lgkmcnt(1)")
    s0 = S[0]
    a(f"v_mfma_f32_32x32x16_bf16 v[{s0}:{s0+15}], v[{K[0]}:{K[0]+3}], v[{Q}:{Q+3}], 0")
    a("s_nop 11")
    a(f"v_max3_f32 v6, v{s0}, v{s0+1}, v{s0+2}")
    for i in range(3, 15, 2):
        a(f"v_max3_f32 v6, v6, v{s0+i}, v{s0+i+1}")
    a(f"v_max_f32 v6, v6, v{s0+15}")
    def setmax():
        a("v_mov_b32 v7, v6")
        a("s_nop 1")
        a("v_permlane32_swap_b32 v7, v6")
        a("s_nop 1")
        a("v_max_f32 v6, v6, v7")
        for i in range(16):
            a(f"v_sub_f32 v{C+i}, 0, v6")
    setmax()
    a("s_mov_b64 exec, s[38:39]")
    a(f"ds_read_b128 v[{V[0]}:{V[0]+3}], v4")
    a(f"ds_read_b128 v[{V[0]+4}:{V[0]+7}], v4 offset:512")
    a("s_mov_b64 exec, -1")
    a(f"v_mfma_f32_32x32x16_bf16 v[{s0}:{s0+15}], v[{K[0]}:{K[0]+3}], v[{Q}:{Q+3}], v[{C}:{C+15}]")
    for i in range(8):
        a(f"v_mov_b32 v{S[1]+8+i}, 0")
    a("s_nop 3")

    hooks = {}
    import os
    NOH = os.environ.get("NOHOOK", "")
    def hook(t, fn, kind=""):
        if kind and kind in NOH: return
        hooks.setdefault(t, []).append(fn)
    def old_only(fn):
        def f():
            l = a.newlabel("Lold")
            a("s_cmp_gt_u32 s32, 3")
            a(f"s_cbranch_scc1 {l}")
            fn()
            a.label(l)
        return f
    def late_only(fn):
        def f():
            l = a.newlabel("Llate")
            a("s_cmp_lt_u32 s2, 128")
            a(f"s_cbranch_scc1 {l}")
            fn()
            a.label(l)
        return f
    def kv_phase(need, cap, name, first=False):
        def f():
            top = a.newlabel("Lkv"); pick = a.newlabel("Lkp"); more = a.newlabel("Lkm"); done = a.newlabel("Lkd")
            a(f"s_mov_b32 s60, {SPIN}")
            if not first: a(f"s_branch {pick}")
            a.label(top)
            a("s_waitcnt vmcnt(0)")
            a("v_cmp_eq_u32 vcc, s48, v13")
            a("s_lshr_b32 s21, vcc_lo, 8")
            a("s_and_b32 s29, vcc_lo, s21")
            a("s_and_b32 s29, s29, 0xff")
            a.label(pick)
            a(f"s_cmp_ge_u32 s61, {16384 * cap}")
            a(f"s_cbranch_scc1 {done}")
            a("s_andn2_b32 s20, s29, s43")
            a(f"s_cbranch_scc0 {more}")
            a("s_ff1_i32_b32 s21, s20")
            a("s_bitset1_b32 s43, s21")
            a("s_add_u32 s61, s61, 16384")
            a("s_mov_b32 m0, s61")
            a("s_lshl_b32 s21, s21, 14")
            a("s_add_u32 s21, s21, s28")
            a("s_add_u32 s21, s21, s35")
            for n in range(4):
                a(f"buffer_load_dwordx4 v9, s[16:19], s21 offen offset:{1024*n} sc1 lds")
            a(f"s_branch {pick}")
            a.label(more)
            a(f"s_cmp_ge_u32 s61, {16384 * need}")
            a(f"s_cbranch_scc1 {done}")
            a("buffer_load_dword v13, v12, s[16:19], s40 offen sc1")
            a("s_sub_u32 s60, s60, 1")
            a("s_cmp_lg_u32 s60, 0")
            a(f"s_cbranch_scc1 {top}")
            a.label(done)
            stamp(a, name)
        return f
    def h_bar(n, name):
        def f():
            a(f"s_waitcnt vmcnt({n})")
            a("s_barrier")
            stamp(a, name)
        return f
    hook(2, old_only(kv_phase(1, 1, "kvok", first=True)))
    hook(4, old_only(kv_phase(2, 2, "kv2")))
    def young_only(fn):
        def f():
            l = a.newlabel("Lyg")
            a("s_cmp_lt_u32 s32, 4")
            a(f"s_cbranch_scc1 {l}")
            fn()
            a.label(l)
        return f
    hook(YK, young_only(kv_phase(0, 7, "ky", first=True)))
    hook(6, old_only(lambda: a("s_waitcnt vmcnt(4)")))
    hook(6, h_bar(63, "bar6"))
    hook(6, young_only(kv_phase(7, 7, "kv7")))
    def le_a():
        a("s_waitcnt vmcnt(0)")
        a(f"v_lshlrev_b32 v{WO+1}, 16, v{WO}")
        a(f"v_and_b32 v{WO}, 0xffff0000, v{WO}")
        silu(a, WO + 1, 5); silu(a, WO, 5)
        for n in range(4): trr(a, WO + 20 + 4 * n, 14, 15, 1024 * n)
        a(f"v_cvt_pk_bf16_f32 v{WO}, v{WO+1}, v{WO}")
        a("v_lshl_add_u32 v5, v2, 2, s36")
        a(f"ds_write_b32 v5, v{WO}")
        a("v_and_b32 v5, 48, v2")
        a("v_add_u32 v5, s36, v5")
        for n in range(4): a(f"ds_read_b128 v[{WO+4+4*n}:{WO+7+4*n}], v5 offset:{64*n}")
    def le_b():
        for n in range(4): mf16(a, WO, WO + 4 + 4 * n, WO + 20 + 4 * n, None if n == 0 else WO)
    def le_c():
        a("s_lshr_b32 s21, s2, 6")
        a("s_lshl_b32 s21, s21, 14")
        a("s_lshl_b32 s22, s62, 8")
        a("s_add_u32 s21, s21, s22")
        a("s_lshl_b32 s22, s20, 7")
        a("s_add_u32 s21, s21, s22")
        a(f"s_add_u32 s21, s21, {WS_MPL}")
        a("v_lshlrev_b32 v5, 3, v2")
        a(f"v_mov_b32 v{WO+1}, s48")
        a("s_mov_b64 exec, 0xffff")
        a(f"buffer_store_dwordx2 v[{WO}:{WO+1}], v5, s[16:19], s21 offen sc1")
        a("s_mov_b64 exec, -1")
    hook(7, lambda: w12(le_issue))
    hook(13, lambda: w12(le_a)); hook(14, lambda: w12(le_b))
    hook(14, h_bar(0, "bar14"))
    hook(15, lambda: w12(le_c))
    def h_prio():
        l = a.newlabel("Lpr")
        a("s_cmp_lt_u32 s32, 4")
        a(f"s_cbranch_scc1 {l}")
        a("s_setprio 1")
        a.label(l)
    hook(14, h_prio)
    hook(FLIP, lambda: a("s_setprio 0"))
    def h_wo(r):
        def f():
            if r == 0: srd(a, 12, 10, 512 * 1024)
            a("s_mov_b32 m0, s36")
            for n in range(4):
                a(f"s_mov_b32 s20, {32768*(4*r+n) - 1024*n}")
                a(f"buffer_load_dwordx4 v1, s[12:15], s20 offen offset:{1024*n} lds")
        return f
    def h_misc():
        a(f"global_load_dwordx4 v[{XT}:{XT+3}], v111, s[6:7]")
        a("s_lshl_b32 s21, s42, 8")
        a("v_lshl_add_u32 v5, v8, 4, s21")
        a("global_load_dwordx4 v[248:251], v5, s[52:53]")
        a("global_load_dwordx4 v[252:255], v9, s[52:53]")
    def h_moe_setup():
        l = a.newlabel("Lms"); l2 = a.newlabel("Lms")
        a("s_cmp_ge_u32 s2, 112")
        a(f"s_cbranch_scc1 {l}")
        a("v_mul_u32_u24 v109, 3584, v11")
        a("v_add_u32 v109, v109, v10")
        a("s_and_b32 s20, s32, 1")
        a("s_cmp_eq_u32 s20, 0")
        a("s_cselect_b32 s24, s54, s56")
        a("s_cselect_b32 s25, s55, s57")
        a(f"s_mov_b32 s26, {512*3584}")
        a("s_lshr_b32 s20, s32, 1")
        a(f"s_mul_i32 s43, s20, {128*3584}")
        a("s_and_b32 s33, s2, 7")
        a("s_mul_i32 s33, s33, 14")
        a("s_lshr_b32 s20, s2, 3")
        a("s_add_u32 s33, s33, s20")
        a("s_lshl_b32 s20, s33, 5")
        a("s_add_u32 s43, s43, s20")
        a(f"s_mov_b32 s61, {32*3584}")
        a(f"s_branch {l2}")
        a.label(l)
        a("v_lshl_add_u32 v109, v11, 10, v10")
        a("s_mov_b32 s24, s58")
        a("s_mov_b32 s25, s59")
        a(f"s_mov_b32 s26, {1792*1024}")
        a(f"s_mul_i32 s43, s32, {224*1024}")
        a("s_and_b32 s33, s2, 7")
        a("s_lshl_b32 s33, s33, 2")
        a("s_sub_u32 s20, s2, 112")
        a("s_bfe_u32 s20, s20, 0x20003")
        a("s_add_u32 s33, s33, s20")
        a("s_lshl_b32 s20, s33, 5")
        a("s_add_u32 s43, s43, s20")
        a(f"s_mov_b32 s61, {32*1024}")
        a.label(l2)
    def h_moe(n):
        def f():
            l = a.newlabel("Lmd")
            a("s_cmp_ge_u32 s2, 144")
            a(f"s_cbranch_scc1 {l}")
            if n >= 4:
                a("s_cmp_lt_u32 s2, 112")
                a(f"s_cbranch_scc1 {l}")
            a(f"buffer_load_dwordx4 v[{MW+4*n}:{MW+4*n+3}], v109, s[24:27], s43 offen")
            a("s_add_u32 s43, s43, s61")
            a.label(l)
        return f
    def cv_write(base, n):
        def f():
            for i in range(n): a(f"ds_write_b128 v1, v[{base+4*i}:{base+4*i+3}] offset:{1024*i}")
        return f
    def cv_wo(r):
        def f():
            for n in range(4):
                b = WO + 16 * r + 4 * n
                a(f"ds_read_b64_tr_b16 v[{b}:{b+1}], v110 offset:{1024*n}")
                a(f"ds_read_b64_tr_b16 v[{b+2}:{b+3}], v110 offset:{1024*n+256}")
        return f
    def cv_moe(base, n):
        def f():
            for i in range(n): trr(a, MW + base + 4 * i, 14, 15, 1024 * i)
        return f
    def lg_issue(lo=0, hi=4):
        a("v_lshlrev_b32 v5, 5, v0")
        for rg in range(lo, hi):
            a(f"s_mov_b32 s22, {WS_MPL + 16384*rg}")
            a(f"buffer_load_dwordx4 v[{GA+8*rg}:{GA+8*rg+3}], v5, s[16:19], s22 offen sc1")
            a(f"buffer_load_dwordx4 v[{GA+8*rg+4}:{GA+8*rg+7}], v5, s[16:19], s22 offen offset:16 sc1")
    WT = [15, 25, 35, 45]
    MT = [int(x) for x in os.environ.get('MT', '27,30,37,40,47,49,51').split(',')]
    def h_touch():
        l = a.newlabel("Ltc")
        a("s_cmp_lt_u32 s2, 144")
        a(f"s_cbranch_scc1 {l}")
        a("s_cmp_gt_u32 s32, 1")
        a(f"s_cbranch_scc1 {l}")
        a("s_sub_u32 s20, s2, 144")
        a("s_lshr_b32 s20, s20, 3")
        a("s_lshl_b32 s20, s20, 1")
        a("s_add_u32 s20, s20, s32")
        a("s_lshl_b32 s20, s20, 16")
        a("s_and_b32 s21, s2, 7")
        a("s_lshl_b32 s21, s21, 7")
        a("s_add_u32 s20, s20, s21")
        a("v_lshl_add_u32 v5, v2, 10, s20")
        a(f"global_load_dword v{XT}, v5, s[58:59]")
        a.label(l)
    if TOUCHD: hook(TOUCHD, h_touch)
    def h_touch_gu():
        l = a.newlabel("Ltg")
        a("s_cmp_lt_u32 s2, 144")
        a(f"s_cbranch_scc1 {l}")
        a("s_cmp_lt_u32 s32, 2")
        a(f"s_cbranch_scc1 {l}")
        a("s_and_b32 s20, s32, 1")
        a("s_cmp_eq_u32 s20, 0")
        a("s_cselect_b32 s24, s54, s56")
        a("s_cselect_b32 s25, s55, s57")
        a(f"s_mov_b32 s26, {512*3584}")
        a("s_sub_u32 s20, s2, 144")
        a("s_lshr_b32 s20, s20, 3")
        a("s_mul_i32 s20, s20, 3")
        a("s_lshr_b32 s21, s32, 1")
        a("s_add_u32 s20, s20, s21")
        a("s_lshl_b32 s20, s20, 6")
        a("s_sub_u32 s20, s20, 64")
        a("v_add_u32 v5, s20, v2")
        a("v_mul_u32_u24 v6, 13108, v5")
        a("v_lshrrev_b32 v6, 16, v6")
        a("v_mul_u32_u24 v7, 5, v6")
        a("v_sub_u32 v5, v5, v7")
        a("v_mul_u32_u24 v6, 3584, v6")
        a("v_lshl_add_u32 v5, v5, 7, v6")
        a("s_and_b32 s21, s2, 7")
        a("s_mul_i32 s21, s21, 448")
        a("s_and_b32 s21, s21, 0xff80")
        a(f"buffer_load_dword v{XT}, v5, s[24:27], s21 offen")
        a.label(l)
    if TOUCHG: hook(TOUCHG, h_touch_gu)
    def h_touch_wo():
        l = a.newlabel("Ltw")
        a("s_sub_u32 s20, s32, 2")
        a("s_cmp_gt_u32 s20, 1")
        a(f"s_cbranch_scc1 {l}")
        a("s_lshr_b32 s21, s2, 3")
        a("s_lshl_b32 s21, s21, 1")
        a("s_add_u32 s20, s20, s21")
        a("s_lshl_b32 s20, s20, 13")
        a("v_lshl_add_u32 v5, v2, 7, s20")
        a(f"global_load_dword v{XT}, v5, s[10:11]")
        a.label(l)
    if TOUCHW: hook(TOUCHW, h_touch_wo)
    hook(15, h_moe_setup)
    for r in range(4):
        hook(WT[r], h_wo(r), 'w')
        hook(WT[r] + 9, lambda: a("s_waitcnt vmcnt(0)") if False else None)
    for n in range(7): hook(MT[n], h_moe(n), 'm')
    hook(43, h_misc)
    for rg in range(4): hook(50 + rg, lambda rg=rg: lg_issue(rg, rg + 1), 'l')
    def wo_wait(r):
        def f():
            fixed = {0: 0, 1: 0, 2: 3, 3: 8}[r]
            inr = [n for n in range(7) if WT[r] < MT[n] < WT[r] + 9]
            ngu = len([n for n in inr if n < 4]); ndn = len(inr)
            l1 = a.newlabel("Lww"); l2 = a.newlabel("Lww")
            a(f"s_waitcnt vmcnt({fixed + ndn})")
            if ndn:
                a("s_sub_u32 s20, s2, 112")
                a("s_cmp_lt_u32 s20, 32")
                a(f"s_cbranch_scc1 {l2}")
                if ngu:
                    a(f"s_waitcnt vmcnt({fixed + ngu})")
                    a("s_cmp_lt_u32 s2, 112")
                    a(f"s_cbranch_scc1 {l2}")
                a(f"s_waitcnt vmcnt({fixed})")
                a.label(l2)
        return f
    for r in range(4):
        hook(WT[r] + 9, wo_wait(r), 'w')
        hook(WT[r] + 9, cv_wo(r), 'c')
    hook(56, lambda: a("v_add_u32 v1, s36, v9"))
    for t, nm in [(23, "t23"), (42, "t42")] + [(t, f"a{t}") for t in range(0, 64, 4)]:
        hook(t, lambda nm=nm: stamp(a, nm))

    def tile(t, off, hooks):
        cur = S[t & 1]; nxt = S[(t + 1) & 1]
        e = lambda i: a(f"v_exp_f32 v{cur+i}, v{cur+i}")
        vp = V[(t + 1) & 1]; kn = K[(t + 1) & 1]; kc = K[t & 1]; vc = V[t & 1]
        if TILEV:
            a("s_waitcnt lgkmcnt(0)")
            for fn in hooks.get(t, []): fn()
            a.raw(f".p2align {TILEV}")
            a(f"v_exp_f32_e64 v{cur}, v{cur}")
            e(1); e(2)
            a(f"v_smfmac_f32_32x32x32_bf16 v[{O}:{O+15}], v[{vp+4}:{vp+7}], v[{nxt+8}:{nxt+15}], v{IDX}")
            e(3); e(4); e(5); e(6)
            a(f"v_mfma_f32_32x32x16_bf16 v[{nxt}:{nxt+15}], v[{kn}:{kn+3}], v[{Q}:{Q+3}], v[{C}:{C+15}]")
            e(7)
            a("s_mov_b64 exec, s[38:39]")
            a(f"ds_read_b128 v[{vp}:{vp+3}], v4 offset:{2048*(off+1)}")
            a(f"ds_read_b128 v[{vp+4}:{vp+7}], v4 offset:{2048*(off+1)+512}")
            a("s_mov_b64 exec, -1")
            e(8)
            a(f"ds_read_b128 v[{kc}:{kc+3}], v3 offset:{2048*(off+2)}")
            e(9); e(10)
            a(f"v_smfmac_f32_32x32x32_bf16 v[{O}:{O+15}], v[{vc}:{vc+3}], v[{cur}:{cur+7}], v{IDX}")
            for i in range(11, 16): e(i)
            return
        a("s_waitcnt lgkmcnt(0)")
        for fn in hooks.get(t, []): fn()
        e(0); e(1); e(2)
        a(f"v_smfmac_f32_32x32x32_bf16 v[{O}:{O+15}], v[{vp+4}:{vp+7}], v[{nxt+8}:{nxt+15}], v{IDX}")
        e(3); e(4); e(5); e(6)
        a(f"v_mfma_f32_32x32x16_bf16 v[{nxt}:{nxt+15}], v[{kn}:{kn+3}], v[{Q}:{Q+3}], v[{C}:{C+15}]")
        a(f"ds_read_b128 v[{kc}:{kc+3}], v3 offset:{2048*(off+2)}")
        a("s_mov_b64 exec, s[38:39]")
        a(f"ds_read_b128 v[{vp}:{vp+3}], v4 offset:{2048*(off+1)}")
        a(f"ds_read_b128 v[{vp+4}:{vp+7}], v4 offset:{2048*(off+1)+512}")
        a("s_mov_b64 exec, -1")
        for i in range(7, 12): e(i)
        a(f"v_smfmac_f32_32x32x32_bf16 v[{O}:{O+15}], v[{vc}:{vc+3}], v[{cur}:{cur+7}], v{IDX}")
        for i in range(12, 16): e(i)
    for t in range(64):
        if t and t % 16 == 0:
            a("v_add_u32 v3, 0x8000, v3")
            a("v_add_u32 v4, 0x8000, v4")
        tile(t, t % 16, hooks)
    a("v_subrev_u32 v3, 0x18000, v3")
    a("v_subrev_u32 v4, 0x18000, v4")
    a.label("main_attn_tail")
    a(f"v_smfmac_f32_32x32x32_bf16 v[{O}:{O+15}], v[{V[1]+4}:{V[1]+7}], v[{S[1]+8}:{S[1]+15}], v{IDX}")
    stamp(a, "att1")
    a("s_lshl_b32 s21, s34, 15")
    a("s_lshl_b32 s22, s30, 10")
    a("s_add_u32 s21, s21, s22")
    a(f"s_add_u32 s21, s21, {WS_OF}")
    a(f"v_mov_b32 v6, {f32(2.0**40)}")
    a("s_waitcnt lgkmcnt(0)")
    a("s_nop 5")
    a(f"v_mov_b32 v7, v{O+8}")
    a(f"v_add_f32 v5, abs(v{O}), abs(v{O+1})")
    a(f"v_add_f32 v5, v5, abs(v{O+2})")
    a(f"v_permlane32_swap_b32 v{O+8}, v7")
    for i in range(3, 8):
        a(f"v_add_f32 v5, v5, abs(v{O+i})")
    a(f"v_mov_b32 v7, {f32(3.0e38)}")
    a(f"v_cmp_nle_f32 vcc, v{O+8}, v6")
    a(f"v_cmp_nle_f32 s[22:23], v5, v7")
    a("s_or_b64 vcc, vcc, s[22:23]")
    a("s_cmp_lg_u32 s37, 0")
    a("s_cbranch_scc1 main_fin")
    a("s_cbranch_vccnz main_fallback")
    a.label("main_fin")
    a(f"v_rcp_f32 v6, v{O+8}")
    a("s_nop 0")
    for i in range(8):
        a(f"v_mul_f32 v{O+i}, v{O+i}, v6")
    for i in range(4):
        a(f"v_cvt_pk_bf16_f32 v{16+i}, v{O+2*i}, v{O+2*i+1}")
    a("buffer_store_dwordx4 v[16:19], v9, s[16:19], s21 offen sc1")
    a("s_lshl_b32 s21, s34, 12")
    a("s_lshl_b32 s22, s30, 7")
    a("s_add_u32 s21, s21, s22")
    a(f"s_add_u32 s21, s21, {WS_F2}")
    a("v_mov_b32 v5, 0")
    a("v_mov_b32 v6, s48")
    a("v_lshrrev_b32 v20, 5, v2")
    a("v_lshlrev_b32 v20, 10, v20")
    a("v_bfe_u32 v21, v2, 4, 1")
    a("v_lshl_add_u32 v20, v21, 9, v20")
    a("v_lshl_add_u32 v20, v8, 4, v20")
    a("v_mul_u32_u24 v22, 528, v8")
    a("v_lshrrev_b32 v23, 4, v2")
    a("v_lshl_add_u32 v22, v23, 4, v22")
    a("s_lshl_b32 s22, s32, 6")
    a("s_add_u32 s22, s22, 32768")
    a("v_add_u32 v22, s22, v22")
    a("v_lshrrev_b32 v24, 4, v0")
    a("v_mul_u32_u24 v23, 528, v24")
    a("v_lshl_add_u32 v23, v8, 5, v23")
    a("v_add_u32 v23, 32768, v23")
    a("v_lshlrev_b32 v12, 4, v24")
    a("v_and_b32 v13, 3, v0")
    a("v_lshl_add_u32 v13, v13, 9, v12")
    a("v_lshrrev_b32 v109, 10, v111")
    a("v_sub_u32 v109, 2047, v109")
    a("v_lshl_or_b32 v109, v109, 1, 1")
    a("v_lshlrev_b32 v110, 2, v24")
    a("v_add_u32 v110, 65536, v110")
    unpack8(a, 40, XT)
    a("s_waitcnt vmcnt(0)")
    a("s_mov_b64 exec, 1")
    a("buffer_store_dword v6, v5, s[16:19], s21 offen sc1")
    a("s_mov_b64 exec, -1")
    stamp(a, "f2")
    cv_write(MW, 4)(); cv_moe(0, 4)(); cv_write(MW + 16, 3)(); cv_moe(16, 3)()
    lchk = lambda: chk_ne(a, [GA + 2 * i + 1 for i in range(16)])
    lchk()
    a("s_cbranch_scc1 main_lok")
    poll_loop(a, lg_issue, lchk, "Ll")
    a.label("main_lok")
    for c in range(4):
        a(f"v_add_f32 v{GA+2*c}, v{GA+2*c}, v{GA+8+2*c}")
        a(f"v_add_f32 v{GA+16+2*c}, v{GA+16+2*c}, v{GA+24+2*c}")
        a(f"v_add_f32 v{56+c}, v{GA+2*c}, v{GA+16+2*c}")
    a("s_lshr_b32 s20, s32, 1")
    a("s_cmp_eq_u32 s20, 2")
    a("s_cselect_b32 s20, 1.0, 0")
    rnd_pair(a, 56, 57, 5); rnd_pair(a, 58, 59, 5)
    for c in range(4): a(f"v_add_f32 v{56+c}, s20, v{56+c}")
    rnd_pair(a, 56, 57, 5); rnd_pair(a, 58, 59, 5)
    a("ds_write_b128 v1, v[56:59]")
    a("s_lshr_b32 s20, s42, 1")
    a("s_lshl_b32 s20, s20, 12")
    a("s_and_b32 s21, s42, 1")
    a("s_lshl_b32 s21, s21, 9")
    a("s_add_u32 s20, s20, s21")
    a(f"s_add_u32 s20, s20, {STG}")
    a("v_lshl_add_u32 v10, v8, 5, s20")
    a("v_lshrrev_b32 v11, 5, v2")
    a("v_lshlrev_b32 v11, 12, v11")
    a("v_and_b32 v5, 31, v2")
    a("v_lshl_add_u32 v11, v5, 5, v11")
    a(f"v_add_u32 v11, {STG}, v11")
    unpack8(a, 72, 252)
    for i in range(4):
        a(f"v_lshlrev_b32 v{WP+2*i}, 16, v{248+i}")
        a(f"v_and_b32 v{WP+2*i+1}, 0xffff0000, v{248+i}")
    a("s_waitcnt lgkmcnt(0)")
    a("s_cmp_lg_u32 s32, 0")
    a("s_cbranch_scc1 main_s2")
    a("v_and_b32 v5, 31, v2")
    a("v_lshlrev_b32 v5, 7, v5")
    a("s_lshl_b32 s22, s41, 12")
    a(f"s_add_u32 s22, s22, {WS_F2}")
    poll_loop(a, lambda: a("buffer_load_dword v6, v5, s[16:19], s22 offen sc1"), lambda: chk_ne(a, [6]), "Lo", sleep=1)
    a.label("main_s2")
    a("s_lshl_b32 s23, s32, 12")
    a("s_lshl_b32 s22, s41, 15")
    a("s_add_u32 s22, s22, s23")
    a(f"s_add_u32 s22, s22, {WS_OF}")
    a("s_mov_b32 m0, s23")
    a("s_barrier")
    stamp(a, "s2")
    for n in range(4):
        a(f"buffer_load_dwordx4 v9, s[16:19], s22 offen offset:{1024*n} sc1 lds")
    a("s_lshl_b32 s21, s41, 11")
    a(f"s_add_u32 s21, s21, {WS_ST2}")
    a("s_lshl_b32 s22, s42, 9")
    a("s_add_u32 s22, s22, s21")
    a("s_mov_b32 s24, 0x00010001")
    a("s_mov_b32 s25, 0x00010001")
    a("v_mov_b32 v55, s48")
    for j, reg in enumerate((GA, SB, CB, GB)):
        a(f"ds_read_b128 v[{reg}:{reg+3}], v10 offset:{8192*j}")
        a(f"ds_read_b128 v[{reg+4}:{reg+7}], v10 offset:{8192*j+16}")
    for j in range(2):
        a(f"ds_read_b128 v[{56+8*j}:{59+8*j}], v11 offset:{8192*(j+1)}")
        a(f"ds_read_b128 v[{60+8*j}:{63+8*j}], v11 offset:{8192*(j+1)+16}")
    a("s_waitcnt lgkmcnt(0)")
    for i in range(8):
        a(f"v_mul_f32 v{WP+i}, v{WP+i}, v{CB+i}")
    a("v_mul_f32 v252, v72, v64")
    a("v_mul_f32 v253, v72, v56")
    for i in range(1, 8):
        a(f"v_fmac_f32 v252, v{72+i}, v{64+i}")
        a(f"v_fmac_f32 v253, v{72+i}, v{56+i}")
    multi_allreduce(a, [252, 253], [5, 6])
    a("s_waitcnt vmcnt(0)")
    a("s_barrier")
    stamp(a, "olan")
    OFR = 56
    def rd(s):
        b = OFR + 8 * (s % 4)
        a(f"ds_read_b128 v[{b}:{b+3}], v20 offset:{2048*s}")
        a(f"ds_read_b128 v[{b+4}:{b+7}], v20 offset:{2048*s+256}")
    rd(0); rd(1); rd(2)
    for s in range(16):
        if s < 13:
            rd(s + 3)
            a("s_waitcnt lgkmcnt(6)")
        else:
            a(f"s_waitcnt lgkmcnt({2*(15-s)})")
        b = OFR + 8 * (s % 4)
        for u in range(2):
            mf16(a, 24 + 4 * u, WO + 4 * s, b + 4 * u, None if s == 0 else 24 + 4 * u)
    a("s_nop 6")
    a("ds_write_b128 v22, v[24:27]")
    a(f"ds_write_b128 v22, v[28:31] offset:{16*528}")
    a("s_waitcnt lgkmcnt(0)")
    a("s_barrier")
    a("ds_read_b128 v[32:35], v23")
    a("ds_read_b128 v[36:39], v23 offset:16")
    for i in range(0, 8, 2):
        if i % 4 == 0: a(f"s_waitcnt lgkmcnt({1 - i//4})")
        rnd_pair(a, 32 + i, 33 + i, 26)
        a(f"v_mul_f32 v{32+i}, v{32+i}, v{GA+i}")
        a(f"v_mul_f32 v{33+i}, v{33+i}, v{GA+i+1}")
        rnd_pair(a, 32 + i, 33 + i, 26)
        a(f"v_add_f32 v{32+i}, v{32+i}, v{40+i}")
        a(f"v_add_f32 v{33+i}, v{33+i}, v{41+i}")
        a(f"v_cvt_pk_bf16_f32 v{48+i//2}, v{32+i}, v{33+i}")
        a(f"v_lshlrev_b32 v{32+i}, 16, v{48+i//2}")
        a(f"v_and_b32 v{33+i}, 0xffff0000, v{48+i//2}")
    a("v_add_f32 v52, v32, v33")
    a("v_mul_f32 v53, v32, v32")
    a(f"v_mul_f32 v54, v32, v{WP}")
    for i in range(1, 8):
        if i > 1: a(f"v_add_f32 v52, v52, v{32+i}")
        a(f"v_fmac_f32 v53, v{32+i}, v{32+i}")
        a(f"v_fmac_f32 v54, v{32+i}, v{WP+i}")
    a("s_nop 0")
    for n in (8, 4, 2, 1):
        for r in (52, 53, 54):
            a(f"v_add_f32_dpp v{r}, v{r}, v{r} row_ror:{n} row_mask:0xf bank_mask:0xf")
    a("s_mov_b64 exec, s[24:25]")
    a("buffer_store_dwordx4 v[52:55], v12, s[16:19], s22 offen sc1")
    a("s_mov_b64 exec, -1")
    stamp(a, "st2")
    poll_loop(a, lambda: a("buffer_load_dwordx4 v[56:59], v13, s[16:19], s21 offen sc1"), lambda: chk_ne(a, [59]), "Ls", sleep=1)
    stamp(a, "s3")
    for qp in ("[1,0,3,2]", "[2,3,0,1]"):
        for r in (56, 57, 58):
            a(f"v_add_f32_dpp v{r}, v{r}, v{r} quad_perm:{qp} row_mask:0xf bank_mask:0xf")
    a(f"v_mul_f32 v56, {f32(1/512)}, v56")
    a(f"v_mul_f32 v57, {f32(1/512)}, v57")
    a("v_fma_f32 v57, -v56, v56, v57")
    a("v_max_f32 v57, 0, v57")
    rnd_pair(a, 56, 57, 26)
    a(f"v_add_f32 v57, {f32(1e-5)}, v57")
    rnd_bf16(a, 57)
    a("v_sqrt_f32 v57, v57")
    a("v_fma_f32 v58, -v56, v252, v58")
    rnd_bf16(a, 57)
    a("v_rcp_f32 v57, v57")
    a("s_nop 0")
    a("v_fma_f32 v58, v58, v57, v253")
    a("v_cvt_pk_bf16_f32 v58, v58, v58")
    a("v_ashrrev_i32 v59, 31, v58")
    a("v_or_b32 v59, 0x80000000, v59")
    a("v_xor_b32 v58, v58, v59")
    a("v_and_b32 v58, 0xffff0000, v58")
    a("v_or_b32 v58, v58, v109")
    a("ds_write_b32 v110, v58")
    a("v_and_b32 v5, 31, v2")
    a("v_lshlrev_b32 v5, 2, v5")
    a("v_add_u32 v5, 65536, v5")
    a("s_waitcnt lgkmcnt(0)")
    a("s_barrier")
    a("ds_read_b32 v10, v5")
    def h2_math(i):
        a(f"v_sub_f32 v{40+i}, v{32+i}, v56")
        a(f"v_sub_f32 v{41+i}, v{33+i}, v56")
        rnd_pair(a, 40 + i, 41 + i, 26)
        a(f"v_mul_f32 v{40+i}, v{40+i}, v57")
        a(f"v_mul_f32 v{41+i}, v{41+i}, v57")
        rnd_pair(a, 40 + i, 41 + i, 26)
        a(f"v_mul_f32 v{40+i}, v{40+i}, v{CB+i}")
        a(f"v_mul_f32 v{41+i}, v{41+i}, v{CB+i+1}")
        rnd_pair(a, 40 + i, 41 + i, 26)
        a(f"v_add_f32 v{40+i}, v{40+i}, v{SB+i}")
        a(f"v_add_f32 v{41+i}, v{41+i}, v{SB+i+1}")
        a(f"v_cvt_pk_bf16_f32 v{60+i//2}, v{40+i}, v{41+i}")
    h2_math(0)
    a("s_waitcnt lgkmcnt(0)")
    a("v_mov_b32 v64, v10")
    multi_allreduce(a, [64], [11], op="v_max_u32")
    a("v_cmp_eq_u32 vcc, v64, v10")
    a("s_nop 1")
    a("v_cndmask_b32 v65, v10, 0, vcc")
    multi_allreduce(a, [65], [11], op="v_max_u32")
    a("v_cmp_eq_u32 s[26:27], v64, v58")
    a("v_cmp_eq_u32 s[28:29], v65, v58")
    a("s_or_b32 s20, s42, s32")
    a("s_cmp_lg_u32 s20, 0")
    a("s_cbranch_scc1 main_notop")
    a("v_and_b32 v65, -2, v65")
    a("v_mov_b32 v66, s48")
    a("v_mov_b32 v67, s48")
    a("s_lshl_b32 s20, s41, 7")
    a(f"s_add_u32 s20, s20, {WS_TOP}")
    a("v_mov_b32 v5, 0")
    a("s_mov_b64 exec, 1")
    a("buffer_store_dwordx4 v[64:67], v5, s[16:19], s20 offen sc1")
    a("s_mov_b64 exec, -1")
    a.label("main_notop")
    stamp(a, "top")
    for i in (2, 4, 6): h2_math(i)
    a("s_or_b64 s[62:63], s[26:27], s[28:29]")
    a("s_cmp_eq_u64 s[62:63], 0")
    a("s_cbranch_scc1 main_nocand")
    a("v_mov_b32 v5, 2048")
    a("v_cndmask_b32 v5, 0, v5, s[28:29]")
    a("v_lshl_add_u32 v5, v8, 4, v5")
    a("s_lshl_b32 s20, s41, 12")
    a("s_lshl_b32 s21, s42, 8")
    a("s_add_u32 s20, s20, s21")
    a(f"s_add_u32 s20, s20, {WS_CAND}")
    a("s_mov_b64 exec, s[62:63]")
    a("buffer_store_dwordx4 v[60:63], v5, s[16:19], s20 offen sc1")
    a("buffer_store_dwordx4 v[48:51], v5, s[16:19], s20 offen offset:1024 sc1")
    a("s_mov_b64 exec, -1")
    a.label("main_nocand")
    a("s_cmp_lg_u32 s32, 0")
    a("s_cbranch_scc1 main_notp")
    a(f"s_mov_b32 s22, {WS_TOP}")
    a("v_lshlrev_b32 v76, 7, v2")
    a("buffer_load_dwordx4 v[68:71], v76, s[16:19], s22 offen sc1")
    a.label("main_notp")
    for i in range(0, 8, 2):
        a(f"v_lshlrev_b32 v{40+i}, 16, v{60+i//2}")
        a(f"v_and_b32 v{41+i}, 0xffff0000, v{60+i//2}")
        a(f"v_mul_f32 v{40+i}, v{40+i}, v{GB+i}")
        a(f"v_mul_f32 v{41+i}, v{41+i}, v{GB+i+1}")
        rnd_pair(a, 40 + i, 41 + i, 26)
        a(f"v_add_f32 v{40+i}, v{40+i}, v{32+i}")
        a(f"v_add_f32 v{41+i}, v{41+i}, v{33+i}")
        a(f"v_cvt_pk_bf16_f32 v{72+i//2}, v{40+i}, v{41+i}")
    a("s_cmp_lg_u32 s32, 0")
    a("s_cbranch_scc1 main_w0e")
    poll_loop(a, lambda: a("buffer_load_dwordx4 v[68:71], v76, s[16:19], s22 offen sc1"), lambda: chk_ne(a, [70]), "Lt", first_issued=True, sleep=2)
    a("v_mov_b32 v64, v68")
    multi_allreduce(a, [64], [11], op="v_max_u32")
    a("v_cmp_eq_u32 vcc, v64, v68")
    a("s_nop 1")
    a("v_cndmask_b32 v65, v68, v69, vcc")
    multi_allreduce(a, [65], [11], op="v_max_u32")
    a("v_mov_b32 v5, 65792")
    a("ds_write_b64 v5, v[64:65]")
    a("s_waitcnt lgkmcnt(0)")
    a.label("main_w0e")
    a("s_andn2_b64 exec, -1, s[62:63]")
    a("global_store_dwordx4 v111, v[72:75], s[50:51]")
    a("s_mov_b64 exec, -1")
    a("s_barrier")
    stamp(a, "s4")
    a("v_mov_b32 v5, 65792")
    a("ds_read_b64 v[64:65], v5")
    a("s_waitcnt lgkmcnt(0)")
    a("s_cmp_eq_u64 s[62:63], 0")
    a("s_cbranch_scc1 main_nodef")
    a("v_or_b32 v5, 1, v64")
    a("v_or_b32 v6, 1, v65")
    a("v_cmp_ne_u32 vcc, v5, v58")
    a("v_cmp_ne_u32 s[20:21], v6, v58")
    a("s_and_b64 vcc, vcc, s[20:21]")
    a("s_and_b64 exec, vcc, s[62:63]")
    a("s_cbranch_execz main_nodef")
    a("global_store_dwordx4 v111, v[72:75], s[50:51]")
    a.label("main_nodef")
    a("s_mov_b64 exec, -1")
    a("s_cmp_ge_u32 s2, 144")
    a("s_cbranch_scc1 main_done")
    def cand_off(key, d, t):
        a(f"v_bfe_u32 v{d}, v{key}, 6, 6")
        a(f"v_sub_u32 v{d}, 63, v{d}")
        a(f"v_lshlrev_b32 v{d}, 12, v{d}")
        a(f"v_not_b32 v{t}, v{key}")
        a(f"v_and_b32 v{t}, 1, v{t}")
        a(f"v_lshl_add_u32 v{d}, v{t}, 11, v{d}")
    a("s_cmp_ge_u32 s2, 112")
    a("s_cbranch_scc1 main_down")
    a("v_and_b32 v15, 1, v2")
    a("v_cmp_eq_u32 vcc, 0, v15")
    a("s_lshr_b32 s21, s32, 1")
    a("s_lshl_b32 s21, s21, 8")
    a("v_cndmask_b32 v16, v65, v64, vcc")
    cand_off(16, 17, 18)
    a("v_lshrrev_b32 v18, 4, v2")
    a("v_lshl_add_u32 v17, v18, 4, v17")
    a(f"s_add_u32 s22, s21, {WS_CAND}")
    def issue():
        for n in range(4):
            a(f"buffer_load_dwordx4 v[{32+4*n}:{35+4*n}], v17, s[16:19], s22 offen offset:{64*n} sc1")
    def check():
        a("v_max3_u32 v5, v32, v36, v40")
        a("v_max_u32 v5, v5, v44")
        a("v_cmp_eq_u32 vcc, -1, v5")
        a("s_cmp_eq_u64 vcc, 0")
    poll_loop(a, issue, check, "Lh", sleep=2)
    stamp(a, "moe")
    for n in range(4):
        mf16(a, 20, 32 + 4 * n, MW + 4 * n, None if n == 0 else 20)
    PB = 66560
    def partial_and_gather():
        a("s_lshl_b32 s23, s32, 7")
        a(f"s_add_u32 s23, s23, {PB}")
        a("v_lshl_add_u32 v24, v2, 2, s23")
        a("s_mov_b64 exec, 0xffff")
        a("s_nop 4")
        a("ds_write_b32 v24, v20")
        a("ds_write_b32 v24, v21 offset:64")
        a("s_mov_b64 exec, -1")
        a("s_waitcnt lgkmcnt(0)")
        a("s_barrier")
        a("s_cmp_lg_u32 s32, 0")
        a("s_cbranch_scc1 main_done")
        a("v_and_b32 v24, 31, v0")
        a("v_lshlrev_b32 v24, 2, v24")
        a(f"v_add_u32 v24, {PB}, v24")
        for w in range(8):
            a(f"ds_read_b32 v{32+w}, v24 offset:{128*w}")
    partial_and_gather()
    a("v_lshlrev_b32 v25, 1, v0")
    a("s_lshl_b32 s21, s33, 7")
    a(f"s_add_u32 s21, s21, {WS_ACT}")
    a("s_waitcnt lgkmcnt(0)")
    for w in range(2, 8):
        a(f"v_add_f32 v{32+(w&1)}, v{32+(w&1)}, v{32+w}")
    rnd_pair(a, 32, 33, 40)
    silu(a, 32, 34)
    rnd_bf16(a, 32)
    a("v_mul_f32 v32, v32, v33")
    a("s_nop 1")
    a("v_mov_b32_dpp v33, v32 quad_perm:[1,0,3,2] row_mask:0xf bank_mask:0xf")
    a("v_cvt_pk_bf16_f32 v32, v32, v33")
    a("s_mov_b64 exec, 0x55555555")
    a("buffer_store_dword v32, v25, s[16:19], s21 offen sc1")
    a("s_mov_b64 exec, -1")
    a("s_branch main_done")
    a.label("main_down")
    if STAMPS is not None and "moe" in STAMPS: Prof.n -= 1
    a("v_bfe_u32 v15, v0, 4, 1")
    a("v_cmp_eq_u32 vcc, 0, v15")
    a("s_lshl_b32 s21, s33, 5")
    a(f"s_add_u32 s22, s21, {WS_CAND}")
    a("v_cndmask_b32 v12, v65, v64, vcc")
    cand_off(12, 16, 17)
    a("v_and_b32 v17, 14, v8")
    a("v_lshl_add_u32 v16, v17, 1, v16")
    def issue():
        a("buffer_load_dword v17, v16, s[16:19], s22 offen sc1")
        a("buffer_load_dword v18, v16, s[16:19], s22 offen offset:1024 sc1")
    def check():
        a("v_max_u32 v5, v17, v18")
        a("v_cmp_eq_u32 vcc, -1, v5")
        a("s_cmp_eq_u64 vcc, 0")
    a("s_lshr_b32 s23, s33, 4")
    a("s_lshl_b32 s23, s23, 12")
    a("s_and_b32 s20, s33, 15")
    a("s_lshl_b32 s20, s20, 6")
    a("s_add_u32 s23, s23, s20")
    a(f"s_add_u32 s23, s23, {STG + 3*8192}")
    a("v_lshl_add_u32 v19, v8, 2, s23")
    a("ds_read_b32 v19, v19")
    poll_loop(a, issue, check, "Lf", sleep=2)
    a("v_bfe_u32 v15, v12, 1, 11")
    a("v_sub_u32 v15, 2047, v15")
    a("v_lshlrev_b32 v15, 10, v15")
    a("v_lshl_add_u32 v15, v8, 1, v15")
    a("v_add_u32 v15, s21, v15")
    a("v_and_b32 v16, 1, v0")
    a("v_lshlrev_b32 v16, 4, v16")
    a("v_lshrrev_b32 v17, v16, v17")
    a("v_lshrrev_b32 v18, v16, v18")
    a("v_lshlrev_b32 v17, 16, v17")
    a("v_lshlrev_b32 v18, 16, v18")
    a("v_and_b32 v12, 0xffff0000, v12")
    a("v_ashrrev_i32 v25, 31, v12")
    a("v_not_b32 v25, v25")
    a("v_or_b32 v25, 0x80000000, v25")
    a("v_xor_b32 v12, v12, v25")
    a("v_and_b32 v12, 0xffff0000, v12")
    a(f"v_mul_f32 v25, {NLOG2E:#x}, v12")
    a("v_exp_f32 v25, v25")
    a("s_nop 0")
    a("v_add_f32 v25, 1.0, v25")
    a("v_rcp_f32 v25, v25")
    a("s_nop 0")
    rnd_bf16(a, 25)
    a("v_and_b32 v13, 1, v2")
    a("v_lshlrev_b32 v13, 5, v13")
    a("v_bfe_u32 v14, v2, 4, 1")
    a("v_lshl_add_u32 v13, v14, 4, v13")
    a("v_lshrrev_b32 v14, 5, v2")
    a("v_lshl_add_u32 v13, v14, 7, v13")
    a("s_mul_i32 s22, s32, 1792")
    a(f"s_add_u32 s22, s22, {WS_ACT}")
    def issue():
        for n in range(7):
            a(f"buffer_load_dwordx4 v[{32+4*n}:{35+4*n}], v13, s[16:19], s22 offen offset:{256*n} sc1")
    def check():
        a("v_max3_u32 v5, v32, v33, v34")
        for i in range(3, 27, 2):
            a(f"v_max3_u32 v5, v5, v{32+i}, v{33+i}")
        a("v_max_u32 v5, v5, v59")
        a("v_cmp_eq_u32 vcc, -1, v5")
        a("s_cmp_eq_u64 vcc, 0")
    poll_loop(a, issue, check, "La", sleep=2)
    stamp(a, "moe")
    for n in range(7):
        mf16(a, 20, 32 + 4 * n, MW + 4 * n, None if n == 0 else 20)
    partial_and_gather()
    a("s_waitcnt lgkmcnt(0)")
    for w in range(1, 8):
        a(f"v_add_f32 v32, v32, v{32+w}")
    rnd_bf16(a, 32)
    a("v_mul_f32 v32, v32, v25")
    rnd_bf16(a, 32)
    a("v_add_f32 v32, v32, v17")
    rnd_bf16(a, 32)
    a("v_mul_f32 v32, v32, v19")
    rnd_bf16(a, 32)
    a("v_add_f32 v32, v32, v18")
    a("v_cvt_pk_bf16_f32 v32, v32, v32")
    a("s_mov_b32 exec_hi, 0")
    a("global_store_short v15, v32, s[50:51]")
    a("s_cmp_lg_u32 s33, 0")
    a("s_cbranch_scc1 main_done")
    a("v_mov_b32 v5, 0")
    a("v_mov_b32 v6, s48")
    a("s_mov_b64 exec, 1")
    a("global_store_dword v5, v6, s[4:5]")
    a.label("main_done")
    if STAMPS is not None: stamp_end(a)
    a.label("main_end")
    a("s_endpgm")
    a.label("main_fallback")
    a("s_mov_b32 s37, 1")
    a("s_mov_b32 s20, 64")
    a("v_mov_b32 v6, 0xff800000")
    a("v_mov_b32 v5, v3")
    a.label("main_fb_loop")
    a(f"ds_read_b128 v[{K[0]}:{K[0]+3}], v5")
    a("v_add_u32 v5, 0x800, v5")
    a("s_waitcnt lgkmcnt(0)")
    a(f"v_mfma_f32_32x32x16_bf16 v[{s0}:{s0+15}], v[{K[0]}:{K[0]+3}], v[{Q}:{Q+3}], 0")
    a("s_nop 11")
    for i in range(0, 16, 2):
        a(f"v_max3_f32 v6, v6, v{s0+i}, v{s0+i+1}")
    a("s_sub_u32 s20, s20, 1")
    a("s_cmp_lg_u32 s20, 0")
    a("s_cbranch_scc1 main_fb_loop")
    a(f"ds_read_b128 v[{K[0]}:{K[0]+3}], v3")
    a(f"ds_read_b128 v[{K[1]}:{K[1]+3}], v3 offset:2048")
    for i in range(16):
        a(f"v_mov_b32 v{O+i}, 0")
    setmax()
    a("s_mov_b64 exec, s[38:39]")
    a(f"ds_read_b128 v[{V[0]}:{V[0]+3}], v4")
    a(f"ds_read_b128 v[{V[0]+4}:{V[0]+7}], v4 offset:512")
    a("s_mov_b64 exec, -1")
    a("s_waitcnt lgkmcnt(0)")
    a(f"v_mfma_f32_32x32x16_bf16 v[{s0}:{s0+15}], v[{K[0]}:{K[0]+3}], v[{Q}:{Q+3}], v[{C}:{C+15}]")
    for i in range(8):
        a(f"v_mov_b32 v{S[1]+8+i}, 0")
    a("s_mov_b32 s20, 32")
    a("s_nop 3")
    a.label("main_fb2")
    tile(0, 0, {}); tile(1, 1, {})
    a("v_add_u32 v3, 0x1000, v3")
    a("v_add_u32 v4, 0x1000, v4")
    a("s_sub_u32 s20, s20, 1")
    a("s_cmp_lg_u32 s20, 0")
    a("s_cbranch_scc1 main_fb2")
    a("v_subrev_u32 v3, 0x20000, v3")
    a("v_subrev_u32 v4, 0x20000, v4")
    a("s_branch main_attn_tail")

def main(out, aslist=False):
    hdr = open("adaLN_cond__mha_block__moe_arch_mod__prompt.s.ref").read().split("; Override launch")[0]
    txt = hdr
    if aslist:
        txt += f"; @launch kernel={KNAME} grid=(256,1,1) block=(512,1,1) lds=163840\n"
    else:
        txt += "; @launch grid=(256,1,1) block=(512,1,1) lds=163840\n"
    txt += '.amdgcn_target "amdgcn-amd-amdhsa--gfx950"\n'
    a = Asm()
    k_main(a)
    txt += a.text()
    txt += kernel_desc(KNAME, 256)
    open(out, "w").write(txt)

SETS = {
    "sc": ["wland", "barx", "sc0", "sc1", "sc2", "sc3", "sc4", "sc5", "bar1", "p2", "p4", "p8", "p12"],
    "q": ["pass1", "kvpub", "q0", "q2", "q4", "q6", "q8", "q10", "f1", "q12", "q14", "att0", "a4"],
    "at": ["att0", "a4", "a8", "a12", "a16", "a24", "a32", "a40", "a48", "a52", "a56", "a60", "att1"],
    "ld": ["karg", "mp", "iw", "i2", "l0", "l1", "l2", "gath1", "barx", "bar1", "p3", "p6", "p9"],
    "p1": ["bar1", "p0", "p1", "p2", "p3", "p4", "p5", "p6", "p7", "p8", "p10", "p12", "p14"],
    "p2": ["p8", "p9", "p10", "p11", "p12", "p13", "p14", "p15", "pass1", "kvpub", "att0", "f1", "kvok"],
    "f0": ["karg", "pk", "ack", "l0", "l2", "gath0", "gath1", "wland", "barx", "bar1", "pass1", "f1", "att0"],
    "f1": ["barx", "bar1", "p5", "pass1", "kvpub", "att0", "f1", "kvok", "ky", "bar6", "bar14", "att1"],
    "tail": ["att0", "t23", "t42", "att1", "f2", "s2", "olan", "st2", "s3", "top", "s4", "moe"],
}
if __name__ == "__main__":
    if len(sys.argv) > 2 and sys.argv[2] in SETS:
        G1.PROF = True
        STAMPS = set(SETS[sys.argv[2]])
    main(sys.argv[1], aslist=(len(sys.argv) > 2 and sys.argv[2] != "final"))
    if STAMPS: print(" ".join(["start"] + ORDER + ["end"]))
```

```python
import sys, os
from asmlib import *
import gen_v1 as G1
from gen_v1 import (f32, multi_allreduce, unpack8, rnd_pair, tr_addr_natural, dma_row_src,
                    stamp_begin, stamp_end, Prof, NLOG2E, QSCALE, WS_BYTES)

KNAME = "adaLN_cond__mha_block__moe_arch_mod__prompt_kernel"
WS_EPOCH = 0
WS_MP = 0x1000
WS_ST1 = 0x10000
WS_MPL = 0x20000
WS_ST2 = 0x180000
WS_TOP = 0x60000
WS_ACT = 0x64000
WS_CAND = 0x80000
WS_F1 = 0x100000
WS_F2 = 0x140000
WS_WP = 0x200000
WS_KV = 0x500000
WS_OF = 0x900000
SPIN = 50000
STAMPS = None
ORDER = []

def stamp(a, name):
    if STAMPS is not None and name in STAMPS:
        if name not in ORDER: ORDER.append(name)
        G1.stamp(a)

def poll_loop(a, issue, check, name, first_issued=False, sleep=4):
    l = a.newlabel(name); d = a.newlabel(name + "d"); w = a.newlabel(name + "w")
    a(f"s_mov_b32 s60, {SPIN}")
    if first_issued: a(f"s_branch {w}")
    a.label(l)
    issue()
    if first_issued: a.label(w)
    a("s_waitcnt vmcnt(0)")
    check()
    a(f"s_cbranch_scc1 {d}")
    a("s_sub_u32 s60, s60, 1")
    if sleep: a(f"s_sleep {sleep}")
    a("s_cmp_lg_u32 s60, 0")
    a(f"s_cbranch_scc1 {l}")
    a.label(d)

def chk_ne(a, regs):
    a(f"v_cmp_ne_u32 vcc, s48, v{regs[0]}")
    for r in regs[1:]:
        a(f"v_cmp_ne_u32 s[20:21], s48, v{r}")
        a("s_or_b64 vcc, vcc, s[20:21]")
    a("s_cmp_eq_u64 vcc, 0")

def silu(a, x, t):
    a(f"v_mul_f32 v{t}, {NLOG2E:#x}, v{x}")
    a(f"v_exp_f32 v{t}, v{t}")
    a("s_nop 0")
    a(f"v_add_f32 v{t}, 1.0, v{t}")
    a(f"v_rcp_f32 v{t}, v{t}")
    a("s_nop 0")
    a(f"v_mul_f32 v{x}, v{x}, v{t}")

def mf16(a, d, A, B, c):
    cs = "0" if c is None else f"v[{c}:{c+3}]"
    a(f"v_mfma_f32_16x16x32_bf16 v[{d}:{d+3}], v[{A}:{A+3}], v[{B}:{B+3}], {cs}")

def trr(a, d, a1, a2, off):
    a(f"ds_read_b64_tr_b16 v[{d}:{d+1}], v{a1} offset:{off}")
    a(f"ds_read_b64_tr_b16 v[{d+2}:{d+3}], v{a2} offset:{off}")

WPB = 0; RING = 49152
REG = {0: 32768, 1: 0, 2: 16384}
EMB = 147456; SAT = 151552; CTE = 152576; CAT = 152832; REC = 154880; STT = 157440; FINR = 152576 - 0
STG = 131072
EM2 = 159744
FIN = 159488 - 320 + 64 - 64
Q = 16; C = 20; S = [36, 52]; O = 68; K = [84, 88]; V = [92, 100]; IDX = 108
WO = 112; MW = 176; XT = 204
GA = 208; SB = 216; CB = 224; GB = 232; WP = 240
FLIP = int(os.environ.get('FLIP', 54))
RBAR = int(os.environ.get('RBAR', 12))
TILEV = int(os.environ.get('TILEV', 0))
YK = int(os.environ.get('YK', 4))
TOUCHD = int(os.environ.get('TOUCHD', 16))
TOUCHG = int(os.environ.get('TOUCHG', 0))
TOUCHW = int(os.environ.get('TOUCHW', 7))
OUTF = os.environ.get('OUTF', '')
OSENT = int(os.environ.get('OSENT', 0))
TOPSH = int(os.environ.get('TOPSH', 7))
SLOWP = int(os.environ.get('SLOWP', 40))
TSLEEP = int(os.environ.get('TSLEEP', 2))
ST2P = int(os.environ.get('ST2P', 1))
PREW = int(os.environ.get('PREW', 25))
PREO = int(os.environ.get('PREO', 0))
PREF = int(os.environ.get('PREF', 1))
S3D = int(os.environ.get('S3D', 8))
S3S = int(os.environ.get('S3S', 1))
ACTD = int(os.environ.get('ACTD', 0))
ACTS = int(os.environ.get('ACTS', 2))
F2S = int(os.environ.get('F2S', 1))
PF = os.environ.get('PF', ' sc1')
KVP = int(os.environ.get('KVP', 0))
P1FLIP = int(os.environ.get('P1FLIP', 11))
TOUCH = 0
WPS = 16384 + 384
F1STEP = 10
XR = 32; WR = 160; ACC = 184; QA = 176; WF = [236, 244]

def k_main(a):
    kernel_begin(a, KNAME)
    a("s_cmp_ge_u32 s2, 256")
    a("s_cbranch_scc1 main_end")
    if STAMPS is not None: stamp_begin(a, 0)
    a("s_setprio 3")
    a("s_load_dwordx2 s[4:5], s[0:1], 96")
    a("s_load_dwordx4 s[44:47], s[0:1], 64")
    a("s_load_dwordx2 s[6:7], s[0:1], 0")
    a("s_load_dwordx4 s[8:11], s[0:1], 8")
    a("s_load_dwordx8 s[52:59], s[0:1], 32")
    a("s_load_dwordx2 s[50:51], s[0:1], 80")
    a("v_lshrrev_b32 v1, 6, v0")
    a("v_and_b32 v2, 63, v0")
    a("s_and_b32 s31, s2, 1")
    a("s_lshl_b32 s31, s31, 2")
    a("v_readfirstlane_b32 s32, v1")
    a("s_bfe_u32 s20, s2, 0x20003")
    a("s_add_u32 s31, s31, s20")
    a("s_and_b32 s30, s2, 6")
    a("s_lshl_b32 s30, s30, 2")
    a("s_lshr_b32 s20, s2, 5")
    a("s_add_u32 s30, s30, s20")
    a("s_lshl_b32 s33, s20, 1")
    a("v_lshlrev_b32 v9, 4, v2")
    a("v_lshrrev_b32 v17, 3, v2")
    a("v_and_b32 v16, 6, v17")
    a("v_xor_b32 v16, v16, v2")
    a("v_and_b32 v16, 7, v16")
    a("v_lshlrev_b32 v200, 10, v17")
    a("v_lshl_add_u32 v200, v16, 4, v200")
    for q in range(1, 4): a(f"v_add_u32 v{200+q}, {7168*q}, v200")
    dma_row_src(a, 255, 2, 6144, 16, 17)
    a("s_lshl_b32 s28, s31, 18")
    a("s_lshl_b32 s21, s32, 15")
    a("s_add_u32 s28, s28, s21")
    a("s_lshl_b32 s29, s33, 6")
    a("s_mul_i32 s49, s32, 12288")
    a(f"s_add_u32 s49, s49, {RING}")
    a("v_lshrrev_b32 v3, 1, v2")
    a("v_lshl_add_u32 v3, v1, 6, v3")
    a("v_and_b32 v6, 1, v0")
    a("v_bfe_u32 v22, v2, 1, 2")
    a("v_mul_u32_u24 v22, 3072, v22")
    a("v_lshrrev_b32 v17, 3, v2")
    a("v_lshl_add_u32 v22, v17, 5, v22")
    a("v_lshl_add_u32 v22, v6, 4, v22")
    a(f"v_mul_u32_u24 v23, {WPS}, v17")
    a("v_and_b32 v17, 7, v2")
    a("v_lshl_add_u32 v23, v17, 4, v23")
    a("s_and_b32 s36, s2, 7")
    a("s_lshl_b32 s36, s36, 4")
    a("s_lshr_b32 s20, s2, 4")
    a("s_add_u32 s36, s36, s20")
    a("s_bfe_u32 s37, s2, 0x10003")
    a("v_lshlrev_b32 v19, 3, v2")
    a("s_lshl_b32 s39, s2, 3")
    a("s_add_u32 s39, s39, s32")
    a("s_and_b32 s62, s2, 7")
    a("s_lshl_b32 s62, s62, 3")
    a("s_bfe_u32 s23, s2, 0x30003")
    a("s_add_u32 s62, s62, s23")
    a("s_waitcnt lgkmcnt(0)")
    stamp(a, "karg")
    a("s_load_dword s48, s[4:5], 0")
    srd(a, 24, 6, 2048 * 1024)
    srd(a, 16, 4, WS_BYTES)
    srd(a, 12, 8, 512 * 3072)
    a("s_cmp_lg_u32 s32, 0")
    a("s_cbranch_scc1 main_w0a")
    a("s_lshr_b32 s21, s2, 6")
    a("s_lshl_b32 s22, s21, 8")
    a("v_lshl_add_u32 v16, v2, 2, s22")
    a("global_load_dword v232, v16, s[44:45]")
    srd(a, 40, 46, 512 * 6144)
    a(f"s_mul_i32 s22, s21, {128*6144}")
    a("s_lshl_b32 s23, s62, 5")
    a("s_add_u32 s22, s22, s23")
    for n in range(4):
        a(f"s_mov_b32 m0, {EMB + 1024*n}")
        if n: a(f"s_add_u32 s22, s22, {32*6144}")
        else: a("s_nop 0")
        a("buffer_load_dwordx4 v255, s[40:43], s22 offen lds")
    a("s_branch main_w0i")
    a.label("main_w0a")
    a("s_cmp_eq_u32 s32, 7")
    a("s_cbranch_scc1 main_w0i")
    a(f"s_mul_i32 s20, s36, {4*3072}")
    a("s_mul_i32 s21, s37, 1536")
    a("s_add_u32 s20, s20, s21")
    a("s_lshl_b32 s21, s32, 8")
    a("s_add_u32 s20, s20, s21")
    a("s_sub_u32 s20, s20, 256")
    a(f"buffer_load_dwordx4 v[{WR}:{WR+3}], v22, s[12:15], s20 offen")
    a.label("main_w0i")
    a("s_lshl_b32 s22, s39, 10")
    a("buffer_load_dwordx4 v[204:207], v9, s[24:27], s22 offen")
    def dstep_issue(base, add):
        a("s_add_u32 s20, s28, s29")
        if add: a(f"s_add_u32 s21, s{base}, {add}")
        a(f"s_mov_b32 m0, s{21 if add else base}")
        a("s_add_u32 s29, s29, 128")
        for q in range(4):
            a(f"buffer_load_dwordx4 v{200+q}, s[24:27], s20 offen offset:{1024*q} lds")
        a("s_and_b32 s29, s29, 0x3ff")
    a("v_lshlrev_b32 v25, 4, v0")
    def g_issue():
        for rg in range(4):
            a(f"s_mov_b32 s22, {WS_MP + 8192*rg}")
            a(f"buffer_load_dwordx4 v[{184+4*rg}:{187+4*rg}], v25, s[16:19], s22 offen sc1")
    a("v_lshrrev_b32 v7, 4, v2")
    a("v_and_b32 v8, 15, v2")
    tr_addr_natural(a, 12, 13, 2, 14, 15)
    a("s_lshl_b32 s21, s33, 10")
    a("v_lshlrev_b32 v10, 5, v3")
    a("v_subrev_u32 v10, s21, v10")
    a("v_bfe_u32 v11, v3, 3, 1")
    a("v_lshlrev_b32 v11, 7, v11")
    a("v_xor_b32 v10, v10, v11")
    a("v_lshl_add_u32 v10, v6, 4, v10")
    a("v_and_b32 v10, 0x3fff, v10")
    a("v_xor_b32 v11, 1024, v10")
    a("s_lshl_b32 s20, s32, 11")
    a("s_sub_u32 s20, s20, s21")
    a("s_and_b32 s20, s20, 0x3fff")
    a("v_add_u32 v26, s20, v12")
    a("v_add_u32 v27, s20, v13")
    a("s_lshr_b32 s20, s20, 4")
    a(f"s_add_u32 s20, s20, {SAT}")
    a("v_lshl_add_u32 v30, v7, 4, s20")
    a("s_lshl_b32 s21, s32, 12")
    a(f"s_add_u32 s21, s21, {STG}")
    a("v_add_u32 v14, s21, v12")
    a("v_add_u32 v15, s21, v13")
    a("v_and_b32 v16, 6, v8")
    a("v_xor_b32 v16, v16, v7")
    a("v_lshlrev_b32 v16, 4, v16")
    a("v_and_b32 v17, 7, v8")
    a("v_lshl_add_u32 v16, v17, 7, v16")
    a("v_lshrrev_b32 v17, 3, v8")
    a("v_lshl_add_u32 v16, v17, 10, v16")
    a("v_xor_b32 v17, 64, v16")
    a("v_add_u32 v254, s49, v16")
    a("v_add_u32 v255, s49, v17")
    a("v_and_b32 v24, 31, v2")
    a("v_lshlrev_b32 v24, 4, v24")
    a("s_lshr_b32 s63, s28, 6")
    a(f"s_add_u32 s63, s63, {WS_ST1}")
    def rd_x2(d, reg, off):
        for e in range(2):
            for u in range(2):
                r = XR + 4 * (16 * u + 2 * d + e)
                a(f"ds_read_b128 v[{r}:{r+3}], v{reg+e} offset:{off + 2048*u}")
    def g_check(): chk_ne(a, [185, 187, 189, 191, 193, 195, 197, 199])
    stamp(a, "d7")
    def w56(fn):
        l = a.newlabel("Lw56")
        a("s_sub_u32 s20, s32, 5")
        a("s_cmp_gt_u32 s20, 1")
        a(f"s_cbranch_scc1 {l}")
        fn()
        a.label(l)
    def w12(fn):
        l = a.newlabel("Lw12")
        a("s_sub_u32 s20, s32, 1")
        a("s_cmp_gt_u32 s20, 1")
        a(f"s_cbranch_scc1 {l}")
        fn()
        a.label(l)
    def le_issue():
        srd(a, 12, 46, 512 * 6144)
        a("v_mul_u32_u24 v5, 6144, v11")
        a("v_add_u32 v5, v5, v10")
        a("s_lshr_b32 s21, s2, 6")
        a(f"s_mul_i32 s22, s21, {128*6144}")
        a("s_lshl_b32 s23, s62, 6")
        a("s_add_u32 s22, s22, s23")
        a("s_lshl_b32 s23, s20, 5")
        a("s_add_u32 s22, s22, s23")
        a("s_add_u32 s22, s22, 2048")
        a("s_mov_b32 s23, s36")
        a("s_lshl_b32 s21, s21, 8")
        a("v_lshl_add_u32 v6, v2, 2, s21")
        a(f"global_load_dword v{WO}, v6, s[44:45]")
        for n in range(4):
            a("s_mov_b32 m0, s23")
            if n: a(f"s_add_u32 s22, s22, {32*6144}")
            else: a("s_nop 0")
            a("buffer_load_dwordx4 v5, s[12:15], s22 offen lds")
            a("s_add_u32 s23, s23, 1024")
    a("s_lshr_b32 s41, s30, 2"); a("s_lshl_b32 s20, s31, 3"); a("s_add_u32 s41, s41, s20")
    a("s_and_b32 s42, s30, 3")
    a("v_and_b32 v29, 1, v2"); a("v_lshlrev_b32 v29, 4, v29")
    a("v_lshrrev_b32 v28, 1, v2"); a("v_lshl_add_u32 v1, v28, 10, v29")
    a("s_lshl_b32 s20, s42, 8"); a("s_lshl_b32 s21, s32, 5"); a("s_add_u32 s21, s21, s20"); a("v_add_u32 v1, s21, v1")
    a("v_bfe_u32 v16, v2, 4, 1"); a("v_lshlrev_b32 v17, 2, v16"); a("v_xor_b32 v28, v28, v17")
    a("v_lshrrev_b32 v5, 5, v2"); a("v_lshlrev_b32 v5, 9, v5"); a("v_lshl_add_u32 v5, v16, 7, v5")
    a("v_bfe_u32 v16, v2, 2, 2"); a("v_lshl_add_u32 v5, v16, 5, v5"); a("v_and_b32 v16, 3, v2"); a("v_lshl_add_u32 v5, v16, 3, v5")
    a("s_lshl_b32 s21, s32, 12"); a(f"s_add_u32 s21, s21, {STG}"); a("v_add_u32 v5, s21, v5")
    a("v_lshrrev_b32 v4, 4, v0"); a("v_lshlrev_b32 v4, 10, v4"); a("v_lshl_add_u32 v4, v8, 4, v4")
    a("s_lshl_b32 s21, s41, 15"); a("s_add_u32 s20, s20, s21"); a("v_add_u32 v4, s20, v4")
    a("s_lshl_b32 s20, s30, 13"); a("s_lshl_b32 s21, s32, 10"); a("s_add_u32 s40, s20, s21"); a(f"s_add_u32 s40, s40, {WS_F1}")
    a("s_cmp_lg_u32 s32, 0")
    a("s_cbranch_scc1 main_w0j")
    a(f"v_add_u32 v20, {EMB}, v12")
    a(f"v_add_u32 v21, {EMB}, v13")
    a("s_waitcnt vmcnt(5)")
    a("v_lshlrev_b32 v233, 16, v232")
    a("v_and_b32 v234, 0xffff0000, v232")
    silu(a, 233, 16); silu(a, 234, 16)
    a("v_cvt_pk_bf16_f32 v232, v233, v234")
    a("v_lshlrev_b32 v16, 2, v2")
    a(f"v_add_u32 v16, {CTE}, v16")
    a("ds_write_b32 v16, v232")
    a("v_and_b32 v17, 48, v2")
    a(f"v_add_u32 v17, {CTE}, v17")
    for n in range(4):
        a(f"ds_read_b128 v[{236+4*n}:{239+4*n}], v17 offset:{64*n}")
    a("s_lshr_b32 s38, s2, 6")
    a("s_lshl_b32 s38, s38, 13")
    a("s_lshl_b32 s22, s62, 7")
    a("s_add_u32 s38, s38, s22")
    a(f"s_add_u32 s38, s38, {WS_MP}")
    a("s_waitcnt vmcnt(0)")
    stamp(a, "emland")
    for n in range(4):
        trr(a, 216 + 4 * n, 20, 21, 1024 * n)
    a("s_waitcnt lgkmcnt(0)")
    a("s_add_u32 s22, s48, 1")
    for n in range(4):
        mf16(a, 232, 236 + 4 * n, 216 + 4 * n, None if n == 0 else 232)
    a("s_nop 7")
    a("v_mov_b32 v184, v232")
    a("v_mov_b32 v185, s22")
    a("s_branch main_w0b")
    a.label("main_w0j")
    a("s_waitcnt vmcnt(0)")
    a("s_cmp_eq_u32 s32, 7")
    a("s_cbranch_scc1 main_w0b")
    a("s_mul_i32 s20, s37, 6")
    a("s_add_u32 s20, s20, s32")
    a(f"s_mul_i32 s20, s20, {8*WPS}")
    a("s_lshl_b32 s21, s36, 7")
    a("s_add_u32 s20, s20, s21")
    a(f"s_add_u32 s20, s20, {WS_WP - 8*WPS}")
    a(f"buffer_store_dwordx4 v[{WR}:{WR+3}], v23, s[16:19], s20 offen sc1")
    a.label("main_w0b")
    stamp(a, "pk")
    if OSENT:
        for i in range(4): a(f"v_mov_b32 v{164+i}, -1")
        a("s_lshl_b32 s20, s31, 3")
        a("s_add_u32 s20, s20, s32")
        a("s_lshl_b32 s20, s20, 15")
        a("s_lshl_b32 s21, s30, 10")
        a("s_add_u32 s20, s20, s21")
        a(f"s_add_u32 s20, s20, {WS_OF}")
        a("buffer_store_dwordx4 v[164:167], v9, s[16:19], s20 offen sc1")
    a("s_barrier")
    dstep_issue(49, 0)
    a("s_waitcnt lgkmcnt(0)")
    a("s_add_u32 s48, s48, 1")
    unpack8(a, 208, 204)
    a("v_add_f32 v216, v208, v209")
    for i in range(2, 8): a(f"v_add_f32 v216, v216, v{208+i}")
    multi_allreduce(a, [216], [217])
    a(f"v_mul_f32 v216, {f32(1/512)}, v216")
    a("v_sub_f32 v217, v208, v216")
    a("v_mul_f32 v218, v217, v217")
    for i in range(1, 8):
        a(f"v_sub_f32 v217, v{208+i}, v216")
        a("v_fmac_f32 v218, v217, v217")
    multi_allreduce(a, [218], [217])
    a(f"v_mul_f32 v217, {f32(1/512)}, v218")
    rnd_pair(a, 216, 217, 218)
    a(f"v_add_f32 v217, {f32(1e-5)}, v217")
    rnd_bf16(a, 217)
    a("v_sqrt_f32 v217, v217")
    a("s_lshl_b32 s21, s39, 4")
    rnd_bf16(a, 217)
    a("v_rcp_f32 v217, v217")
    a("v_mov_b32 v218, s48")
    a("v_mov_b32 v219, s48")
    a(f"s_add_u32 s21, s21, {WS_ST1}")
    a("v_mov_b32 v16, 0")
    a("s_mov_b64 exec, 1")
    a("buffer_store_dwordx4 v[216:219], v16, s[16:19], s21 offen sc1")
    a("s_mov_b64 exec, -1")
    a("s_waitcnt vmcnt(5)")
    stamp(a, "ack")
    a("s_barrier")
    a("s_cmp_lg_u32 s32, 0")
    a("s_cbranch_scc1 main_w0c")
    a("s_mov_b64 exec, 0xffff")
    a("buffer_store_dwordx2 v[184:185], v19, s[16:19], s38 offen sc1")
    a("s_mov_b64 exec, -1")
    stamp(a, "mp")
    a.label("main_w0c")
    dstep_issue(49, 4096); dstep_issue(49, 8192)
    a("s_setprio 0")
    stamp(a, "i2")
    a("s_waitcnt vmcnt(9)")
    stamp(a, "l0")
    rd_x2(0, 254, 0)
    a("s_waitcnt lgkmcnt(0)")
    dstep_issue(49, 0)
    a("s_waitcnt vmcnt(8)")
    a("s_setprio 3")
    g_issue()
    rd_x2(1, 254, 4096)
    a("s_waitcnt vmcnt(8)")
    stamp(a, "l2")
    rd_x2(2, 254, 8192)
    a("s_waitcnt vmcnt(0)")
    stamp(a, "gath0")
    g_check()
    a("s_cbranch_scc1 main_gok")
    poll_loop(a, g_issue, g_check, "Lm")
    a.label("main_gok")
    stamp(a, "gath1")
    a(f"s_mul_i32 s20, s30, {WPS}")
    a("s_lshl_b32 s21, s32, 11")
    a("s_add_u32 s20, s20, s21")
    a(f"s_add_u32 s20, s20, {WS_WP}")
    for t in (0, 2, 1):
        a(f"s_add_u32 s21, s20, {32*WPS*t}")
        for p in range(2):
            r = WR + 4 * (3 * p + t)
            a(f"buffer_load_dwordx4 v[{r}:{r+3}], v9, s[16:19], s21 offen offset:{1024*p} sc1")
    a("s_setprio 0")
    rd_x2(3, 254, 0)
    for c in range(2):
        a(f"v_add_f32 v{184+2*c}, v{184+2*c}, v{188+2*c}")
        a(f"v_add_f32 v{192+2*c}, v{192+2*c}, v{196+2*c}")
        a(f"v_add_f32 v{184+2*c}, v{184+2*c}, v{192+2*c}")
    a("v_cvt_pk_bf16_f32 v188, v184, v186")
    a("s_cmp_gt_u32 s32, 3")
    a("s_cbranch_scc1 main_gca")
    a("s_lshl_b32 s21, s33, 6")
    a("v_lshlrev_b32 v16, 2, v0")
    a("v_subrev_u32 v16, s21, v16")
    a("v_and_b32 v16, 0x3ff, v16")
    a(f"v_add_u32 v16, {SAT}, v16")
    a("ds_write_b32 v16, v188")
    a("s_branch main_gdn")
    a.label("main_gca")
    a("v_lshlrev_b32 v184, 16, v188")
    a("v_and_b32 v185, 0xffff0000, v188")
    a("v_add_f32 v184, 1.0, v184")
    a("v_add_f32 v185, 1.0, v185")
    rnd_pair(a, 184, 185, 188)
    a("v_lshlrev_b32 v16, 3, v0")
    a(f"v_add_u32 v16, {CAT - 2048}, v16")
    a("ds_write_b64 v16, v[184:185]")
    a.label("main_gdn")
    a("v_lshlrev_b32 v16, 2, v3")
    a(f"v_add_u32 v16, {CAT}, v16")
    a("v_xor_b32 v17, 128, v16")
    a("s_waitcnt lgkmcnt(0)")
    dstep_issue(49, 4096)
    a("s_waitcnt vmcnt(6)")
    stamp(a, "wland")
    if PREF:
        a("s_lshl_b32 s20, s31, 7")
        a("s_add_u32 s20, s20, s40")
        a("s_add_u32 s21, s48, 1")
        a("v_mov_b32 v18, s21")
        a("v_lshlrev_b32 v19, 2, v2")
        a("s_mov_b32 exec_hi, 0")
        a("buffer_store_dword v18, v19, s[16:19], s20 offen sc1")
        a("s_mov_b64 exec, -1")
    if PREF > 1:
        a("s_lshl_b32 s20, s31, 3")
        a("s_add_u32 s20, s20, s32")
        a("s_lshl_b32 s20, s20, 11")
        a("s_lshl_b32 s21, s30, 17")
        a("s_add_u32 s20, s20, s21")
        a(f"s_add_u32 s20, s20, {WS_KV}")
        a("buffer_store_dwordx4 v[32:35], v9, s[16:19], s20 offen sc1")
        a("buffer_store_dwordx4 v[32:35], v9, s[16:19], s20 offen offset:1024 sc1")
    for t in (0, 2):
        for p in range(2):
            r = WR + 4 * (3 * p + t)
            a(f"ds_write_b128 v{10+p}, v[{r}:{r+3}] offset:{REG[t]}")
    for n in range(2):
        trr(a, 236 + 8 * n, 26, 27, REG[0] + 1024 * n)
        trr(a, 240 + 8 * n, 26, 27, REG[2] + 1024 * n)
    for i in range(4): a(f"v_mov_b32 v{204+i}, 0x3f803f80")
    UPK = {1: 64, 2: 128, 0: 80}
    a("s_mov_b32 s22, 0xffff0000")
    for t in (0, 2, 1):
        if t == 1: a(f"s_waitcnt vmcnt({4 + (0, 1, 3)[PREF]})")
        for p in range(2):
            r = WR + 4 * (3 * p + t); T = UPK[t] + 8 * p
            for i in range(4):
                a(f"v_lshlrev_b32 v{T+2*i}, 16, v{r+i}")
                a(f"v_and_b32 v{T+2*i+1}, s22, v{r+i}")
    a("s_waitcnt lgkmcnt(0)")
    a("s_barrier")
    stamp(a, "barx")
    a("ds_read_b32 v188, v16")
    a("ds_read_b32 v189, v17")
    for n in range(2): a(f"ds_read_b128 v[{192+4*n}:{195+4*n}], v30 offset:{64*n}")
    a("s_mul_i32 s21, s32, 320")
    a(f"s_add_u32 s21, s21, {REC}")
    a("v_lshl_add_u32 v30, v7, 4, s21")
    a("v_lshl_add_u32 v31, v8, 3, s21")
    a("s_waitcnt lgkmcnt(2)")
    CSF = [80, 84, 64, 68, 128, 132]
    stamp(a, "sc0")
    for j, t in enumerate((1, 2, 0)):
        for p in range(2):
            r = WR + 4 * (3 * p + t)
            d = 208 + 4 * p
            T = UPK[t] + 8 * p
            for i in range(4):
                a(f"v_pk_mul_f32 v[{T+2*i}:{T+2*i+1}], v[{T+2*i}:{T+2*i+1}], v[188:189] " + ("op_sel_hi:[1,0]" if p == 0 else "op_sel:[0,1] op_sel_hi:[1,1]"))
            for i in range(4):
                a(f"v_cvt_pk_bf16_f32 v{d+i}, v{T+2*i}, v{T+2*i+1}")
            a(f"ds_write_b128 v{10+p}, v[{d}:{d+3}] offset:{REG[t]}")
        for n in range(2): trr(a, CSF[2 * t + n], 26, 27, REG[t] + 1024 * n)
        stamp(a, f"sc{j+1}")
        if j == 2: a("buffer_load_dwordx4 v[20:23], v24, s[16:19], s63 offen sc1")
        if j == 0:
            a("s_waitcnt lgkmcnt(6)")
            for n in range(2):
                mf16(a, 216, 236 + 8 * n, 192 + 4 * n, None if n == 0 else 216)
                mf16(a, 220, 192 + 4 * n, 240 + 8 * n, None if n == 0 else 220)
    a("s_waitcnt lgkmcnt(0)")
    for n in range(2):
        mf16(a, 228, CSF[2 + n], 204, None if n == 0 else 228)
        mf16(a, 232, 204, CSF[4 + n], None if n == 0 else 232)
        mf16(a, 224, CSF[n], 204, None if n == 0 else 224)
    a("v_lshlrev_b32 v16, 4, v7")
    a(f"v_add_u32 v16, {REC}, v16")
    a("v_lshlrev_b32 v17, 3, v8")
    a(f"v_add_u32 v17, {REC}, v17")
    stamp(a, "sc4")
    a("ds_write_b128 v30, v[216:219]")
    a("s_nop 1")
    a("v_mov_b32 v233, v220")
    a("ds_write_b128 v30, v[228:231] offset:128")
    a("ds_write_b64 v31, v[232:233] offset:192")
    a("ds_write_b128 v30, v[224:227] offset:64")
    a("s_waitcnt lgkmcnt(0)")
    stamp(a, "sc5")
    a("s_barrier")
    stamp(a, "bar1")
    WF3 = [236, 244, 176]
    def rd_kv(s):
        b = WF3[s % 3]
        trr(a, b, 12, 13, REG[1] + 1024 * s)
        trr(a, b + 4, 12, 13, REG[2] + 1024 * s)
    rd_kv(0); rd_kv(1)
    a("s_lshr_b32 s20, s32, 2")
    a("s_cmp_eq_u32 s20, 0")
    a("s_cbranch_scc1 main_p1o")
    a("s_setprio 1")
    a.label("main_p1o")
    DR = {2: 4, 7: 5, 9: 6, 11: 7}
    def rec_rd(w):
        d = (208, 212, 220, 224) if w == 0 else (228, 232, 216, 226)
        a(f"ds_read_b128 v[{d[0]}:{d[0]+3}], v16 offset:{320*w}")
        a(f"ds_read_b128 v[{d[1]}:{d[1]+3}], v16 offset:{320*w+64}")
        a(f"ds_read_b128 v[{d[2]}:{d[2]+3}], v16 offset:{320*w+128}")
        a(f"ds_read_b64 v[{d[3]}:{d[3]+1}], v17 offset:{320*w+192}")
    for s in range(16):
        if s < 14:
            rd_kv(s + 2)
            a(f"s_waitcnt lgkmcnt({8 if s == 0 else 4})")
        else:
            a(f"s_waitcnt lgkmcnt({4 * (15 - s)})")
        stamp(a, f"p{s}")
        if s == 0: dstep_issue(49, 8192)
        if s == 1: dstep_issue(49, 0)
        if s == 3: dstep_issue(49, 4096)
        b = WF3[s % 3]
        adds = []
        for u in range(2):
            x = XR + 4 * (16 * u + s)
            mf16(a, ACC + 4 * u, b, x, None if s == 0 else ACC + 4 * u)
            for q in adds[4*u:4*u+2]: a(q)
            mf16(a, ACC + 8 + 4 * u, x, b + 4, None if s == 0 else ACC + 8 + 4 * u)
            for q in adds[4*u+2:4*u+4]: a(q)
        if s == 0:
            l = a.newlabel("Lrs")
            a("s_cmp_lt_u32 s32, 6")
            a(f"s_cbranch_scc1 {l}")
            a("v_lshlrev_b32 v18, 2, v0")
            a(f"v_add_u32 v18, {REC - 1536}, v18")
            for w in range(8): a(f"ds_read_b32 v{208+w}, v18 offset:{320*w}")
            a("s_waitcnt lgkmcnt(0)")
            for w in range(1, 8): a(f"v_add_f32 v208, v208, v{208+w}")
            a(f"v_cmp_gt_u32 vcc, {384+80}, v0")
            a("s_nop 0")
            a("s_and_saveexec_b64 s[20:21], vcc")
            a("ds_write_b32 v18, v208")
            a("s_mov_b64 exec, -1")
            a.label(l)
        if s == P1FLIP: a("s_setprio 0")
        if s in DR:
            a(f"s_waitcnt vmcnt({ {4: 9, 5: 8, 6: 4, 7: 0}[DR[s]] })")
            rd_x2(DR[s], 254, 4096 * (DR[s] % 3))
        if s == 8:
            chk_ne(a, [22])
            a("s_cbranch_scc1 main_stok")
            poll_loop(a, lambda: a("buffer_load_dwordx4 v[20:23], v24, s[16:19], s63 offen sc1"),
                      lambda: chk_ne(a, [22]), "Lst")
            a.label("main_stok")
            a("s_lshl_b32 s21, s32, 8")
            a(f"s_add_u32 s21, s21, {STT}")
            a("v_lshrrev_b32 v18, 1, v24")
            a("v_add_u32 v18, s21, v18")
            a("ds_write_b64 v18, v[20:21]")
            a("v_lshl_add_u32 v18, v8, 3, s21")
            a("v_lshl_add_u32 v19, v7, 5, s21")
            for u in range(2):
                a(f"ds_read_b64 v[{204+2*u}:{205+2*u}], v18 offset:{128*u}")
                a(f"ds_read_b128 v[{160+8*u}:{163+8*u}], v19 offset:{128*u}")
                a(f"ds_read_b128 v[{164+8*u}:{167+8*u}], v19 offset:{128*u+16}")
        if s == 13:
            a("s_lshl_b32 s34, s31, 3")
            a("s_add_u32 s34, s34, s32")
            a("s_lshl_b32 s22, s30, 17")
            a(f"s_add_u32 s35, s22, {WS_KV}")
            a("s_lshl_b32 s23, s34, 11")
            a("s_add_u32 s22, s35, s23")
            a("v_and_b32 v18, 1, v7")
            a("v_lshlrev_b32 v18, 9, v18")
            a("v_lshrrev_b32 v19, 1, v7")
            a("v_lshl_add_u32 v18, v19, 8, v18")
            a("v_lshl_add_u32 v18, v8, 4, v18")
            a("s_lshl_b32 s23, s32, 11")
            a("v_add_u32 v19, s23, v9")
            a("v_add_u32 v20, s23, v18")
    stamp(a, "pass1")
    def rd_q(s):
        trr(a, 236 + 4 * (s & 3), 12, 13, REG[0] + 1024 * s)
    rd_q(0); rd_q(1)
    a("s_barrier")
    rec_rd(0)
    a("s_waitcnt lgkmcnt(0)")
    for u in range(2):
        for r in range(4):
            k = ACC + 4 * u + r
            a(f"v_fma_f32 v{k}, -v{204+2*u}, v{220+r}, v{k}")
            a(f"v_mul_f32 v{k}, v{k}, v{205+2*u}")
        a(f"v_cvt_pk_bf16_f32 v{228+2*u}, v{ACC+4*u}, v{ACC+4*u+1}")
        a(f"v_cvt_pk_bf16_f32 v{229+2*u}, v{ACC+4*u+2}, v{ACC+4*u+3}")
    for u in range(2):
        for r in range(4):
            v = ACC + 8 + 4 * u + r
            a(f"v_fma_f32 v{v}, -v{160+8*u+2*r}, v224, v{v}")
            a(f"v_fma_f32 v{v}, v{v}, v{161+8*u+2*r}, v225")
        if u == 0:
            a("v_permlane16_swap_b32 v228, v230")
            a("v_permlane16_swap_b32 v229, v231")
            a("buffer_store_dwordx4 v[228:231], v9, s[16:19], s22 offen sc1")
        a(f"v_cvt_pk_bf16_f32 v{232+2*u}, v{ACC+8+4*u}, v{ACC+8+4*u+1}")
        a(f"v_cvt_pk_bf16_f32 v{233+2*u}, v{ACC+8+4*u+2}, v{ACC+8+4*u+3}")
    a("ds_write_b128 v19, v[228:231]")
    a("s_nop 0")
    a("v_permlane16_swap_b32 v232, v234")
    a("v_permlane16_swap_b32 v233, v235")
    a("buffer_store_dwordx4 v[232:235], v18, s[16:19], s22 offen offset:1024 sc1")
    a("ds_write_b128 v20, v[232:235] offset:1024")
    l = a.newlabel("Lrz")
    a("s_sub_u32 s20, s32, 1")
    a("s_cmp_gt_u32 s20, 1")
    a(f"s_cbranch_scc1 {l}")
    for i in range(4): a(f"v_mov_b32 v{216+i}, -1")
    a("s_lshl_b32 s22, s2, 10")
    a(f"s_add_u32 s22, s22, {WS_CAND}")
    a("s_lshl_b32 s23, s2, 6")
    a(f"s_add_u32 s23, s23, {WS_ACT}")
    a("s_cmp_eq_u32 s32, 1")
    a("s_cselect_b32 s22, s22, s23")
    a("s_cselect_b32 s20, -1, 15")
    a("s_cselect_b32 s21, -1, 0")
    a("s_mov_b64 exec, s[20:21]")
    a("buffer_store_dwordx4 v[216:219], v9, s[16:19], s22 offen sc1")
    a("s_mov_b64 exec, -1")
    a.label(l)
    stamp(a, "kvpub")
    rd_q(2)
    side = []
    sd = side.append
    sd("v_and_b32 v25, 31, v2"); sd("v_cmp_eq_u32 vcc, 16, v25"); sd("v_mov_b32 v25, 0x3f803f80")
    sd("s_lshl_b32 s36, s32, 12"); sd(f"s_add_u32 s36, s36, {STG}")
    sd("v_cndmask_b32 v25, 0, v25, vcc")
    sd("v_mov_b32 v110, v5"); sd("v_mov_b32 v111, v4"); sd("v_mov_b32 v10, v29"); sd("v_mov_b32 v11, v28")
    sd("v_mov_b32 v3, v9")
    sd("v_lshrrev_b32 v4, 5, v2"); sd("v_lshlrev_b32 v4, 8, v4"); sd("v_lshl_add_u32 v4, v8, 4, v4"); sd("v_add_u32 v4, 1024, v4")
    sd("s_mov_b32 s38, 0x0000ffff"); sd("s_mov_b32 s39, 0x0000ffff"); sd("s_mov_b32 s37, 0")
    for i in range(12): sd(f"v_mov_b32 v{V[0]+4+i}, v25")
    sd(f"v_mov_b32 v{IDX}, 0xdddddddd")
    sd(f"s_mov_b32 s24, {f32(QSCALE)}")
    for r in range(4): sd(f"v_mul_f32 v{208+r}, s24, v{208+r}")
    for u in range(2): sd(f"v_mul_f32 v{205+2*u}, s24, v{205+2*u}")
    per = (len(side) + 7) // 8
    for s in range(16):
        if s < 13:
            rd_q(s + 3)
            a("s_waitcnt lgkmcnt(6)")
        else:
            a(f"s_waitcnt lgkmcnt({2 * (15 - s)})")
        stamp(a, f"q{s}")
        extra = []
        if 4 <= s < 12: extra += side[per*(s-4):per*(s-3)]
        if s >= 12: extra += [f"v_mov_b32 v{O+4*(s-12)+i}, 0" for i in range(4)]
        h = (len(extra) + 1) // 2
        for u in range(2):
            mf16(a, QA + 4 * u, 236 + 4 * (s & 3), XR + 4 * (16 * u + s), None if s == 0 else QA + 4 * u)
            for q in (extra[:h] if u == 0 else extra[h:]): a(q)
        if s == F1STEP:
            a("s_lshl_b32 s20, s31, 7")
            a("s_add_u32 s20, s20, s40")
            a("v_mov_b32 v6, 0")
            a("v_mov_b32 v7, s48")
            a("s_waitcnt vmcnt(0)")
            a("s_mov_b64 exec, 1")
            a("buffer_store_dword v7, v6, s[16:19], s20 offen sc1")
            a("s_mov_b64 exec, -1")
            stamp(a, "f1")
    for i in range(4): a(f"v_mov_b32 v{V[0]+i}, v25")
    for u in range(2):
        for r in range(4):
            q = QA + 4 * u + r
            a(f"v_fma_f32 v{q}, -v{204+2*u}, v{212+r}, v{q}")
            a(f"v_fma_f32 v{q}, v{q}, v{205+2*u}, v{208+r}")
        a(f"v_cvt_pk_bf16_f32 v{Q+2*u}, v{QA+4*u}, v{QA+4*u+1}")
        a(f"v_cvt_pk_bf16_f32 v{Q+1+2*u}, v{QA+4*u+2}, v{QA+4*u+3}")
    a("s_nop 1")
    a(f"v_permlane16_swap_b32 v{Q}, v{Q+2}")
    a(f"v_permlane16_swap_b32 v{Q+1}, v{Q+3}")
    a("s_barrier")
    stamp(a, "att0")
    a(f"ds_read_b128 v[{K[0]}:{K[0]+3}], v3")
    a(f"ds_read_b128 v[{K[1]}:{K[1]+3}], v3 offset:2048")
    a("s_and_b32 s28, s32, 3")
    a("s_lshl_b32 s20, s30, 13")
    a("s_lshl_b32 s21, s28, 11")
    a("s_add_u32 s40, s20, s21")
    a(f"s_add_u32 s40, s40, {WS_F1}")
    a("v_lshlrev_b32 v12, 7, v8")
    if not KVP: a("buffer_load_dword v13, v12, s[16:19], s40 offen" + PF)
    a("s_lshl_b32 s28, s28, 12")
    a("s_lshl_b32 s20, 6, s31")
    a("s_lshr_b32 s21, s20, 8")
    a("s_or_b32 s20, s20, s21")
    a("s_and_b32 s20, s20, 0xff")
    a("s_lshl_b32 s21, 1, s31")
    a("s_or_b32 s21, s21, s20")
    a("s_xor_b32 s20, s20, 0xff")
    a("s_add_u32 s22, s28, 32768")
    a("s_cmp_gt_u32 s32, 3")
    a("s_cselect_b32 s43, s21, s20")
    a("s_cselect_b32 s61, s22, s28")
    a("s_waitcnt lgkmcnt(1)")
    s0 = S[0]
    a(f"v_mfma_f32_32x32x16_bf16 v[{s0}:{s0+15}], v[{K[0]}:{K[0]+3}], v[{Q}:{Q+3}], 0")
    a("s_nop 11")
    a(f"v_max3_f32 v6, v{s0}, v{s0+1}, v{s0+2}")
    for i in range(3, 15, 2):
        a(f"v_max3_f32 v6, v6, v{s0+i}, v{s0+i+1}")
    a(f"v_max_f32 v6, v6, v{s0+15}")
    def setmax():
        a("v_mov_b32 v7, v6")
        a("s_nop 1")
        a("v_permlane32_swap_b32 v7, v6")
        a("s_nop 1")
        a("v_max_f32 v6, v6, v7")
        for i in range(16):
            a(f"v_sub_f32 v{C+i}, 0, v6")
    setmax()
    a("s_mov_b64 exec, s[38:39]")
    a(f"ds_read_b128 v[{V[0]}:{V[0]+3}], v4")
    a(f"ds_read_b128 v[{V[0]+4}:{V[0]+7}], v4 offset:512")
    a("s_mov_b64 exec, -1")
    a(f"v_mfma_f32_32x32x16_bf16 v[{s0}:{s0+15}], v[{K[0]}:{K[0]+3}], v[{Q}:{Q+3}], v[{C}:{C+15}]")
    for i in range(8):
        a(f"v_mov_b32 v{S[1]+8+i}, 0")
    a("s_nop 3")

    hooks = {}
    import os
    NOH = os.environ.get("NOHOOK", "")
    def hook(t, fn, kind=""):
        if kind and kind in NOH: return
        hooks.setdefault(t, []).append(fn)
    def old_only(fn):
        def f():
            l = a.newlabel("Lold")
            a("s_cmp_gt_u32 s32, 3")
            a(f"s_cbranch_scc1 {l}")
            fn()
            a.label(l)
        return f
    def late_only(fn):
        def f():
            l = a.newlabel("Llate")
            a("s_cmp_lt_u32 s2, 128")
            a(f"s_cbranch_scc1 {l}")
            fn()
            a.label(l)
        return f
    def kv_phase(need, cap, name, first=False):
        def f():
            top = a.newlabel("Lkv"); pick = a.newlabel("Lkp"); more = a.newlabel("Lkm"); done = a.newlabel("Lkd")
            a(f"s_mov_b32 s60, {SPIN}")
            if not first: a(f"s_branch {pick}")
            a.label(top)
            a("s_waitcnt vmcnt(0)")
            a("v_cmp_eq_u32 vcc, s48, v13")
            a("s_lshr_b32 s21, vcc_lo, 8")
            a("s_and_b32 s29, vcc_lo, s21")
            a("s_and_b32 s29, s29, 0xff")
            a.label(pick)
            a(f"s_cmp_ge_u32 s61, {16384 * cap}")
            a(f"s_cbranch_scc1 {done}")
            a("s_andn2_b32 s20, s29, s43")
            a(f"s_cbranch_scc0 {more}")
            a("s_ff1_i32_b32 s21, s20")
            a("s_bitset1_b32 s43, s21")
            a("s_add_u32 s61, s61, 16384")
            a("s_mov_b32 m0, s61")
            a("s_lshl_b32 s21, s21, 14")
            a("s_add_u32 s21, s21, s28")
            a("s_add_u32 s21, s21, s35")
            for n in range(4):
                a(f"buffer_load_dwordx4 v9, s[16:19], s21 offen offset:{1024*n} sc1 lds")
            a(f"s_branch {pick}")
            a.label(more)
            a(f"s_cmp_ge_u32 s61, {16384 * need}")
            a(f"s_cbranch_scc1 {done}")
            a("buffer_load_dword v13, v12, s[16:19], s40 offen" + PF)
            a("s_sub_u32 s60, s60, 1")
            a("s_cmp_lg_u32 s60, 0")
            a(f"s_cbranch_scc1 {top}")
            a.label(done)
            stamp(a, name)
        return f
    def h_bar(n, name):
        def f():
            a(f"s_waitcnt vmcnt({n})")
            a("s_barrier")
            stamp(a, name)
        return f
    if KVP: hook(KVP, lambda: a("buffer_load_dword v13, v12, s[16:19], s40 offen" + PF))
    hook(2 + KVP, old_only(kv_phase(1, 1, "kvok", first=True)))
    hook(4 + KVP, old_only(kv_phase(2, 2, "kv2")))
    def young_only(fn):
        def f():
            l = a.newlabel("Lyg")
            a("s_cmp_lt_u32 s32, 4")
            a(f"s_cbranch_scc1 {l}")
            fn()
            a.label(l)
        return f
    hook(YK, young_only(kv_phase(0, 7, "ky", first=True)))
    hook(6, old_only(lambda: a("s_waitcnt vmcnt(4)")))
    hook(6, h_bar(63, "bar6"))
    hook(6, young_only(kv_phase(7, 7, "kv7")))
    def le_a():
        a("s_waitcnt vmcnt(0)")
        a(f"v_lshlrev_b32 v{WO+1}, 16, v{WO}")
        a(f"v_and_b32 v{WO}, 0xffff0000, v{WO}")
        silu(a, WO + 1, 5); silu(a, WO, 5)
        for n in range(4): trr(a, WO + 20 + 4 * n, 14, 15, 1024 * n)
        a(f"v_cvt_pk_bf16_f32 v{WO}, v{WO+1}, v{WO}")
        a("v_lshl_add_u32 v5, v2, 2, s36")
        a(f"ds_write_b32 v5, v{WO}")
        a("v_and_b32 v5, 48, v2")
        a("v_add_u32 v5, s36, v5")
        for n in range(4): a(f"ds_read_b128 v[{WO+4+4*n}:{WO+7+4*n}], v5 offset:{64*n}")
    def le_b():
        for n in range(4): mf16(a, WO, WO + 4 + 4 * n, WO + 20 + 4 * n, None if n == 0 else WO)
    def le_c():
        a("s_lshr_b32 s21, s2, 6")
        a("s_lshl_b32 s21, s21, 14")
        a("s_lshl_b32 s22, s62, 8")
        a("s_add_u32 s21, s21, s22")
        a("s_lshl_b32 s22, s20, 7")
        a("s_add_u32 s21, s21, s22")
        a(f"s_add_u32 s21, s21, {WS_MPL}")
        a("v_lshlrev_b32 v5, 3, v2")
        a(f"v_mov_b32 v{WO+1}, s48")
        a("s_mov_b64 exec, 0xffff")
        a(f"buffer_store_dwordx2 v[{WO}:{WO+1}], v5, s[16:19], s21 offen sc1")
        a("s_mov_b64 exec, -1")
    hook(7, lambda: w12(le_issue))
    hook(13, lambda: w12(le_a)); hook(14, lambda: w12(le_b))
    hook(14, h_bar(0, "bar14"))
    hook(15, lambda: w12(le_c))
    def h_prio():
        l = a.newlabel("Lpr")
        a("s_cmp_lt_u32 s32, 4")
        a(f"s_cbranch_scc1 {l}")
        a("s_setprio 1")
        a.label(l)
    hook(14, h_prio)
    hook(FLIP, lambda: a("s_setprio 0"))
    def h_wo(r):
        def f():
            if r == 0: srd(a, 12, 10, 512 * 1024)
            a("s_mov_b32 m0, s36")
            for n in range(4):
                a(f"s_mov_b32 s20, {32768*(4*r+n) - 1024*n}")
                a(f"buffer_load_dwordx4 v1, s[12:15], s20 offen offset:{1024*n} lds")
        return f
    def h_misc():
        a(f"global_load_dwordx4 v[{XT}:{XT+3}], v111, s[6:7]")
        a("s_lshl_b32 s21, s42, 8")
        a("v_lshl_add_u32 v5, v8, 4, s21")
        a("global_load_dwordx4 v[248:251], v5, s[52:53]")
        a("global_load_dwordx4 v[252:255], v9, s[52:53]")
    def h_moe_setup():
        l = a.newlabel("Lms"); l2 = a.newlabel("Lms")
        a("s_cmp_ge_u32 s2, 112")
        a(f"s_cbranch_scc1 {l}")
        a("v_mul_u32_u24 v109, 3584, v11")
        a("v_add_u32 v109, v109, v10")
        a("s_and_b32 s20, s32, 1")
        a("s_cmp_eq_u32 s20, 0")
        a("s_cselect_b32 s24, s54, s56")
        a("s_cselect_b32 s25, s55, s57")
        a(f"s_mov_b32 s26, {512*3584}")
        a("s_lshr_b32 s20, s32, 1")
        a(f"s_mul_i32 s43, s20, {128*3584}")
        a("s_and_b32 s33, s2, 7")
        a("s_mul_i32 s33, s33, 14")
        a("s_lshr_b32 s20, s2, 3")
        a("s_add_u32 s33, s33, s20")
        a("s_lshl_b32 s20, s33, 5")
        a("s_add_u32 s43, s43, s20")
        a(f"s_mov_b32 s61, {32*3584}")
        a(f"s_branch {l2}")
        a.label(l)
        a("v_lshl_add_u32 v109, v11, 10, v10")
        a("s_mov_b32 s24, s58")
        a("s_mov_b32 s25, s59")
        a(f"s_mov_b32 s26, {1792*1024}")
        a(f"s_mul_i32 s43, s32, {224*1024}")
        a("s_and_b32 s33, s2, 7")
        a("s_lshl_b32 s33, s33, 2")
        a("s_sub_u32 s20, s2, 112")
        a("s_bfe_u32 s20, s20, 0x20003")
        a("s_add_u32 s33, s33, s20")
        a("s_lshl_b32 s20, s33, 5")
        a("s_add_u32 s43, s43, s20")
        a(f"s_mov_b32 s61, {32*1024}")
        a.label(l2)
    def h_moe(n):
        def f():
            l = a.newlabel("Lmd")
            a("s_cmp_ge_u32 s2, 144")
            a(f"s_cbranch_scc1 {l}")
            if n >= 4:
                a("s_cmp_lt_u32 s2, 112")
                a(f"s_cbranch_scc1 {l}")
            a(f"buffer_load_dwordx4 v[{MW+4*n}:{MW+4*n+3}], v109, s[24:27], s43 offen")
            a("s_add_u32 s43, s43, s61")
            a.label(l)
        return f
    def cv_write(base, n):
        def f():
            for i in range(n): a(f"ds_write_b128 v1, v[{base+4*i}:{base+4*i+3}] offset:{1024*i}")
        return f
    def cv_wo(r):
        def f():
            for n in range(4):
                b = WO + 16 * r + 4 * n
                a(f"ds_read_b64_tr_b16 v[{b}:{b+1}], v110 offset:{1024*n}")
                a(f"ds_read_b64_tr_b16 v[{b+2}:{b+3}], v110 offset:{1024*n+256}")
        return f
    def cv_moe(base, n):
        def f():
            for i in range(n): trr(a, MW + base + 4 * i, 14, 15, 1024 * i)
        return f
    def lg_issue(lo=0, hi=4):
        a("v_lshlrev_b32 v5, 5, v0")
        for rg in range(lo, hi):
            a(f"s_mov_b32 s22, {WS_MPL + 16384*rg}")
            a(f"buffer_load_dwordx4 v[{GA+8*rg}:{GA+8*rg+3}], v5, s[16:19], s22 offen sc1")
            a(f"buffer_load_dwordx4 v[{GA+8*rg+4}:{GA+8*rg+7}], v5, s[16:19], s22 offen offset:16 sc1")
    WT = [15, 25, 35, 45]
    MT = [int(x) for x in os.environ.get('MT', '27,30,37,40,47,49,51').split(',')]
    def h_touch():
        l = a.newlabel("Ltc")
        a("s_cmp_lt_u32 s2, 144")
        a(f"s_cbranch_scc1 {l}")
        a("s_cmp_gt_u32 s32, 1")
        a(f"s_cbranch_scc1 {l}")
        a("s_sub_u32 s20, s2, 144")
        a("s_lshr_b32 s20, s20, 3")
        a("s_lshl_b32 s20, s20, 1")
        a("s_add_u32 s20, s20, s32")
        a("s_lshl_b32 s20, s20, 16")
        a("s_and_b32 s21, s2, 7")
        a("s_lshl_b32 s21, s21, 7")
        a("s_add_u32 s20, s20, s21")
        a("v_lshl_add_u32 v5, v2, 10, s20")
        a(f"global_load_dword v{XT}, v5, s[58:59]")
        a.label(l)
    if TOUCHD: hook(TOUCHD, h_touch)
    def h_touch_gu():
        l = a.newlabel("Ltg")
        a("s_cmp_lt_u32 s2, 144")
        a(f"s_cbranch_scc1 {l}")
        a("s_cmp_lt_u32 s32, 2")
        a(f"s_cbranch_scc1 {l}")
        a("s_and_b32 s20, s32, 1")
        a("s_cmp_eq_u32 s20, 0")
        a("s_cselect_b32 s24, s54, s56")
        a("s_cselect_b32 s25, s55, s57")
        a(f"s_mov_b32 s26, {512*3584}")
        a("s_sub_u32 s20, s2, 144")
        a("s_lshr_b32 s20, s20, 3")
        a("s_mul_i32 s20, s20, 3")
        a("s_lshr_b32 s21, s32, 1")
        a("s_add_u32 s20, s20, s21")
        a("s_lshl_b32 s20, s20, 6")
        a("s_sub_u32 s20, s20, 64")
        a("v_add_u32 v5, s20, v2")
        a("v_mul_u32_u24 v6, 13108, v5")
        a("v_lshrrev_b32 v6, 16, v6")
        a("v_mul_u32_u24 v7, 5, v6")
        a("v_sub_u32 v5, v5, v7")
        a("v_mul_u32_u24 v6, 3584, v6")
        a("v_lshl_add_u32 v5, v5, 7, v6")
        a("s_and_b32 s21, s2, 7")
        a("s_mul_i32 s21, s21, 448")
        a("s_and_b32 s21, s21, 0xff80")
        a(f"buffer_load_dword v{XT}, v5, s[24:27], s21 offen")
        a.label(l)
    if TOUCHG: hook(TOUCHG, h_touch_gu)
    def h_touch_wo():
        l = a.newlabel("Ltw")
        a("s_sub_u32 s20, s32, 2")
        a("s_cmp_gt_u32 s20, 1")
        a(f"s_cbranch_scc1 {l}")
        a("s_lshr_b32 s21, s2, 3")
        a("s_lshl_b32 s21, s21, 1")
        a("s_add_u32 s20, s20, s21")
        a("s_lshl_b32 s20, s20, 13")
        a("v_lshl_add_u32 v5, v2, 7, s20")
        a(f"global_load_dword v{XT}, v5, s[10:11]")
        a.label(l)
    if TOUCHW: hook(TOUCHW, h_touch_wo)
    hook(15, h_moe_setup)
    for r in range(4):
        hook(WT[r], h_wo(r), 'w')
        hook(WT[r] + 9, lambda: a("s_waitcnt vmcnt(0)") if False else None)
    for n in range(7): hook(MT[n], h_moe(n), 'm')
    hook(43, h_misc)
    def h_prew():
        a("s_add_u32 s20, s48, 1")
        a("v_mov_b32 v5, s20")
        a("v_lshlrev_b32 v6, 2, v2")
        a("s_lshl_b32 s21, s41, 12")
        a("s_lshl_b32 s22, s42, 10")
        a("s_add_u32 s21, s21, s22")
        a("s_lshl_b32 s22, s32, 7")
        a("s_add_u32 s21, s21, s22")
        a(f"s_add_u32 s21, s21, {WS_ST2}")
        a("s_mov_b32 exec_hi, 0")
        a("buffer_store_dword v5, v6, s[16:19], s21 offen sc1")
        a("s_lshl_b32 s21, s34, 12")
        a("s_lshl_b32 s22, s30, 7")
        a("s_add_u32 s21, s21, s22")
        a(f"s_add_u32 s21, s21, {WS_F2}")
        a("buffer_store_dword v5, v6, s[16:19], s21 offen sc1")
        l = a.newlabel("Lpw")
        a("s_or_b32 s20, s42, s32")
        a(f"s_cbranch_scc1 {l}")
        a(f"s_lshl_b32 s21, s41, {TOPSH}")
        a(f"s_add_u32 s21, s21, {WS_TOP}")
        a("buffer_store_dword v5, v6, s[16:19], s21 offen sc1")
        a.label(l)
        a("s_mov_b64 exec, -1")
    if PREW: hook(PREW, h_prew)
    def h_preo():
        a("s_lshl_b32 s21, s34, 15")
        a("s_lshl_b32 s22, s30, 10")
        a("s_add_u32 s21, s21, s22")
        a(f"s_add_u32 s21, s21, {WS_OF}")
        a(f"buffer_store_dwordx4 v[{Q}:{Q+3}], v9, s[16:19], s21 offen sc1")
    if PREO: hook(PREO, h_preo)
    for rg in range(4): hook(50 + rg, lambda rg=rg: lg_issue(rg, rg + 1), 'l')
    def wo_wait(r):
        def f():
            fixed = {0: 0, 1: 0, 2: 3, 3: 8}[r]
            inr = [n for n in range(7) if WT[r] < MT[n] < WT[r] + 9]
            ngu = len([n for n in inr if n < 4]); ndn = len(inr)
            l1 = a.newlabel("Lww"); l2 = a.newlabel("Lww")
            a(f"s_waitcnt vmcnt({fixed + ndn})")
            if ndn:
                a("s_sub_u32 s20, s2, 112")
                a("s_cmp_lt_u32 s20, 32")
                a(f"s_cbranch_scc1 {l2}")
                if ngu:
                    a(f"s_waitcnt vmcnt({fixed + ngu})")
                    a("s_cmp_lt_u32 s2, 112")
                    a(f"s_cbranch_scc1 {l2}")
                a(f"s_waitcnt vmcnt({fixed})")
                a.label(l2)
        return f
    for r in range(4):
        hook(WT[r] + 9, wo_wait(r), 'w')
        hook(WT[r] + 9, cv_wo(r), 'c')
    hook(56, lambda: a("v_add_u32 v1, s36, v9"))
    for t, nm in [(23, "t23"), (42, "t42")] + [(t, f"a{t}") for t in range(0, 64, 4)]:
        hook(t, lambda nm=nm: stamp(a, nm))

    def tile(t, off, hooks):
        cur = S[t & 1]; nxt = S[(t + 1) & 1]
        e = lambda i: a(f"v_exp_f32 v{cur+i}, v{cur+i}")
        vp = V[(t + 1) & 1]; kn = K[(t + 1) & 1]; kc = K[t & 1]; vc = V[t & 1]
        if TILEV:
            a("s_waitcnt lgkmcnt(0)")
            for fn in hooks.get(t, []): fn()
            a.raw(f".p2align {TILEV}")
            a(f"v_exp_f32_e64 v{cur}, v{cur}")
            e(1); e(2)
            a(f"v_smfmac_f32_32x32x32_bf16 v[{O}:{O+15}], v[{vp+4}:{vp+7}], v[{nxt+8}:{nxt+15}], v{IDX}")
            e(3); e(4); e(5); e(6)
            a(f"v_mfma_f32_32x32x16_bf16 v[{nxt}:{nxt+15}], v[{kn}:{kn+3}], v[{Q}:{Q+3}], v[{C}:{C+15}]")
            e(7)
            a("s_mov_b64 exec, s[38:39]")
            a(f"ds_read_b128 v[{vp}:{vp+3}], v4 offset:{2048*(off+1)}")
            a(f"ds_read_b128 v[{vp+4}:{vp+7}], v4 offset:{2048*(off+1)+512}")
            a("s_mov_b64 exec, -1")
            e(8)
            a(f"ds_read_b128 v[{kc}:{kc+3}], v3 offset:{2048*(off+2)}")
            e(9); e(10)
            a(f"v_smfmac_f32_32x32x32_bf16 v[{O}:{O+15}], v[{vc}:{vc+3}], v[{cur}:{cur+7}], v{IDX}")
            for i in range(11, 16): e(i)
            return
        a("s_waitcnt lgkmcnt(0)")
        for fn in hooks.get(t, []): fn()
        e(0); e(1); e(2)
        a(f"v_smfmac_f32_32x32x32_bf16 v[{O}:{O+15}], v[{vp+4}:{vp+7}], v[{nxt+8}:{nxt+15}], v{IDX}")
        e(3); e(4); e(5); e(6)
        a(f"v_mfma_f32_32x32x16_bf16 v[{nxt}:{nxt+15}], v[{kn}:{kn+3}], v[{Q}:{Q+3}], v[{C}:{C+15}]")
        a(f"ds_read_b128 v[{kc}:{kc+3}], v3 offset:{2048*(off+2)}")
        a("s_mov_b64 exec, s[38:39]")
        a(f"ds_read_b128 v[{vp}:{vp+3}], v4 offset:{2048*(off+1)}")
        a(f"ds_read_b128 v[{vp+4}:{vp+7}], v4 offset:{2048*(off+1)+512}")
        a("s_mov_b64 exec, -1")
        for i in range(7, 12): e(i)
        a(f"v_smfmac_f32_32x32x32_bf16 v[{O}:{O+15}], v[{vc}:{vc+3}], v[{cur}:{cur+7}], v{IDX}")
        for i in range(12, 16): e(i)
    for t in range(64):
        if t and t % 16 == 0:
            a("v_add_u32 v3, 0x8000, v3")
            a("v_add_u32 v4, 0x8000, v4")
        tile(t, t % 16, hooks)
    a("v_subrev_u32 v3, 0x18000, v3")
    a("v_subrev_u32 v4, 0x18000, v4")
    a.label("main_attn_tail")
    a(f"v_smfmac_f32_32x32x32_bf16 v[{O}:{O+15}], v[{V[1]+4}:{V[1]+7}], v[{S[1]+8}:{S[1]+15}], v{IDX}")
    stamp(a, "att1")
    a("s_lshl_b32 s21, s34, 15")
    a("s_lshl_b32 s22, s30, 10")
    a("s_add_u32 s21, s21, s22")
    a(f"s_add_u32 s21, s21, {WS_OF}")
    a(f"v_mov_b32 v6, {f32(2.0**40)}")
    a("s_waitcnt lgkmcnt(0)")
    a("s_nop 5")
    a(f"v_mov_b32 v7, v{O+8}")
    a(f"v_add_f32 v5, abs(v{O}), abs(v{O+1})")
    a(f"v_add_f32 v5, v5, abs(v{O+2})")
    a(f"v_permlane32_swap_b32 v{O+8}, v7")
    for i in range(3, 8):
        a(f"v_add_f32 v5, v5, abs(v{O+i})")
    a(f"v_mov_b32 v7, {f32(3.0e38)}")
    a(f"v_cmp_nle_f32 vcc, v{O+8}, v6")
    a(f"v_cmp_nle_f32 s[22:23], v5, v7")
    a("s_or_b64 vcc, vcc, s[22:23]")
    a("s_cmp_lg_u32 s37, 0")
    a("s_cbranch_scc1 main_fin")
    a("s_cbranch_vccnz main_fallback")
    a.label("main_fin")
    a(f"v_rcp_f32 v6, v{O+8}")
    a("s_nop 0")
    for i in range(8):
        a(f"v_mul_f32 v{O+i}, v{O+i}, v6")
    for i in range(4):
        a(f"v_cvt_pk_bf16_f32 v{16+i}, v{O+2*i}, v{O+2*i+1}")
    a("buffer_store_dwordx4 v[16:19], v9, s[16:19], s21 offen sc1")
    a("s_lshl_b32 s21, s34, 12")
    a("s_lshl_b32 s22, s30, 7")
    a("s_add_u32 s21, s21, s22")
    a(f"s_add_u32 s21, s21, {WS_F2}")
    a("v_mov_b32 v5, 0")
    a("v_mov_b32 v6, s48")
    def f2_store():
        a("s_mov_b64 exec, 1")
        a("buffer_store_dword v6, v5, s[16:19], s21 offen sc1")
        a("s_mov_b64 exec, -1")
        stamp(a, "f2")
    if OSENT: f2_store()
    a("v_lshrrev_b32 v20, 5, v2")
    a("v_lshlrev_b32 v20, 10, v20")
    a("v_bfe_u32 v21, v2, 4, 1")
    a("v_lshl_add_u32 v20, v21, 9, v20")
    a("v_lshl_add_u32 v20, v8, 4, v20")
    a("v_mul_u32_u24 v22, 528, v8")
    a("v_lshrrev_b32 v23, 4, v2")
    a("v_lshl_add_u32 v22, v23, 4, v22")
    a("s_lshl_b32 s22, s32, 6")
    a("s_add_u32 s22, s22, 32768")
    a("v_add_u32 v22, s22, v22")
    a("v_lshrrev_b32 v24, 4, v0")
    a("v_mul_u32_u24 v23, 528, v24")
    a("v_lshl_add_u32 v23, v8, 5, v23")
    a("v_add_u32 v23, 32768, v23")
    if ST2P:
        a("v_and_b32 v12, 48, v2")
        a("s_lshl_b32 s22, s32, 7")
        a("v_add_u32 v12, s22, v12")
        a("v_and_b32 v13, 3, v0")
        a("v_lshl_add_u32 v13, v13, 10, v12")
    else:
        a("v_lshlrev_b32 v12, 4, v24")
        a("v_and_b32 v13, 3, v0")
        a("v_lshl_add_u32 v13, v13, 9, v12")
    a("v_lshrrev_b32 v109, 10, v111")
    a("v_sub_u32 v109, 2047, v109")
    a("v_lshl_or_b32 v109, v109, 1, 1")
    a("v_lshlrev_b32 v110, 2, v24")
    a("v_add_u32 v110, 65536, v110")
    a(f"s_waitcnt vmcnt({2 if OSENT else 0})")
    unpack8(a, 40, XT)
    if not OSENT: f2_store()
    cv_write(MW, 4)(); cv_moe(0, 4)(); cv_write(MW + 16, 3)(); cv_moe(16, 3)()
    lchk = lambda: chk_ne(a, [GA + 2 * i + 1 for i in range(16)])
    lchk()
    a("s_cbranch_scc1 main_lok")
    poll_loop(a, lg_issue, lchk, "Ll")
    a.label("main_lok")
    for c in range(4):
        a(f"v_add_f32 v{GA+2*c}, v{GA+2*c}, v{GA+8+2*c}")
        a(f"v_add_f32 v{GA+16+2*c}, v{GA+16+2*c}, v{GA+24+2*c}")
        a(f"v_add_f32 v{56+c}, v{GA+2*c}, v{GA+16+2*c}")
    a("s_lshr_b32 s20, s32, 1")
    a("s_cmp_eq_u32 s20, 2")
    a("s_cselect_b32 s20, 1.0, 0")
    rnd_pair(a, 56, 57, 5); rnd_pair(a, 58, 59, 5)
    for c in range(4): a(f"v_add_f32 v{56+c}, s20, v{56+c}")
    rnd_pair(a, 56, 57, 5); rnd_pair(a, 58, 59, 5)
    a("ds_write_b128 v1, v[56:59]")
    a("s_lshr_b32 s20, s42, 1")
    a("s_lshl_b32 s20, s20, 12")
    a("s_and_b32 s21, s42, 1")
    a("s_lshl_b32 s21, s21, 9")
    a("s_add_u32 s20, s20, s21")
    a(f"s_add_u32 s20, s20, {STG}")
    a("v_lshl_add_u32 v10, v8, 5, s20")
    a("v_lshrrev_b32 v11, 5, v2")
    a("v_lshlrev_b32 v11, 12, v11")
    a("v_and_b32 v5, 31, v2")
    a("v_lshl_add_u32 v11, v5, 5, v11")
    a(f"v_add_u32 v11, {STG}, v11")
    unpack8(a, 72, 252)
    for i in range(4):
        a(f"v_lshlrev_b32 v{WP+2*i}, 16, v{248+i}")
        a(f"v_and_b32 v{WP+2*i+1}, 0xffff0000, v{248+i}")
    a("s_waitcnt lgkmcnt(0)")
    a("s_cmp_lg_u32 s32, 0")
    a("s_cbranch_scc1 main_s2")
    a("v_and_b32 v5, 31, v2")
    a("v_lshlrev_b32 v5, 7, v5")
    a("s_lshl_b32 s22, s41, 12")
    a(f"s_add_u32 s22, s22, {WS_F2}")
    poll_loop(a, lambda: a("buffer_load_dword v6, v5, s[16:19], s22 offen" + PF), lambda: chk_ne(a, [6]), "Lo", sleep=F2S)
    a.label("main_s2")
    a("s_lshl_b32 s23, s32, 12")
    a("s_lshl_b32 s22, s41, 15")
    a("s_add_u32 s22, s22, s23")
    a(f"s_add_u32 s62, s22, {WS_OF}")
    a("v_add_u32 v27, s23, v9")
    a("s_mov_b32 m0, s23")
    a("s_barrier")
    stamp(a, "s2")
    for n in range(4):
        a(f"buffer_load_dwordx4 v9, s[16:19], s62 offen offset:{1024*n} sc1 lds")
    a(f"s_lshl_b32 s21, s41, {11 + ST2P}")
    a(f"s_add_u32 s21, s21, {WS_ST2}")
    a(f"s_lshl_b32 s22, s42, {9 + ST2P}")
    a("s_add_u32 s22, s22, s21")
    a("s_mov_b32 s24, 0x00010001")
    a("s_mov_b32 s25, 0x00010001")
    a("v_mov_b32 v55, s48")
    for j, reg in enumerate((GA, SB, CB, GB)):
        a(f"ds_read_b128 v[{reg}:{reg+3}], v10 offset:{8192*j}")
        a(f"ds_read_b128 v[{reg+4}:{reg+7}], v10 offset:{8192*j+16}")
    for j in range(2):
        a(f"ds_read_b128 v[{56+8*j}:{59+8*j}], v11 offset:{8192*(j+1)}")
        a(f"ds_read_b128 v[{60+8*j}:{63+8*j}], v11 offset:{8192*(j+1)+16}")
    a("s_waitcnt lgkmcnt(0)")
    for i in range(8):
        a(f"v_mul_f32 v{WP+i}, v{WP+i}, v{CB+i}")
    a("v_mul_f32 v252, v72, v64")
    a("v_mul_f32 v253, v72, v56")
    for i in range(1, 8):
        a(f"v_fmac_f32 v252, v{72+i}, v{64+i}")
        a(f"v_fmac_f32 v253, v{72+i}, v{56+i}")
    multi_allreduce(a, [252, 253], [5, 6])
    a("s_waitcnt vmcnt(0)")
    if OSENT:
        a(f"s_mov_b32 s60, {SPIN}")
        a.label("main_ov")
        for n in range(4): a(f"ds_read_b32 v{28+n}, v27 offset:{1024*n}")
        a("s_waitcnt lgkmcnt(0)")
        a("v_max3_u32 v28, v28, v29, v30")
        a("v_max_u32 v28, v28, v31")
        a("v_cmp_eq_u32 vcc, -1, v28")
        a("s_cbranch_vccz main_ok")
        for n in range(4):
            a(f"buffer_load_dwordx4 v9, s[16:19], s62 offen offset:{1024*n} sc1 lds")
        a("s_sub_u32 s60, s60, 1")
        a("s_waitcnt vmcnt(0)")
        a("s_cmp_lg_u32 s60, 0")
        a("s_cbranch_scc1 main_ov")
        a.label("main_ok")
    a("s_barrier")
    stamp(a, "olan")
    OFR = 56
    def rd(s):
        b = OFR + 8 * (s % 4)
        a(f"ds_read_b128 v[{b}:{b+3}], v20 offset:{2048*s}")
        a(f"ds_read_b128 v[{b+4}:{b+7}], v20 offset:{2048*s+256}")
    rd(0); rd(1); rd(2)
    for s in range(16):
        if s < 13:
            rd(s + 3)
            a("s_waitcnt lgkmcnt(6)")
        else:
            a(f"s_waitcnt lgkmcnt({2*(15-s)})")
        b = OFR + 8 * (s % 4)
        stamp(a, f"o{s}")
        for u in range(2):
            mf16(a, 24 + 4 * u, WO + 4 * s, b + 4 * u, None if s == 0 else 24 + 4 * u)
    stamp(a, "omf")
    a("s_nop 6")
    a("ds_write_b128 v22, v[24:27]")
    a(f"ds_write_b128 v22, v[28:31] offset:{16*528}")
    a("s_waitcnt lgkmcnt(0)")
    a("s_barrier")
    stamp(a, "tbar")
    a("ds_read_b128 v[32:35], v23")
    a("ds_read_b128 v[36:39], v23 offset:16")
    a("s_mov_b32 s23, 0xffff0000")
    def rnd4(lo):
        for i in lo: a(f"v_cvt_pk_bf16_f32 v{56+i//2}, v{32+i}, v{33+i}")
        for i in lo:
            a(f"v_lshlrev_b32 v{32+i}, 16, v{56+i//2}")
            a(f"v_and_b32 v{33+i}, s23, v{56+i//2}")
    a("s_waitcnt lgkmcnt(0)")
    E = (0, 2, 4, 6)
    rnd4(E)
    for i in E: a(f"v_pk_mul_f32 v[{32+i}:{33+i}], v[{32+i}:{33+i}], v[{GA+i}:{GA+i+1}]")
    rnd4(E)
    for i in E: a(f"v_pk_add_f32 v[{32+i}:{33+i}], v[{32+i}:{33+i}], v[{40+i}:{41+i}]")
    for i in E: a(f"v_cvt_pk_bf16_f32 v{48+i//2}, v{32+i}, v{33+i}")
    for i in E:
        a(f"v_lshlrev_b32 v{32+i}, 16, v{48+i//2}")
        a(f"v_and_b32 v{33+i}, s23, v{48+i//2}")
    a("v_pk_add_f32 v[56:57], v[32:33], v[34:35]")
    a("v_pk_mul_f32 v[58:59], v[32:33], v[32:33]")
    a(f"v_pk_mul_f32 v[60:61], v[32:33], v[{WP}:{WP+1}]")
    for i in (2, 4, 6):
        if i > 2: a(f"v_pk_add_f32 v[56:57], v[56:57], v[{32+i}:{33+i}]")
        a(f"v_pk_fma_f32 v[58:59], v[{32+i}:{33+i}], v[{32+i}:{33+i}], v[58:59]")
        a(f"v_pk_fma_f32 v[60:61], v[{32+i}:{33+i}], v[{WP+i}:{WP+i+1}], v[60:61]")
    a("v_add_f32 v52, v56, v57")
    a("v_add_f32 v53, v58, v59")
    a("v_add_f32 v54, v60, v61")
    a("s_nop 0")
    for n in (8, 4, 2, 1):
        for r in (52, 53, 54):
            a(f"v_add_f32_dpp v{r}, v{r}, v{r} row_ror:{n} row_mask:0xf bank_mask:0xf")
    a("s_mov_b64 exec, s[24:25]")
    a("buffer_store_dwordx4 v[52:55], v12, s[16:19], s22 offen sc1")
    a("s_mov_b64 exec, -1")
    stamp(a, "st2")
    if S3D: a(f"s_sleep {S3D}")
    poll_loop(a, lambda: a("buffer_load_dwordx4 v[56:59], v13, s[16:19], s21 offen" + PF), lambda: chk_ne(a, [59]), "Ls", sleep=S3S)
    stamp(a, "s3")
    for qp in ("[1,0,3,2]", "[2,3,0,1]"):
        for r in (56, 57, 58):
            a(f"v_add_f32_dpp v{r}, v{r}, v{r} quad_perm:{qp} row_mask:0xf bank_mask:0xf")
    a(f"v_mul_f32 v56, {f32(1/512)}, v56")
    a(f"v_mul_f32 v57, {f32(1/512)}, v57")
    a("v_fma_f32 v57, -v56, v56, v57")
    a("v_max_f32 v57, 0, v57")
    rnd_pair(a, 56, 57, 26)
    a(f"v_add_f32 v57, {f32(1e-5)}, v57")
    rnd_bf16(a, 57)
    a("v_sqrt_f32 v57, v57")
    a("v_fma_f32 v58, -v56, v252, v58")
    rnd_bf16(a, 57)
    a("v_rcp_f32 v57, v57")
    a("s_nop 0")
    a("v_fma_f32 v58, v58, v57, v253")
    a("v_cvt_pk_bf16_f32 v58, v58, v58")
    a("v_ashrrev_i32 v59, 31, v58")
    a("v_or_b32 v59, 0x80000000, v59")
    a("v_xor_b32 v58, v58, v59")
    a("v_and_b32 v58, 0xffff0000, v58")
    a("v_or_b32 v58, v58, v109")
    a("ds_write_b32 v110, v58")
    a("v_and_b32 v5, 31, v2")
    a("v_lshlrev_b32 v5, 2, v5")
    a("v_add_u32 v5, 65536, v5")
    a("s_waitcnt lgkmcnt(0)")
    a("s_barrier")
    stamp(a, "kbar")
    a("ds_read_b32 v10, v5")
    def h2_math(i):
        a(f"v_sub_f32 v{40+i}, v{32+i}, v56")
        a(f"v_sub_f32 v{41+i}, v{33+i}, v56")
        rnd_pair(a, 40 + i, 41 + i, 26)
        a(f"v_mul_f32 v{40+i}, v{40+i}, v57")
        a(f"v_mul_f32 v{41+i}, v{41+i}, v57")
        rnd_pair(a, 40 + i, 41 + i, 26)
        a(f"v_mul_f32 v{40+i}, v{40+i}, v{CB+i}")
        a(f"v_mul_f32 v{41+i}, v{41+i}, v{CB+i+1}")
        rnd_pair(a, 40 + i, 41 + i, 26)
        a(f"v_add_f32 v{40+i}, v{40+i}, v{SB+i}")
        a(f"v_add_f32 v{41+i}, v{41+i}, v{SB+i+1}")
        a(f"v_cvt_pk_bf16_f32 v{60+i//2}, v{40+i}, v{41+i}")
    h2_math(0)
    a("s_waitcnt lgkmcnt(0)")
    a("v_mov_b32 v64, v10")
    multi_allreduce(a, [64], [11], op="v_max_u32")
    a("v_cmp_eq_u32 vcc, v64, v10")
    a("s_nop 1")
    a("v_cndmask_b32 v65, v10, 0, vcc")
    multi_allreduce(a, [65], [11], op="v_max_u32")
    a("v_cmp_eq_u32 s[26:27], v64, v58")
    a("v_cmp_eq_u32 s[28:29], v65, v58")
    a("s_or_b32 s20, s42, s32")
    a("s_cmp_lg_u32 s20, 0")
    a("s_cbranch_scc1 main_notop")
    a("v_and_b32 v65, -2, v65")
    a("v_mov_b32 v66, s48")
    a("v_mov_b32 v67, s48")
    a(f"s_lshl_b32 s20, s41, {TOPSH}")
    a(f"s_add_u32 s20, s20, {WS_TOP}")
    a("v_mov_b32 v5, 0")
    a("s_mov_b64 exec, 1")
    a("buffer_store_dwordx4 v[64:67], v5, s[16:19], s20 offen sc1")
    a("s_mov_b64 exec, -1")
    a.label("main_notop")
    stamp(a, "top")
    for i in (2, 4, 6): h2_math(i)
    a("s_or_b64 s[62:63], s[26:27], s[28:29]")
    a("s_cmp_eq_u64 s[62:63], 0")
    a("s_cbranch_scc1 main_nocand")
    a("v_mov_b32 v5, 2048")
    a("v_cndmask_b32 v5, 0, v5, s[28:29]")
    a("v_lshl_add_u32 v5, v8, 4, v5")
    a("s_lshl_b32 s20, s41, 12")
    a("s_lshl_b32 s21, s42, 8")
    a("s_add_u32 s20, s20, s21")
    a(f"s_add_u32 s20, s20, {WS_CAND}")
    a("s_mov_b64 exec, s[62:63]")
    a("buffer_store_dwordx4 v[60:63], v5, s[16:19], s20 offen sc1")
    a("buffer_store_dwordx4 v[48:51], v5, s[16:19], s20 offen offset:1024 sc1")
    a("s_mov_b64 exec, -1")
    a.label("main_nocand")
    a("s_cmp_lg_u32 s32, 0")
    a("s_cbranch_scc1 main_notp")
    a(f"s_mov_b32 s22, {WS_TOP}")
    a(f"v_lshlrev_b32 v76, {TOPSH}, v2")
    a("buffer_load_dwordx4 v[68:71], v76, s[16:19], s22 offen" + PF)
    a.label("main_notp")
    for i in range(0, 8, 2):
        a(f"v_lshlrev_b32 v{40+i}, 16, v{60+i//2}")
        a(f"v_and_b32 v{41+i}, 0xffff0000, v{60+i//2}")
        a(f"v_mul_f32 v{40+i}, v{40+i}, v{GB+i}")
        a(f"v_mul_f32 v{41+i}, v{41+i}, v{GB+i+1}")
        rnd_pair(a, 40 + i, 41 + i, 26)
        a(f"v_add_f32 v{40+i}, v{40+i}, v{32+i}")
        a(f"v_add_f32 v{41+i}, v{41+i}, v{33+i}")
        a(f"v_cvt_pk_bf16_f32 v{72+i//2}, v{40+i}, v{41+i}")
    a("s_cmp_lg_u32 s32, 0")
    a("s_cbranch_scc1 main_w0e")
    def t_issue():
        if SLOWP:
            l = a.newlabel("Lsl")
            a("s_cmp_lt_u32 s2, 144")
            a(f"s_cbranch_scc1 {l}")
            a(f"s_sleep {SLOWP}")
            a.label(l)
        a("buffer_load_dwordx4 v[68:71], v76, s[16:19], s22 offen" + PF)
    poll_loop(a, t_issue, lambda: chk_ne(a, [70]), "Lt", first_issued=True, sleep=TSLEEP)
    a("v_mov_b32 v64, v68")
    multi_allreduce(a, [64], [11], op="v_max_u32")
    a("v_cmp_eq_u32 vcc, v64, v68")
    a("s_nop 1")
    a("v_cndmask_b32 v65, v68, v69, vcc")
    multi_allreduce(a, [65], [11], op="v_max_u32")
    a("v_mov_b32 v5, 65792")
    a("ds_write_b64 v5, v[64:65]")
    a("s_waitcnt lgkmcnt(0)")
    a.label("main_w0e")
    a("s_andn2_b64 exec, -1, s[62:63]")
    a("global_store_dwordx4 v111, v[72:75], s[50:51]" + OUTF)
    a("s_mov_b64 exec, -1")
    a("s_barrier")
    stamp(a, "s4")
    a("v_mov_b32 v5, 65792")
    a("ds_read_b64 v[64:65], v5")
    a("s_waitcnt lgkmcnt(0)")
    a("s_cmp_eq_u64 s[62:63], 0")
    a("s_cbranch_scc1 main_nodef")
    a("v_or_b32 v5, 1, v64")
    a("v_or_b32 v6, 1, v65")
    a("v_cmp_ne_u32 vcc, v5, v58")
    a("v_cmp_ne_u32 s[20:21], v6, v58")
    a("s_and_b64 vcc, vcc, s[20:21]")
    a("s_and_b64 exec, vcc, s[62:63]")
    a("s_cbranch_execz main_nodef")
    a("global_store_dwordx4 v111, v[72:75], s[50:51]" + OUTF)
    a.label("main_nodef")
    a("s_mov_b64 exec, -1")
    a("s_cmp_ge_u32 s2, 144")
    a("s_cbranch_scc1 main_done")
    def cand_off(key, d, t):
        a(f"v_bfe_u32 v{d}, v{key}, 6, 6")
        a(f"v_sub_u32 v{d}, 63, v{d}")
        a(f"v_lshlrev_b32 v{d}, 12, v{d}")
        a(f"v_not_b32 v{t}, v{key}")
        a(f"v_and_b32 v{t}, 1, v{t}")
        a(f"v_lshl_add_u32 v{d}, v{t}, 11, v{d}")
    a("s_cmp_ge_u32 s2, 112")
    a("s_cbranch_scc1 main_down")
    a("v_and_b32 v15, 1, v2")
    a("v_cmp_eq_u32 vcc, 0, v15")
    a("s_lshr_b32 s21, s32, 1")
    a("s_lshl_b32 s21, s21, 8")
    a("v_cndmask_b32 v16, v65, v64, vcc")
    cand_off(16, 17, 18)
    a("v_lshrrev_b32 v18, 4, v2")
    a("v_lshl_add_u32 v17, v18, 4, v17")
    a(f"s_add_u32 s22, s21, {WS_CAND}")
    def issue():
        for n in range(4):
            a(f"buffer_load_dwordx4 v[{32+4*n}:{35+4*n}], v17, s[16:19], s22 offen offset:{64*n} sc1")
    def check():
        a("v_max3_u32 v5, v32, v36, v40")
        a("v_max_u32 v5, v5, v44")
        a("v_cmp_eq_u32 vcc, -1, v5")
        a("s_cmp_eq_u64 vcc, 0")
    poll_loop(a, issue, check, "Lh", sleep=2)
    stamp(a, "moe")
    for n in range(4):
        mf16(a, 20, 32 + 4 * n, MW + 4 * n, None if n == 0 else 20)
    PB = 66560
    def partial_and_gather():
        a("s_lshl_b32 s23, s32, 7")
        a(f"s_add_u32 s23, s23, {PB}")
        a("v_lshl_add_u32 v24, v2, 2, s23")
        a("s_mov_b64 exec, 0xffff")
        a("s_nop 4")
        a("ds_write_b32 v24, v20")
        a("ds_write_b32 v24, v21 offset:64")
        a("s_mov_b64 exec, -1")
        a("s_waitcnt lgkmcnt(0)")
        a("s_barrier")
        a("s_cmp_lg_u32 s32, 0")
        a("s_cbranch_scc1 main_done")
        a("v_and_b32 v24, 31, v0")
        a("v_lshlrev_b32 v24, 2, v24")
        a(f"v_add_u32 v24, {PB}, v24")
        for w in range(8):
            a(f"ds_read_b32 v{32+w}, v24 offset:{128*w}")
    partial_and_gather()
    a("v_lshlrev_b32 v25, 1, v0")
    a("s_lshl_b32 s21, s33, 7")
    a(f"s_add_u32 s21, s21, {WS_ACT}")
    a("s_waitcnt lgkmcnt(0)")
    for w in range(2, 8):
        a(f"v_add_f32 v{32+(w&1)}, v{32+(w&1)}, v{32+w}")
    rnd_pair(a, 32, 33, 40)
    silu(a, 32, 34)
    rnd_bf16(a, 32)
    a("v_mul_f32 v32, v32, v33")
    a("s_nop 1")
    a("v_mov_b32_dpp v33, v32 quad_perm:[1,0,3,2] row_mask:0xf bank_mask:0xf")
    a("v_cvt_pk_bf16_f32 v32, v32, v33")
    a("s_mov_b64 exec, 0x55555555")
    a("buffer_store_dword v32, v25, s[16:19], s21 offen sc1")
    a("s_mov_b64 exec, -1")
    a("s_branch main_done")
    a.label("main_down")
    if STAMPS is not None and "moe" in STAMPS: Prof.n -= 1
    a("v_bfe_u32 v15, v0, 4, 1")
    a("v_cmp_eq_u32 vcc, 0, v15")
    a("s_lshl_b32 s21, s33, 5")
    a(f"s_add_u32 s22, s21, {WS_CAND}")
    a("v_cndmask_b32 v12, v65, v64, vcc")
    cand_off(12, 16, 17)
    a("v_and_b32 v17, 14, v8")
    a("v_lshl_add_u32 v16, v17, 1, v16")
    def issue():
        a("buffer_load_dword v17, v16, s[16:19], s22 offen sc1")
        a("buffer_load_dword v18, v16, s[16:19], s22 offen offset:1024 sc1")
    def check():
        a("v_max_u32 v5, v17, v18")
        a("v_cmp_eq_u32 vcc, -1, v5")
        a("s_cmp_eq_u64 vcc, 0")
    a("s_lshr_b32 s23, s33, 4")
    a("s_lshl_b32 s23, s23, 12")
    a("s_and_b32 s20, s33, 15")
    a("s_lshl_b32 s20, s20, 6")
    a("s_add_u32 s23, s23, s20")
    a(f"s_add_u32 s23, s23, {STG + 3*8192}")
    a("v_lshl_add_u32 v19, v8, 2, s23")
    a("ds_read_b32 v19, v19")
    poll_loop(a, issue, check, "Lf", sleep=2)
    a("v_bfe_u32 v15, v12, 1, 11")
    a("v_sub_u32 v15, 2047, v15")
    a("v_lshlrev_b32 v15, 10, v15")
    a("v_lshl_add_u32 v15, v8, 1, v15")
    a("v_add_u32 v15, s21, v15")
    a("v_and_b32 v16, 1, v0")
    a("v_lshlrev_b32 v16, 4, v16")
    a("v_lshrrev_b32 v17, v16, v17")
    a("v_lshrrev_b32 v18, v16, v18")
    a("v_lshlrev_b32 v17, 16, v17")
    a("v_lshlrev_b32 v18, 16, v18")
    a("v_and_b32 v12, 0xffff0000, v12")
    a("v_ashrrev_i32 v25, 31, v12")
    a("v_not_b32 v25, v25")
    a("v_or_b32 v25, 0x80000000, v25")
    a("v_xor_b32 v12, v12, v25")
    a("v_and_b32 v12, 0xffff0000, v12")
    a(f"v_mul_f32 v25, {NLOG2E:#x}, v12")
    a("v_exp_f32 v25, v25")
    a("s_nop 0")
    a("v_add_f32 v25, 1.0, v25")
    a("v_rcp_f32 v25, v25")
    a("s_nop 0")
    rnd_bf16(a, 25)
    a("v_and_b32 v13, 1, v2")
    a("v_lshlrev_b32 v13, 5, v13")
    a("v_bfe_u32 v14, v2, 4, 1")
    a("v_lshl_add_u32 v13, v14, 4, v13")
    a("v_lshrrev_b32 v14, 5, v2")
    a("v_lshl_add_u32 v13, v14, 7, v13")
    a("s_mul_i32 s22, s32, 1792")
    a(f"s_add_u32 s22, s22, {WS_ACT}")
    def issue():
        for n in range(7):
            a(f"buffer_load_dwordx4 v[{32+4*n}:{35+4*n}], v13, s[16:19], s22 offen offset:{256*n}" + PF)
    def check():
        a("v_max3_u32 v5, v32, v33, v34")
        for i in range(3, 27, 2):
            a(f"v_max3_u32 v5, v5, v{32+i}, v{33+i}")
        a("v_max_u32 v5, v5, v59")
        a("v_cmp_eq_u32 vcc, -1, v5")
        a("s_cmp_eq_u64 vcc, 0")
    if ACTD: a(f"s_sleep {ACTD}")
    poll_loop(a, issue, check, "La", sleep=ACTS)
    stamp(a, "moe")
    for n in range(7):
        mf16(a, 20, 32 + 4 * n, MW + 4 * n, None if n == 0 else 20)
    partial_and_gather()
    a("s_waitcnt lgkmcnt(0)")
    for w in range(1, 8):
        a(f"v_add_f32 v32, v32, v{32+w}")
    rnd_bf16(a, 32)
    a("v_mul_f32 v32, v32, v25")
    rnd_bf16(a, 32)
    a("v_add_f32 v32, v32, v17")
    rnd_bf16(a, 32)
    a("v_mul_f32 v32, v32, v19")
    rnd_bf16(a, 32)
    a("v_add_f32 v32, v32, v18")
    a("v_cvt_pk_bf16_f32 v32, v32, v32")
    a("s_mov_b32 exec_hi, 0")
    a("global_store_short v15, v32, s[50:51]" + OUTF)
    a("s_cmp_lg_u32 s33, 0")
    a("s_cbranch_scc1 main_done")
    a("v_mov_b32 v5, 0")
    a("v_mov_b32 v6, s48")
    a("s_mov_b64 exec, 1")
    a("global_store_dword v5, v6, s[4:5]" + OUTF)
    a.label("main_done")
    if STAMPS is not None: stamp_end(a)
    a.label("main_end")
    a("s_endpgm")
    a.label("main_fallback")
    a("s_mov_b32 s37, 1")
    a("s_mov_b32 s20, 64")
    a("v_mov_b32 v6, 0xff800000")
    a("v_mov_b32 v5, v3")
    a.label("main_fb_loop")
    a(f"ds_read_b128 v[{K[0]}:{K[0]+3}], v5")
    a("v_add_u32 v5, 0x800, v5")
    a("s_waitcnt lgkmcnt(0)")
    a(f"v_mfma_f32_32x32x16_bf16 v[{s0}:{s0+15}], v[{K[0]}:{K[0]+3}], v[{Q}:{Q+3}], 0")
    a("s_nop 11")
    for i in range(0, 16, 2):
        a(f"v_max3_f32 v6, v6, v{s0+i}, v{s0+i+1}")
    a("s_sub_u32 s20, s20, 1")
    a("s_cmp_lg_u32 s20, 0")
    a("s_cbranch_scc1 main_fb_loop")
    a(f"ds_read_b128 v[{K[0]}:{K[0]+3}], v3")
    a(f"ds_read_b128 v[{K[1]}:{K[1]+3}], v3 offset:2048")
    for i in range(16):
        a(f"v_mov_b32 v{O+i}, 0")
    setmax()
    a("s_mov_b64 exec, s[38:39]")
    a(f"ds_read_b128 v[{V[0]}:{V[0]+3}], v4")
    a(f"ds_read_b128 v[{V[0]+4}:{V[0]+7}], v4 offset:512")
    a("s_mov_b64 exec, -1")
    a("s_waitcnt lgkmcnt(0)")
    a(f"v_mfma_f32_32x32x16_bf16 v[{s0}:{s0+15}], v[{K[0]}:{K[0]+3}], v[{Q}:{Q+3}], v[{C}:{C+15}]")
    for i in range(8):
        a(f"v_mov_b32 v{S[1]+8+i}, 0")
    a("s_mov_b32 s20, 32")
    a("s_nop 3")
    a.label("main_fb2")
    tile(0, 0, {}); tile(1, 1, {})
    a("v_add_u32 v3, 0x1000, v3")
    a("v_add_u32 v4, 0x1000, v4")
    a("s_sub_u32 s20, s20, 1")
    a("s_cmp_lg_u32 s20, 0")
    a("s_cbranch_scc1 main_fb2")
    a("v_subrev_u32 v3, 0x20000, v3")
    a("v_subrev_u32 v4, 0x20000, v4")
    a("s_branch main_attn_tail")

def main(out, aslist=False):
    hdr = open("adaLN_cond__mha_block__moe_arch_mod__prompt.s.ref").read().split("; Override launch")[0]
    txt = hdr
    if aslist:
        txt += f"; @launch kernel={KNAME} grid=(256,1,1) block=(512,1,1) lds=163840\n"
    else:
        txt += "; @launch grid=(256,1,1) block=(512,1,1) lds=163840\n"
    txt += '.amdgcn_target "amdgcn-amd-amdhsa--gfx950"\n'
    a = Asm()
    k_main(a)
    txt += a.text()
    txt += kernel_desc(KNAME, 256)
    open(out, "w").write(txt)

SETS = {
    "t2": ["s2", "olan", "o0", "o4", "o8", "o12", "omf", "tbar", "st2", "s3", "kbar", "top", "s4"],
    "sc": ["wland", "barx", "sc0", "sc1", "sc2", "sc3", "sc4", "sc5", "bar1", "p2", "p4", "p8", "p12"],
    "q": ["pass1", "kvpub", "q0", "q2", "q4", "q6", "q8", "q10", "f1", "q12", "q14", "att0", "a4"],
    "at": ["att0", "a4", "a8", "a12", "a16", "a24", "a32", "a40", "a48", "a52", "a56", "a60", "att1"],
    "ld": ["karg", "mp", "iw", "i2", "l0", "l1", "l2", "gath1", "barx", "bar1", "p3", "p6", "p9"],
    "p1": ["bar1", "p0", "p1", "p2", "p3", "p4", "p5", "p6", "p7", "p8", "p10", "p12", "p14"],
    "p2": ["p8", "p9", "p10", "p11", "p12", "p13", "p14", "p15", "pass1", "kvpub", "att0", "f1", "kvok"],
    "f0": ["karg", "pk", "ack", "l0", "l2", "gath0", "gath1", "wland", "barx", "bar1", "pass1", "f1", "att0"],
    "f1": ["barx", "bar1", "p5", "pass1", "kvpub", "att0", "f1", "kvok", "ky", "bar6", "bar14", "att1"],
    "tail": ["att0", "t23", "t42", "att1", "f2", "s2", "olan", "st2", "s3", "top", "s4", "moe"],
}
if __name__ == "__main__":
    if len(sys.argv) > 2 and sys.argv[2] in SETS:
        G1.PROF = True
        STAMPS = set(SETS[sys.argv[2]])
    main(sys.argv[1], aslist=(len(sys.argv) > 2 and sys.argv[2] != "final"))
    if STAMPS: print(" ".join(["start"] + ORDER + ["end"]))
```

```python
import sys, os
from asmlib import *
import gen_v1 as G1
from gen_v1 import (f32, multi_allreduce, unpack8, rnd_pair, tr_addr_natural, dma_row_src,
                    stamp_begin, stamp_end, Prof, NLOG2E, QSCALE, WS_BYTES)

KNAME = "adaLN_cond__mha_block__moe_arch_mod__prompt_kernel"
WS_EPOCH = 0
WS_MP = 0x1000
WS_ST1 = 0x10000
WS_MPL = 0x20000
WS_ST2 = 0x180000
WS_TOP = 0x60000
WS_ACT = 0x64000
WS_CAND = 0x80000
WS_F1 = 0x100000
WS_F2 = 0x140000
WS_WP = 0x200000
WS_KV = 0x500000
WS_OF = 0x900000
SPIN = 50000
STAMPS = None
ORDER = []

def stamp(a, name):
    if STAMPS is not None and name in STAMPS:
        if name not in ORDER: ORDER.append(name)
        G1.stamp(a)

def poll_loop(a, issue, check, name, first_issued=False, sleep=4):
    l = a.newlabel(name); d = a.newlabel(name + "d"); w = a.newlabel(name + "w")
    a(f"s_mov_b32 s60, {SPIN}")
    if first_issued: a(f"s_branch {w}")
    a.label(l)
    issue()
    if first_issued: a.label(w)
    a("s_waitcnt vmcnt(0)")
    check()
    a(f"s_cbranch_scc1 {d}")
    a("s_sub_u32 s60, s60, 1")
    if sleep: a(f"s_sleep {sleep}")
    a("s_cmp_lg_u32 s60, 0")
    a(f"s_cbranch_scc1 {l}")
    a.label(d)

def chk_ne(a, regs):
    a(f"v_cmp_ne_u32 vcc, s48, v{regs[0]}")
    for r in regs[1:]:
        a(f"v_cmp_ne_u32 s[20:21], s48, v{r}")
        a("s_or_b64 vcc, vcc, s[20:21]")
    a("s_cmp_eq_u64 vcc, 0")

def silu(a, x, t):
    a(f"v_mul_f32 v{t}, {NLOG2E:#x}, v{x}")
    a(f"v_exp_f32 v{t}, v{t}")
    a("s_nop 0")
    a(f"v_add_f32 v{t}, 1.0, v{t}")
    a(f"v_rcp_f32 v{t}, v{t}")
    a("s_nop 0")
    a(f"v_mul_f32 v{x}, v{x}, v{t}")

def mf16(a, d, A, B, c):
    cs = "0" if c is None else f"v[{c}:{c+3}]"
    a(f"v_mfma_f32_16x16x32_bf16 v[{d}:{d+3}], v[{A}:{A+3}], v[{B}:{B+3}], {cs}")

def trr(a, d, a1, a2, off):
    a(f"ds_read_b64_tr_b16 v[{d}:{d+1}], v{a1} offset:{off}")
    a(f"ds_read_b64_tr_b16 v[{d+2}:{d+3}], v{a2} offset:{off}")

WPB = 0; RING = 49152
REG = {0: 32768, 1: 0, 2: 16384}
EMB = 147456; SAT = 151552; CTE = 152576; CAT = 152832; REC = 154880; STT = 157440; FINR = 152576 - 0
STG = 131072
EM2 = 159744
FIN = 159488 - 320 + 64 - 64
Q = 16; C = 20; S = [36, 52]; O = 68; K = [84, 88]; V = [92, 100]; IDX = 108
WO = 112; MW = 176; XT = 204
GA = 208; SB = 216; CB = 224; GB = 232; WP = 240
FLIP = int(os.environ.get('FLIP', 54))
RBAR = int(os.environ.get('RBAR', 12))
TILEV = int(os.environ.get('TILEV', 0))
YK = int(os.environ.get('YK', 4))
TOUCHD = int(os.environ.get('TOUCHD', 16))
TOUCHG = int(os.environ.get('TOUCHG', 0))
TOUCHW = int(os.environ.get('TOUCHW', 7))
OUTF = os.environ.get('OUTF', '')
OSENT = int(os.environ.get('OSENT', 0))
TOPSH = int(os.environ.get('TOPSH', 7))
SLOWP = int(os.environ.get('SLOWP', 40))
TSLEEP = int(os.environ.get('TSLEEP', 2))
ST2P = int(os.environ.get('ST2P', 1))
PREW = int(os.environ.get('PREW', 25))
PREO = int(os.environ.get('PREO', 0))
PREF = int(os.environ.get('PREF', 1))
S3D = int(os.environ.get('S3D', 8))
S3S = int(os.environ.get('S3S', 1))
ACTD = int(os.environ.get('ACTD', 0))
ACTS = int(os.environ.get('ACTS', 2))
F2S = int(os.environ.get('F2S', 1))
PF = os.environ.get('PF', ' sc1')
KVP = int(os.environ.get('KVP', 0))
P1FLIP = int(os.environ.get('P1FLIP', 11))
TOUCH = 0
WPS = 16384 + 384
F1STEP = 10
XR = 32; WR = 160; ACC = 184; QA = 176; WF = [236, 244]

def k_main(a):
    kernel_begin(a, KNAME)
    a("s_cmp_ge_u32 s2, 256")
    a("s_cbranch_scc1 main_end")
    if STAMPS is not None: stamp_begin(a, 0)
    a("s_setprio 3")
    a("s_load_dwordx2 s[4:5], s[0:1], 96")
    a("s_load_dwordx4 s[44:47], s[0:1], 64")
    a("s_load_dwordx2 s[6:7], s[0:1], 0")
    a("s_load_dwordx4 s[8:11], s[0:1], 8")
    a("s_load_dwordx8 s[52:59], s[0:1], 32")
    a("s_load_dwordx2 s[50:51], s[0:1], 80")
    a("v_lshrrev_b32 v1, 6, v0")
    a("v_and_b32 v2, 63, v0")
    a("s_and_b32 s31, s2, 1")
    a("s_lshl_b32 s31, s31, 2")
    a("v_readfirstlane_b32 s32, v1")
    a("s_bfe_u32 s20, s2, 0x20003")
    a("s_add_u32 s31, s31, s20")
    a("s_and_b32 s30, s2, 6")
    a("s_lshl_b32 s30, s30, 2")
    a("s_lshr_b32 s20, s2, 5")
    a("s_add_u32 s30, s30, s20")
    a("s_lshl_b32 s33, s20, 1")
    a("v_lshlrev_b32 v9, 4, v2")
    a("v_lshrrev_b32 v17, 3, v2")
    a("v_and_b32 v16, 6, v17")
    a("v_xor_b32 v16, v16, v2")
    a("v_and_b32 v16, 7, v16")
    a("v_lshlrev_b32 v200, 10, v17")
    a("v_lshl_add_u32 v200, v16, 4, v200")
    for q in range(1, 4): a(f"v_add_u32 v{200+q}, {7168*q}, v200")
    dma_row_src(a, 255, 2, 6144, 16, 17)
    a("s_lshl_b32 s28, s31, 18")
    a("s_lshl_b32 s21, s32, 15")
    a("s_add_u32 s28, s28, s21")
    a("s_lshl_b32 s29, s33, 6")
    a("s_mul_i32 s49, s32, 12288")
    a(f"s_add_u32 s49, s49, {RING}")
    a("v_lshrrev_b32 v3, 1, v2")
    a("v_lshl_add_u32 v3, v1, 6, v3")
    a("v_and_b32 v6, 1, v0")
    a("v_bfe_u32 v22, v2, 1, 2")
    a("v_mul_u32_u24 v22, 3072, v22")
    a("v_lshrrev_b32 v17, 3, v2")
    a("v_lshl_add_u32 v22, v17, 5, v22")
    a("v_lshl_add_u32 v22, v6, 4, v22")
    a(f"v_mul_u32_u24 v23, {WPS}, v17")
    a("v_and_b32 v17, 7, v2")
    a("v_lshl_add_u32 v23, v17, 4, v23")
    a("s_and_b32 s36, s2, 7")
    a("s_lshl_b32 s36, s36, 4")
    a("s_lshr_b32 s20, s2, 4")
    a("s_add_u32 s36, s36, s20")
    a("s_bfe_u32 s37, s2, 0x10003")
    a("v_lshlrev_b32 v19, 3, v2")
    a("s_lshl_b32 s39, s2, 3")
    a("s_add_u32 s39, s39, s32")
    a("s_and_b32 s62, s2, 7")
    a("s_lshl_b32 s62, s62, 3")
    a("s_bfe_u32 s23, s2, 0x30003")
    a("s_add_u32 s62, s62, s23")
    a("s_waitcnt lgkmcnt(0)")
    stamp(a, "karg")
    a("s_load_dword s48, s[4:5], 0")
    srd(a, 24, 6, 2048 * 1024)
    srd(a, 16, 4, WS_BYTES)
    srd(a, 12, 8, 512 * 3072)
    a("s_cmp_lg_u32 s32, 0")
    a("s_cbranch_scc1 main_w0a")
    a("s_lshr_b32 s21, s2, 6")
    a("s_lshl_b32 s22, s21, 8")
    a("v_lshl_add_u32 v16, v2, 2, s22")
    a("global_load_dword v232, v16, s[44:45]")
    srd(a, 40, 46, 512 * 6144)
    a(f"s_mul_i32 s22, s21, {128*6144}")
    a("s_lshl_b32 s23, s62, 5")
    a("s_add_u32 s22, s22, s23")
    for n in range(4):
        a(f"s_mov_b32 m0, {EMB + 1024*n}")
        if n: a(f"s_add_u32 s22, s22, {32*6144}")
        else: a("s_nop 0")
        a("buffer_load_dwordx4 v255, s[40:43], s22 offen lds")
    a("s_branch main_w0i")
    a.label("main_w0a")
    a("s_cmp_eq_u32 s32, 7")
    a("s_cbranch_scc1 main_w0i")
    a(f"s_mul_i32 s20, s36, {4*3072}")
    a("s_mul_i32 s21, s37, 1536")
    a("s_add_u32 s20, s20, s21")
    a("s_lshl_b32 s21, s32, 8")
    a("s_add_u32 s20, s20, s21")
    a("s_sub_u32 s20, s20, 256")
    a(f"buffer_load_dwordx4 v[{WR}:{WR+3}], v22, s[12:15], s20 offen")
    a.label("main_w0i")
    a("s_lshl_b32 s22, s39, 10")
    a("buffer_load_dwordx4 v[204:207], v9, s[24:27], s22 offen")
    def dstep_issue(base, add):
        a("s_add_u32 s20, s28, s29")
        if add: a(f"s_add_u32 s21, s{base}, {add}")
        a(f"s_mov_b32 m0, s{21 if add else base}")
        a("s_add_u32 s29, s29, 128")
        for q in range(4):
            a(f"buffer_load_dwordx4 v{200+q}, s[24:27], s20 offen offset:{1024*q} lds")
        a("s_and_b32 s29, s29, 0x3ff")
    a("v_lshlrev_b32 v25, 4, v0")
    def g_issue():
        for rg in range(4):
            a(f"s_mov_b32 s22, {WS_MP + 8192*rg}")
            a(f"buffer_load_dwordx4 v[{184+4*rg}:{187+4*rg}], v25, s[16:19], s22 offen sc1")
    a("v_lshrrev_b32 v7, 4, v2")
    a("v_and_b32 v8, 15, v2")
    tr_addr_natural(a, 12, 13, 2, 14, 15)
    a("s_lshl_b32 s21, s33, 10")
    a("v_lshlrev_b32 v10, 5, v3")
    a("v_subrev_u32 v10, s21, v10")
    a("v_bfe_u32 v11, v3, 3, 1")
    a("v_lshlrev_b32 v11, 7, v11")
    a("v_xor_b32 v10, v10, v11")
    a("v_lshl_add_u32 v10, v6, 4, v10")
    a("v_and_b32 v10, 0x3fff, v10")
    a("v_xor_b32 v11, 1024, v10")
    a("s_lshl_b32 s20, s32, 11")
    a("s_sub_u32 s20, s20, s21")
    a("s_and_b32 s20, s20, 0x3fff")
    a("v_add_u32 v26, s20, v12")
    a("v_add_u32 v27, s20, v13")
    a("s_lshr_b32 s20, s20, 4")
    a(f"s_add_u32 s20, s20, {SAT}")
    a("v_lshl_add_u32 v30, v7, 4, s20")
    a("s_lshl_b32 s21, s32, 12")
    a(f"s_add_u32 s21, s21, {STG}")
    a("v_add_u32 v14, s21, v12")
    a("v_add_u32 v15, s21, v13")
    a("v_and_b32 v16, 6, v8")
    a("v_xor_b32 v16, v16, v7")
    a("v_lshlrev_b32 v16, 4, v16")
    a("v_and_b32 v17, 7, v8")
    a("v_lshl_add_u32 v16, v17, 7, v16")
    a("v_lshrrev_b32 v17, 3, v8")
    a("v_lshl_add_u32 v16, v17, 10, v16")
    a("v_xor_b32 v17, 64, v16")
    a("v_add_u32 v254, s49, v16")
    a("v_add_u32 v255, s49, v17")
    a("v_and_b32 v24, 31, v2")
    a("v_lshlrev_b32 v24, 4, v24")
    a("s_lshr_b32 s63, s28, 6")
    a(f"s_add_u32 s63, s63, {WS_ST1}")
    def rd_x2(d, reg, off):
        for e in range(2):
            for u in range(2):
                r = XR + 4 * (16 * u + 2 * d + e)
                a(f"ds_read_b128 v[{r}:{r+3}], v{reg+e} offset:{off + 2048*u}")
    def g_check(): chk_ne(a, [185, 187, 189, 191, 193, 195, 197, 199])
    stamp(a, "d7")
    def w56(fn):
        l = a.newlabel("Lw56")
        a("s_sub_u32 s20, s32, 5")
        a("s_cmp_gt_u32 s20, 1")
        a(f"s_cbranch_scc1 {l}")
        fn()
        a.label(l)
    def w12(fn):
        l = a.newlabel("Lw12")
        a("s_sub_u32 s20, s32, 1")
        a("s_cmp_gt_u32 s20, 1")
        a(f"s_cbranch_scc1 {l}")
        fn()
        a.label(l)
    def le_issue():
        srd(a, 12, 46, 512 * 6144)
        a("v_mul_u32_u24 v5, 6144, v11")
        a("v_add_u32 v5, v5, v10")
        a("s_lshr_b32 s21, s2, 6")
        a(f"s_mul_i32 s22, s21, {128*6144}")
        a("s_lshl_b32 s23, s62, 6")
        a("s_add_u32 s22, s22, s23")
        a("s_lshl_b32 s23, s20, 5")
        a("s_add_u32 s22, s22, s23")
        a("s_add_u32 s22, s22, 2048")
        a("s_mov_b32 s23, s36")
        a("s_lshl_b32 s21, s21, 8")
        a("v_lshl_add_u32 v6, v2, 2, s21")
        a(f"global_load_dword v{WO}, v6, s[44:45]")
        for n in range(4):
            a("s_mov_b32 m0, s23")
            if n: a(f"s_add_u32 s22, s22, {32*6144}")
            else: a("s_nop 0")
            a("buffer_load_dwordx4 v5, s[12:15], s22 offen lds")
            a("s_add_u32 s23, s23, 1024")
    a("s_lshr_b32 s41, s30, 2"); a("s_lshl_b32 s20, s31, 3"); a("s_add_u32 s41, s41, s20")
    a("s_and_b32 s42, s30, 3")
    a("v_and_b32 v29, 1, v2"); a("v_lshlrev_b32 v29, 4, v29")
    a("v_lshrrev_b32 v28, 1, v2"); a("v_lshl_add_u32 v1, v28, 10, v29")
    a("s_lshl_b32 s20, s42, 8"); a("s_lshl_b32 s21, s32, 5"); a("s_add_u32 s21, s21, s20"); a("v_add_u32 v1, s21, v1")
    a("v_bfe_u32 v16, v2, 4, 1"); a("v_lshlrev_b32 v17, 2, v16"); a("v_xor_b32 v28, v28, v17")
    a("v_lshrrev_b32 v5, 5, v2"); a("v_lshlrev_b32 v5, 9, v5"); a("v_lshl_add_u32 v5, v16, 7, v5")
    a("v_bfe_u32 v16, v2, 2, 2"); a("v_lshl_add_u32 v5, v16, 5, v5"); a("v_and_b32 v16, 3, v2"); a("v_lshl_add_u32 v5, v16, 3, v5")
    a("s_lshl_b32 s21, s32, 12"); a(f"s_add_u32 s21, s21, {STG}"); a("v_add_u32 v5, s21, v5")
    a("v_lshrrev_b32 v4, 4, v0"); a("v_lshlrev_b32 v4, 10, v4"); a("v_lshl_add_u32 v4, v8, 4, v4")
    a("s_lshl_b32 s21, s41, 15"); a("s_add_u32 s20, s20, s21"); a("v_add_u32 v4, s20, v4")
    a("s_lshl_b32 s20, s30, 13"); a("s_lshl_b32 s21, s32, 10"); a("s_add_u32 s40, s20, s21"); a(f"s_add_u32 s40, s40, {WS_F1}")
    a("s_cmp_lg_u32 s32, 0")
    a("s_cbranch_scc1 main_w0j")
    a(f"v_add_u32 v20, {EMB}, v12")
    a(f"v_add_u32 v21, {EMB}, v13")
    a("s_waitcnt vmcnt(5)")
    a("v_lshlrev_b32 v233, 16, v232")
    a("v_and_b32 v234, 0xffff0000, v232")
    silu(a, 233, 16); silu(a, 234, 16)
    a("v_cvt_pk_bf16_f32 v232, v233, v234")
    a("v_lshlrev_b32 v16, 2, v2")
    a(f"v_add_u32 v16, {CTE}, v16")
    a("ds_write_b32 v16, v232")
    a("v_and_b32 v17, 48, v2")
    a(f"v_add_u32 v17, {CTE}, v17")
    for n in range(4):
        a(f"ds_read_b128 v[{236+4*n}:{239+4*n}], v17 offset:{64*n}")
    a("s_lshr_b32 s38, s2, 6")
    a("s_lshl_b32 s38, s38, 13")
    a("s_lshl_b32 s22, s62, 7")
    a("s_add_u32 s38, s38, s22")
    a(f"s_add_u32 s38, s38, {WS_MP}")
    a("s_waitcnt vmcnt(0)")
    stamp(a, "emland")
    for n in range(4):
        trr(a, 216 + 4 * n, 20, 21, 1024 * n)
    a("s_waitcnt lgkmcnt(0)")
    a("s_add_u32 s22, s48, 1")
    for n in range(4):
        mf16(a, 232, 236 + 4 * n, 216 + 4 * n, None if n == 0 else 232)
    a("s_nop 7")
    a("v_mov_b32 v184, v232")
    a("v_mov_b32 v185, s22")
    a("s_branch main_w0b")
    a.label("main_w0j")
    a("s_waitcnt vmcnt(0)")
    a("s_cmp_eq_u32 s32, 7")
    a("s_cbranch_scc1 main_w0b")
    a("s_mul_i32 s20, s37, 6")
    a("s_add_u32 s20, s20, s32")
    a(f"s_mul_i32 s20, s20, {8*WPS}")
    a("s_lshl_b32 s21, s36, 7")
    a("s_add_u32 s20, s20, s21")
    a(f"s_add_u32 s20, s20, {WS_WP - 8*WPS}")
    a(f"buffer_store_dwordx4 v[{WR}:{WR+3}], v23, s[16:19], s20 offen sc1")
    a.label("main_w0b")
    stamp(a, "pk")
    if OSENT:
        for i in range(4): a(f"v_mov_b32 v{164+i}, -1")
        a("s_lshl_b32 s20, s31, 3")
        a("s_add_u32 s20, s20, s32")
        a("s_lshl_b32 s20, s20, 15")
        a("s_lshl_b32 s21, s30, 10")
        a("s_add_u32 s20, s20, s21")
        a(f"s_add_u32 s20, s20, {WS_OF}")
        a("buffer_store_dwordx4 v[164:167], v9, s[16:19], s20 offen sc1")
    a("s_barrier")
    dstep_issue(49, 0)
    a("s_waitcnt lgkmcnt(0)")
    a("s_add_u32 s48, s48, 1")
    unpack8(a, 208, 204)
    a("v_add_f32 v216, v208, v209")
    for i in range(2, 8): a(f"v_add_f32 v216, v216, v{208+i}")
    multi_allreduce(a, [216], [217])
    a(f"v_mul_f32 v216, {f32(1/512)}, v216")
    a("v_sub_f32 v217, v208, v216")
    a("v_mul_f32 v218, v217, v217")
    for i in range(1, 8):
        a(f"v_sub_f32 v217, v{208+i}, v216")
        a("v_fmac_f32 v218, v217, v217")
    multi_allreduce(a, [218], [217])
    a(f"v_mul_f32 v217, {f32(1/512)}, v218")
    rnd_pair(a, 216, 217, 218)
    a(f"v_add_f32 v217, {f32(1e-5)}, v217")
    rnd_bf16(a, 217)
    a("v_sqrt_f32 v217, v217")
    a("s_lshl_b32 s21, s39, 4")
    rnd_bf16(a, 217)
    a("v_rcp_f32 v217, v217")
    a("v_mov_b32 v218, s48")
    a("v_mov_b32 v219, s48")
    a(f"s_add_u32 s21, s21, {WS_ST1}")
    a("v_mov_b32 v16, 0")
    a("s_mov_b64 exec, 1")
    a("buffer_store_dwordx4 v[216:219], v16, s[16:19], s21 offen sc1")
    a("s_mov_b64 exec, -1")
    a("s_waitcnt vmcnt(5)")
    stamp(a, "ack")
    a("s_barrier")
    a("s_cmp_lg_u32 s32, 0")
    a("s_cbranch_scc1 main_w0c")
    a("s_mov_b64 exec, 0xffff")
    a("buffer_store_dwordx2 v[184:185], v19, s[16:19], s38 offen sc1")
    a("s_mov_b64 exec, -1")
    stamp(a, "mp")
    a.label("main_w0c")
    dstep_issue(49, 4096); dstep_issue(49, 8192)
    a("s_setprio 0")
    stamp(a, "i2")
    a("s_waitcnt vmcnt(9)")
    stamp(a, "l0")
    rd_x2(0, 254, 0)
    a("s_waitcnt lgkmcnt(0)")
    dstep_issue(49, 0)
    a("s_waitcnt vmcnt(8)")
    a("s_setprio 3")
    g_issue()
    rd_x2(1, 254, 4096)
    a("s_waitcnt vmcnt(8)")
    stamp(a, "l2")
    rd_x2(2, 254, 8192)
    a("s_waitcnt vmcnt(0)")
    stamp(a, "gath0")
    g_check()
    a("s_cbranch_scc1 main_gok")
    poll_loop(a, g_issue, g_check, "Lm")
    a.label("main_gok")
    stamp(a, "gath1")
    a(f"s_mul_i32 s20, s30, {WPS}")
    a("s_lshl_b32 s21, s32, 11")
    a("s_add_u32 s20, s20, s21")
    a(f"s_add_u32 s20, s20, {WS_WP}")
    for t in (0, 2, 1):
        a(f"s_add_u32 s21, s20, {32*WPS*t}")
        for p in range(2):
            r = WR + 4 * (3 * p + t)
            a(f"buffer_load_dwordx4 v[{r}:{r+3}], v9, s[16:19], s21 offen offset:{1024*p} sc1")
    a("s_setprio 0")
    rd_x2(3, 254, 0)
    for c in range(2):
        a(f"v_add_f32 v{184+2*c}, v{184+2*c}, v{188+2*c}")
        a(f"v_add_f32 v{192+2*c}, v{192+2*c}, v{196+2*c}")
        a(f"v_add_f32 v{184+2*c}, v{184+2*c}, v{192+2*c}")
    a("v_cvt_pk_bf16_f32 v188, v184, v186")
    a("s_cmp_gt_u32 s32, 3")
    a("s_cbranch_scc1 main_gca")
    a("s_lshl_b32 s21, s33, 6")
    a("v_lshlrev_b32 v16, 2, v0")
    a("v_subrev_u32 v16, s21, v16")
    a("v_and_b32 v16, 0x3ff, v16")
    a(f"v_add_u32 v16, {SAT}, v16")
    a("ds_write_b32 v16, v188")
    a("s_branch main_gdn")
    a.label("main_gca")
    a("v_lshlrev_b32 v184, 16, v188")
    a("v_and_b32 v185, 0xffff0000, v188")
    a("v_add_f32 v184, 1.0, v184")
    a("v_add_f32 v185, 1.0, v185")
    rnd_pair(a, 184, 185, 188)
    a("v_lshlrev_b32 v16, 3, v0")
    a(f"v_add_u32 v16, {CAT - 2048}, v16")
    a("ds_write_b64 v16, v[184:185]")
    a.label("main_gdn")
    a("v_lshlrev_b32 v16, 2, v3")
    a(f"v_add_u32 v16, {CAT}, v16")
    a("v_xor_b32 v17, 128, v16")
    a("s_waitcnt lgkmcnt(0)")
    dstep_issue(49, 4096)
    a("s_waitcnt vmcnt(6)")
    stamp(a, "wland")
    if PREF:
        a("s_lshl_b32 s20, s31, 7")
        a("s_add_u32 s20, s20, s40")
        a("s_xor_b32 s21, s48, 0x80000000")
        a("v_mov_b32 v18, s21")
        a("v_lshlrev_b32 v19, 2, v2")
        a("s_mov_b32 exec_hi, 0")
        a("buffer_store_dword v18, v19, s[16:19], s20 offen sc1")
        a("s_mov_b64 exec, -1")
    if PREF > 1:
        a("s_lshl_b32 s20, s31, 3")
        a("s_add_u32 s20, s20, s32")
        a("s_lshl_b32 s20, s20, 11")
        a("s_lshl_b32 s21, s30, 17")
        a("s_add_u32 s20, s20, s21")
        a(f"s_add_u32 s20, s20, {WS_KV}")
        a("buffer_store_dwordx4 v[32:35], v9, s[16:19], s20 offen sc1")
        a("buffer_store_dwordx4 v[32:35], v9, s[16:19], s20 offen offset:1024 sc1")
    for t in (0, 2):
        for p in range(2):
            r = WR + 4 * (3 * p + t)
            a(f"ds_write_b128 v{10+p}, v[{r}:{r+3}] offset:{REG[t]}")
    for n in range(2):
        trr(a, 236 + 8 * n, 26, 27, REG[0] + 1024 * n)
        trr(a, 240 + 8 * n, 26, 27, REG[2] + 1024 * n)
    for i in range(4): a(f"v_mov_b32 v{204+i}, 0x3f803f80")
    UPK = {1: 64, 2: 128, 0: 80}
    a("s_mov_b32 s22, 0xffff0000")
    for t in (0, 2, 1):
        if t == 1: a(f"s_waitcnt vmcnt({4 + (0, 1, 3)[PREF]})")
        for p in range(2):
            r = WR + 4 * (3 * p + t); T = UPK[t] + 8 * p
            for i in range(4):
                a(f"v_lshlrev_b32 v{T+2*i}, 16, v{r+i}")
                a(f"v_and_b32 v{T+2*i+1}, s22, v{r+i}")
    a("s_waitcnt lgkmcnt(0)")
    a("s_barrier")
    stamp(a, "barx")
    a("ds_read_b32 v188, v16")
    a("ds_read_b32 v189, v17")
    for n in range(2): a(f"ds_read_b128 v[{192+4*n}:{195+4*n}], v30 offset:{64*n}")
    a("s_mul_i32 s21, s32, 320")
    a(f"s_add_u32 s21, s21, {REC}")
    a("v_lshl_add_u32 v30, v7, 4, s21")
    a("v_lshl_add_u32 v31, v8, 3, s21")
    a("s_waitcnt lgkmcnt(2)")
    CSF = [80, 84, 64, 68, 128, 132]
    stamp(a, "sc0")
    for j, t in enumerate((1, 2, 0)):
        for p in range(2):
            r = WR + 4 * (3 * p + t)
            d = 208 + 4 * p
            T = UPK[t] + 8 * p
            for i in range(4):
                a(f"v_pk_mul_f32 v[{T+2*i}:{T+2*i+1}], v[{T+2*i}:{T+2*i+1}], v[188:189] " + ("op_sel_hi:[1,0]" if p == 0 else "op_sel:[0,1] op_sel_hi:[1,1]"))
            for i in range(4):
                a(f"v_cvt_pk_bf16_f32 v{d+i}, v{T+2*i}, v{T+2*i+1}")
            a(f"ds_write_b128 v{10+p}, v[{d}:{d+3}] offset:{REG[t]}")
        for n in range(2): trr(a, CSF[2 * t + n], 26, 27, REG[t] + 1024 * n)
        stamp(a, f"sc{j+1}")
        if j == 2: a("buffer_load_dwordx4 v[20:23], v24, s[16:19], s63 offen sc1")
        if j == 0:
            a("s_waitcnt lgkmcnt(6)")
            for n in range(2):
                mf16(a, 216, 236 + 8 * n, 192 + 4 * n, None if n == 0 else 216)
                mf16(a, 220, 192 + 4 * n, 240 + 8 * n, None if n == 0 else 220)
    a("s_waitcnt lgkmcnt(0)")
    for n in range(2):
        mf16(a, 228, CSF[2 + n], 204, None if n == 0 else 228)
        mf16(a, 232, 204, CSF[4 + n], None if n == 0 else 232)
        mf16(a, 224, CSF[n], 204, None if n == 0 else 224)
    a("v_lshlrev_b32 v16, 4, v7")
    a(f"v_add_u32 v16, {REC}, v16")
    a("v_lshlrev_b32 v17, 3, v8")
    a(f"v_add_u32 v17, {REC}, v17")
    stamp(a, "sc4")
    a("ds_write_b128 v30, v[216:219]")
    a("s_nop 1")
    a("v_mov_b32 v233, v220")
    a("ds_write_b128 v30, v[228:231] offset:128")
    a("ds_write_b64 v31, v[232:233] offset:192")
    a("ds_write_b128 v30, v[224:227] offset:64")
    a("s_waitcnt lgkmcnt(0)")
    stamp(a, "sc5")
    a("s_barrier")
    stamp(a, "bar1")
    WF3 = [236, 244, 176]
    def rd_kv(s):
        b = WF3[s % 3]
        trr(a, b, 12, 13, REG[1] + 1024 * s)
        trr(a, b + 4, 12, 13, REG[2] + 1024 * s)
    rd_kv(0); rd_kv(1)
    a("s_lshr_b32 s20, s32, 2")
    a("s_cmp_eq_u32 s20, 0")
    a("s_cbranch_scc1 main_p1o")
    a("s_setprio 1")
    a.label("main_p1o")
    DR = {2: 4, 7: 5, 9: 6, 11: 7}
    def rec_rd(w):
        d = (208, 212, 220, 224) if w == 0 else (228, 232, 216, 226)
        a(f"ds_read_b128 v[{d[0]}:{d[0]+3}], v16 offset:{320*w}")
        a(f"ds_read_b128 v[{d[1]}:{d[1]+3}], v16 offset:{320*w+64}")
        a(f"ds_read_b128 v[{d[2]}:{d[2]+3}], v16 offset:{320*w+128}")
        a(f"ds_read_b64 v[{d[3]}:{d[3]+1}], v17 offset:{320*w+192}")
    for s in range(16):
        if s < 14:
            rd_kv(s + 2)
            a(f"s_waitcnt lgkmcnt({8 if s == 0 else 4})")
        else:
            a(f"s_waitcnt lgkmcnt({4 * (15 - s)})")
        stamp(a, f"p{s}")
        if s == 0: dstep_issue(49, 8192)
        if s == 1: dstep_issue(49, 0)
        if s == 3: dstep_issue(49, 4096)
        b = WF3[s % 3]
        adds = []
        for u in range(2):
            x = XR + 4 * (16 * u + s)
            mf16(a, ACC + 4 * u, b, x, None if s == 0 else ACC + 4 * u)
            for q in adds[4*u:4*u+2]: a(q)
            mf16(a, ACC + 8 + 4 * u, x, b + 4, None if s == 0 else ACC + 8 + 4 * u)
            for q in adds[4*u+2:4*u+4]: a(q)
        if s == 0:
            l = a.newlabel("Lrs")
            a("s_cmp_lt_u32 s32, 6")
            a(f"s_cbranch_scc1 {l}")
            a("v_lshlrev_b32 v18, 2, v0")
            a(f"v_add_u32 v18, {REC - 1536}, v18")
            for w in range(8): a(f"ds_read_b32 v{208+w}, v18 offset:{320*w}")
            a("s_waitcnt lgkmcnt(0)")
            for w in range(1, 8): a(f"v_add_f32 v208, v208, v{208+w}")
            a(f"v_cmp_gt_u32 vcc, {384+80}, v0")
            a("s_nop 0")
            a("s_and_saveexec_b64 s[20:21], vcc")
            a("ds_write_b32 v18, v208")
            a("s_mov_b64 exec, -1")
            a.label(l)
        if s == P1FLIP: a("s_setprio 0")
        if s in DR:
            a(f"s_waitcnt vmcnt({ {4: 9, 5: 8, 6: 4, 7: 0}[DR[s]] })")
            rd_x2(DR[s], 254, 4096 * (DR[s] % 3))
        if s == 8:
            chk_ne(a, [22])
            a("s_cbranch_scc1 main_stok")
            poll_loop(a, lambda: a("buffer_load_dwordx4 v[20:23], v24, s[16:19], s63 offen sc1"),
                      lambda: chk_ne(a, [22]), "Lst")
            a.label("main_stok")
            a("s_lshl_b32 s21, s32, 8")
            a(f"s_add_u32 s21, s21, {STT}")
            a("v_lshrrev_b32 v18, 1, v24")
            a("v_add_u32 v18, s21, v18")
            a("ds_write_b64 v18, v[20:21]")
            a("v_lshl_add_u32 v18, v8, 3, s21")
            a("v_lshl_add_u32 v19, v7, 5, s21")
            for u in range(2):
                a(f"ds_read_b64 v[{204+2*u}:{205+2*u}], v18 offset:{128*u}")
                a(f"ds_read_b128 v[{160+8*u}:{163+8*u}], v19 offset:{128*u}")
                a(f"ds_read_b128 v[{164+8*u}:{167+8*u}], v19 offset:{128*u+16}")
        if s == 13:
            a("s_lshl_b32 s34, s31, 3")
            a("s_add_u32 s34, s34, s32")
            a("s_lshl_b32 s22, s30, 17")
            a(f"s_add_u32 s35, s22, {WS_KV}")
            a("s_lshl_b32 s23, s34, 11")
            a("s_add_u32 s22, s35, s23")
            a("v_and_b32 v18, 1, v7")
            a("v_lshlrev_b32 v18, 9, v18")
            a("v_lshrrev_b32 v19, 1, v7")
            a("v_lshl_add_u32 v18, v19, 8, v18")
            a("v_lshl_add_u32 v18, v8, 4, v18")
            a("s_lshl_b32 s23, s32, 11")
            a("v_add_u32 v19, s23, v9")
            a("v_add_u32 v20, s23, v18")
    stamp(a, "pass1")
    def rd_q(s):
        trr(a, 236 + 4 * (s & 3), 12, 13, REG[0] + 1024 * s)
    rd_q(0); rd_q(1)
    a("s_barrier")
    rec_rd(0)
    a("s_waitcnt lgkmcnt(0)")
    for u in range(2):
        for r in range(4):
            k = ACC + 4 * u + r
            a(f"v_fma_f32 v{k}, -v{204+2*u}, v{220+r}, v{k}")
            a(f"v_mul_f32 v{k}, v{k}, v{205+2*u}")
        a(f"v_cvt_pk_bf16_f32 v{228+2*u}, v{ACC+4*u}, v{ACC+4*u+1}")
        a(f"v_cvt_pk_bf16_f32 v{229+2*u}, v{ACC+4*u+2}, v{ACC+4*u+3}")
    for u in range(2):
        for r in range(4):
            v = ACC + 8 + 4 * u + r
            a(f"v_fma_f32 v{v}, -v{160+8*u+2*r}, v224, v{v}")
            a(f"v_fma_f32 v{v}, v{v}, v{161+8*u+2*r}, v225")
        if u == 0:
            a("v_permlane16_swap_b32 v228, v230")
            a("v_permlane16_swap_b32 v229, v231")
            a("buffer_store_dwordx4 v[228:231], v9, s[16:19], s22 offen sc1")
        a(f"v_cvt_pk_bf16_f32 v{232+2*u}, v{ACC+8+4*u}, v{ACC+8+4*u+1}")
        a(f"v_cvt_pk_bf16_f32 v{233+2*u}, v{ACC+8+4*u+2}, v{ACC+8+4*u+3}")
    a("ds_write_b128 v19, v[228:231]")
    a("s_nop 0")
    a("v_permlane16_swap_b32 v232, v234")
    a("v_permlane16_swap_b32 v233, v235")
    a("buffer_store_dwordx4 v[232:235], v18, s[16:19], s22 offen offset:1024 sc1")
    a("ds_write_b128 v20, v[232:235] offset:1024")
    l = a.newlabel("Lrz")
    a("s_sub_u32 s20, s32, 1")
    a("s_cmp_gt_u32 s20, 1")
    a(f"s_cbranch_scc1 {l}")
    for i in range(4): a(f"v_mov_b32 v{216+i}, -1")
    a("s_lshl_b32 s22, s2, 10")
    a(f"s_add_u32 s22, s22, {WS_CAND}")
    a("s_lshl_b32 s23, s2, 6")
    a(f"s_add_u32 s23, s23, {WS_ACT}")
    a("s_cmp_eq_u32 s32, 1")
    a("s_cselect_b32 s22, s22, s23")
    a("s_cselect_b32 s20, -1, 15")
    a("s_cselect_b32 s21, -1, 0")
    a("s_mov_b64 exec, s[20:21]")
    a("buffer_store_dwordx4 v[216:219], v9, s[16:19], s22 offen sc1")
    a("s_mov_b64 exec, -1")
    a.label(l)
    stamp(a, "kvpub")
    rd_q(2)
    side = []
    sd = side.append
    sd("v_and_b32 v25, 31, v2"); sd("v_cmp_eq_u32 vcc, 16, v25"); sd("v_mov_b32 v25, 0x3f803f80")
    sd("s_lshl_b32 s36, s32, 12"); sd(f"s_add_u32 s36, s36, {STG}")
    sd("v_cndmask_b32 v25, 0, v25, vcc")
    sd("v_mov_b32 v110, v5"); sd("v_mov_b32 v111, v4"); sd("v_mov_b32 v10, v29"); sd("v_mov_b32 v11, v28")
    sd("v_mov_b32 v3, v9")
    sd("v_lshrrev_b32 v4, 5, v2"); sd("v_lshlrev_b32 v4, 8, v4"); sd("v_lshl_add_u32 v4, v8, 4, v4"); sd("v_add_u32 v4, 1024, v4")
    sd("s_mov_b32 s38, 0x0000ffff"); sd("s_mov_b32 s39, 0x0000ffff"); sd("s_mov_b32 s37, 0")
    for i in range(12): sd(f"v_mov_b32 v{V[0]+4+i}, v25")
    sd(f"v_mov_b32 v{IDX}, 0xdddddddd")
    sd(f"s_mov_b32 s24, {f32(QSCALE)}")
    for r in range(4): sd(f"v_mul_f32 v{208+r}, s24, v{208+r}")
    for u in range(2): sd(f"v_mul_f32 v{205+2*u}, s24, v{205+2*u}")
    per = (len(side) + 7) // 8
    for s in range(16):
        if s < 13:
            rd_q(s + 3)
            a("s_waitcnt lgkmcnt(6)")
        else:
            a(f"s_waitcnt lgkmcnt({2 * (15 - s)})")
        stamp(a, f"q{s}")
        extra = []
        if 4 <= s < 12: extra += side[per*(s-4):per*(s-3)]
        if s >= 12: extra += [f"v_mov_b32 v{O+4*(s-12)+i}, 0" for i in range(4)]
        h = (len(extra) + 1) // 2
        for u in range(2):
            mf16(a, QA + 4 * u, 236 + 4 * (s & 3), XR + 4 * (16 * u + s), None if s == 0 else QA + 4 * u)
            for q in (extra[:h] if u == 0 else extra[h:]): a(q)
        if s == F1STEP:
            a("s_lshl_b32 s20, s31, 7")
            a("s_add_u32 s20, s20, s40")
            a("v_mov_b32 v6, 0")
            a("v_mov_b32 v7, s48")
            a("s_waitcnt vmcnt(0)")
            a("s_mov_b64 exec, 1")
            a("buffer_store_dword v7, v6, s[16:19], s20 offen sc1")
            a("s_mov_b64 exec, -1")
            stamp(a, "f1")
    for i in range(4): a(f"v_mov_b32 v{V[0]+i}, v25")
    for u in range(2):
        for r in range(4):
            q = QA + 4 * u + r
            a(f"v_fma_f32 v{q}, -v{204+2*u}, v{212+r}, v{q}")
            a(f"v_fma_f32 v{q}, v{q}, v{205+2*u}, v{208+r}")
        a(f"v_cvt_pk_bf16_f32 v{Q+2*u}, v{QA+4*u}, v{QA+4*u+1}")
        a(f"v_cvt_pk_bf16_f32 v{Q+1+2*u}, v{QA+4*u+2}, v{QA+4*u+3}")
    a("s_nop 1")
    a(f"v_permlane16_swap_b32 v{Q}, v{Q+2}")
    a(f"v_permlane16_swap_b32 v{Q+1}, v{Q+3}")
    a("s_barrier")
    stamp(a, "att0")
    a(f"ds_read_b128 v[{K[0]}:{K[0]+3}], v3")
    a(f"ds_read_b128 v[{K[1]}:{K[1]+3}], v3 offset:2048")
    a("s_and_b32 s28, s32, 3")
    a("s_lshl_b32 s20, s30, 13")
    a("s_lshl_b32 s21, s28, 11")
    a("s_add_u32 s40, s20, s21")
    a(f"s_add_u32 s40, s40, {WS_F1}")
    a("v_lshlrev_b32 v12, 7, v8")
    if not KVP: a("buffer_load_dword v13, v12, s[16:19], s40 offen" + PF)
    a("s_lshl_b32 s28, s28, 12")
    a("s_lshl_b32 s20, 6, s31")
    a("s_lshr_b32 s21, s20, 8")
    a("s_or_b32 s20, s20, s21")
    a("s_and_b32 s20, s20, 0xff")
    a("s_lshl_b32 s21, 1, s31")
    a("s_or_b32 s21, s21, s20")
    a("s_xor_b32 s20, s20, 0xff")
    a("s_add_u32 s22, s28, 32768")
    a("s_cmp_gt_u32 s32, 3")
    a("s_cselect_b32 s43, s21, s20")
    a("s_cselect_b32 s61, s22, s28")
    a("s_waitcnt lgkmcnt(1)")
    s0 = S[0]
    a(f"v_mfma_f32_32x32x16_bf16 v[{s0}:{s0+15}], v[{K[0]}:{K[0]+3}], v[{Q}:{Q+3}], 0")
    a("s_nop 11")
    a(f"v_max3_f32 v6, v{s0}, v{s0+1}, v{s0+2}")
    for i in range(3, 15, 2):
        a(f"v_max3_f32 v6, v6, v{s0+i}, v{s0+i+1}")
    a(f"v_max_f32 v6, v6, v{s0+15}")
    def setmax():
        a("v_mov_b32 v7, v6")
        a("s_nop 1")
        a("v_permlane32_swap_b32 v7, v6")
        a("s_nop 1")
        a("v_max_f32 v6, v6, v7")
        for i in range(16):
            a(f"v_sub_f32 v{C+i}, 0, v6")
    setmax()
    a("s_mov_b64 exec, s[38:39]")
    a(f"ds_read_b128 v[{V[0]}:{V[0]+3}], v4")
    a(f"ds_read_b128 v[{V[0]+4}:{V[0]+7}], v4 offset:512")
    a("s_mov_b64 exec, -1")
    a(f"v_mfma_f32_32x32x16_bf16 v[{s0}:{s0+15}], v[{K[0]}:{K[0]+3}], v[{Q}:{Q+3}], v[{C}:{C+15}]")
    for i in range(8):
        a(f"v_mov_b32 v{S[1]+8+i}, 0")
    a("s_nop 3")

    hooks = {}
    import os
    NOH = os.environ.get("NOHOOK", "")
    def hook(t, fn, kind=""):
        if kind and kind in NOH: return
        hooks.setdefault(t, []).append(fn)
    def old_only(fn):
        def f():
            l = a.newlabel("Lold")
            a("s_cmp_gt_u32 s32, 3")
            a(f"s_cbranch_scc1 {l}")
            fn()
            a.label(l)
        return f
    def late_only(fn):
        def f():
            l = a.newlabel("Llate")
            a("s_cmp_lt_u32 s2, 128")
            a(f"s_cbranch_scc1 {l}")
            fn()
            a.label(l)
        return f
    def kv_phase(need, cap, name, first=False):
        def f():
            top = a.newlabel("Lkv"); pick = a.newlabel("Lkp"); more = a.newlabel("Lkm"); done = a.newlabel("Lkd")
            a(f"s_mov_b32 s60, {SPIN}")
            if not first: a(f"s_branch {pick}")
            a.label(top)
            a("s_waitcnt vmcnt(0)")
            a("v_cmp_eq_u32 vcc, s48, v13")
            a("s_lshr_b32 s21, vcc_lo, 8")
            a("s_and_b32 s29, vcc_lo, s21")
            a("s_and_b32 s29, s29, 0xff")
            a.label(pick)
            a(f"s_cmp_ge_u32 s61, {16384 * cap}")
            a(f"s_cbranch_scc1 {done}")
            a("s_andn2_b32 s20, s29, s43")
            a(f"s_cbranch_scc0 {more}")
            a("s_ff1_i32_b32 s21, s20")
            a("s_bitset1_b32 s43, s21")
            a("s_add_u32 s61, s61, 16384")
            a("s_mov_b32 m0, s61")
            a("s_lshl_b32 s21, s21, 14")
            a("s_add_u32 s21, s21, s28")
            a("s_add_u32 s21, s21, s35")
            for n in range(4):
                a(f"buffer_load_dwordx4 v9, s[16:19], s21 offen offset:{1024*n} sc1 lds")
            a(f"s_branch {pick}")
            a.label(more)
            a(f"s_cmp_ge_u32 s61, {16384 * need}")
            a(f"s_cbranch_scc1 {done}")
            a("buffer_load_dword v13, v12, s[16:19], s40 offen" + PF)
            a("s_sub_u32 s60, s60, 1")
            a("s_cmp_lg_u32 s60, 0")
            a(f"s_cbranch_scc1 {top}")
            a.label(done)
            stamp(a, name)
        return f
    def h_bar(n, name):
        def f():
            a(f"s_waitcnt vmcnt({n})")
            a("s_barrier")
            stamp(a, name)
        return f
    if KVP: hook(KVP, lambda: a("buffer_load_dword v13, v12, s[16:19], s40 offen" + PF))
    hook(2 + KVP, old_only(kv_phase(1, 1, "kvok", first=True)))
    hook(4 + KVP, old_only(kv_phase(2, 2, "kv2")))
    def young_only(fn):
        def f():
            l = a.newlabel("Lyg")
            a("s_cmp_lt_u32 s32, 4")
            a(f"s_cbranch_scc1 {l}")
            fn()
            a.label(l)
        return f
    hook(YK, young_only(kv_phase(0, 7, "ky", first=True)))
    hook(6, old_only(lambda: a("s_waitcnt vmcnt(4)")))
    hook(6, h_bar(63, "bar6"))
    hook(6, young_only(kv_phase(7, 7, "kv7")))
    def le_a():
        a("s_waitcnt vmcnt(0)")
        a(f"v_lshlrev_b32 v{WO+1}, 16, v{WO}")
        a(f"v_and_b32 v{WO}, 0xffff0000, v{WO}")
        silu(a, WO + 1, 5); silu(a, WO, 5)
        for n in range(4): trr(a, WO + 20 + 4 * n, 14, 15, 1024 * n)
        a(f"v_cvt_pk_bf16_f32 v{WO}, v{WO+1}, v{WO}")
        a("v_lshl_add_u32 v5, v2, 2, s36")
        a(f"ds_write_b32 v5, v{WO}")
        a("v_and_b32 v5, 48, v2")
        a("v_add_u32 v5, s36, v5")
        for n in range(4): a(f"ds_read_b128 v[{WO+4+4*n}:{WO+7+4*n}], v5 offset:{64*n}")
    def le_b():
        for n in range(4): mf16(a, WO, WO + 4 + 4 * n, WO + 20 + 4 * n, None if n == 0 else WO)
    def le_c():
        a("s_lshr_b32 s21, s2, 6")
        a("s_lshl_b32 s21, s21, 14")
        a("s_lshl_b32 s22, s62, 8")
        a("s_add_u32 s21, s21, s22")
        a("s_lshl_b32 s22, s20, 7")
        a("s_add_u32 s21, s21, s22")
        a(f"s_add_u32 s21, s21, {WS_MPL}")
        a("v_lshlrev_b32 v5, 3, v2")
        a(f"v_mov_b32 v{WO+1}, s48")
        a("s_mov_b64 exec, 0xffff")
        a(f"buffer_store_dwordx2 v[{WO}:{WO+1}], v5, s[16:19], s21 offen sc1")
        a("s_mov_b64 exec, -1")
    hook(7, old_only(lambda: a("s_waitcnt vmcnt(0)")))
    hook(7, lambda: w12(le_issue))
    hook(14, young_only(lambda: a("s_waitcnt vmcnt(0)")))
    hook(14, h_bar(63, "bar14"))
    hook(14, lambda: w12(le_a)); hook(15, lambda: w12(le_b)); hook(16, lambda: w12(le_c))
    def h_prio():
        l = a.newlabel("Lpr")
        a("s_cmp_lt_u32 s32, 4")
        a(f"s_cbranch_scc1 {l}")
        a("s_setprio 1")
        a.label(l)
    hook(14, h_prio)
    hook(FLIP, lambda: a("s_setprio 0"))
    def h_wo(r):
        def f():
            if r == 0: srd(a, 12, 10, 512 * 1024)
            a("s_mov_b32 m0, s36")
            for n in range(4):
                a(f"s_mov_b32 s20, {32768*(4*r+n) - 1024*n}")
                a(f"buffer_load_dwordx4 v1, s[12:15], s20 offen offset:{1024*n} lds")
        return f
    def h_misc():
        a(f"global_load_dwordx4 v[{XT}:{XT+3}], v111, s[6:7]")
        a("s_lshl_b32 s21, s42, 8")
        a("v_lshl_add_u32 v5, v8, 4, s21")
        a("global_load_dwordx4 v[248:251], v5, s[52:53]")
        a("global_load_dwordx4 v[252:255], v9, s[52:53]")
    def h_moe_setup():
        l = a.newlabel("Lms"); l2 = a.newlabel("Lms")
        a("s_cmp_ge_u32 s2, 112")
        a(f"s_cbranch_scc1 {l}")
        a("v_mul_u32_u24 v109, 3584, v11")
        a("v_add_u32 v109, v109, v10")
        a("s_and_b32 s20, s32, 1")
        a("s_cmp_eq_u32 s20, 0")
        a("s_cselect_b32 s24, s54, s56")
        a("s_cselect_b32 s25, s55, s57")
        a(f"s_mov_b32 s26, {512*3584}")
        a("s_lshr_b32 s20, s32, 1")
        a(f"s_mul_i32 s43, s20, {128*3584}")
        a("s_and_b32 s33, s2, 7")
        a("s_mul_i32 s33, s33, 14")
        a("s_lshr_b32 s20, s2, 3")
        a("s_add_u32 s33, s33, s20")
        a("s_lshl_b32 s20, s33, 5")
        a("s_add_u32 s43, s43, s20")
        a(f"s_mov_b32 s61, {32*3584}")
        a(f"s_branch {l2}")
        a.label(l)
        a("v_lshl_add_u32 v109, v11, 10, v10")
        a("s_mov_b32 s24, s58")
        a("s_mov_b32 s25, s59")
        a(f"s_mov_b32 s26, {1792*1024}")
        a(f"s_mul_i32 s43, s32, {224*1024}")
        a("s_and_b32 s33, s2, 7")
        a("s_lshl_b32 s33, s33, 2")
        a("s_sub_u32 s20, s2, 112")
        a("s_bfe_u32 s20, s20, 0x20003")
        a("s_add_u32 s33, s33, s20")
        a("s_lshl_b32 s20, s33, 5")
        a("s_add_u32 s43, s43, s20")
        a(f"s_mov_b32 s61, {32*1024}")
        a.label(l2)
    def h_moe(n):
        def f():
            l = a.newlabel("Lmd")
            a("s_cmp_ge_u32 s2, 144")
            a(f"s_cbranch_scc1 {l}")
            if n >= 4:
                a("s_cmp_lt_u32 s2, 112")
                a(f"s_cbranch_scc1 {l}")
            a(f"buffer_load_dwordx4 v[{MW+4*n}:{MW+4*n+3}], v109, s[24:27], s43 offen")
            a("s_add_u32 s43, s43, s61")
            a.label(l)
        return f
    def cv_write(base, n):
        def f():
            for i in range(n): a(f"ds_write_b128 v1, v[{base+4*i}:{base+4*i+3}] offset:{1024*i}")
        return f
    def cv_wo(r):
        def f():
            for n in range(4):
                b = WO + 16 * r + 4 * n
                a(f"ds_read_b64_tr_b16 v[{b}:{b+1}], v110 offset:{1024*n}")
                a(f"ds_read_b64_tr_b16 v[{b+2}:{b+3}], v110 offset:{1024*n+256}")
        return f
    def cv_moe(base, n):
        def f():
            for i in range(n): trr(a, MW + base + 4 * i, 14, 15, 1024 * i)
        return f
    def lg_issue(lo=0, hi=4):
        a("v_lshlrev_b32 v5, 5, v0")
        for rg in range(lo, hi):
            a(f"s_mov_b32 s22, {WS_MPL + 16384*rg}")
            a(f"buffer_load_dwordx4 v[{GA+8*rg}:{GA+8*rg+3}], v5, s[16:19], s22 offen sc1")
            a(f"buffer_load_dwordx4 v[{GA+8*rg+4}:{GA+8*rg+7}], v5, s[16:19], s22 offen offset:16 sc1")
    WT = [15, 25, 35, 45]
    MT = [int(x) for x in os.environ.get('MT', '27,30,37,40,47,49,51').split(',')]
    def h_touch():
        l = a.newlabel("Ltc")
        a("s_cmp_lt_u32 s2, 144")
        a(f"s_cbranch_scc1 {l}")
        a("s_cmp_gt_u32 s32, 1")
        a(f"s_cbranch_scc1 {l}")
        a("s_sub_u32 s20, s2, 144")
        a("s_lshr_b32 s20, s20, 3")
        a("s_lshl_b32 s20, s20, 1")
        a("s_add_u32 s20, s20, s32")
        a("s_lshl_b32 s20, s20, 16")
        a("s_and_b32 s21, s2, 7")
        a("s_lshl_b32 s21, s21, 7")
        a("s_add_u32 s20, s20, s21")
        a("v_lshl_add_u32 v5, v2, 10, s20")
        a(f"global_load_dword v{XT}, v5, s[58:59]")
        a.label(l)
    if TOUCHD: hook(TOUCHD, h_touch)
    def h_touch_gu():
        l = a.newlabel("Ltg")
        a("s_cmp_lt_u32 s2, 144")
        a(f"s_cbranch_scc1 {l}")
        a("s_cmp_lt_u32 s32, 2")
        a(f"s_cbranch_scc1 {l}")
        a("s_and_b32 s20, s32, 1")
        a("s_cmp_eq_u32 s20, 0")
        a("s_cselect_b32 s24, s54, s56")
        a("s_cselect_b32 s25, s55, s57")
        a(f"s_mov_b32 s26, {512*3584}")
        a("s_sub_u32 s20, s2, 144")
        a("s_lshr_b32 s20, s20, 3")
        a("s_mul_i32 s20, s20, 3")
        a("s_lshr_b32 s21, s32, 1")
        a("s_add_u32 s20, s20, s21")
        a("s_lshl_b32 s20, s20, 6")
        a("s_sub_u32 s20, s20, 64")
        a("v_add_u32 v5, s20, v2")
        a("v_mul_u32_u24 v6, 13108, v5")
        a("v_lshrrev_b32 v6, 16, v6")
        a("v_mul_u32_u24 v7, 5, v6")
        a("v_sub_u32 v5, v5, v7")
        a("v_mul_u32_u24 v6, 3584, v6")
        a("v_lshl_add_u32 v5, v5, 7, v6")
        a("s_and_b32 s21, s2, 7")
        a("s_mul_i32 s21, s21, 448")
        a("s_and_b32 s21, s21, 0xff80")
        a(f"buffer_load_dword v{XT}, v5, s[24:27], s21 offen")
        a.label(l)
    if TOUCHG: hook(TOUCHG, h_touch_gu)
    def h_touch_wo():
        l = a.newlabel("Ltw")
        a("s_sub_u32 s20, s32, 2")
        a("s_cmp_gt_u32 s20, 1")
        a(f"s_cbranch_scc1 {l}")
        a("s_lshr_b32 s21, s2, 3")
        a("s_lshl_b32 s21, s21, 1")
        a("s_add_u32 s20, s20, s21")
        a("s_lshl_b32 s20, s20, 13")
        a("v_lshl_add_u32 v5, v2, 7, s20")
        a(f"global_load_dword v{XT}, v5, s[10:11]")
        a.label(l)
    if TOUCHW: hook(TOUCHW, h_touch_wo)
    hook(15, h_moe_setup)
    for r in range(4):
        if r: hook(WT[r], h_wo(r), 'w')
        else:
            def not12():
                l = a.newlabel("Ln12")
                a("s_sub_u32 s20, s32, 1")
                a("s_cmp_lt_u32 s20, 2")
                a(f"s_cbranch_scc1 {l}")
                h_wo(0)()
                a.label(l)
            hook(WT[0], not12)
            hook(WT[0] + 2, lambda: w12(h_wo(0)))
        hook(WT[r] + 9, lambda: a("s_waitcnt vmcnt(0)") if False else None)
    for n in range(7): hook(MT[n], h_moe(n), 'm')
    hook(43, h_misc)
    def h_prew():
        a("s_xor_b32 s20, s48, 0x80000000")
        a("v_mov_b32 v5, s20")
        a("v_lshlrev_b32 v6, 2, v2")
        a("s_lshl_b32 s21, s41, 12")
        a("s_lshl_b32 s22, s42, 10")
        a("s_add_u32 s21, s21, s22")
        a("s_lshl_b32 s22, s32, 7")
        a("s_add_u32 s21, s21, s22")
        a(f"s_add_u32 s21, s21, {WS_ST2}")
        a("s_mov_b32 exec_hi, 0")
        a("buffer_store_dword v5, v6, s[16:19], s21 offen sc1")
        a("s_lshl_b32 s21, s34, 12")
        a("s_lshl_b32 s22, s30, 7")
        a("s_add_u32 s21, s21, s22")
        a(f"s_add_u32 s21, s21, {WS_F2}")
        a("buffer_store_dword v5, v6, s[16:19], s21 offen sc1")
        l = a.newlabel("Lpw")
        a("s_or_b32 s20, s42, s32")
        a(f"s_cbranch_scc1 {l}")
        a(f"s_lshl_b32 s21, s41, {TOPSH}")
        a(f"s_add_u32 s21, s21, {WS_TOP}")
        a("buffer_store_dword v5, v6, s[16:19], s21 offen sc1")
        a.label(l)
        a("s_mov_b64 exec, -1")
    if PREW: hook(PREW, h_prew)
    def h_preo():
        a("s_lshl_b32 s21, s34, 15")
        a("s_lshl_b32 s22, s30, 10")
        a("s_add_u32 s21, s21, s22")
        a(f"s_add_u32 s21, s21, {WS_OF}")
        a(f"buffer_store_dwordx4 v[{Q}:{Q+3}], v9, s[16:19], s21 offen sc1")
    if PREO: hook(PREO, h_preo)
    for rg in range(4): hook(50 + rg, lambda rg=rg: lg_issue(rg, rg + 1), 'l')
    def wo_wait(r):
        def f():
            fixed = {0: 0, 1: 0, 2: 3, 3: 8}[r]
            inr = [n for n in range(7) if WT[r] < MT[n] < WT[r] + 9]
            ngu = len([n for n in inr if n < 4]); ndn = len(inr)
            l1 = a.newlabel("Lww"); l2 = a.newlabel("Lww")
            a(f"s_waitcnt vmcnt({fixed + ndn})")
            if ndn:
                a("s_sub_u32 s20, s2, 112")
                a("s_cmp_lt_u32 s20, 32")
                a(f"s_cbranch_scc1 {l2}")
                if ngu:
                    a(f"s_waitcnt vmcnt({fixed + ngu})")
                    a("s_cmp_lt_u32 s2, 112")
                    a(f"s_cbranch_scc1 {l2}")
                a(f"s_waitcnt vmcnt({fixed})")
                a.label(l2)
        return f
    for r in range(4):
        hook(WT[r] + 9, wo_wait(r), 'w')
        hook(WT[r] + 9, cv_wo(r), 'c')
    hook(56, lambda: a("v_add_u32 v1, s36, v9"))
    for t, nm in [(23, "t23"), (42, "t42")] + [(t, f"a{t}") for t in range(0, 64, 4)]:
        hook(t, lambda nm=nm: stamp(a, nm))

    def tile(t, off, hooks):
        cur = S[t & 1]; nxt = S[(t + 1) & 1]
        e = lambda i: a(f"v_exp_f32 v{cur+i}, v{cur+i}")
        vp = V[(t + 1) & 1]; kn = K[(t + 1) & 1]; kc = K[t & 1]; vc = V[t & 1]
        if TILEV:
            a("s_waitcnt lgkmcnt(0)")
            for fn in hooks.get(t, []): fn()
            a.raw(f".p2align {TILEV}")
            a(f"v_exp_f32_e64 v{cur}, v{cur}")
            e(1); e(2)
            a(f"v_smfmac_f32_32x32x32_bf16 v[{O}:{O+15}], v[{vp+4}:{vp+7}], v[{nxt+8}:{nxt+15}], v{IDX}")
            e(3); e(4); e(5); e(6)
            a(f"v_mfma_f32_32x32x16_bf16 v[{nxt}:{nxt+15}], v[{kn}:{kn+3}], v[{Q}:{Q+3}], v[{C}:{C+15}]")
            e(7)
            a("s_mov_b64 exec, s[38:39]")
            a(f"ds_read_b128 v[{vp}:{vp+3}], v4 offset:{2048*(off+1)}")
            a(f"ds_read_b128 v[{vp+4}:{vp+7}], v4 offset:{2048*(off+1)+512}")
            a("s_mov_b64 exec, -1")
            e(8)
            a(f"ds_read_b128 v[{kc}:{kc+3}], v3 offset:{2048*(off+2)}")
            e(9); e(10)
            a(f"v_smfmac_f32_32x32x32_bf16 v[{O}:{O+15}], v[{vc}:{vc+3}], v[{cur}:{cur+7}], v{IDX}")
            for i in range(11, 16): e(i)
            return
        a("s_waitcnt lgkmcnt(0)")
        for fn in hooks.get(t, []): fn()
        e(0); e(1); e(2)
        a(f"v_smfmac_f32_32x32x32_bf16 v[{O}:{O+15}], v[{vp+4}:{vp+7}], v[{nxt+8}:{nxt+15}], v{IDX}")
        e(3); e(4); e(5); e(6)
        a(f"v_mfma_f32_32x32x16_bf16 v[{nxt}:{nxt+15}], v[{kn}:{kn+3}], v[{Q}:{Q+3}], v[{C}:{C+15}]")
        a(f"ds_read_b128 v[{kc}:{kc+3}], v3 offset:{2048*(off+2)}")
        a("s_mov_b64 exec, s[38:39]")
        a(f"ds_read_b128 v[{vp}:{vp+3}], v4 offset:{2048*(off+1)}")
        a(f"ds_read_b128 v[{vp+4}:{vp+7}], v4 offset:{2048*(off+1)+512}")
        a("s_mov_b64 exec, -1")
        for i in range(7, 12): e(i)
        a(f"v_smfmac_f32_32x32x32_bf16 v[{O}:{O+15}], v[{vc}:{vc+3}], v[{cur}:{cur+7}], v{IDX}")
        for i in range(12, 16): e(i)
    for t in range(64):
        if t and t % 16 == 0:
            a("v_add_u32 v3, 0x8000, v3")
            a("v_add_u32 v4, 0x8000, v4")
        tile(t, t % 16, hooks)
    a("v_subrev_u32 v3, 0x18000, v3")
    a("v_subrev_u32 v4, 0x18000, v4")
    a.label("main_attn_tail")
    a(f"v_smfmac_f32_32x32x32_bf16 v[{O}:{O+15}], v[{V[1]+4}:{V[1]+7}], v[{S[1]+8}:{S[1]+15}], v{IDX}")
    stamp(a, "att1")
    a("s_lshl_b32 s21, s34, 15")
    a("s_lshl_b32 s22, s30, 10")
    a("s_add_u32 s21, s21, s22")
    a(f"s_add_u32 s21, s21, {WS_OF}")
    a(f"v_mov_b32 v6, {f32(2.0**40)}")
    a("s_waitcnt lgkmcnt(0)")
    a("s_nop 5")
    a(f"v_mov_b32 v7, v{O+8}")
    a(f"v_add_f32 v5, abs(v{O}), abs(v{O+1})")
    a(f"v_add_f32 v5, v5, abs(v{O+2})")
    a(f"v_permlane32_swap_b32 v{O+8}, v7")
    for i in range(3, 8):
        a(f"v_add_f32 v5, v5, abs(v{O+i})")
    a(f"v_mov_b32 v7, {f32(3.0e38)}")
    a(f"v_cmp_nle_f32 vcc, v{O+8}, v6")
    a(f"v_cmp_nle_f32 s[22:23], v5, v7")
    a("s_or_b64 vcc, vcc, s[22:23]")
    a("s_cmp_lg_u32 s37, 0")
    a("s_cbranch_scc1 main_fin")
    a("s_cbranch_vccnz main_fallback")
    a.label("main_fin")
    a(f"v_rcp_f32 v6, v{O+8}")
    a("s_nop 0")
    for i in range(8):
        a(f"v_mul_f32 v{O+i}, v{O+i}, v6")
    for i in range(4):
        a(f"v_cvt_pk_bf16_f32 v{16+i}, v{O+2*i}, v{O+2*i+1}")
    a("buffer_store_dwordx4 v[16:19], v9, s[16:19], s21 offen sc1")
    a("s_lshl_b32 s21, s34, 12")
    a("s_lshl_b32 s22, s30, 7")
    a("s_add_u32 s21, s21, s22")
    a(f"s_add_u32 s21, s21, {WS_F2}")
    a("v_mov_b32 v5, 0")
    a("v_mov_b32 v6, s48")
    def f2_store():
        a("s_mov_b64 exec, 1")
        a("buffer_store_dword v6, v5, s[16:19], s21 offen sc1")
        a("s_mov_b64 exec, -1")
        stamp(a, "f2")
    if OSENT: f2_store()
    a("v_lshrrev_b32 v20, 5, v2")
    a("v_lshlrev_b32 v20, 10, v20")
    a("v_bfe_u32 v21, v2, 4, 1")
    a("v_lshl_add_u32 v20, v21, 9, v20")
    a("v_lshl_add_u32 v20, v8, 4, v20")
    a("v_mul_u32_u24 v22, 528, v8")
    a("v_lshrrev_b32 v23, 4, v2")
    a("v_lshl_add_u32 v22, v23, 4, v22")
    a("s_lshl_b32 s22, s32, 6")
    a("s_add_u32 s22, s22, 32768")
    a("v_add_u32 v22, s22, v22")
    a("v_lshrrev_b32 v24, 4, v0")
    a("v_mul_u32_u24 v23, 528, v24")
    a("v_lshl_add_u32 v23, v8, 5, v23")
    a("v_add_u32 v23, 32768, v23")
    if ST2P:
        a("v_and_b32 v12, 48, v2")
        a("s_lshl_b32 s22, s32, 7")
        a("v_add_u32 v12, s22, v12")
        a("v_and_b32 v13, 3, v0")
        a("v_lshl_add_u32 v13, v13, 10, v12")
    else:
        a("v_lshlrev_b32 v12, 4, v24")
        a("v_and_b32 v13, 3, v0")
        a("v_lshl_add_u32 v13, v13, 9, v12")
    a("v_lshrrev_b32 v109, 10, v111")
    a("v_sub_u32 v109, 2047, v109")
    a("v_lshl_or_b32 v109, v109, 1, 1")
    a("v_lshlrev_b32 v110, 2, v24")
    a("v_add_u32 v110, 65536, v110")
    a(f"s_waitcnt vmcnt({2 if OSENT else 0})")
    unpack8(a, 40, XT)
    if not OSENT: f2_store()
    cv_write(MW, 4)(); cv_moe(0, 4)(); cv_write(MW + 16, 3)(); cv_moe(16, 3)()
    lchk = lambda: chk_ne(a, [GA + 2 * i + 1 for i in range(16)])
    lchk()
    a("s_cbranch_scc1 main_lok")
    poll_loop(a, lg_issue, lchk, "Ll")
    a.label("main_lok")
    for c in range(4):
        a(f"v_add_f32 v{GA+2*c}, v{GA+2*c}, v{GA+8+2*c}")
        a(f"v_add_f32 v{GA+16+2*c}, v{GA+16+2*c}, v{GA+24+2*c}")
        a(f"v_add_f32 v{56+c}, v{GA+2*c}, v{GA+16+2*c}")
    a("s_lshr_b32 s20, s32, 1")
    a("s_cmp_eq_u32 s20, 2")
    a("s_cselect_b32 s20, 1.0, 0")
    rnd_pair(a, 56, 57, 5); rnd_pair(a, 58, 59, 5)
    for c in range(4): a(f"v_add_f32 v{56+c}, s20, v{56+c}")
    rnd_pair(a, 56, 57, 5); rnd_pair(a, 58, 59, 5)
    a("ds_write_b128 v1, v[56:59]")
    a("s_lshr_b32 s20, s42, 1")
    a("s_lshl_b32 s20, s20, 12")
    a("s_and_b32 s21, s42, 1")
    a("s_lshl_b32 s21, s21, 9")
    a("s_add_u32 s20, s20, s21")
    a(f"s_add_u32 s20, s20, {STG}")
    a("v_lshl_add_u32 v10, v8, 5, s20")
    a("v_lshrrev_b32 v11, 5, v2")
    a("v_lshlrev_b32 v11, 12, v11")
    a("v_and_b32 v5, 31, v2")
    a("v_lshl_add_u32 v11, v5, 5, v11")
    a(f"v_add_u32 v11, {STG}, v11")
    unpack8(a, 72, 252)
    for i in range(4):
        a(f"v_lshlrev_b32 v{WP+2*i}, 16, v{248+i}")
        a(f"v_and_b32 v{WP+2*i+1}, 0xffff0000, v{248+i}")
    a("s_waitcnt lgkmcnt(0)")
    a("s_cmp_lg_u32 s32, 0")
    a("s_cbranch_scc1 main_s2")
    a("v_and_b32 v5, 31, v2")
    a("v_lshlrev_b32 v5, 7, v5")
    a("s_lshl_b32 s22, s41, 12")
    a(f"s_add_u32 s22, s22, {WS_F2}")
    poll_loop(a, lambda: a("buffer_load_dword v6, v5, s[16:19], s22 offen" + PF), lambda: chk_ne(a, [6]), "Lo", sleep=F2S)
    a.label("main_s2")
    a("s_lshl_b32 s23, s32, 12")
    a("s_lshl_b32 s22, s41, 15")
    a("s_add_u32 s22, s22, s23")
    a(f"s_add_u32 s62, s22, {WS_OF}")
    a("v_add_u32 v27, s23, v9")
    a("s_mov_b32 m0, s23")
    a("s_barrier")
    stamp(a, "s2")
    for n in range(4):
        a(f"buffer_load_dwordx4 v9, s[16:19], s62 offen offset:{1024*n} sc1 lds")
    a(f"s_lshl_b32 s21, s41, {11 + ST2P}")
    a(f"s_add_u32 s21, s21, {WS_ST2}")
    a(f"s_lshl_b32 s22, s42, {9 + ST2P}")
    a("s_add_u32 s22, s22, s21")
    a("s_mov_b32 s24, 0x00010001")
    a("s_mov_b32 s25, 0x00010001")
    a("v_mov_b32 v55, s48")
    for j, reg in enumerate((GA, SB, CB, GB)):
        a(f"ds_read_b128 v[{reg}:{reg+3}], v10 offset:{8192*j}")
        a(f"ds_read_b128 v[{reg+4}:{reg+7}], v10 offset:{8192*j+16}")
    for j in range(2):
        a(f"ds_read_b128 v[{56+8*j}:{59+8*j}], v11 offset:{8192*(j+1)}")
        a(f"ds_read_b128 v[{60+8*j}:{63+8*j}], v11 offset:{8192*(j+1)+16}")
    a("s_waitcnt lgkmcnt(0)")
    for i in range(8):
        a(f"v_mul_f32 v{WP+i}, v{WP+i}, v{CB+i}")
    a("v_mul_f32 v252, v72, v64")
    a("v_mul_f32 v253, v72, v56")
    for i in range(1, 8):
        a(f"v_fmac_f32 v252, v{72+i}, v{64+i}")
        a(f"v_fmac_f32 v253, v{72+i}, v{56+i}")
    multi_allreduce(a, [252, 253], [5, 6])
    a("s_waitcnt vmcnt(0)")
    if OSENT:
        a(f"s_mov_b32 s60, {SPIN}")
        a.label("main_ov")
        for n in range(4): a(f"ds_read_b32 v{28+n}, v27 offset:{1024*n}")
        a("s_waitcnt lgkmcnt(0)")
        a("v_max3_u32 v28, v28, v29, v30")
        a("v_max_u32 v28, v28, v31")
        a("v_cmp_eq_u32 vcc, -1, v28")
        a("s_cbranch_vccz main_ok")
        for n in range(4):
            a(f"buffer_load_dwordx4 v9, s[16:19], s62 offen offset:{1024*n} sc1 lds")
        a("s_sub_u32 s60, s60, 1")
        a("s_waitcnt vmcnt(0)")
        a("s_cmp_lg_u32 s60, 0")
        a("s_cbranch_scc1 main_ov")
        a.label("main_ok")
    a("s_barrier")
    stamp(a, "olan")
    OFR = 56
    def rd(s):
        b = OFR + 8 * (s % 4)
        a(f"ds_read_b128 v[{b}:{b+3}], v20 offset:{2048*s}")
        a(f"ds_read_b128 v[{b+4}:{b+7}], v20 offset:{2048*s+256}")
    rd(0); rd(1); rd(2)
    for s in range(16):
        if s < 13:
            rd(s + 3)
            a("s_waitcnt lgkmcnt(6)")
        else:
            a(f"s_waitcnt lgkmcnt({2*(15-s)})")
        b = OFR + 8 * (s % 4)
        stamp(a, f"o{s}")
        for u in range(2):
            mf16(a, 24 + 4 * u, WO + 4 * s, b + 4 * u, None if s == 0 else 24 + 4 * u)
    stamp(a, "omf")
    a("s_nop 6")
    a("ds_write_b128 v22, v[24:27]")
    a(f"ds_write_b128 v22, v[28:31] offset:{16*528}")
    a("s_waitcnt lgkmcnt(0)")
    a("s_barrier")
    stamp(a, "tbar")
    a("ds_read_b128 v[32:35], v23")
    a("ds_read_b128 v[36:39], v23 offset:16")
    a("s_mov_b32 s23, 0xffff0000")
    def rnd4(lo):
        for i in lo: a(f"v_cvt_pk_bf16_f32 v{56+i//2}, v{32+i}, v{33+i}")
        for i in lo:
            a(f"v_lshlrev_b32 v{32+i}, 16, v{56+i//2}")
            a(f"v_and_b32 v{33+i}, s23, v{56+i//2}")
    a("s_waitcnt lgkmcnt(0)")
    E = (0, 2, 4, 6)
    rnd4(E)
    for i in E: a(f"v_pk_mul_f32 v[{32+i}:{33+i}], v[{32+i}:{33+i}], v[{GA+i}:{GA+i+1}]")
    rnd4(E)
    for i in E: a(f"v_pk_add_f32 v[{32+i}:{33+i}], v[{32+i}:{33+i}], v[{40+i}:{41+i}]")
    for i in E: a(f"v_cvt_pk_bf16_f32 v{48+i//2}, v{32+i}, v{33+i}")
    for i in E:
        a(f"v_lshlrev_b32 v{32+i}, 16, v{48+i//2}")
        a(f"v_and_b32 v{33+i}, s23, v{48+i//2}")
    a("v_pk_add_f32 v[56:57], v[32:33], v[34:35]")
    a("v_pk_mul_f32 v[58:59], v[32:33], v[32:33]")
    a(f"v_pk_mul_f32 v[60:61], v[32:33], v[{WP}:{WP+1}]")
    for i in (2, 4, 6):
        if i > 2: a(f"v_pk_add_f32 v[56:57], v[56:57], v[{32+i}:{33+i}]")
        a(f"v_pk_fma_f32 v[58:59], v[{32+i}:{33+i}], v[{32+i}:{33+i}], v[58:59]")
        a(f"v_pk_fma_f32 v[60:61], v[{32+i}:{33+i}], v[{WP+i}:{WP+i+1}], v[60:61]")
    a("v_add_f32 v52, v56, v57")
    a("v_add_f32 v53, v58, v59")
    a("v_add_f32 v54, v60, v61")
    a("s_nop 0")
    for n in (8, 4, 2, 1):
        for r in (52, 53, 54):
            a(f"v_add_f32_dpp v{r}, v{r}, v{r} row_ror:{n} row_mask:0xf bank_mask:0xf")
    a("s_mov_b64 exec, s[24:25]")
    a("buffer_store_dwordx4 v[52:55], v12, s[16:19], s22 offen sc1")
    a("s_mov_b64 exec, -1")
    stamp(a, "st2")
    poll_loop(a, lambda: (a(f"s_sleep {S3D}"), a("buffer_load_dwordx4 v[56:59], v13, s[16:19], s21 offen" + PF)), lambda: chk_ne(a, [59]), "Ls", sleep=0)
    stamp(a, "s3")
    for qp in ("[1,0,3,2]", "[2,3,0,1]"):
        for r in (56, 57, 58):
            a(f"v_add_f32_dpp v{r}, v{r}, v{r} quad_perm:{qp} row_mask:0xf bank_mask:0xf")
    a(f"v_mul_f32 v56, {f32(1/512)}, v56")
    a(f"v_mul_f32 v57, {f32(1/512)}, v57")
    a("v_fma_f32 v57, -v56, v56, v57")
    a("v_max_f32 v57, 0, v57")
    rnd_pair(a, 56, 57, 26)
    a(f"v_add_f32 v57, {f32(1e-5)}, v57")
    rnd_bf16(a, 57)
    a("v_sqrt_f32 v57, v57")
    a("v_fma_f32 v58, -v56, v252, v58")
    rnd_bf16(a, 57)
    a("v_rcp_f32 v57, v57")
    a("s_nop 0")
    a("v_fma_f32 v58, v58, v57, v253")
    a("v_cvt_pk_bf16_f32 v58, v58, v58")
    a("v_ashrrev_i32 v59, 31, v58")
    a("v_or_b32 v59, 0x80000000, v59")
    a("v_xor_b32 v58, v58, v59")
    a("v_and_b32 v58, 0xffff0000, v58")
    a("v_or_b32 v58, v58, v109")
    a("ds_write_b32 v110, v58")
    a("v_and_b32 v5, 31, v2")
    a("v_lshlrev_b32 v5, 2, v5")
    a("v_add_u32 v5, 65536, v5")
    a("s_waitcnt lgkmcnt(0)")
    a("s_barrier")
    stamp(a, "kbar")
    a("ds_read_b32 v10, v5")
    def h2_math(i):
        a(f"v_sub_f32 v{40+i}, v{32+i}, v56")
        a(f"v_sub_f32 v{41+i}, v{33+i}, v56")
        rnd_pair(a, 40 + i, 41 + i, 26)
        a(f"v_mul_f32 v{40+i}, v{40+i}, v57")
        a(f"v_mul_f32 v{41+i}, v{41+i}, v57")
        rnd_pair(a, 40 + i, 41 + i, 26)
        a(f"v_mul_f32 v{40+i}, v{40+i}, v{CB+i}")
        a(f"v_mul_f32 v{41+i}, v{41+i}, v{CB+i+1}")
        rnd_pair(a, 40 + i, 41 + i, 26)
        a(f"v_add_f32 v{40+i}, v{40+i}, v{SB+i}")
        a(f"v_add_f32 v{41+i}, v{41+i}, v{SB+i+1}")
        a(f"v_cvt_pk_bf16_f32 v{60+i//2}, v{40+i}, v{41+i}")
    h2_math(0)
    a("s_waitcnt lgkmcnt(0)")
    a("v_mov_b32 v64, v10")
    multi_allreduce(a, [64], [11], op="v_max_u32")
    a("v_cmp_eq_u32 vcc, v64, v10")
    a("s_nop 1")
    a("v_cndmask_b32 v65, v10, 0, vcc")
    multi_allreduce(a, [65], [11], op="v_max_u32")
    a("v_cmp_eq_u32 s[26:27], v64, v58")
    a("v_cmp_eq_u32 s[28:29], v65, v58")
    a("s_or_b32 s20, s42, s32")
    a("s_cmp_lg_u32 s20, 0")
    a("s_cbranch_scc1 main_notop")
    a("v_and_b32 v65, -2, v65")
    a("v_mov_b32 v66, s48")
    a("v_mov_b32 v67, s48")
    a(f"s_lshl_b32 s20, s41, {TOPSH}")
    a(f"s_add_u32 s20, s20, {WS_TOP}")
    a("v_mov_b32 v5, 0")
    a("s_mov_b64 exec, 1")
    a("buffer_store_dwordx4 v[64:67], v5, s[16:19], s20 offen sc1")
    a("s_mov_b64 exec, -1")
    a.label("main_notop")
    stamp(a, "top")
    for i in (2, 4, 6): h2_math(i)
    a("s_or_b64 s[62:63], s[26:27], s[28:29]")
    a("s_cmp_eq_u64 s[62:63], 0")
    a("s_cbranch_scc1 main_nocand")
    a("v_mov_b32 v5, 2048")
    a("v_cndmask_b32 v5, 0, v5, s[28:29]")
    a("v_lshl_add_u32 v5, v8, 4, v5")
    a("s_lshl_b32 s20, s41, 12")
    a("s_lshl_b32 s21, s42, 8")
    a("s_add_u32 s20, s20, s21")
    a(f"s_add_u32 s20, s20, {WS_CAND}")
    a("s_mov_b64 exec, s[62:63]")
    a("buffer_store_dwordx4 v[60:63], v5, s[16:19], s20 offen sc1")
    a("buffer_store_dwordx4 v[48:51], v5, s[16:19], s20 offen offset:1024 sc1")
    a("s_mov_b64 exec, -1")
    a.label("main_nocand")
    a("s_cmp_lg_u32 s32, 0")
    a("s_cbranch_scc1 main_notp")
    a(f"s_mov_b32 s22, {WS_TOP}")
    a(f"v_lshlrev_b32 v76, {TOPSH}, v2")
    a("buffer_load_dwordx4 v[68:71], v76, s[16:19], s22 offen" + PF)
    a.label("main_notp")
    for i in range(0, 8, 2):
        a(f"v_lshlrev_b32 v{40+i}, 16, v{60+i//2}")
        a(f"v_and_b32 v{41+i}, 0xffff0000, v{60+i//2}")
        a(f"v_mul_f32 v{40+i}, v{40+i}, v{GB+i}")
        a(f"v_mul_f32 v{41+i}, v{41+i}, v{GB+i+1}")
        rnd_pair(a, 40 + i, 41 + i, 26)
        a(f"v_add_f32 v{40+i}, v{40+i}, v{32+i}")
        a(f"v_add_f32 v{41+i}, v{41+i}, v{33+i}")
        a(f"v_cvt_pk_bf16_f32 v{72+i//2}, v{40+i}, v{41+i}")
    a("s_cmp_lg_u32 s32, 0")
    a("s_cbranch_scc1 main_w0e")
    def t_issue():
        if SLOWP:
            l = a.newlabel("Lsl")
            a("s_cmp_lt_u32 s2, 144")
            a(f"s_cbranch_scc1 {l}")
            a(f"s_sleep {SLOWP}")
            a.label(l)
        a("buffer_load_dwordx4 v[68:71], v76, s[16:19], s22 offen" + PF)
    poll_loop(a, t_issue, lambda: chk_ne(a, [70]), "Lt", first_issued=True, sleep=TSLEEP)
    a("v_mov_b32 v64, v68")
    multi_allreduce(a, [64], [11], op="v_max_u32")
    a("v_cmp_eq_u32 vcc, v64, v68")
    a("s_nop 1")
    a("v_cndmask_b32 v65, v68, v69, vcc")
    multi_allreduce(a, [65], [11], op="v_max_u32")
    a("v_mov_b32 v5, 65792")
    a("ds_write_b64 v5, v[64:65]")
    a("s_waitcnt lgkmcnt(0)")
    a.label("main_w0e")
    a("s_andn2_b64 exec, -1, s[62:63]")
    a("global_store_dwordx4 v111, v[72:75], s[50:51]" + OUTF)
    a("s_mov_b64 exec, -1")
    a("s_barrier")
    stamp(a, "s4")
    a("v_mov_b32 v5, 65792")
    a("ds_read_b64 v[64:65], v5")
    a("s_waitcnt lgkmcnt(0)")
    a("s_cmp_eq_u64 s[62:63], 0")
    a("s_cbranch_scc1 main_nodef")
    a("v_or_b32 v5, 1, v64")
    a("v_or_b32 v6, 1, v65")
    a("v_cmp_ne_u32 vcc, v5, v58")
    a("v_cmp_ne_u32 s[20:21], v6, v58")
    a("s_and_b64 vcc, vcc, s[20:21]")
    a("s_and_b64 exec, vcc, s[62:63]")
    a("s_cbranch_execz main_nodef")
    a("global_store_dwordx4 v111, v[72:75], s[50:51]" + OUTF)
    a.label("main_nodef")
    a("s_mov_b64 exec, -1")
    a("s_cmp_ge_u32 s2, 144")
    a("s_cbranch_scc1 main_done")
    def cand_off(key, d, t):
        a(f"v_bfe_u32 v{d}, v{key}, 6, 6")
        a(f"v_sub_u32 v{d}, 63, v{d}")
        a(f"v_lshlrev_b32 v{d}, 12, v{d}")
        a(f"v_not_b32 v{t}, v{key}")
        a(f"v_and_b32 v{t}, 1, v{t}")
        a(f"v_lshl_add_u32 v{d}, v{t}, 11, v{d}")
    a("s_cmp_ge_u32 s2, 112")
    a("s_cbranch_scc1 main_down")
    a("v_and_b32 v15, 1, v2")
    a("v_cmp_eq_u32 vcc, 0, v15")
    a("s_lshr_b32 s21, s32, 1")
    a("s_lshl_b32 s21, s21, 8")
    a("v_cndmask_b32 v16, v65, v64, vcc")
    cand_off(16, 17, 18)
    a("v_lshrrev_b32 v18, 4, v2")
    a("v_lshl_add_u32 v17, v18, 4, v17")
    a(f"s_add_u32 s22, s21, {WS_CAND}")
    def issue():
        for n in range(4):
            a(f"buffer_load_dwordx4 v[{32+4*n}:{35+4*n}], v17, s[16:19], s22 offen offset:{64*n} sc1")
    def check():
        a("v_max3_u32 v5, v32, v36, v40")
        a("v_max_u32 v5, v5, v44")
        a("v_cmp_eq_u32 vcc, -1, v5")
        a("s_cmp_eq_u64 vcc, 0")
    poll_loop(a, issue, check, "Lh", sleep=2)
    stamp(a, "moe")
    for n in range(4):
        mf16(a, 20, 32 + 4 * n, MW + 4 * n, None if n == 0 else 20)
    PB = 66560
    def partial_and_gather():
        a("s_lshl_b32 s23, s32, 7")
        a(f"s_add_u32 s23, s23, {PB}")
        a("v_lshl_add_u32 v24, v2, 2, s23")
        a("s_mov_b64 exec, 0xffff")
        a("s_nop 4")
        a("ds_write_b32 v24, v20")
        a("ds_write_b32 v24, v21 offset:64")
        a("s_mov_b64 exec, -1")
        a("s_waitcnt lgkmcnt(0)")
        a("s_barrier")
        a("s_cmp_lg_u32 s32, 0")
        a("s_cbranch_scc1 main_done")
        a("v_and_b32 v24, 31, v0")
        a("v_lshlrev_b32 v24, 2, v24")
        a(f"v_add_u32 v24, {PB}, v24")
        for w in range(8):
            a(f"ds_read_b32 v{32+w}, v24 offset:{128*w}")
    partial_and_gather()
    a("v_lshlrev_b32 v25, 1, v0")
    a("s_lshl_b32 s21, s33, 7")
    a(f"s_add_u32 s21, s21, {WS_ACT}")
    a("s_waitcnt lgkmcnt(0)")
    for w in range(2, 8):
        a(f"v_add_f32 v{32+(w&1)}, v{32+(w&1)}, v{32+w}")
    rnd_pair(a, 32, 33, 40)
    silu(a, 32, 34)
    rnd_bf16(a, 32)
    a("v_mul_f32 v32, v32, v33")
    a("s_nop 1")
    a("v_mov_b32_dpp v33, v32 quad_perm:[1,0,3,2] row_mask:0xf bank_mask:0xf")
    a("v_cvt_pk_bf16_f32 v32, v32, v33")
    a("s_mov_b64 exec, 0x55555555")
    a("buffer_store_dword v32, v25, s[16:19], s21 offen sc1")
    a("s_mov_b64 exec, -1")
    a("s_branch main_done")
    a.label("main_down")
    if STAMPS is not None and "moe" in STAMPS: Prof.n -= 1
    a("v_bfe_u32 v15, v0, 4, 1")
    a("v_cmp_eq_u32 vcc, 0, v15")
    a("s_lshl_b32 s21, s33, 5")
    a(f"s_add_u32 s22, s21, {WS_CAND}")
    a("v_cndmask_b32 v12, v65, v64, vcc")
    cand_off(12, 16, 17)
    a("v_and_b32 v17, 14, v8")
    a("v_lshl_add_u32 v16, v17, 1, v16")
    def issue():
        a("buffer_load_dword v17, v16, s[16:19], s22 offen sc1")
        a("buffer_load_dword v18, v16, s[16:19], s22 offen offset:1024 sc1")
    def check():
        a("v_max_u32 v5, v17, v18")
        a("v_cmp_eq_u32 vcc, -1, v5")
        a("s_cmp_eq_u64 vcc, 0")
    a("s_lshr_b32 s23, s33, 4")
    a("s_lshl_b32 s23, s23, 12")
    a("s_and_b32 s20, s33, 15")
    a("s_lshl_b32 s20, s20, 6")
    a("s_add_u32 s23, s23, s20")
    a(f"s_add_u32 s23, s23, {STG + 3*8192}")
    a("v_lshl_add_u32 v19, v8, 2, s23")
    a("ds_read_b32 v19, v19")
    poll_loop(a, issue, check, "Lf", sleep=2)
    a("v_bfe_u32 v15, v12, 1, 11")
    a("v_sub_u32 v15, 2047, v15")
    a("v_lshlrev_b32 v15, 10, v15")
    a("v_lshl_add_u32 v15, v8, 1, v15")
    a("v_add_u32 v15, s21, v15")
    a("v_and_b32 v16, 1, v0")
    a("v_lshlrev_b32 v16, 4, v16")
    a("v_lshrrev_b32 v17, v16, v17")
    a("v_lshrrev_b32 v18, v16, v18")
    a("v_lshlrev_b32 v17, 16, v17")
    a("v_lshlrev_b32 v18, 16, v18")
    a("v_and_b32 v12, 0xffff0000, v12")
    a("v_ashrrev_i32 v25, 31, v12")
    a("v_not_b32 v25, v25")
    a("v_or_b32 v25, 0x80000000, v25")
    a("v_xor_b32 v12, v12, v25")
    a("v_and_b32 v12, 0xffff0000, v12")
    a(f"v_mul_f32 v25, {NLOG2E:#x}, v12")
    a("v_exp_f32 v25, v25")
    a("s_nop 0")
    a("v_add_f32 v25, 1.0, v25")
    a("v_rcp_f32 v25, v25")
    a("s_nop 0")
    rnd_bf16(a, 25)
    a("v_and_b32 v13, 1, v2")
    a("v_lshlrev_b32 v13, 5, v13")
    a("v_bfe_u32 v14, v2, 4, 1")
    a("v_lshl_add_u32 v13, v14, 4, v13")
    a("v_lshrrev_b32 v14, 5, v2")
    a("v_lshl_add_u32 v13, v14, 7, v13")
    a("s_mul_i32 s22, s32, 1792")
    a(f"s_add_u32 s22, s22, {WS_ACT}")
    def issue():
        for n in range(7):
            a(f"buffer_load_dwordx4 v[{32+4*n}:{35+4*n}], v13, s[16:19], s22 offen offset:{256*n}" + PF)
    def check():
        a("v_max3_u32 v5, v32, v33, v34")
        for i in range(3, 27, 2):
            a(f"v_max3_u32 v5, v5, v{32+i}, v{33+i}")
        a("v_max_u32 v5, v5, v59")
        a("v_cmp_eq_u32 vcc, -1, v5")
        a("s_cmp_eq_u64 vcc, 0")
    if ACTD: a(f"s_sleep {ACTD}")
    poll_loop(a, issue, check, "La", sleep=ACTS)
    stamp(a, "moe")
    for n in range(7):
        mf16(a, 20, 32 + 4 * n, MW + 4 * n, None if n == 0 else 20)
    partial_and_gather()
    a("s_waitcnt lgkmcnt(0)")
    for w in range(1, 8):
        a(f"v_add_f32 v32, v32, v{32+w}")
    rnd_bf16(a, 32)
    a("v_mul_f32 v32, v32, v25")
    rnd_bf16(a, 32)
    a("v_add_f32 v32, v32, v17")
    rnd_bf16(a, 32)
    a("v_mul_f32 v32, v32, v19")
    rnd_bf16(a, 32)
    a("v_add_f32 v32, v32, v18")
    a("v_cvt_pk_bf16_f32 v32, v32, v32")
    a("s_mov_b32 exec_hi, 0")
    a("global_store_short v15, v32, s[50:51]" + OUTF)
    a("s_cmp_lg_u32 s33, 0")
    a("s_cbranch_scc1 main_done")
    a("v_mov_b32 v5, 0")
    a("v_mov_b32 v6, s48")
    a("s_mov_b64 exec, 1")
    a("global_store_dword v5, v6, s[4:5]" + OUTF)
    a.label("main_done")
    if STAMPS is not None: stamp_end(a)
    a.label("main_end")
    a("s_endpgm")
    a.label("main_fallback")
    a("s_mov_b32 s37, 1")
    a("s_mov_b32 s20, 64")
    a("v_mov_b32 v6, 0xff800000")
    a("v_mov_b32 v5, v3")
    a.label("main_fb_loop")
    a(f"ds_read_b128 v[{K[0]}:{K[0]+3}], v5")
    a("v_add_u32 v5, 0x800, v5")
    a("s_waitcnt lgkmcnt(0)")
    a(f"v_mfma_f32_32x32x16_bf16 v[{s0}:{s0+15}], v[{K[0]}:{K[0]+3}], v[{Q}:{Q+3}], 0")
    a("s_nop 11")
    for i in range(0, 16, 2):
        a(f"v_max3_f32 v6, v6, v{s0+i}, v{s0+i+1}")
    a("s_sub_u32 s20, s20, 1")
    a("s_cmp_lg_u32 s20, 0")
    a("s_cbranch_scc1 main_fb_loop")
    a(f"ds_read_b128 v[{K[0]}:{K[0]+3}], v3")
    a(f"ds_read_b128 v[{K[1]}:{K[1]+3}], v3 offset:2048")
    for i in range(16):
        a(f"v_mov_b32 v{O+i}, 0")
    setmax()
    a("s_mov_b64 exec, s[38:39]")
    a(f"ds_read_b128 v[{V[0]}:{V[0]+3}], v4")
    a(f"ds_read_b128 v[{V[0]+4}:{V[0]+7}], v4 offset:512")
    a("s_mov_b64 exec, -1")
    a("s_waitcnt lgkmcnt(0)")
    a(f"v_mfma_f32_32x32x16_bf16 v[{s0}:{s0+15}], v[{K[0]}:{K[0]+3}], v[{Q}:{Q+3}], v[{C}:{C+15}]")
    for i in range(8):
        a(f"v_mov_b32 v{S[1]+8+i}, 0")
    a("s_mov_b32 s20, 32")
    a("s_nop 3")
    a.label("main_fb2")
    tile(0, 0, {}); tile(1, 1, {})
    a("v_add_u32 v3, 0x1000, v3")
    a("v_add_u32 v4, 0x1000, v4")
    a("s_sub_u32 s20, s20, 1")
    a("s_cmp_lg_u32 s20, 0")
    a("s_cbranch_scc1 main_fb2")
    a("v_subrev_u32 v3, 0x20000, v3")
    a("v_subrev_u32 v4, 0x20000, v4")
    a("s_branch main_attn_tail")

NOTES = """;
"""
def main(out, aslist=False):
    hdr = open("adaLN_cond__mha_block__moe_arch_mod__prompt.s.ref").read().split("; Override launch")[0]
    txt = hdr
    if aslist:
        txt += f"; @launch kernel={KNAME} grid=(256,1,1) block=(512,1,1) lds=163840\n"
    else:
        txt += "; @launch grid=(256,1,1) block=(512,1,1) lds=163840\n"
    txt += NOTES
    txt += '.amdgcn_target "amdgcn-amd-amdhsa--gfx950"\n'
    a = Asm()
    k_main(a)
    txt += a.text()
    txt += kernel_desc(KNAME, 256)
    open(out, "w").write(txt)

SETS = {
    "t2": ["s2", "olan", "o0", "o4", "o8", "o12", "omf", "tbar", "st2", "s3", "kbar", "top", "s4"],
    "sc": ["wland", "barx", "sc0", "sc1", "sc2", "sc3", "sc4", "sc5", "bar1", "p2", "p4", "p8", "p12"],
    "q": ["pass1", "kvpub", "q0", "q2", "q4", "q6", "q8", "q10", "f1", "q12", "q14", "att0", "a4"],
    "at": ["att0", "a4", "a8", "a12", "a16", "a24", "a32", "a40", "a48", "a52", "a56", "a60", "att1"],
    "ld": ["karg", "mp", "iw", "i2", "l0", "l1", "l2", "gath1", "barx", "bar1", "p3", "p6", "p9"],
    "p1": ["bar1", "p0", "p1", "p2", "p3", "p4", "p5", "p6", "p7", "p8", "p10", "p12", "p14"],
    "p2": ["p8", "p9", "p10", "p11", "p12", "p13", "p14", "p15", "pass1", "kvpub", "att0", "f1", "kvok"],
    "f0": ["karg", "pk", "ack", "l0", "l2", "gath0", "gath1", "wland", "barx", "bar1", "pass1", "f1", "att0"],
    "f1": ["barx", "bar1", "p5", "pass1", "kvpub", "att0", "f1", "kvok", "ky", "bar6", "bar14", "att1"],
    "tail": ["att0", "t23", "t42", "att1", "f2", "s2", "olan", "st2", "s3", "top", "s4", "moe"],
}
if __name__ == "__main__":
    if len(sys.argv) > 2 and sys.argv[2] in SETS:
        G1.PROF = True
        STAMPS = set(SETS[sys.argv[2]])
    main(sys.argv[1], aslist=(len(sys.argv) > 2 and sys.argv[2] != "final"))
    if STAMPS: print(" ".join(["start"] + ORDER + ["end"]))
```

```python
import sys, os
from asmlib import *
import gen_v1 as G1
from gen_v1 import (f32, multi_allreduce, unpack8, rnd_pair, tr_addr_natural, dma_row_src,
                    stamp_begin, stamp_end, Prof, NLOG2E, QSCALE, WS_BYTES)

KNAME = "adaLN_cond__mha_block__moe_arch_mod__prompt_kernel"
WS_EPOCH = 0
WS_MP = 0x1000
WS_ST1 = 0x10000
WS_MPL = 0x20000
WS_ST2 = 0x180000
WS_TOP = 0x60000
WS_ACT = 0x64000
WS_CAND = 0x80000
WS_F1 = 0x100000
WS_F2 = 0x140000
WS_WP = 0x200000
WS_KV = 0x500000
WS_OF = 0x900000
SPIN = 50000
STAMPS = None
ORDER = []

def stamp(a, name):
    if STAMPS is not None and name in STAMPS:
        if name not in ORDER: ORDER.append(name)
        G1.stamp(a)

def poll_loop(a, issue, check, name, first_issued=False, sleep=4):
    l = a.newlabel(name); d = a.newlabel(name + "d"); w = a.newlabel(name + "w")
    a(f"s_mov_b32 s60, {SPIN}")
    if first_issued: a(f"s_branch {w}")
    a.label(l)
    issue()
    if first_issued: a.label(w)
    a("s_waitcnt vmcnt(0)")
    check()
    a(f"s_cbranch_scc1 {d}")
    a("s_sub_u32 s60, s60, 1")
    if sleep: a(f"s_sleep {sleep}")
    a("s_cmp_lg_u32 s60, 0")
    a(f"s_cbranch_scc1 {l}")
    a.label(d)

def chk_ne(a, regs):
    a(f"v_cmp_ne_u32 vcc, s48, v{regs[0]}")
    for r in regs[1:]:
        a(f"v_cmp_ne_u32 s[20:21], s48, v{r}")
        a("s_or_b64 vcc, vcc, s[20:21]")
    a("s_cmp_eq_u64 vcc, 0")

def silu(a, x, t):
    a(f"v_mul_f32 v{t}, {NLOG2E:#x}, v{x}")
    a(f"v_exp_f32 v{t}, v{t}")
    a("s_nop 0")
    a(f"v_add_f32 v{t}, 1.0, v{t}")
    a(f"v_rcp_f32 v{t}, v{t}")
    a("s_nop 0")
    a(f"v_mul_f32 v{x}, v{x}, v{t}")

def mf16(a, d, A, B, c):
    cs = "0" if c is None else f"v[{c}:{c+3}]"
    a(f"v_mfma_f32_16x16x32_bf16 v[{d}:{d+3}], v[{A}:{A+3}], v[{B}:{B+3}], {cs}")

def trr(a, d, a1, a2, off):
    a(f"ds_read_b64_tr_b16 v[{d}:{d+1}], v{a1} offset:{off}")
    a(f"ds_read_b64_tr_b16 v[{d+2}:{d+3}], v{a2} offset:{off}")

WPB = 0; RING = 49152
REG = {0: 32768, 1: 0, 2: 16384}
EMB = 147456; SAT = 151552; CTE = 152576; CAT = 152832; REC = 154880; STT = 157440; FINR = 152576 - 0
STG = 131072
EM2 = 159744
FIN = 159488 - 320 + 64 - 64
Q = 16; C = 20; S = [36, 52]; O = 68; K = [84, 88]; V = [92, 100]; IDX = 108
WO = 112; MW = 176; XT = 204
GA = 208; SB = 216; CB = 224; GB = 232; WP = 240
FLIP = int(os.environ.get('FLIP', 54))
RBAR = int(os.environ.get('RBAR', 12))
TILEV = int(os.environ.get('TILEV', 0))
YK = int(os.environ.get('YK', 4))
TOUCHD = int(os.environ.get('TOUCHD', 16))
TOUCHG = int(os.environ.get('TOUCHG', 0))
TOUCHW = int(os.environ.get('TOUCHW', 7))
OUTF = os.environ.get('OUTF', '')
OSENT = int(os.environ.get('OSENT', 0))
TOPSH = int(os.environ.get('TOPSH', 7))
SLOWP = int(os.environ.get('SLOWP', 40))
TSLEEP = int(os.environ.get('TSLEEP', 2))
ST2P = int(os.environ.get('ST2P', 1))
PREW = int(os.environ.get('PREW', 25))
PREO = int(os.environ.get('PREO', 0))
PREF = int(os.environ.get('PREF', 1))
S3D = int(os.environ.get('S3D', 8))
S3S = int(os.environ.get('S3S', 1))
ACTD = int(os.environ.get('ACTD', 0))
ACTS = int(os.environ.get('ACTS', 2))
F2S = int(os.environ.get('F2S', 1))
PF = os.environ.get('PF', ' sc1')
KVP = int(os.environ.get('KVP', 0))
TLB = int(os.environ.get('TLB', 0))
P1FLIP = int(os.environ.get('P1FLIP', 11))
TOUCH = 0
WPS = 16384 + 384
F1STEP = 10
XR = 32; WR = 160; ACC = 184; QA = 176; WF = [236, 244]

def k_main(a):
    kernel_begin(a, KNAME)
    a("s_cmp_ge_u32 s2, 256")
    a("s_cbranch_scc1 main_end")
    if STAMPS is not None: stamp_begin(a, 0)
    a("s_setprio 3")
    a("s_load_dwordx2 s[4:5], s[0:1], 96")
    a("s_load_dwordx4 s[44:47], s[0:1], 64")
    a("s_load_dwordx2 s[6:7], s[0:1], 0")
    a("s_load_dwordx4 s[8:11], s[0:1], 8")
    a("s_load_dwordx8 s[52:59], s[0:1], 32")
    a("s_load_dwordx2 s[50:51], s[0:1], 80")
    a("v_lshrrev_b32 v1, 6, v0")
    a("v_and_b32 v2, 63, v0")
    a("s_and_b32 s31, s2, 1")
    a("s_lshl_b32 s31, s31, 2")
    a("v_readfirstlane_b32 s32, v1")
    a("s_bfe_u32 s20, s2, 0x20003")
    a("s_add_u32 s31, s31, s20")
    a("s_and_b32 s30, s2, 6")
    a("s_lshl_b32 s30, s30, 2")
    a("s_lshr_b32 s20, s2, 5")
    a("s_add_u32 s30, s30, s20")
    a("s_lshl_b32 s33, s20, 1")
    a("v_lshlrev_b32 v9, 4, v2")
    a("v_lshrrev_b32 v17, 3, v2")
    a("v_and_b32 v16, 6, v17")
    a("v_xor_b32 v16, v16, v2")
    a("v_and_b32 v16, 7, v16")
    a("v_lshlrev_b32 v200, 10, v17")
    a("v_lshl_add_u32 v200, v16, 4, v200")
    for q in range(1, 4): a(f"v_add_u32 v{200+q}, {7168*q}, v200")
    dma_row_src(a, 255, 2, 6144, 16, 17)
    a("s_lshl_b32 s28, s31, 18")
    a("s_lshl_b32 s21, s32, 15")
    a("s_add_u32 s28, s28, s21")
    a("s_lshl_b32 s29, s33, 6")
    a("s_mul_i32 s49, s32, 12288")
    a(f"s_add_u32 s49, s49, {RING}")
    a("v_lshrrev_b32 v3, 1, v2")
    a("v_lshl_add_u32 v3, v1, 6, v3")
    a("v_and_b32 v6, 1, v0")
    a("v_bfe_u32 v22, v2, 1, 2")
    a("v_mul_u32_u24 v22, 3072, v22")
    a("v_lshrrev_b32 v17, 3, v2")
    a("v_lshl_add_u32 v22, v17, 5, v22")
    a("v_lshl_add_u32 v22, v6, 4, v22")
    a(f"v_mul_u32_u24 v23, {WPS}, v17")
    a("v_and_b32 v17, 7, v2")
    a("v_lshl_add_u32 v23, v17, 4, v23")
    a("s_and_b32 s36, s2, 7")
    a("s_lshl_b32 s36, s36, 4")
    a("s_lshr_b32 s20, s2, 4")
    a("s_add_u32 s36, s36, s20")
    a("s_bfe_u32 s37, s2, 0x10003")
    a("v_lshlrev_b32 v19, 3, v2")
    a("s_lshl_b32 s39, s2, 3")
    a("s_add_u32 s39, s39, s32")
    a("s_and_b32 s62, s2, 7")
    a("s_lshl_b32 s62, s62, 3")
    a("s_bfe_u32 s23, s2, 0x30003")
    a("s_add_u32 s62, s62, s23")
    a("s_waitcnt lgkmcnt(0)")
    stamp(a, "karg")
    a("s_load_dword s48, s[4:5], 0")
    srd(a, 24, 6, 2048 * 1024)
    srd(a, 16, 4, WS_BYTES)
    srd(a, 12, 8, 512 * 3072)
    a("s_cmp_lg_u32 s32, 0")
    a("s_cbranch_scc1 main_w0a")
    a("s_lshr_b32 s21, s2, 6")
    a("s_lshl_b32 s22, s21, 8")
    a("v_lshl_add_u32 v16, v2, 2, s22")
    a("global_load_dword v232, v16, s[44:45]")
    srd(a, 40, 46, 512 * 6144)
    a(f"s_mul_i32 s22, s21, {128*6144}")
    a("s_lshl_b32 s23, s62, 5")
    a("s_add_u32 s22, s22, s23")
    for n in range(4):
        a(f"s_mov_b32 m0, {EMB + 1024*n}")
        if n: a(f"s_add_u32 s22, s22, {32*6144}")
        else: a("s_nop 0")
        a("buffer_load_dwordx4 v255, s[40:43], s22 offen lds")
    a("s_branch main_w0i")
    a.label("main_w0a")
    a("s_cmp_eq_u32 s32, 7")
    a("s_cbranch_scc1 main_w7" if TLB else "s_cbranch_scc1 main_w0i")
    a(f"s_mul_i32 s20, s36, {4*3072}")
    a("s_mul_i32 s21, s37, 1536")
    a("s_add_u32 s20, s20, s21")
    a("s_lshl_b32 s21, s32, 8")
    a("s_add_u32 s20, s20, s21")
    a("s_sub_u32 s20, s20, 256")
    a(f"buffer_load_dwordx4 v[{WR}:{WR+3}], v22, s[12:15], s20 offen")
    if TLB:
        a("s_branch main_w0i")
        a.label("main_w7")
        a("s_lshl_b32 s20, s2, 8")
        a(f"v_lshlrev_b32 v16, {TLB}, v2")
        a(f"s_mov_b64 exec, {(1 << min(63, (12 << 20) >> TLB)) - 1:#x}") if ((12 << 20) >> TLB) <= 31 else a("s_nop 0")
        a("buffer_load_dword v160, v16, s[16:19], s20 offen")
        a("s_mov_b64 exec, 1")
        a("v_mov_b32 v16, s20")
        for j, b in enumerate((10, 54, 56, 58, 50)):
            a(f"global_load_dword v{161+j}, v16, s[{b}:{b+1}]")
        a("s_mov_b64 exec, -1")
    a.label("main_w0i")
    a("s_lshl_b32 s22, s39, 10")
    a("buffer_load_dwordx4 v[204:207], v9, s[24:27], s22 offen")
    def dstep_issue(base, add):
        a("s_add_u32 s20, s28, s29")
        if add: a(f"s_add_u32 s21, s{base}, {add}")
        a(f"s_mov_b32 m0, s{21 if add else base}")
        a("s_add_u32 s29, s29, 128")
        for q in range(4):
            a(f"buffer_load_dwordx4 v{200+q}, s[24:27], s20 offen offset:{1024*q} lds")
        a("s_and_b32 s29, s29, 0x3ff")
    a("v_lshlrev_b32 v25, 4, v0")
    def g_issue():
        for rg in range(4):
            a(f"s_mov_b32 s22, {WS_MP + 8192*rg}")
            a(f"buffer_load_dwordx4 v[{184+4*rg}:{187+4*rg}], v25, s[16:19], s22 offen sc1")
    a("v_lshrrev_b32 v7, 4, v2")
    a("v_and_b32 v8, 15, v2")
    tr_addr_natural(a, 12, 13, 2, 14, 15)
    a("s_lshl_b32 s21, s33, 10")
    a("v_lshlrev_b32 v10, 5, v3")
    a("v_subrev_u32 v10, s21, v10")
    a("v_bfe_u32 v11, v3, 3, 1")
    a("v_lshlrev_b32 v11, 7, v11")
    a("v_xor_b32 v10, v10, v11")
    a("v_lshl_add_u32 v10, v6, 4, v10")
    a("v_and_b32 v10, 0x3fff, v10")
    a("v_xor_b32 v11, 1024, v10")
    a("s_lshl_b32 s20, s32, 11")
    a("s_sub_u32 s20, s20, s21")
    a("s_and_b32 s20, s20, 0x3fff")
    a("v_add_u32 v26, s20, v12")
    a("v_add_u32 v27, s20, v13")
    a("s_lshr_b32 s20, s20, 4")
    a(f"s_add_u32 s20, s20, {SAT}")
    a("v_lshl_add_u32 v30, v7, 4, s20")
    a("s_lshl_b32 s21, s32, 12")
    a(f"s_add_u32 s21, s21, {STG}")
    a("v_add_u32 v14, s21, v12")
    a("v_add_u32 v15, s21, v13")
    a("v_and_b32 v16, 6, v8")
    a("v_xor_b32 v16, v16, v7")
    a("v_lshlrev_b32 v16, 4, v16")
    a("v_and_b32 v17, 7, v8")
    a("v_lshl_add_u32 v16, v17, 7, v16")
    a("v_lshrrev_b32 v17, 3, v8")
    a("v_lshl_add_u32 v16, v17, 10, v16")
    a("v_xor_b32 v17, 64, v16")
    a("v_add_u32 v254, s49, v16")
    a("v_add_u32 v255, s49, v17")
    a("v_and_b32 v24, 31, v2")
    a("v_lshlrev_b32 v24, 4, v24")
    a("s_lshr_b32 s63, s28, 6")
    a(f"s_add_u32 s63, s63, {WS_ST1}")
    def rd_x2(d, reg, off):
        for e in range(2):
            for u in range(2):
                r = XR + 4 * (16 * u + 2 * d + e)
                a(f"ds_read_b128 v[{r}:{r+3}], v{reg+e} offset:{off + 2048*u}")
    def g_check(): chk_ne(a, [185, 187, 189, 191, 193, 195, 197, 199])
    stamp(a, "d7")
    def w56(fn):
        l = a.newlabel("Lw56")
        a("s_sub_u32 s20, s32, 5")
        a("s_cmp_gt_u32 s20, 1")
        a(f"s_cbranch_scc1 {l}")
        fn()
        a.label(l)
    def w12(fn):
        l = a.newlabel("Lw12")
        a("s_sub_u32 s20, s32, 1")
        a("s_cmp_gt_u32 s20, 1")
        a(f"s_cbranch_scc1 {l}")
        fn()
        a.label(l)
    def le_issue():
        srd(a, 12, 46, 512 * 6144)
        a("v_mul_u32_u24 v5, 6144, v11")
        a("v_add_u32 v5, v5, v10")
        a("s_lshr_b32 s21, s2, 6")
        a(f"s_mul_i32 s22, s21, {128*6144}")
        a("s_lshl_b32 s23, s62, 6")
        a("s_add_u32 s22, s22, s23")
        a("s_lshl_b32 s23, s20, 5")
        a("s_add_u32 s22, s22, s23")
        a("s_add_u32 s22, s22, 2048")
        a("s_mov_b32 s23, s36")
        a("s_lshl_b32 s21, s21, 8")
        a("v_lshl_add_u32 v6, v2, 2, s21")
        a(f"global_load_dword v{WO}, v6, s[44:45]")
        for n in range(4):
            a("s_mov_b32 m0, s23")
            if n: a(f"s_add_u32 s22, s22, {32*6144}")
            else: a("s_nop 0")
            a("buffer_load_dwordx4 v5, s[12:15], s22 offen lds")
            a("s_add_u32 s23, s23, 1024")
    a("s_lshr_b32 s41, s30, 2"); a("s_lshl_b32 s20, s31, 3"); a("s_add_u32 s41, s41, s20")
    a("s_and_b32 s42, s30, 3")
    a("v_and_b32 v29, 1, v2"); a("v_lshlrev_b32 v29, 4, v29")
    a("v_lshrrev_b32 v28, 1, v2"); a("v_lshl_add_u32 v1, v28, 10, v29")
    a("s_lshl_b32 s20, s42, 8"); a("s_lshl_b32 s21, s32, 5"); a("s_add_u32 s21, s21, s20"); a("v_add_u32 v1, s21, v1")
    a("v_bfe_u32 v16, v2, 4, 1"); a("v_lshlrev_b32 v17, 2, v16"); a("v_xor_b32 v28, v28, v17")
    a("v_lshrrev_b32 v5, 5, v2"); a("v_lshlrev_b32 v5, 9, v5"); a("v_lshl_add_u32 v5, v16, 7, v5")
    a("v_bfe_u32 v16, v2, 2, 2"); a("v_lshl_add_u32 v5, v16, 5, v5"); a("v_and_b32 v16, 3, v2"); a("v_lshl_add_u32 v5, v16, 3, v5")
    a("s_lshl_b32 s21, s32, 12"); a(f"s_add_u32 s21, s21, {STG}"); a("v_add_u32 v5, s21, v5")
    a("v_lshrrev_b32 v4, 4, v0"); a("v_lshlrev_b32 v4, 10, v4"); a("v_lshl_add_u32 v4, v8, 4, v4")
    a("s_lshl_b32 s21, s41, 15"); a("s_add_u32 s20, s20, s21"); a("v_add_u32 v4, s20, v4")
    a("s_lshl_b32 s20, s30, 13"); a("s_lshl_b32 s21, s32, 10"); a("s_add_u32 s40, s20, s21"); a(f"s_add_u32 s40, s40, {WS_F1}")
    a("s_cmp_lg_u32 s32, 0")
    a("s_cbranch_scc1 main_w0j")
    a(f"v_add_u32 v20, {EMB}, v12")
    a(f"v_add_u32 v21, {EMB}, v13")
    a("s_waitcnt vmcnt(5)")
    a("v_lshlrev_b32 v233, 16, v232")
    a("v_and_b32 v234, 0xffff0000, v232")
    silu(a, 233, 16); silu(a, 234, 16)
    a("v_cvt_pk_bf16_f32 v232, v233, v234")
    a("v_lshlrev_b32 v16, 2, v2")
    a(f"v_add_u32 v16, {CTE}, v16")
    a("ds_write_b32 v16, v232")
    a("v_and_b32 v17, 48, v2")
    a(f"v_add_u32 v17, {CTE}, v17")
    for n in range(4):
        a(f"ds_read_b128 v[{236+4*n}:{239+4*n}], v17 offset:{64*n}")
    a("s_lshr_b32 s38, s2, 6")
    a("s_lshl_b32 s38, s38, 13")
    a("s_lshl_b32 s22, s62, 7")
    a("s_add_u32 s38, s38, s22")
    a(f"s_add_u32 s38, s38, {WS_MP}")
    a("s_waitcnt vmcnt(0)")
    stamp(a, "emland")
    for n in range(4):
        trr(a, 216 + 4 * n, 20, 21, 1024 * n)
    a("s_waitcnt lgkmcnt(0)")
    a("s_add_u32 s22, s48, 1")
    for n in range(4):
        mf16(a, 232, 236 + 4 * n, 216 + 4 * n, None if n == 0 else 232)
    a("s_nop 7")
    a("v_mov_b32 v184, v232")
    a("v_mov_b32 v185, s22")
    a("s_branch main_w0b")
    a.label("main_w0j")
    a("s_waitcnt vmcnt(0)")
    a("s_cmp_eq_u32 s32, 7")
    a("s_cbranch_scc1 main_w0b")
    a("s_mul_i32 s20, s37, 6")
    a("s_add_u32 s20, s20, s32")
    a(f"s_mul_i32 s20, s20, {8*WPS}")
    a("s_lshl_b32 s21, s36, 7")
    a("s_add_u32 s20, s20, s21")
    a(f"s_add_u32 s20, s20, {WS_WP - 8*WPS}")
    a(f"buffer_store_dwordx4 v[{WR}:{WR+3}], v23, s[16:19], s20 offen sc1")
    a.label("main_w0b")
    stamp(a, "pk")
    if OSENT:
        for i in range(4): a(f"v_mov_b32 v{164+i}, -1")
        a("s_lshl_b32 s20, s31, 3")
        a("s_add_u32 s20, s20, s32")
        a("s_lshl_b32 s20, s20, 15")
        a("s_lshl_b32 s21, s30, 10")
        a("s_add_u32 s20, s20, s21")
        a(f"s_add_u32 s20, s20, {WS_OF}")
        a("buffer_store_dwordx4 v[164:167], v9, s[16:19], s20 offen sc1")
    a("s_barrier")
    dstep_issue(49, 0)
    a("s_waitcnt lgkmcnt(0)")
    a("s_add_u32 s48, s48, 1")
    unpack8(a, 208, 204)
    a("v_add_f32 v216, v208, v209")
    for i in range(2, 8): a(f"v_add_f32 v216, v216, v{208+i}")
    multi_allreduce(a, [216], [217])
    a(f"v_mul_f32 v216, {f32(1/512)}, v216")
    a("v_sub_f32 v217, v208, v216")
    a("v_mul_f32 v218, v217, v217")
    for i in range(1, 8):
        a(f"v_sub_f32 v217, v{208+i}, v216")
        a("v_fmac_f32 v218, v217, v217")
    multi_allreduce(a, [218], [217])
    a(f"v_mul_f32 v217, {f32(1/512)}, v218")
    rnd_pair(a, 216, 217, 218)
    a(f"v_add_f32 v217, {f32(1e-5)}, v217")
    rnd_bf16(a, 217)
    a("v_sqrt_f32 v217, v217")
    a("s_lshl_b32 s21, s39, 4")
    rnd_bf16(a, 217)
    a("v_rcp_f32 v217, v217")
    a("v_mov_b32 v218, s48")
    a("v_mov_b32 v219, s48")
    a(f"s_add_u32 s21, s21, {WS_ST1}")
    a("v_mov_b32 v16, 0")
    a("s_mov_b64 exec, 1")
    a("buffer_store_dwordx4 v[216:219], v16, s[16:19], s21 offen sc1")
    a("s_mov_b64 exec, -1")
    a("s_waitcnt vmcnt(5)")
    stamp(a, "ack")
    a("s_barrier")
    a("s_cmp_lg_u32 s32, 0")
    a("s_cbranch_scc1 main_w0c")
    a("s_mov_b64 exec, 0xffff")
    a("buffer_store_dwordx2 v[184:185], v19, s[16:19], s38 offen sc1")
    a("s_mov_b64 exec, -1")
    stamp(a, "mp")
    a.label("main_w0c")
    dstep_issue(49, 4096); dstep_issue(49, 8192)
    a("s_setprio 0")
    stamp(a, "i2")
    a("s_waitcnt vmcnt(9)")
    stamp(a, "l0")
    rd_x2(0, 254, 0)
    a("s_waitcnt lgkmcnt(0)")
    dstep_issue(49, 0)
    a("s_waitcnt vmcnt(8)")
    a("s_setprio 3")
    g_issue()
    rd_x2(1, 254, 4096)
    a("s_waitcnt vmcnt(8)")
    stamp(a, "l2")
    rd_x2(2, 254, 8192)
    a("s_waitcnt vmcnt(0)")
    stamp(a, "gath0")
    g_check()
    a("s_cbranch_scc1 main_gok")
    poll_loop(a, g_issue, g_check, "Lm")
    a.label("main_gok")
    stamp(a, "gath1")
    a(f"s_mul_i32 s20, s30, {WPS}")
    a("s_lshl_b32 s21, s32, 11")
    a("s_add_u32 s20, s20, s21")
    a(f"s_add_u32 s20, s20, {WS_WP}")
    for t in (0, 2, 1):
        a(f"s_add_u32 s21, s20, {32*WPS*t}")
        for p in range(2):
            r = WR + 4 * (3 * p + t)
            a(f"buffer_load_dwordx4 v[{r}:{r+3}], v9, s[16:19], s21 offen offset:{1024*p} sc1")
    a("s_setprio 0")
    rd_x2(3, 254, 0)
    for c in range(2):
        a(f"v_add_f32 v{184+2*c}, v{184+2*c}, v{188+2*c}")
        a(f"v_add_f32 v{192+2*c}, v{192+2*c}, v{196+2*c}")
        a(f"v_add_f32 v{184+2*c}, v{184+2*c}, v{192+2*c}")
    a("v_cvt_pk_bf16_f32 v188, v184, v186")
    a("s_cmp_gt_u32 s32, 3")
    a("s_cbranch_scc1 main_gca")
    a("s_lshl_b32 s21, s33, 6")
    a("v_lshlrev_b32 v16, 2, v0")
    a("v_subrev_u32 v16, s21, v16")
    a("v_and_b32 v16, 0x3ff, v16")
    a(f"v_add_u32 v16, {SAT}, v16")
    a("ds_write_b32 v16, v188")
    a("s_branch main_gdn")
    a.label("main_gca")
    a("v_lshlrev_b32 v184, 16, v188")
    a("v_and_b32 v185, 0xffff0000, v188")
    a("v_add_f32 v184, 1.0, v184")
    a("v_add_f32 v185, 1.0, v185")
    rnd_pair(a, 184, 185, 188)
    a("v_lshlrev_b32 v16, 3, v0")
    a(f"v_add_u32 v16, {CAT - 2048}, v16")
    a("ds_write_b64 v16, v[184:185]")
    a.label("main_gdn")
    a("v_lshlrev_b32 v16, 2, v3")
    a(f"v_add_u32 v16, {CAT}, v16")
    a("v_xor_b32 v17, 128, v16")
    a("s_waitcnt lgkmcnt(0)")
    dstep_issue(49, 4096)
    a("s_waitcnt vmcnt(6)")
    stamp(a, "wland")
    if PREF:
        a("s_lshl_b32 s20, s31, 7")
        a("s_add_u32 s20, s20, s40")
        a("s_xor_b32 s21, s48, 0x80000000")
        a("v_mov_b32 v18, s21")
        a("v_lshlrev_b32 v19, 2, v2")
        a("s_mov_b32 exec_hi, 0")
        a("buffer_store_dword v18, v19, s[16:19], s20 offen sc1")
        a("s_mov_b64 exec, -1")
    if PREF > 1:
        a("s_lshl_b32 s20, s31, 3")
        a("s_add_u32 s20, s20, s32")
        a("s_lshl_b32 s20, s20, 11")
        a("s_lshl_b32 s21, s30, 17")
        a("s_add_u32 s20, s20, s21")
        a(f"s_add_u32 s20, s20, {WS_KV}")
        a("buffer_store_dwordx4 v[32:35], v9, s[16:19], s20 offen sc1")
        a("buffer_store_dwordx4 v[32:35], v9, s[16:19], s20 offen offset:1024 sc1")
    for t in (0, 2):
        for p in range(2):
            r = WR + 4 * (3 * p + t)
            a(f"ds_write_b128 v{10+p}, v[{r}:{r+3}] offset:{REG[t]}")
    for n in range(2):
        trr(a, 236 + 8 * n, 26, 27, REG[0] + 1024 * n)
        trr(a, 240 + 8 * n, 26, 27, REG[2] + 1024 * n)
    for i in range(4): a(f"v_mov_b32 v{204+i}, 0x3f803f80")
    UPK = {1: 64, 2: 128, 0: 80}
    a("s_mov_b32 s22, 0xffff0000")
    for t in (0, 2, 1):
        if t == 1: a(f"s_waitcnt vmcnt({4 + (0, 1, 3)[PREF]})")
        for p in range(2):
            r = WR + 4 * (3 * p + t); T = UPK[t] + 8 * p
            for i in range(4):
                a(f"v_lshlrev_b32 v{T+2*i}, 16, v{r+i}")
                a(f"v_and_b32 v{T+2*i+1}, s22, v{r+i}")
    a("s_waitcnt lgkmcnt(0)")
    a("s_barrier")
    stamp(a, "barx")
    a("ds_read_b32 v188, v16")
    a("ds_read_b32 v189, v17")
    for n in range(2): a(f"ds_read_b128 v[{192+4*n}:{195+4*n}], v30 offset:{64*n}")
    a("s_mul_i32 s21, s32, 320")
    a(f"s_add_u32 s21, s21, {REC}")
    a("v_lshl_add_u32 v30, v7, 4, s21")
    a("v_lshl_add_u32 v31, v8, 3, s21")
    a("s_waitcnt lgkmcnt(2)")
    CSF = [80, 84, 64, 68, 128, 132]
    stamp(a, "sc0")
    for j, t in enumerate((1, 2, 0)):
        for p in range(2):
            r = WR + 4 * (3 * p + t)
            d = 208 + 4 * p
            T = UPK[t] + 8 * p
            for i in range(4):
                a(f"v_pk_mul_f32 v[{T+2*i}:{T+2*i+1}], v[{T+2*i}:{T+2*i+1}], v[188:189] " + ("op_sel_hi:[1,0]" if p == 0 else "op_sel:[0,1] op_sel_hi:[1,1]"))
            for i in range(4):
                a(f"v_cvt_pk_bf16_f32 v{d+i}, v{T+2*i}, v{T+2*i+1}")
            a(f"ds_write_b128 v{10+p}, v[{d}:{d+3}] offset:{REG[t]}")
        for n in range(2): trr(a, CSF[2 * t + n], 26, 27, REG[t] + 1024 * n)
        stamp(a, f"sc{j+1}")
        if j == 2: a("buffer_load_dwordx4 v[20:23], v24, s[16:19], s63 offen sc1")
        if j == 0:
            a("s_waitcnt lgkmcnt(6)")
            for n in range(2):
                mf16(a, 216, 236 + 8 * n, 192 + 4 * n, None if n == 0 else 216)
                mf16(a, 220, 192 + 4 * n, 240 + 8 * n, None if n == 0 else 220)
    a("s_waitcnt lgkmcnt(0)")
    for n in range(2):
        mf16(a, 228, CSF[2 + n], 204, None if n == 0 else 228)
        mf16(a, 232, 204, CSF[4 + n], None if n == 0 else 232)
        mf16(a, 224, CSF[n], 204, None if n == 0 else 224)
    a("v_lshlrev_b32 v16, 4, v7")
    a(f"v_add_u32 v16, {REC}, v16")
    a("v_lshlrev_b32 v17, 3, v8")
    a(f"v_add_u32 v17, {REC}, v17")
    stamp(a, "sc4")
    a("ds_write_b128 v30, v[216:219]")
    a("s_nop 1")
    a("v_mov_b32 v233, v220")
    a("ds_write_b128 v30, v[228:231] offset:128")
    a("ds_write_b64 v31, v[232:233] offset:192")
    a("ds_write_b128 v30, v[224:227] offset:64")
    a("s_waitcnt lgkmcnt(0)")
    stamp(a, "sc5")
    a("s_barrier")
    stamp(a, "bar1")
    WF3 = [236, 244, 176]
    def rd_kv(s):
        b = WF3[s % 3]
        trr(a, b, 12, 13, REG[1] + 1024 * s)
        trr(a, b + 4, 12, 13, REG[2] + 1024 * s)
    rd_kv(0); rd_kv(1)
    a("s_lshr_b32 s20, s32, 2")
    a("s_cmp_eq_u32 s20, 0")
    a("s_cbranch_scc1 main_p1o")
    a("s_setprio 1")
    a.label("main_p1o")
    DR = {2: 4, 7: 5, 9: 6, 11: 7}
    def rec_rd(w):
        d = (208, 212, 220, 224) if w == 0 else (228, 232, 216, 226)
        a(f"ds_read_b128 v[{d[0]}:{d[0]+3}], v16 offset:{320*w}")
        a(f"ds_read_b128 v[{d[1]}:{d[1]+3}], v16 offset:{320*w+64}")
        a(f"ds_read_b128 v[{d[2]}:{d[2]+3}], v16 offset:{320*w+128}")
        a(f"ds_read_b64 v[{d[3]}:{d[3]+1}], v17 offset:{320*w+192}")
    for s in range(16):
        if s < 14:
            rd_kv(s + 2)
            a(f"s_waitcnt lgkmcnt({8 if s == 0 else 4})")
        else:
            a(f"s_waitcnt lgkmcnt({4 * (15 - s)})")
        stamp(a, f"p{s}")
        if s == 0: dstep_issue(49, 8192)
        if s == 1: dstep_issue(49, 0)
        if s == 3: dstep_issue(49, 4096)
        b = WF3[s % 3]
        adds = []
        for u in range(2):
            x = XR + 4 * (16 * u + s)
            mf16(a, ACC + 4 * u, b, x, None if s == 0 else ACC + 4 * u)
            for q in adds[4*u:4*u+2]: a(q)
            mf16(a, ACC + 8 + 4 * u, x, b + 4, None if s == 0 else ACC + 8 + 4 * u)
            for q in adds[4*u+2:4*u+4]: a(q)
        if s == 0:
            l = a.newlabel("Lrs")
            a("s_cmp_lt_u32 s32, 6")
            a(f"s_cbranch_scc1 {l}")
            a("v_lshlrev_b32 v18, 2, v0")
            a(f"v_add_u32 v18, {REC - 1536}, v18")
            for w in range(8): a(f"ds_read_b32 v{208+w}, v18 offset:{320*w}")
            a("s_waitcnt lgkmcnt(0)")
            for w in range(1, 8): a(f"v_add_f32 v208, v208, v{208+w}")
            a(f"v_cmp_gt_u32 vcc, {384+80}, v0")
            a("s_nop 0")
            a("s_and_saveexec_b64 s[20:21], vcc")
            a("ds_write_b32 v18, v208")
            a("s_mov_b64 exec, -1")
            a.label(l)
        if s == P1FLIP: a("s_setprio 0")
        if s in DR:
            a(f"s_waitcnt vmcnt({ {4: 9, 5: 8, 6: 4, 7: 0}[DR[s]] })")
            rd_x2(DR[s], 254, 4096 * (DR[s] % 3))
        if s == 8:
            chk_ne(a, [22])
            a("s_cbranch_scc1 main_stok")
            poll_loop(a, lambda: a("buffer_load_dwordx4 v[20:23], v24, s[16:19], s63 offen sc1"),
                      lambda: chk_ne(a, [22]), "Lst")
            a.label("main_stok")
            a("s_lshl_b32 s21, s32, 8")
            a(f"s_add_u32 s21, s21, {STT}")
            a("v_lshrrev_b32 v18, 1, v24")
            a("v_add_u32 v18, s21, v18")
            a("ds_write_b64 v18, v[20:21]")
            a("v_lshl_add_u32 v18, v8, 3, s21")
            a("v_lshl_add_u32 v19, v7, 5, s21")
            for u in range(2):
                a(f"ds_read_b64 v[{204+2*u}:{205+2*u}], v18 offset:{128*u}")
                a(f"ds_read_b128 v[{160+8*u}:{163+8*u}], v19 offset:{128*u}")
                a(f"ds_read_b128 v[{164+8*u}:{167+8*u}], v19 offset:{128*u+16}")
        if s == 13:
            a("s_lshl_b32 s34, s31, 3")
            a("s_add_u32 s34, s34, s32")
            a("s_lshl_b32 s22, s30, 17")
            a(f"s_add_u32 s35, s22, {WS_KV}")
            a("s_lshl_b32 s23, s34, 11")
            a("s_add_u32 s22, s35, s23")
            a("v_and_b32 v18, 1, v7")
            a("v_lshlrev_b32 v18, 9, v18")
            a("v_lshrrev_b32 v19, 1, v7")
            a("v_lshl_add_u32 v18, v19, 8, v18")
            a("v_lshl_add_u32 v18, v8, 4, v18")
            a("s_lshl_b32 s23, s32, 11")
            a("v_add_u32 v19, s23, v9")
            a("v_add_u32 v20, s23, v18")
    stamp(a, "pass1")
    def rd_q(s):
        trr(a, 236 + 4 * (s & 3), 12, 13, REG[0] + 1024 * s)
    rd_q(0); rd_q(1)
    a("s_barrier")
    rec_rd(0)
    a("s_waitcnt lgkmcnt(0)")
    for u in range(2):
        for r in range(4):
            k = ACC + 4 * u + r
            a(f"v_fma_f32 v{k}, -v{204+2*u}, v{220+r}, v{k}")
            a(f"v_mul_f32 v{k}, v{k}, v{205+2*u}")
        a(f"v_cvt_pk_bf16_f32 v{228+2*u}, v{ACC+4*u}, v{ACC+4*u+1}")
        a(f"v_cvt_pk_bf16_f32 v{229+2*u}, v{ACC+4*u+2}, v{ACC+4*u+3}")
    for u in range(2):
        for r in range(4):
            v = ACC + 8 + 4 * u + r
            a(f"v_fma_f32 v{v}, -v{160+8*u+2*r}, v224, v{v}")
            a(f"v_fma_f32 v{v}, v{v}, v{161+8*u+2*r}, v225")
        if u == 0:
            a("v_permlane16_swap_b32 v228, v230")
            a("v_permlane16_swap_b32 v229, v231")
            a("buffer_store_dwordx4 v[228:231], v9, s[16:19], s22 offen sc1")
        a(f"v_cvt_pk_bf16_f32 v{232+2*u}, v{ACC+8+4*u}, v{ACC+8+4*u+1}")
        a(f"v_cvt_pk_bf16_f32 v{233+2*u}, v{ACC+8+4*u+2}, v{ACC+8+4*u+3}")
    a("ds_write_b128 v19, v[228:231]")
    a("s_nop 0")
    a("v_permlane16_swap_b32 v232, v234")
    a("v_permlane16_swap_b32 v233, v235")
    a("buffer_store_dwordx4 v[232:235], v18, s[16:19], s22 offen offset:1024 sc1")
    a("ds_write_b128 v20, v[232:235] offset:1024")
    l = a.newlabel("Lrz")
    a("s_sub_u32 s20, s32, 1")
    a("s_cmp_gt_u32 s20, 1")
    a(f"s_cbranch_scc1 {l}")
    for i in range(4): a(f"v_mov_b32 v{216+i}, -1")
    a("s_lshl_b32 s22, s2, 10")
    a(f"s_add_u32 s22, s22, {WS_CAND}")
    a("s_lshl_b32 s23, s2, 6")
    a(f"s_add_u32 s23, s23, {WS_ACT}")
    a("s_cmp_eq_u32 s32, 1")
    a("s_cselect_b32 s22, s22, s23")
    a("s_cselect_b32 s20, -1, 15")
    a("s_cselect_b32 s21, -1, 0")
    a("s_mov_b64 exec, s[20:21]")
    a("buffer_store_dwordx4 v[216:219], v9, s[16:19], s22 offen sc1")
    a("s_mov_b64 exec, -1")
    a.label(l)
    stamp(a, "kvpub")
    rd_q(2)
    side = []
    sd = side.append
    sd("v_and_b32 v25, 31, v2"); sd("v_cmp_eq_u32 vcc, 16, v25"); sd("v_mov_b32 v25, 0x3f803f80")
    sd("s_lshl_b32 s36, s32, 12"); sd(f"s_add_u32 s36, s36, {STG}")
    sd("v_cndmask_b32 v25, 0, v25, vcc")
    sd("v_mov_b32 v110, v5"); sd("v_mov_b32 v111, v4"); sd("v_mov_b32 v10, v29"); sd("v_mov_b32 v11, v28")
    sd("v_mov_b32 v3, v9")
    sd("v_lshrrev_b32 v4, 5, v2"); sd("v_lshlrev_b32 v4, 8, v4"); sd("v_lshl_add_u32 v4, v8, 4, v4"); sd("v_add_u32 v4, 1024, v4")
    sd("s_mov_b32 s38, 0x0000ffff"); sd("s_mov_b32 s39, 0x0000ffff"); sd("s_mov_b32 s37, 0")
    for i in range(12): sd(f"v_mov_b32 v{V[0]+4+i}, v25")
    sd(f"v_mov_b32 v{IDX}, 0xdddddddd")
    sd(f"s_mov_b32 s24, {f32(QSCALE)}")
    for r in range(4): sd(f"v_mul_f32 v{208+r}, s24, v{208+r}")
    for u in range(2): sd(f"v_mul_f32 v{205+2*u}, s24, v{205+2*u}")
    per = (len(side) + 7) // 8
    for s in range(16):
        if s < 13:
            rd_q(s + 3)
            a("s_waitcnt lgkmcnt(6)")
        else:
            a(f"s_waitcnt lgkmcnt({2 * (15 - s)})")
        stamp(a, f"q{s}")
        extra = []
        if 4 <= s < 12: extra += side[per*(s-4):per*(s-3)]
        if s >= 12: extra += [f"v_mov_b32 v{O+4*(s-12)+i}, 0" for i in range(4)]
        h = (len(extra) + 1) // 2
        for u in range(2):
            mf16(a, QA + 4 * u, 236 + 4 * (s & 3), XR + 4 * (16 * u + s), None if s == 0 else QA + 4 * u)
            for q in (extra[:h] if u == 0 else extra[h:]): a(q)
        if s == F1STEP:
            a("s_lshl_b32 s20, s31, 7")
            a("s_add_u32 s20, s20, s40")
            a("v_mov_b32 v6, 0")
            a("v_mov_b32 v7, s48")
            a("s_waitcnt vmcnt(0)")
            a("s_mov_b64 exec, 1")
            a("buffer_store_dword v7, v6, s[16:19], s20 offen sc1")
            a("s_mov_b64 exec, -1")
            stamp(a, "f1")
    for i in range(4): a(f"v_mov_b32 v{V[0]+i}, v25")
    for u in range(2):
        for r in range(4):
            q = QA + 4 * u + r
            a(f"v_fma_f32 v{q}, -v{204+2*u}, v{212+r}, v{q}")
            a(f"v_fma_f32 v{q}, v{q}, v{205+2*u}, v{208+r}")
        a(f"v_cvt_pk_bf16_f32 v{Q+2*u}, v{QA+4*u}, v{QA+4*u+1}")
        a(f"v_cvt_pk_bf16_f32 v{Q+1+2*u}, v{QA+4*u+2}, v{QA+4*u+3}")
    a("s_nop 1")
    a(f"v_permlane16_swap_b32 v{Q}, v{Q+2}")
    a(f"v_permlane16_swap_b32 v{Q+1}, v{Q+3}")
    a("s_barrier")
    stamp(a, "att0")
    a(f"ds_read_b128 v[{K[0]}:{K[0]+3}], v3")
    a(f"ds_read_b128 v[{K[1]}:{K[1]+3}], v3 offset:2048")
    a("s_and_b32 s28, s32, 3")
    a("s_lshl_b32 s20, s30, 13")
    a("s_lshl_b32 s21, s28, 11")
    a("s_add_u32 s40, s20, s21")
    a(f"s_add_u32 s40, s40, {WS_F1}")
    a("v_lshlrev_b32 v12, 7, v8")
    if not KVP: a("buffer_load_dword v13, v12, s[16:19], s40 offen" + PF)
    a("s_lshl_b32 s28, s28, 12")
    a("s_lshl_b32 s20, 6, s31")
    a("s_lshr_b32 s21, s20, 8")
    a("s_or_b32 s20, s20, s21")
    a("s_and_b32 s20, s20, 0xff")
    a("s_lshl_b32 s21, 1, s31")
    a("s_or_b32 s21, s21, s20")
    a("s_xor_b32 s20, s20, 0xff")
    a("s_add_u32 s22, s28, 32768")
    a("s_cmp_gt_u32 s32, 3")
    a("s_cselect_b32 s43, s21, s20")
    a("s_cselect_b32 s61, s22, s28")
    a("s_waitcnt lgkmcnt(1)")
    s0 = S[0]
    a(f"v_mfma_f32_32x32x16_bf16 v[{s0}:{s0+15}], v[{K[0]}:{K[0]+3}], v[{Q}:{Q+3}], 0")
    a("s_nop 11")
    a(f"v_max3_f32 v6, v{s0}, v{s0+1}, v{s0+2}")
    for i in range(3, 15, 2):
        a(f"v_max3_f32 v6, v6, v{s0+i}, v{s0+i+1}")
    a(f"v_max_f32 v6, v6, v{s0+15}")
    def setmax():
        a("v_mov_b32 v7, v6")
        a("s_nop 1")
        a("v_permlane32_swap_b32 v7, v6")
        a("s_nop 1")
        a("v_max_f32 v6, v6, v7")
        for i in range(16):
            a(f"v_sub_f32 v{C+i}, 0, v6")
    setmax()
    a("s_mov_b64 exec, s[38:39]")
    a(f"ds_read_b128 v[{V[0]}:{V[0]+3}], v4")
    a(f"ds_read_b128 v[{V[0]+4}:{V[0]+7}], v4 offset:512")
    a("s_mov_b64 exec, -1")
    a(f"v_mfma_f32_32x32x16_bf16 v[{s0}:{s0+15}], v[{K[0]}:{K[0]+3}], v[{Q}:{Q+3}], v[{C}:{C+15}]")
    for i in range(8):
        a(f"v_mov_b32 v{S[1]+8+i}, 0")
    a("s_nop 3")

    hooks = {}
    import os
    NOH = os.environ.get("NOHOOK", "")
    def hook(t, fn, kind=""):
        if kind and kind in NOH: return
        hooks.setdefault(t, []).append(fn)
    def old_only(fn):
        def f():
            l = a.newlabel("Lold")
            a("s_cmp_gt_u32 s32, 3")
            a(f"s_cbranch_scc1 {l}")
            fn()
            a.label(l)
        return f
    def late_only(fn):
        def f():
            l = a.newlabel("Llate")
            a("s_cmp_lt_u32 s2, 128")
            a(f"s_cbranch_scc1 {l}")
            fn()
            a.label(l)
        return f
    def kv_phase(need, cap, name, first=False):
        def f():
            top = a.newlabel("Lkv"); pick = a.newlabel("Lkp"); more = a.newlabel("Lkm"); done = a.newlabel("Lkd")
            a(f"s_mov_b32 s60, {SPIN}")
            if not first: a(f"s_branch {pick}")
            a.label(top)
            a("s_waitcnt vmcnt(0)")
            a("v_cmp_eq_u32 vcc, s48, v13")
            a("s_lshr_b32 s21, vcc_lo, 8")
            a("s_and_b32 s29, vcc_lo, s21")
            a("s_and_b32 s29, s29, 0xff")
            a.label(pick)
            a(f"s_cmp_ge_u32 s61, {16384 * cap}")
            a(f"s_cbranch_scc1 {done}")
            a("s_andn2_b32 s20, s29, s43")
            a(f"s_cbranch_scc0 {more}")
            a("s_ff1_i32_b32 s21, s20")
            a("s_bitset1_b32 s43, s21")
            a("s_add_u32 s61, s61, 16384")
            a("s_mov_b32 m0, s61")
            a("s_lshl_b32 s21, s21, 14")
            a("s_add_u32 s21, s21, s28")
            a("s_add_u32 s21, s21, s35")
            for n in range(4):
                a(f"buffer_load_dwordx4 v9, s[16:19], s21 offen offset:{1024*n} sc1 lds")
            a(f"s_branch {pick}")
            a.label(more)
            a(f"s_cmp_ge_u32 s61, {16384 * need}")
            a(f"s_cbranch_scc1 {done}")
            a("buffer_load_dword v13, v12, s[16:19], s40 offen" + PF)
            a("s_sub_u32 s60, s60, 1")
            a("s_cmp_lg_u32 s60, 0")
            a(f"s_cbranch_scc1 {top}")
            a.label(done)
            stamp(a, name)
        return f
    def h_bar(n, name):
        def f():
            a(f"s_waitcnt vmcnt({n})")
            a("s_barrier")
            stamp(a, name)
        return f
    if KVP: hook(KVP, lambda: a("buffer_load_dword v13, v12, s[16:19], s40 offen" + PF))
    hook(2 + KVP, old_only(kv_phase(1, 1, "kvok", first=True)))
    hook(4 + KVP, old_only(kv_phase(2, 2, "kv2")))
    def young_only(fn):
        def f():
            l = a.newlabel("Lyg")
            a("s_cmp_lt_u32 s32, 4")
            a(f"s_cbranch_scc1 {l}")
            fn()
            a.label(l)
        return f
    hook(YK, young_only(kv_phase(0, 7, "ky", first=True)))
    hook(6, old_only(lambda: a("s_waitcnt vmcnt(4)")))
    hook(6, h_bar(63, "bar6"))
    hook(6, young_only(kv_phase(7, 7, "kv7")))
    def le_a():
        a("s_waitcnt vmcnt(0)")
        a(f"v_lshlrev_b32 v{WO+1}, 16, v{WO}")
        a(f"v_and_b32 v{WO}, 0xffff0000, v{WO}")
        silu(a, WO + 1, 5); silu(a, WO, 5)
        for n in range(4): trr(a, WO + 20 + 4 * n, 14, 15, 1024 * n)
        a(f"v_cvt_pk_bf16_f32 v{WO}, v{WO+1}, v{WO}")
        a("v_lshl_add_u32 v5, v2, 2, s36")
        a(f"ds_write_b32 v5, v{WO}")
        a("v_and_b32 v5, 48, v2")
        a("v_add_u32 v5, s36, v5")
        for n in range(4): a(f"ds_read_b128 v[{WO+4+4*n}:{WO+7+4*n}], v5 offset:{64*n}")
    def le_b():
        for n in range(4): mf16(a, WO, WO + 4 + 4 * n, WO + 20 + 4 * n, None if n == 0 else WO)
    def le_c():
        a("s_lshr_b32 s21, s2, 6")
        a("s_lshl_b32 s21, s21, 14")
        a("s_lshl_b32 s22, s62, 8")
        a("s_add_u32 s21, s21, s22")
        a("s_lshl_b32 s22, s20, 7")
        a("s_add_u32 s21, s21, s22")
        a(f"s_add_u32 s21, s21, {WS_MPL}")
        a("v_lshlrev_b32 v5, 3, v2")
        a(f"v_mov_b32 v{WO+1}, s48")
        a("s_mov_b64 exec, 0xffff")
        a(f"buffer_store_dwordx2 v[{WO}:{WO+1}], v5, s[16:19], s21 offen sc1")
        a("s_mov_b64 exec, -1")
    hook(7, old_only(lambda: a("s_waitcnt vmcnt(0)")))
    hook(7, lambda: w12(le_issue))
    hook(14, young_only(lambda: a("s_waitcnt vmcnt(0)")))
    hook(14, h_bar(63, "bar14"))
    hook(14, lambda: w12(le_a)); hook(15, lambda: w12(le_b)); hook(16, lambda: w12(le_c))
    def h_prio():
        l = a.newlabel("Lpr")
        a("s_cmp_lt_u32 s32, 4")
        a(f"s_cbranch_scc1 {l}")
        a("s_setprio 1")
        a.label(l)
    hook(14, h_prio)
    hook(FLIP, lambda: a("s_setprio 0"))
    def h_wo(r):
        def f():
            if r == 0: srd(a, 12, 10, 512 * 1024)
            a("s_mov_b32 m0, s36")
            for n in range(4):
                a(f"s_mov_b32 s20, {32768*(4*r+n) - 1024*n}")
                a(f"buffer_load_dwordx4 v1, s[12:15], s20 offen offset:{1024*n} lds")
        return f
    def h_misc():
        a(f"global_load_dwordx4 v[{XT}:{XT+3}], v111, s[6:7]")
        a("s_lshl_b32 s21, s42, 8")
        a("v_lshl_add_u32 v5, v8, 4, s21")
        a("global_load_dwordx4 v[248:251], v5, s[52:53]")
        a("global_load_dwordx4 v[252:255], v9, s[52:53]")
    def h_moe_setup():
        l = a.newlabel("Lms"); l2 = a.newlabel("Lms")
        a("s_cmp_ge_u32 s2, 112")
        a(f"s_cbranch_scc1 {l}")
        a("v_mul_u32_u24 v109, 3584, v11")
        a("v_add_u32 v109, v109, v10")
        a("s_and_b32 s20, s32, 1")
        a("s_cmp_eq_u32 s20, 0")
        a("s_cselect_b32 s24, s54, s56")
        a("s_cselect_b32 s25, s55, s57")
        a(f"s_mov_b32 s26, {512*3584}")
        a("s_lshr_b32 s20, s32, 1")
        a(f"s_mul_i32 s43, s20, {128*3584}")
        a("s_and_b32 s33, s2, 7")
        a("s_mul_i32 s33, s33, 14")
        a("s_lshr_b32 s20, s2, 3")
        a("s_add_u32 s33, s33, s20")
        a("s_lshl_b32 s20, s33, 5")
        a("s_add_u32 s43, s43, s20")
        a(f"s_mov_b32 s61, {32*3584}")
        a(f"s_branch {l2}")
        a.label(l)
        a("v_lshl_add_u32 v109, v11, 10, v10")
        a("s_mov_b32 s24, s58")
        a("s_mov_b32 s25, s59")
        a(f"s_mov_b32 s26, {1792*1024}")
        a(f"s_mul_i32 s43, s32, {224*1024}")
        a("s_and_b32 s33, s2, 7")
        a("s_lshl_b32 s33, s33, 2")
        a("s_sub_u32 s20, s2, 112")
        a("s_bfe_u32 s20, s20, 0x20003")
        a("s_add_u32 s33, s33, s20")
        a("s_lshl_b32 s20, s33, 5")
        a("s_add_u32 s43, s43, s20")
        a(f"s_mov_b32 s61, {32*1024}")
        a.label(l2)
    def h_moe(n):
        def f():
            l = a.newlabel("Lmd")
            a("s_cmp_ge_u32 s2, 144")
            a(f"s_cbranch_scc1 {l}")
            if n >= 4:
                a("s_cmp_lt_u32 s2, 112")
                a(f"s_cbranch_scc1 {l}")
            a(f"buffer_load_dwordx4 v[{MW+4*n}:{MW+4*n+3}], v109, s[24:27], s43 offen")
            a("s_add_u32 s43, s43, s61")
            a.label(l)
        return f
    def cv_write(base, n):
        def f():
            for i in range(n): a(f"ds_write_b128 v1, v[{base+4*i}:{base+4*i+3}] offset:{1024*i}")
        return f
    def cv_wo(r):
        def f():
            for n in range(4):
                b = WO + 16 * r + 4 * n
                a(f"ds_read_b64_tr_b16 v[{b}:{b+1}], v110 offset:{1024*n}")
                a(f"ds_read_b64_tr_b16 v[{b+2}:{b+3}], v110 offset:{1024*n+256}")
        return f
    def cv_moe(base, n):
        def f():
            for i in range(n): trr(a, MW + base + 4 * i, 14, 15, 1024 * i)
        return f
    def lg_issue(lo=0, hi=4):
        a("v_lshlrev_b32 v5, 5, v0")
        for rg in range(lo, hi):
            a(f"s_mov_b32 s22, {WS_MPL + 16384*rg}")
            a(f"buffer_load_dwordx4 v[{GA+8*rg}:{GA+8*rg+3}], v5, s[16:19], s22 offen sc1")
            a(f"buffer_load_dwordx4 v[{GA+8*rg+4}:{GA+8*rg+7}], v5, s[16:19], s22 offen offset:16 sc1")
    WT = [15, 25, 35, 45]
    MT = [int(x) for x in os.environ.get('MT', '27,30,37,40,47,49,51').split(',')]
    def h_touch():
        l = a.newlabel("Ltc")
        a("s_cmp_lt_u32 s2, 144")
        a(f"s_cbranch_scc1 {l}")
        a("s_cmp_gt_u32 s32, 1")
        a(f"s_cbranch_scc1 {l}")
        a("s_sub_u32 s20, s2, 144")
        a("s_lshr_b32 s20, s20, 3")
        a("s_lshl_b32 s20, s20, 1")
        a("s_add_u32 s20, s20, s32")
        a("s_lshl_b32 s20, s20, 16")
        a("s_and_b32 s21, s2, 7")
        a("s_lshl_b32 s21, s21, 7")
        a("s_add_u32 s20, s20, s21")
        a("v_lshl_add_u32 v5, v2, 10, s20")
        a(f"global_load_dword v{XT}, v5, s[58:59]")
        a.label(l)
    if TOUCHD: hook(TOUCHD, h_touch)
    def h_touch_gu():
        l = a.newlabel("Ltg")
        a("s_cmp_lt_u32 s2, 144")
        a(f"s_cbranch_scc1 {l}")
        a("s_cmp_lt_u32 s32, 2")
        a(f"s_cbranch_scc1 {l}")
        a("s_and_b32 s20, s32, 1")
        a("s_cmp_eq_u32 s20, 0")
        a("s_cselect_b32 s24, s54, s56")
        a("s_cselect_b32 s25, s55, s57")
        a(f"s_mov_b32 s26, {512*3584}")
        a("s_sub_u32 s20, s2, 144")
        a("s_lshr_b32 s20, s20, 3")
        a("s_mul_i32 s20, s20, 3")
        a("s_lshr_b32 s21, s32, 1")
        a("s_add_u32 s20, s20, s21")
        a("s_lshl_b32 s20, s20, 6")
        a("s_sub_u32 s20, s20, 64")
        a("v_add_u32 v5, s20, v2")
        a("v_mul_u32_u24 v6, 13108, v5")
        a("v_lshrrev_b32 v6, 16, v6")
        a("v_mul_u32_u24 v7, 5, v6")
        a("v_sub_u32 v5, v5, v7")
        a("v_mul_u32_u24 v6, 3584, v6")
        a("v_lshl_add_u32 v5, v5, 7, v6")
        a("s_and_b32 s21, s2, 7")
        a("s_mul_i32 s21, s21, 448")
        a("s_and_b32 s21, s21, 0xff80")
        a(f"buffer_load_dword v{XT}, v5, s[24:27], s21 offen")
        a.label(l)
    if TOUCHG: hook(TOUCHG, h_touch_gu)
    def h_touch_wo():
        l = a.newlabel("Ltw")
        a("s_sub_u32 s20, s32, 2")
        a("s_cmp_gt_u32 s20, 1")
        a(f"s_cbranch_scc1 {l}")
        a("s_lshr_b32 s21, s2, 3")
        a("s_lshl_b32 s21, s21, 1")
        a("s_add_u32 s20, s20, s21")
        a("s_lshl_b32 s20, s20, 13")
        a("v_lshl_add_u32 v5, v2, 7, s20")
        a(f"global_load_dword v{XT}, v5, s[10:11]")
        a.label(l)
    if TOUCHW: hook(TOUCHW, h_touch_wo)
    hook(15, h_moe_setup)
    for r in range(4):
        if r: hook(WT[r], h_wo(r), 'w')
        else:
            def not12():
                l = a.newlabel("Ln12")
                a("s_sub_u32 s20, s32, 1")
                a("s_cmp_lt_u32 s20, 2")
                a(f"s_cbranch_scc1 {l}")
                h_wo(0)()
                a.label(l)
            hook(WT[0], not12)
            hook(WT[0] + 2, lambda: w12(h_wo(0)))
        hook(WT[r] + 9, lambda: a("s_waitcnt vmcnt(0)") if False else None)
    for n in range(7): hook(MT[n], h_moe(n), 'm')
    hook(43, h_misc)
    def h_prew():
        a("s_xor_b32 s20, s48, 0x80000000")
        a("v_mov_b32 v5, s20")
        a("v_lshlrev_b32 v6, 2, v2")
        a("s_lshl_b32 s21, s41, 12")
        a("s_lshl_b32 s22, s42, 10")
        a("s_add_u32 s21, s21, s22")
        a("s_lshl_b32 s22, s32, 7")
        a("s_add_u32 s21, s21, s22")
        a(f"s_add_u32 s21, s21, {WS_ST2}")
        a("s_mov_b32 exec_hi, 0")
        a("buffer_store_dword v5, v6, s[16:19], s21 offen sc1")
        a("s_lshl_b32 s21, s34, 12")
        a("s_lshl_b32 s22, s30, 7")
        a("s_add_u32 s21, s21, s22")
        a(f"s_add_u32 s21, s21, {WS_F2}")
        a("buffer_store_dword v5, v6, s[16:19], s21 offen sc1")
        l = a.newlabel("Lpw")
        a("s_or_b32 s20, s42, s32")
        a(f"s_cbranch_scc1 {l}")
        a(f"s_lshl_b32 s21, s41, {TOPSH}")
        a(f"s_add_u32 s21, s21, {WS_TOP}")
        a("buffer_store_dword v5, v6, s[16:19], s21 offen sc1")
        a.label(l)
        a("s_mov_b64 exec, -1")
    if PREW: hook(PREW, h_prew)
    def h_preo():
        a("s_lshl_b32 s21, s34, 15")
        a("s_lshl_b32 s22, s30, 10")
        a("s_add_u32 s21, s21, s22")
        a(f"s_add_u32 s21, s21, {WS_OF}")
        a(f"buffer_store_dwordx4 v[{Q}:{Q+3}], v9, s[16:19], s21 offen sc1")
    if PREO: hook(PREO, h_preo)
    for rg in range(4): hook(50 + rg, lambda rg=rg: lg_issue(rg, rg + 1), 'l')
    def wo_wait(r):
        def f():
            fixed = {0: 0, 1: 0, 2: 3, 3: 8}[r]
            inr = [n for n in range(7) if WT[r] < MT[n] < WT[r] + 9]
            ngu = len([n for n in inr if n < 4]); ndn = len(inr)
            l1 = a.newlabel("Lww"); l2 = a.newlabel("Lww")
            a(f"s_waitcnt vmcnt({fixed + ndn})")
            if ndn:
                a("s_sub_u32 s20, s2, 112")
                a("s_cmp_lt_u32 s20, 32")
                a(f"s_cbranch_scc1 {l2}")
                if ngu:
                    a(f"s_waitcnt vmcnt({fixed + ngu})")
                    a("s_cmp_lt_u32 s2, 112")
                    a(f"s_cbranch_scc1 {l2}")
                a(f"s_waitcnt vmcnt({fixed})")
                a.label(l2)
        return f
    for r in range(4):
        hook(WT[r] + 9, wo_wait(r), 'w')
        hook(WT[r] + 9, cv_wo(r), 'c')
    hook(56, lambda: a("v_add_u32 v1, s36, v9"))
    for t, nm in [(23, "t23"), (42, "t42")] + [(t, f"a{t}") for t in range(0, 64, 4)]:
        hook(t, lambda nm=nm: stamp(a, nm))

    def tile(t, off, hooks):
        cur = S[t & 1]; nxt = S[(t + 1) & 1]
        e = lambda i: a(f"v_exp_f32 v{cur+i}, v{cur+i}")
        vp = V[(t + 1) & 1]; kn = K[(t + 1) & 1]; kc = K[t & 1]; vc = V[t & 1]
        if TILEV:
            a("s_waitcnt lgkmcnt(0)")
            for fn in hooks.get(t, []): fn()
            a.raw(f".p2align {TILEV}")
            a(f"v_exp_f32_e64 v{cur}, v{cur}")
            e(1); e(2)
            a(f"v_smfmac_f32_32x32x32_bf16 v[{O}:{O+15}], v[{vp+4}:{vp+7}], v[{nxt+8}:{nxt+15}], v{IDX}")
            e(3); e(4); e(5); e(6)
            a(f"v_mfma_f32_32x32x16_bf16 v[{nxt}:{nxt+15}], v[{kn}:{kn+3}], v[{Q}:{Q+3}], v[{C}:{C+15}]")
            e(7)
            a("s_mov_b64 exec, s[38:39]")
            a(f"ds_read_b128 v[{vp}:{vp+3}], v4 offset:{2048*(off+1)}")
            a(f"ds_read_b128 v[{vp+4}:{vp+7}], v4 offset:{2048*(off+1)+512}")
            a("s_mov_b64 exec, -1")
            e(8)
            a(f"ds_read_b128 v[{kc}:{kc+3}], v3 offset:{2048*(off+2)}")
            e(9); e(10)
            a(f"v_smfmac_f32_32x32x32_bf16 v[{O}:{O+15}], v[{vc}:{vc+3}], v[{cur}:{cur+7}], v{IDX}")
            for i in range(11, 16): e(i)
            return
        a("s_waitcnt lgkmcnt(0)")
        for fn in hooks.get(t, []): fn()
        e(0); e(1); e(2)
        a(f"v_smfmac_f32_32x32x32_bf16 v[{O}:{O+15}], v[{vp+4}:{vp+7}], v[{nxt+8}:{nxt+15}], v{IDX}")
        e(3); e(4); e(5); e(6)
        a(f"v_mfma_f32_32x32x16_bf16 v[{nxt}:{nxt+15}], v[{kn}:{kn+3}], v[{Q}:{Q+3}], v[{C}:{C+15}]")
        a(f"ds_read_b128 v[{kc}:{kc+3}], v3 offset:{2048*(off+2)}")
        a("s_mov_b64 exec, s[38:39]")
        a(f"ds_read_b128 v[{vp}:{vp+3}], v4 offset:{2048*(off+1)}")
        a(f"ds_read_b128 v[{vp+4}:{vp+7}], v4 offset:{2048*(off+1)+512}")
        a("s_mov_b64 exec, -1")
        for i in range(7, 12): e(i)
        a(f"v_smfmac_f32_32x32x32_bf16 v[{O}:{O+15}], v[{vc}:{vc+3}], v[{cur}:{cur+7}], v{IDX}")
        for i in range(12, 16): e(i)
    for t in range(64):
        if t and t % 16 == 0:
            a("v_add_u32 v3, 0x8000, v3")
            a("v_add_u32 v4, 0x8000, v4")
        tile(t, t % 16, hooks)
    a("v_subrev_u32 v3, 0x18000, v3")
    a("v_subrev_u32 v4, 0x18000, v4")
    a.label("main_attn_tail")
    a(f"v_smfmac_f32_32x32x32_bf16 v[{O}:{O+15}], v[{V[1]+4}:{V[1]+7}], v[{S[1]+8}:{S[1]+15}], v{IDX}")
    stamp(a, "att1")
    a("s_lshl_b32 s21, s34, 15")
    a("s_lshl_b32 s22, s30, 10")
    a("s_add_u32 s21, s21, s22")
    a(f"s_add_u32 s21, s21, {WS_OF}")
    a(f"v_mov_b32 v6, {f32(2.0**40)}")
    a("s_waitcnt lgkmcnt(0)")
    a("s_nop 5")
    a(f"v_mov_b32 v7, v{O+8}")
    a(f"v_add_f32 v5, abs(v{O}), abs(v{O+1})")
    a(f"v_add_f32 v5, v5, abs(v{O+2})")
    a(f"v_permlane32_swap_b32 v{O+8}, v7")
    for i in range(3, 8):
        a(f"v_add_f32 v5, v5, abs(v{O+i})")
    a(f"v_mov_b32 v7, {f32(3.0e38)}")
    a(f"v_cmp_nle_f32 vcc, v{O+8}, v6")
    a(f"v_cmp_nle_f32 s[22:23], v5, v7")
    a("s_or_b64 vcc, vcc, s[22:23]")
    a("s_cmp_lg_u32 s37, 0")
    a("s_cbranch_scc1 main_fin")
    a("s_cbranch_vccnz main_fallback")
    a.label("main_fin")
    a(f"v_rcp_f32 v6, v{O+8}")
    a("s_nop 0")
    for i in range(8):
        a(f"v_mul_f32 v{O+i}, v{O+i}, v6")
    for i in range(4):
        a(f"v_cvt_pk_bf16_f32 v{16+i}, v{O+2*i}, v{O+2*i+1}")
    a("buffer_store_dwordx4 v[16:19], v9, s[16:19], s21 offen sc1")
    a("s_lshl_b32 s21, s34, 12")
    a("s_lshl_b32 s22, s30, 7")
    a("s_add_u32 s21, s21, s22")
    a(f"s_add_u32 s21, s21, {WS_F2}")
    a("v_mov_b32 v5, 0")
    a("v_mov_b32 v6, s48")
    def f2_store():
        a("s_mov_b64 exec, 1")
        a("buffer_store_dword v6, v5, s[16:19], s21 offen sc1")
        a("s_mov_b64 exec, -1")
        stamp(a, "f2")
    if OSENT: f2_store()
    a("v_lshrrev_b32 v20, 5, v2")
    a("v_lshlrev_b32 v20, 10, v20")
    a("v_bfe_u32 v21, v2, 4, 1")
    a("v_lshl_add_u32 v20, v21, 9, v20")
    a("v_lshl_add_u32 v20, v8, 4, v20")
    a("v_mul_u32_u24 v22, 528, v8")
    a("v_lshrrev_b32 v23, 4, v2")
    a("v_lshl_add_u32 v22, v23, 4, v22")
    a("s_lshl_b32 s22, s32, 6")
    a("s_add_u32 s22, s22, 32768")
    a("v_add_u32 v22, s22, v22")
    a("v_lshrrev_b32 v24, 4, v0")
    a("v_mul_u32_u24 v23, 528, v24")
    a("v_lshl_add_u32 v23, v8, 5, v23")
    a("v_add_u32 v23, 32768, v23")
    if ST2P:
        a("v_and_b32 v12, 48, v2")
        a("s_lshl_b32 s22, s32, 7")
        a("v_add_u32 v12, s22, v12")
        a("v_and_b32 v13, 3, v0")
        a("v_lshl_add_u32 v13, v13, 10, v12")
    else:
        a("v_lshlrev_b32 v12, 4, v24")
        a("v_and_b32 v13, 3, v0")
        a("v_lshl_add_u32 v13, v13, 9, v12")
    a("v_lshrrev_b32 v109, 10, v111")
    a("v_sub_u32 v109, 2047, v109")
    a("v_lshl_or_b32 v109, v109, 1, 1")
    a("v_lshlrev_b32 v110, 2, v24")
    a("v_add_u32 v110, 65536, v110")
    a(f"s_waitcnt vmcnt({2 if OSENT else 0})")
    unpack8(a, 40, XT)
    if not OSENT: f2_store()
    cv_write(MW, 4)(); cv_moe(0, 4)(); cv_write(MW + 16, 3)(); cv_moe(16, 3)()
    lchk = lambda: chk_ne(a, [GA + 2 * i + 1 for i in range(16)])
    lchk()
    a("s_cbranch_scc1 main_lok")
    poll_loop(a, lg_issue, lchk, "Ll")
    a.label("main_lok")
    for c in range(4):
        a(f"v_add_f32 v{GA+2*c}, v{GA+2*c}, v{GA+8+2*c}")
        a(f"v_add_f32 v{GA+16+2*c}, v{GA+16+2*c}, v{GA+24+2*c}")
        a(f"v_add_f32 v{56+c}, v{GA+2*c}, v{GA+16+2*c}")
    a("s_lshr_b32 s20, s32, 1")
    a("s_cmp_eq_u32 s20, 2")
    a("s_cselect_b32 s20, 1.0, 0")
    rnd_pair(a, 56, 57, 5); rnd_pair(a, 58, 59, 5)
    for c in range(4): a(f"v_add_f32 v{56+c}, s20, v{56+c}")
    rnd_pair(a, 56, 57, 5); rnd_pair(a, 58, 59, 5)
    a("ds_write_b128 v1, v[56:59]")
    a("s_lshr_b32 s20, s42, 1")
    a("s_lshl_b32 s20, s20, 12")
    a("s_and_b32 s21, s42, 1")
    a("s_lshl_b32 s21, s21, 9")
    a("s_add_u32 s20, s20, s21")
    a(f"s_add_u32 s20, s20, {STG}")
    a("v_lshl_add_u32 v10, v8, 5, s20")
    a("v_lshrrev_b32 v11, 5, v2")
    a("v_lshlrev_b32 v11, 12, v11")
    a("v_and_b32 v5, 31, v2")
    a("v_lshl_add_u32 v11, v5, 5, v11")
    a(f"v_add_u32 v11, {STG}, v11")
    unpack8(a, 72, 252)
    for i in range(4):
        a(f"v_lshlrev_b32 v{WP+2*i}, 16, v{248+i}")
        a(f"v_and_b32 v{WP+2*i+1}, 0xffff0000, v{248+i}")
    a("s_waitcnt lgkmcnt(0)")
    a("s_cmp_lg_u32 s32, 0")
    a("s_cbranch_scc1 main_s2")
    a("v_and_b32 v5, 31, v2")
    a("v_lshlrev_b32 v5, 7, v5")
    a("s_lshl_b32 s22, s41, 12")
    a(f"s_add_u32 s22, s22, {WS_F2}")
    poll_loop(a, lambda: a("buffer_load_dword v6, v5, s[16:19], s22 offen" + PF), lambda: chk_ne(a, [6]), "Lo", sleep=F2S)
    a.label("main_s2")
    a("s_lshl_b32 s23, s32, 12")
    a("s_lshl_b32 s22, s41, 15")
    a("s_add_u32 s22, s22, s23")
    a(f"s_add_u32 s62, s22, {WS_OF}")
    a("v_add_u32 v27, s23, v9")
    a("s_mov_b32 m0, s23")
    a("s_barrier")
    stamp(a, "s2")
    for n in range(4):
        a(f"buffer_load_dwordx4 v9, s[16:19], s62 offen offset:{1024*n} sc1 lds")
    a(f"s_lshl_b32 s21, s41, {11 + ST2P}")
    a(f"s_add_u32 s21, s21, {WS_ST2}")
    a(f"s_lshl_b32 s22, s42, {9 + ST2P}")
    a("s_add_u32 s22, s22, s21")
    a("s_mov_b32 s24, 0x00010001")
    a("s_mov_b32 s25, 0x00010001")
    a("v_mov_b32 v55, s48")
    for j, reg in enumerate((GA, SB, CB, GB)):
        a(f"ds_read_b128 v[{reg}:{reg+3}], v10 offset:{8192*j}")
        a(f"ds_read_b128 v[{reg+4}:{reg+7}], v10 offset:{8192*j+16}")
    for j in range(2):
        a(f"ds_read_b128 v[{56+8*j}:{59+8*j}], v11 offset:{8192*(j+1)}")
        a(f"ds_read_b128 v[{60+8*j}:{63+8*j}], v11 offset:{8192*(j+1)+16}")
    a("s_waitcnt lgkmcnt(0)")
    for i in range(8):
        a(f"v_mul_f32 v{WP+i}, v{WP+i}, v{CB+i}")
    a("v_mul_f32 v252, v72, v64")
    a("v_mul_f32 v253, v72, v56")
    for i in range(1, 8):
        a(f"v_fmac_f32 v252, v{72+i}, v{64+i}")
        a(f"v_fmac_f32 v253, v{72+i}, v{56+i}")
    multi_allreduce(a, [252, 253], [5, 6])
    a("s_waitcnt vmcnt(0)")
    if OSENT:
        a(f"s_mov_b32 s60, {SPIN}")
        a.label("main_ov")
        for n in range(4): a(f"ds_read_b32 v{28+n}, v27 offset:{1024*n}")
        a("s_waitcnt lgkmcnt(0)")
        a("v_max3_u32 v28, v28, v29, v30")
        a("v_max_u32 v28, v28, v31")
        a("v_cmp_eq_u32 vcc, -1, v28")
        a("s_cbranch_vccz main_ok")
        for n in range(4):
            a(f"buffer_load_dwordx4 v9, s[16:19], s62 offen offset:{1024*n} sc1 lds")
        a("s_sub_u32 s60, s60, 1")
        a("s_waitcnt vmcnt(0)")
        a("s_cmp_lg_u32 s60, 0")
        a("s_cbranch_scc1 main_ov")
        a.label("main_ok")
    a("s_barrier")
    stamp(a, "olan")
    OFR = 56
    def rd(s):
        b = OFR + 8 * (s % 4)
        a(f"ds_read_b128 v[{b}:{b+3}], v20 offset:{2048*s}")
        a(f"ds_read_b128 v[{b+4}:{b+7}], v20 offset:{2048*s+256}")
    rd(0); rd(1); rd(2)
    for s in range(16):
        if s < 13:
            rd(s + 3)
            a("s_waitcnt lgkmcnt(6)")
        else:
            a(f"s_waitcnt lgkmcnt({2*(15-s)})")
        b = OFR + 8 * (s % 4)
        stamp(a, f"o{s}")
        for u in range(2):
            mf16(a, 24 + 4 * u, WO + 4 * s, b + 4 * u, None if s == 0 else 24 + 4 * u)
    stamp(a, "omf")
    a("s_nop 6")
    a("ds_write_b128 v22, v[24:27]")
    a(f"ds_write_b128 v22, v[28:31] offset:{16*528}")
    a("s_waitcnt lgkmcnt(0)")
    a("s_barrier")
    stamp(a, "tbar")
    a("ds_read_b128 v[32:35], v23")
    a("ds_read_b128 v[36:39], v23 offset:16")
    a("s_mov_b32 s23, 0xffff0000")
    def rnd4(lo):
        for i in lo: a(f"v_cvt_pk_bf16_f32 v{56+i//2}, v{32+i}, v{33+i}")
        for i in lo:
            a(f"v_lshlrev_b32 v{32+i}, 16, v{56+i//2}")
            a(f"v_and_b32 v{33+i}, s23, v{56+i//2}")
    a("s_waitcnt lgkmcnt(0)")
    E = (0, 2, 4, 6)
    rnd4(E)
    for i in E: a(f"v_pk_mul_f32 v[{32+i}:{33+i}], v[{32+i}:{33+i}], v[{GA+i}:{GA+i+1}]")
    rnd4(E)
    for i in E: a(f"v_pk_add_f32 v[{32+i}:{33+i}], v[{32+i}:{33+i}], v[{40+i}:{41+i}]")
    for i in E: a(f"v_cvt_pk_bf16_f32 v{48+i//2}, v{32+i}, v{33+i}")
    for i in E:
        a(f"v_lshlrev_b32 v{32+i}, 16, v{48+i//2}")
        a(f"v_and_b32 v{33+i}, s23, v{48+i//2}")
    a("v_pk_add_f32 v[56:57], v[32:33], v[34:35]")
    a("v_pk_mul_f32 v[58:59], v[32:33], v[32:33]")
    a(f"v_pk_mul_f32 v[60:61], v[32:33], v[{WP}:{WP+1}]")
    for i in (2, 4, 6):
        if i > 2: a(f"v_pk_add_f32 v[56:57], v[56:57], v[{32+i}:{33+i}]")
        a(f"v_pk_fma_f32 v[58:59], v[{32+i}:{33+i}], v[{32+i}:{33+i}], v[58:59]")
        a(f"v_pk_fma_f32 v[60:61], v[{32+i}:{33+i}], v[{WP+i}:{WP+i+1}], v[60:61]")
    a("v_add_f32 v52, v56, v57")
    a("v_add_f32 v53, v58, v59")
    a("v_add_f32 v54, v60, v61")
    a("s_nop 0")
    for n in (8, 4, 2, 1):
        for r in (52, 53, 54):
            a(f"v_add_f32_dpp v{r}, v{r}, v{r} row_ror:{n} row_mask:0xf bank_mask:0xf")
    a("s_mov_b64 exec, s[24:25]")
    a("buffer_store_dwordx4 v[52:55], v12, s[16:19], s22 offen sc1")
    a("s_mov_b64 exec, -1")
    stamp(a, "st2")
    poll_loop(a, lambda: (a(f"s_sleep {S3D}"), a("buffer_load_dwordx4 v[56:59], v13, s[16:19], s21 offen" + PF)), lambda: chk_ne(a, [59]), "Ls", sleep=0)
    stamp(a, "s3")
    for qp in ("[1,0,3,2]", "[2,3,0,1]"):
        for r in (56, 57, 58):
            a(f"v_add_f32_dpp v{r}, v{r}, v{r} quad_perm:{qp} row_mask:0xf bank_mask:0xf")
    a(f"v_mul_f32 v56, {f32(1/512)}, v56")
    a(f"v_mul_f32 v57, {f32(1/512)}, v57")
    a("v_fma_f32 v57, -v56, v56, v57")
    a("v_max_f32 v57, 0, v57")
    rnd_pair(a, 56, 57, 26)
    a(f"v_add_f32 v57, {f32(1e-5)}, v57")
    rnd_bf16(a, 57)
    a("v_sqrt_f32 v57, v57")
    a("v_fma_f32 v58, -v56, v252, v58")
    rnd_bf16(a, 57)
    a("v_rcp_f32 v57, v57")
    a("s_nop 0")
    a("v_fma_f32 v58, v58, v57, v253")
    a("v_cvt_pk_bf16_f32 v58, v58, v58")
    a("v_ashrrev_i32 v59, 31, v58")
    a("v_or_b32 v59, 0x80000000, v59")
    a("v_xor_b32 v58, v58, v59")
    a("v_and_b32 v58, 0xffff0000, v58")
    a("v_or_b32 v58, v58, v109")
    a("ds_write_b32 v110, v58")
    a("v_and_b32 v5, 31, v2")
    a("v_lshlrev_b32 v5, 2, v5")
    a("v_add_u32 v5, 65536, v5")
    a("s_waitcnt lgkmcnt(0)")
    a("s_barrier")
    stamp(a, "kbar")
    a("ds_read_b32 v10, v5")
    def h2_math(i):
        a(f"v_sub_f32 v{40+i}, v{32+i}, v56")
        a(f"v_sub_f32 v{41+i}, v{33+i}, v56")
        rnd_pair(a, 40 + i, 41 + i, 26)
        a(f"v_mul_f32 v{40+i}, v{40+i}, v57")
        a(f"v_mul_f32 v{41+i}, v{41+i}, v57")
        rnd_pair(a, 40 + i, 41 + i, 26)
        a(f"v_mul_f32 v{40+i}, v{40+i}, v{CB+i}")
        a(f"v_mul_f32 v{41+i}, v{41+i}, v{CB+i+1}")
        rnd_pair(a, 40 + i, 41 + i, 26)
        a(f"v_add_f32 v{40+i}, v{40+i}, v{SB+i}")
        a(f"v_add_f32 v{41+i}, v{41+i}, v{SB+i+1}")
        a(f"v_cvt_pk_bf16_f32 v{60+i//2}, v{40+i}, v{41+i}")
    h2_math(0)
    a("s_waitcnt lgkmcnt(0)")
    a("v_mov_b32 v64, v10")
    multi_allreduce(a, [64], [11], op="v_max_u32")
    a("v_cmp_eq_u32 vcc, v64, v10")
    a("s_nop 1")
    a("v_cndmask_b32 v65, v10, 0, vcc")
    multi_allreduce(a, [65], [11], op="v_max_u32")
    a("v_cmp_eq_u32 s[26:27], v64, v58")
    a("v_cmp_eq_u32 s[28:29], v65, v58")
    a("s_or_b32 s20, s42, s32")
    a("s_cmp_lg_u32 s20, 0")
    a("s_cbranch_scc1 main_notop")
    a("v_and_b32 v65, -2, v65")
    a("v_mov_b32 v66, s48")
    a("v_mov_b32 v67, s48")
    a(f"s_lshl_b32 s20, s41, {TOPSH}")
    a(f"s_add_u32 s20, s20, {WS_TOP}")
    a("v_mov_b32 v5, 0")
    a("s_mov_b64 exec, 1")
    a("buffer_store_dwordx4 v[64:67], v5, s[16:19], s20 offen sc1")
    a("s_mov_b64 exec, -1")
    a.label("main_notop")
    stamp(a, "top")
    for i in (2, 4, 6): h2_math(i)
    a("s_or_b64 s[62:63], s[26:27], s[28:29]")
    a("s_cmp_eq_u64 s[62:63], 0")
    a("s_cbranch_scc1 main_nocand")
    a("v_mov_b32 v5, 2048")
    a("v_cndmask_b32 v5, 0, v5, s[28:29]")
    a("v_lshl_add_u32 v5, v8, 4, v5")
    a("s_lshl_b32 s20, s41, 12")
    a("s_lshl_b32 s21, s42, 8")
    a("s_add_u32 s20, s20, s21")
    a(f"s_add_u32 s20, s20, {WS_CAND}")
    a("s_mov_b64 exec, s[62:63]")
    a("buffer_store_dwordx4 v[60:63], v5, s[16:19], s20 offen sc1")
    a("buffer_store_dwordx4 v[48:51], v5, s[16:19], s20 offen offset:1024 sc1")
    a("s_mov_b64 exec, -1")
    a.label("main_nocand")
    a("s_cmp_lg_u32 s32, 0")
    a("s_cbranch_scc1 main_notp")
    a(f"s_mov_b32 s22, {WS_TOP}")
    a(f"v_lshlrev_b32 v76, {TOPSH}, v2")
    a("buffer_load_dwordx4 v[68:71], v76, s[16:19], s22 offen" + PF)
    a.label("main_notp")
    for i in range(0, 8, 2):
        a(f"v_lshlrev_b32 v{40+i}, 16, v{60+i//2}")
        a(f"v_and_b32 v{41+i}, 0xffff0000, v{60+i//2}")
        a(f"v_mul_f32 v{40+i}, v{40+i}, v{GB+i}")
        a(f"v_mul_f32 v{41+i}, v{41+i}, v{GB+i+1}")
        rnd_pair(a, 40 + i, 41 + i, 26)
        a(f"v_add_f32 v{40+i}, v{40+i}, v{32+i}")
        a(f"v_add_f32 v{41+i}, v{41+i}, v{33+i}")
        a(f"v_cvt_pk_bf16_f32 v{72+i//2}, v{40+i}, v{41+i}")
    a("s_cmp_lg_u32 s32, 0")
    a("s_cbranch_scc1 main_w0e")
    def t_issue():
        if SLOWP:
            l = a.newlabel("Lsl")
            a("s_cmp_lt_u32 s2, 144")
            a(f"s_cbranch_scc1 {l}")
            a(f"s_sleep {SLOWP}")
            a.label(l)
        a("buffer_load_dwordx4 v[68:71], v76, s[16:19], s22 offen" + PF)
    poll_loop(a, t_issue, lambda: chk_ne(a, [70]), "Lt", first_issued=True, sleep=TSLEEP)
    a("v_mov_b32 v64, v68")
    multi_allreduce(a, [64], [11], op="v_max_u32")
    a("v_cmp_eq_u32 vcc, v64, v68")
    a("s_nop 1")
    a("v_cndmask_b32 v65, v68, v69, vcc")
    multi_allreduce(a, [65], [11], op="v_max_u32")
    a("v_mov_b32 v5, 65792")
    a("ds_write_b64 v5, v[64:65]")
    a("s_waitcnt lgkmcnt(0)")
    a.label("main_w0e")
    a("s_andn2_b64 exec, -1, s[62:63]")
    a("global_store_dwordx4 v111, v[72:75], s[50:51]" + OUTF)
    a("s_mov_b64 exec, -1")
    a("s_barrier")
    stamp(a, "s4")
    a("v_mov_b32 v5, 65792")
    a("ds_read_b64 v[64:65], v5")
    a("s_waitcnt lgkmcnt(0)")
    a("s_cmp_eq_u64 s[62:63], 0")
    a("s_cbranch_scc1 main_nodef")
    a("v_or_b32 v5, 1, v64")
    a("v_or_b32 v6, 1, v65")
    a("v_cmp_ne_u32 vcc, v5, v58")
    a("v_cmp_ne_u32 s[20:21], v6, v58")
    a("s_and_b64 vcc, vcc, s[20:21]")
    a("s_and_b64 exec, vcc, s[62:63]")
    a("s_cbranch_execz main_nodef")
    a("global_store_dwordx4 v111, v[72:75], s[50:51]" + OUTF)
    a.label("main_nodef")
    a("s_mov_b64 exec, -1")
    a("s_cmp_ge_u32 s2, 144")
    a("s_cbranch_scc1 main_done")
    def cand_off(key, d, t):
        a(f"v_bfe_u32 v{d}, v{key}, 6, 6")
        a(f"v_sub_u32 v{d}, 63, v{d}")
        a(f"v_lshlrev_b32 v{d}, 12, v{d}")
        a(f"v_not_b32 v{t}, v{key}")
        a(f"v_and_b32 v{t}, 1, v{t}")
        a(f"v_lshl_add_u32 v{d}, v{t}, 11, v{d}")
    a("s_cmp_ge_u32 s2, 112")
    a("s_cbranch_scc1 main_down")
    a("v_and_b32 v15, 1, v2")
    a("v_cmp_eq_u32 vcc, 0, v15")
    a("s_lshr_b32 s21, s32, 1")
    a("s_lshl_b32 s21, s21, 8")
    a("v_cndmask_b32 v16, v65, v64, vcc")
    cand_off(16, 17, 18)
    a("v_lshrrev_b32 v18, 4, v2")
    a("v_lshl_add_u32 v17, v18, 4, v17")
    a(f"s_add_u32 s22, s21, {WS_CAND}")
    def issue():
        for n in range(4):
            a(f"buffer_load_dwordx4 v[{32+4*n}:{35+4*n}], v17, s[16:19], s22 offen offset:{64*n} sc1")
    def check():
        a("v_max3_u32 v5, v32, v36, v40")
        a("v_max_u32 v5, v5, v44")
        a("v_cmp_eq_u32 vcc, -1, v5")
        a("s_cmp_eq_u64 vcc, 0")
    poll_loop(a, issue, check, "Lh", sleep=2)
    stamp(a, "moe")
    for n in range(4):
        mf16(a, 20, 32 + 4 * n, MW + 4 * n, None if n == 0 else 20)
    PB = 66560
    def partial_and_gather():
        a("s_lshl_b32 s23, s32, 7")
        a(f"s_add_u32 s23, s23, {PB}")
        a("v_lshl_add_u32 v24, v2, 2, s23")
        a("s_mov_b64 exec, 0xffff")
        a("s_nop 4")
        a("ds_write_b32 v24, v20")
        a("ds_write_b32 v24, v21 offset:64")
        a("s_mov_b64 exec, -1")
        a("s_waitcnt lgkmcnt(0)")
        a("s_barrier")
        a("s_cmp_lg_u32 s32, 0")
        a("s_cbranch_scc1 main_done")
        a("v_and_b32 v24, 31, v0")
        a("v_lshlrev_b32 v24, 2, v24")
        a(f"v_add_u32 v24, {PB}, v24")
        for w in range(8):
            a(f"ds_read_b32 v{32+w}, v24 offset:{128*w}")
    partial_and_gather()
    a("v_lshlrev_b32 v25, 1, v0")
    a("s_lshl_b32 s21, s33, 7")
    a(f"s_add_u32 s21, s21, {WS_ACT}")
    a("s_waitcnt lgkmcnt(0)")
    for w in range(2, 8):
        a(f"v_add_f32 v{32+(w&1)}, v{32+(w&1)}, v{32+w}")
    rnd_pair(a, 32, 33, 40)
    silu(a, 32, 34)
    rnd_bf16(a, 32)
    a("v_mul_f32 v32, v32, v33")
    a("s_nop 1")
    a("v_mov_b32_dpp v33, v32 quad_perm:[1,0,3,2] row_mask:0xf bank_mask:0xf")
    a("v_cvt_pk_bf16_f32 v32, v32, v33")
    a("s_mov_b64 exec, 0x55555555")
    a("buffer_store_dword v32, v25, s[16:19], s21 offen sc1")
    a("s_mov_b64 exec, -1")
    a("s_branch main_done")
    a.label("main_down")
    if STAMPS is not None and "moe" in STAMPS: Prof.n -= 1
    a("v_bfe_u32 v15, v0, 4, 1")
    a("v_cmp_eq_u32 vcc, 0, v15")
    a("s_lshl_b32 s21, s33, 5")
    a(f"s_add_u32 s22, s21, {WS_CAND}")
    a("v_cndmask_b32 v12, v65, v64, vcc")
    cand_off(12, 16, 17)
    a("v_and_b32 v17, 14, v8")
    a("v_lshl_add_u32 v16, v17, 1, v16")
    def issue():
        a("buffer_load_dword v17, v16, s[16:19], s22 offen sc1")
        a("buffer_load_dword v18, v16, s[16:19], s22 offen offset:1024 sc1")
    def check():
        a("v_max_u32 v5, v17, v18")
        a("v_cmp_eq_u32 vcc, -1, v5")
        a("s_cmp_eq_u64 vcc, 0")
    a("s_lshr_b32 s23, s33, 4")
    a("s_lshl_b32 s23, s23, 12")
    a("s_and_b32 s20, s33, 15")
    a("s_lshl_b32 s20, s20, 6")
    a("s_add_u32 s23, s23, s20")
    a(f"s_add_u32 s23, s23, {STG + 3*8192}")
    a("v_lshl_add_u32 v19, v8, 2, s23")
    a("ds_read_b32 v19, v19")
    poll_loop(a, issue, check, "Lf", sleep=2)
    a("v_bfe_u32 v15, v12, 1, 11")
    a("v_sub_u32 v15, 2047, v15")
    a("v_lshlrev_b32 v15, 10, v15")
    a("v_lshl_add_u32 v15, v8, 1, v15")
    a("v_add_u32 v15, s21, v15")
    a("v_and_b32 v16, 1, v0")
    a("v_lshlrev_b32 v16, 4, v16")
    a("v_lshrrev_b32 v17, v16, v17")
    a("v_lshrrev_b32 v18, v16, v18")
    a("v_lshlrev_b32 v17, 16, v17")
    a("v_lshlrev_b32 v18, 16, v18")
    a("v_and_b32 v12, 0xffff0000, v12")
    a("v_ashrrev_i32 v25, 31, v12")
    a("v_not_b32 v25, v25")
    a("v_or_b32 v25, 0x80000000, v25")
    a("v_xor_b32 v12, v12, v25")
    a("v_and_b32 v12, 0xffff0000, v12")
    a(f"v_mul_f32 v25, {NLOG2E:#x}, v12")
    a("v_exp_f32 v25, v25")
    a("s_nop 0")
    a("v_add_f32 v25, 1.0, v25")
    a("v_rcp_f32 v25, v25")
    a("s_nop 0")
    rnd_bf16(a, 25)
    a("v_and_b32 v13, 1, v2")
    a("v_lshlrev_b32 v13, 5, v13")
    a("v_bfe_u32 v14, v2, 4, 1")
    a("v_lshl_add_u32 v13, v14, 4, v13")
    a("v_lshrrev_b32 v14, 5, v2")
    a("v_lshl_add_u32 v13, v14, 7, v13")
    a("s_mul_i32 s22, s32, 1792")
    a(f"s_add_u32 s22, s22, {WS_ACT}")
    def issue():
        for n in range(7):
            a(f"buffer_load_dwordx4 v[{32+4*n}:{35+4*n}], v13, s[16:19], s22 offen offset:{256*n}" + PF)
    def check():
        a("v_max3_u32 v5, v32, v33, v34")
        for i in range(3, 27, 2):
            a(f"v_max3_u32 v5, v5, v{32+i}, v{33+i}")
        a("v_max_u32 v5, v5, v59")
        a("v_cmp_eq_u32 vcc, -1, v5")
        a("s_cmp_eq_u64 vcc, 0")
    if ACTD: a(f"s_sleep {ACTD}")
    poll_loop(a, issue, check, "La", sleep=ACTS)
    stamp(a, "moe")
    for n in range(7):
        mf16(a, 20, 32 + 4 * n, MW + 4 * n, None if n == 0 else 20)
    partial_and_gather()
    a("s_waitcnt lgkmcnt(0)")
    for w in range(1, 8):
        a(f"v_add_f32 v32, v32, v{32+w}")
    rnd_bf16(a, 32)
    a("v_mul_f32 v32, v32, v25")
    rnd_bf16(a, 32)
    a("v_add_f32 v32, v32, v17")
    rnd_bf16(a, 32)
    a("v_mul_f32 v32, v32, v19")
    rnd_bf16(a, 32)
    a("v_add_f32 v32, v32, v18")
    a("v_cvt_pk_bf16_f32 v32, v32, v32")
    a("s_mov_b32 exec_hi, 0")
    a("global_store_short v15, v32, s[50:51]" + OUTF)
    a("s_cmp_lg_u32 s33, 0")
    a("s_cbranch_scc1 main_done")
    a("v_mov_b32 v5, 0")
    a("v_mov_b32 v6, s48")
    a("s_mov_b64 exec, 1")
    a("global_store_dword v5, v6, s[4:5]" + OUTF)
    a.label("main_done")
    if STAMPS is not None: stamp_end(a)
    a.label("main_end")
    a("s_endpgm")
    a.label("main_fallback")
    a("s_mov_b32 s37, 1")
    a("s_mov_b32 s20, 64")
    a("v_mov_b32 v6, 0xff800000")
    a("v_mov_b32 v5, v3")
    a.label("main_fb_loop")
    a(f"ds_read_b128 v[{K[0]}:{K[0]+3}], v5")
    a("v_add_u32 v5, 0x800, v5")
    a("s_waitcnt lgkmcnt(0)")
    a(f"v_mfma_f32_32x32x16_bf16 v[{s0}:{s0+15}], v[{K[0]}:{K[0]+3}], v[{Q}:{Q+3}], 0")
    a("s_nop 11")
    for i in range(0, 16, 2):
        a(f"v_max3_f32 v6, v6, v{s0+i}, v{s0+i+1}")
    a("s_sub_u32 s20, s20, 1")
    a("s_cmp_lg_u32 s20, 0")
    a("s_cbranch_scc1 main_fb_loop")
    a(f"ds_read_b128 v[{K[0]}:{K[0]+3}], v3")
    a(f"ds_read_b128 v[{K[1]}:{K[1]+3}], v3 offset:2048")
    for i in range(16):
        a(f"v_mov_b32 v{O+i}, 0")
    setmax()
    a("s_mov_b64 exec, s[38:39]")
    a(f"ds_read_b128 v[{V[0]}:{V[0]+3}], v4")
    a(f"ds_read_b128 v[{V[0]+4}:{V[0]+7}], v4 offset:512")
    a("s_mov_b64 exec, -1")
    a("s_waitcnt lgkmcnt(0)")
    a(f"v_mfma_f32_32x32x16_bf16 v[{s0}:{s0+15}], v[{K[0]}:{K[0]+3}], v[{Q}:{Q+3}], v[{C}:{C+15}]")
    for i in range(8):
        a(f"v_mov_b32 v{S[1]+8+i}, 0")
    a("s_mov_b32 s20, 32")
    a("s_nop 3")
    a.label("main_fb2")
    tile(0, 0, {}); tile(1, 1, {})
    a("v_add_u32 v3, 0x1000, v3")
    a("v_add_u32 v4, 0x1000, v4")
    a("s_sub_u32 s20, s20, 1")
    a("s_cmp_lg_u32 s20, 0")
    a("s_cbranch_scc1 main_fb2")
    a("v_subrev_u32 v3, 0x20000, v3")
    a("v_subrev_u32 v4, 0x20000, v4")
    a("s_branch main_attn_tail")

NOTES = """;
"""
def main(out, aslist=False):
    hdr = open("adaLN_cond__mha_block__moe_arch_mod__prompt.s.ref").read().split("; Override launch")[0]
    txt = hdr
    if aslist:
        txt += f"; @launch kernel={KNAME} grid=(256,1,1) block=(512,1,1) lds=163840\n"
    else:
        txt += "; @launch grid=(256,1,1) block=(512,1,1) lds=163840\n"
    txt += NOTES
    txt += '.amdgcn_target "amdgcn-amd-amdhsa--gfx950"\n'
    a = Asm()
    k_main(a)
    txt += a.text()
    txt += kernel_desc(KNAME, 256)
    open(out, "w").write(txt)

SETS = {
    "t2": ["s2", "olan", "o0", "o4", "o8", "o12", "omf", "tbar", "st2", "s3", "kbar", "top", "s4"],
    "sc": ["wland", "barx", "sc0", "sc1", "sc2", "sc3", "sc4", "sc5", "bar1", "p2", "p4", "p8", "p12"],
    "q": ["pass1", "kvpub", "q0", "q2", "q4", "q6", "q8", "q10", "f1", "q12", "q14", "att0", "a4"],
    "at": ["att0", "a4", "a8", "a12", "a16", "a24", "a32", "a40", "a48", "a52", "a56", "a60", "att1"],
    "ld": ["karg", "mp", "iw", "i2", "l0", "l1", "l2", "gath1", "barx", "bar1", "p3", "p6", "p9"],
    "p1": ["bar1", "p0", "p1", "p2", "p3", "p4", "p5", "p6", "p7", "p8", "p10", "p12", "p14"],
    "p2": ["p8", "p9", "p10", "p11", "p12", "p13", "p14", "p15", "pass1", "kvpub", "att0", "f1", "kvok"],
    "f0": ["karg", "pk", "ack", "l0", "l2", "gath0", "gath1", "wland", "barx", "bar1", "pass1", "f1", "att0"],
    "f1": ["barx", "bar1", "p5", "pass1", "kvpub", "att0", "f1", "kvok", "ky", "bar6", "bar14", "att1"],
    "tail": ["att0", "t23", "t42", "att1", "f2", "s2", "olan", "st2", "s3", "top", "s4", "moe"],
}
if __name__ == "__main__":
    if len(sys.argv) > 2 and sys.argv[2] in SETS:
        G1.PROF = True
        STAMPS = set(SETS[sys.argv[2]])
    main(sys.argv[1], aslist=(len(sys.argv) > 2 and sys.argv[2] != "final"))
    if STAMPS: print(" ".join(["start"] + ORDER + ["end"]))
```

```python
import sys, os
from asmlib import *
import gen_v1 as G1
from gen_v1 import (f32, multi_allreduce, unpack8, rnd_pair, tr_addr_natural, dma_row_src,
                    stamp_begin, stamp_end, Prof, NLOG2E, QSCALE, WS_BYTES)

KNAME = "adaLN_cond__mha_block__moe_arch_mod__prompt_kernel"
WS_EPOCH = 0
WS_MP = 0x1000
WS_ST1 = 0x10000
WS_MPL = 0x20000
WS_ST2 = 0x180000
WS_TOP = 0x60000
WS_ACT = 0x64000
WS_CAND = 0x80000
WS_F1 = 0x100000
WS_F2 = 0x140000
WS_WP = 0x200000
WS_KV = 0x500000
WS_OF = 0x900000
SPIN = 50000
STAMPS = None
ORDER = []

def stamp(a, name):
    if STAMPS is not None and name in STAMPS:
        if name not in ORDER: ORDER.append(name)
        G1.stamp(a)

def poll_loop(a, issue, check, name, first_issued=False, sleep=4):
    l = a.newlabel(name); d = a.newlabel(name + "d"); w = a.newlabel(name + "w")
    a(f"s_mov_b32 s60, {SPIN}")
    if first_issued: a(f"s_branch {w}")
    a.label(l)
    issue()
    if first_issued: a.label(w)
    a("s_waitcnt vmcnt(0)")
    check()
    a(f"s_cbranch_scc1 {d}")
    a("s_sub_u32 s60, s60, 1")
    if sleep: a(f"s_sleep {sleep}")
    a("s_cmp_lg_u32 s60, 0")
    a(f"s_cbranch_scc1 {l}")
    a.label(d)

def chk_ne(a, regs):
    a(f"v_cmp_ne_u32 vcc, s48, v{regs[0]}")
    for r in regs[1:]:
        a(f"v_cmp_ne_u32 s[20:21], s48, v{r}")
        a("s_or_b64 vcc, vcc, s[20:21]")
    a("s_cmp_eq_u64 vcc, 0")

def silu(a, x, t):
    a(f"v_mul_f32 v{t}, {NLOG2E:#x}, v{x}")
    a(f"v_exp_f32 v{t}, v{t}")
    a("s_nop 0")
    a(f"v_add_f32 v{t}, 1.0, v{t}")
    a(f"v_rcp_f32 v{t}, v{t}")
    a("s_nop 0")
    a(f"v_mul_f32 v{x}, v{x}, v{t}")

def mf16(a, d, A, B, c):
    cs = "0" if c is None else f"v[{c}:{c+3}]"
    a(f"v_mfma_f32_16x16x32_bf16 v[{d}:{d+3}], v[{A}:{A+3}], v[{B}:{B+3}], {cs}")

def trr(a, d, a1, a2, off):
    a(f"ds_read_b64_tr_b16 v[{d}:{d+1}], v{a1} offset:{off}")
    a(f"ds_read_b64_tr_b16 v[{d+2}:{d+3}], v{a2} offset:{off}")

WPB = 0; RING = 49152
REG = {0: 32768, 1: 0, 2: 16384}
EMB = 147456; SAT = 151552; CTE = 152576; CAT = 152832; REC = 154880; STT = 157440; FINR = 152576 - 0
STG = 131072
EM2 = 159744
FIN = 159488 - 320 + 64 - 64
Q = 16; C = 20; S = [36, 52]; O = 68; K = [84, 88]; V = [92, 100]; IDX = 108
WO = 112; MW = 176; XT = 204
GA = 208; SB = 216; CB = 224; GB = 232; WP = 240
FLIP = int(os.environ.get('FLIP', 54))
RBAR = int(os.environ.get('RBAR', 12))
TILEV = int(os.environ.get('TILEV', 0))
YK = int(os.environ.get('YK', 4))
TOUCHD = int(os.environ.get('TOUCHD', 16))
TOUCHG = int(os.environ.get('TOUCHG', 0))
TOUCHW = int(os.environ.get('TOUCHW', 7))
OUTF = os.environ.get('OUTF', '')
OSENT = int(os.environ.get('OSENT', 0))
TOPSH = int(os.environ.get('TOPSH', 7))
SLOWP = int(os.environ.get('SLOWP', 40))
TSLEEP = int(os.environ.get('TSLEEP', 2))
ST2P = int(os.environ.get('ST2P', 1))
PREW = int(os.environ.get('PREW', 25))
PREO = int(os.environ.get('PREO', 0))
PREF = int(os.environ.get('PREF', 1))
S3D = int(os.environ.get('S3D', 8))
S3S = int(os.environ.get('S3S', 1))
ACTD = int(os.environ.get('ACTD', 0))
ACTS = int(os.environ.get('ACTS', 2))
F2S = int(os.environ.get('F2S', 1))
PF = os.environ.get('PF', ' sc1')
KVP = int(os.environ.get('KVP', 0))
TLB = int(os.environ.get('TLB', 21))
CODEPF = int(os.environ.get('CODEPF', 0))
P1FLIP = int(os.environ.get('P1FLIP', 11))
TOUCH = 0
WPS = 16384 + 384
F1STEP = 10
XR = 32; WR = 160; ACC = 184; QA = 176; WF = [236, 244]

def k_main(a):
    kernel_begin(a, KNAME)
    a("s_cmp_ge_u32 s2, 256")
    a("s_cbranch_scc1 main_end")
    if STAMPS is not None: stamp_begin(a, 0)
    a("s_setprio 3")
    a("s_load_dwordx2 s[4:5], s[0:1], 96")
    a("s_load_dwordx4 s[44:47], s[0:1], 64")
    a("s_load_dwordx2 s[6:7], s[0:1], 0")
    a("s_load_dwordx4 s[8:11], s[0:1], 8")
    a("s_load_dwordx8 s[52:59], s[0:1], 32")
    a("s_load_dwordx2 s[50:51], s[0:1], 80")
    a("v_lshrrev_b32 v1, 6, v0")
    a("v_and_b32 v2, 63, v0")
    a("s_and_b32 s31, s2, 1")
    a("s_lshl_b32 s31, s31, 2")
    a("v_readfirstlane_b32 s32, v1")
    a("s_bfe_u32 s20, s2, 0x20003")
    a("s_add_u32 s31, s31, s20")
    a("s_and_b32 s30, s2, 6")
    a("s_lshl_b32 s30, s30, 2")
    a("s_lshr_b32 s20, s2, 5")
    a("s_add_u32 s30, s30, s20")
    a("s_lshl_b32 s33, s20, 1")
    a("v_lshlrev_b32 v9, 4, v2")
    a("v_lshrrev_b32 v17, 3, v2")
    a("v_and_b32 v16, 6, v17")
    a("v_xor_b32 v16, v16, v2")
    a("v_and_b32 v16, 7, v16")
    a("v_lshlrev_b32 v200, 10, v17")
    a("v_lshl_add_u32 v200, v16, 4, v200")
    for q in range(1, 4): a(f"v_add_u32 v{200+q}, {7168*q}, v200")
    dma_row_src(a, 255, 2, 6144, 16, 17)
    a("s_lshl_b32 s28, s31, 18")
    a("s_lshl_b32 s21, s32, 15")
    a("s_add_u32 s28, s28, s21")
    a("s_lshl_b32 s29, s33, 6")
    a("s_mul_i32 s49, s32, 12288")
    a(f"s_add_u32 s49, s49, {RING}")
    a("v_lshrrev_b32 v3, 1, v2")
    a("v_lshl_add_u32 v3, v1, 6, v3")
    a("v_and_b32 v6, 1, v0")
    a("v_bfe_u32 v22, v2, 1, 2")
    a("v_mul_u32_u24 v22, 3072, v22")
    a("v_lshrrev_b32 v17, 3, v2")
    a("v_lshl_add_u32 v22, v17, 5, v22")
    a("v_lshl_add_u32 v22, v6, 4, v22")
    a(f"v_mul_u32_u24 v23, {WPS}, v17")
    a("v_and_b32 v17, 7, v2")
    a("v_lshl_add_u32 v23, v17, 4, v23")
    a("s_and_b32 s36, s2, 7")
    a("s_lshl_b32 s36, s36, 4")
    a("s_lshr_b32 s20, s2, 4")
    a("s_add_u32 s36, s36, s20")
    a("s_bfe_u32 s37, s2, 0x10003")
    a("v_lshlrev_b32 v19, 3, v2")
    a("s_lshl_b32 s39, s2, 3")
    a("s_add_u32 s39, s39, s32")
    a("s_and_b32 s62, s2, 7")
    a("s_lshl_b32 s62, s62, 3")
    a("s_bfe_u32 s23, s2, 0x30003")
    a("s_add_u32 s62, s62, s23")
    a("s_waitcnt lgkmcnt(0)")
    stamp(a, "karg")
    a("s_load_dword s48, s[4:5], 0")
    srd(a, 24, 6, 2048 * 1024)
    srd(a, 16, 4, WS_BYTES)
    srd(a, 12, 8, 512 * 3072)
    a("s_cmp_lg_u32 s32, 0")
    a("s_cbranch_scc1 main_w0a")
    a("s_lshr_b32 s21, s2, 6")
    a("s_lshl_b32 s22, s21, 8")
    a("v_lshl_add_u32 v16, v2, 2, s22")
    a("global_load_dword v232, v16, s[44:45]")
    srd(a, 40, 46, 512 * 6144)
    a(f"s_mul_i32 s22, s21, {128*6144}")
    a("s_lshl_b32 s23, s62, 5")
    a("s_add_u32 s22, s22, s23")
    for n in range(4):
        a(f"s_mov_b32 m0, {EMB + 1024*n}")
        if n: a(f"s_add_u32 s22, s22, {32*6144}")
        else: a("s_nop 0")
        a("buffer_load_dwordx4 v255, s[40:43], s22 offen lds")
    a("s_branch main_w0i")
    a.label("main_w0a")
    a("s_cmp_eq_u32 s32, 7")
    a("s_cbranch_scc1 main_w7" if TLB else "s_cbranch_scc1 main_w0i")
    a(f"s_mul_i32 s20, s36, {4*3072}")
    a("s_mul_i32 s21, s37, 1536")
    a("s_add_u32 s20, s20, s21")
    a("s_lshl_b32 s21, s32, 8")
    a("s_add_u32 s20, s20, s21")
    a("s_sub_u32 s20, s20, 256")
    a(f"buffer_load_dwordx4 v[{WR}:{WR+3}], v22, s[12:15], s20 offen")
    if TLB:
        a("s_branch main_w0i")
        a.label("main_w7")
        a("s_lshl_b32 s20, s2, 8")
        a(f"v_lshlrev_b32 v16, {TLB}, v2")
        a(f"s_mov_b64 exec, {(1 << min(63, (12 << 20) >> TLB)) - 1:#x}") if ((12 << 20) >> TLB) <= 31 else a("s_nop 0")
        a("buffer_load_dword v160, v16, s[16:19], s20 offen")
        a("s_mov_b64 exec, 1")
        a("v_mov_b32 v16, s20")
        for j, b in enumerate((10, 54, 56, 58, 50)):
            a(f"global_load_dword v{161+j}, v16, s[{b}:{b+1}]")
        if CODEPF:
            a("s_getpc_b64 s[22:23]")
            a.label("main_pc")
            a(f"s_sub_u32 s22, s22, main_pc-{KNAME}")
            a("s_subb_u32 s23, s23, 0")
            a("s_mov_b64 exec, 0xff")
            a("s_lshr_b32 s20, s2, 3")
            a("s_min_u32 s20, s20, 24")
            a("s_lshl_b32 s20, s20, 10")
            a("v_lshl_add_u32 v16, v2, 7, s20")
            a("global_load_dword v166, v16, s[22:23]")
        a("s_mov_b64 exec, -1")
    a.label("main_w0i")
    a("s_lshl_b32 s22, s39, 10")
    a("buffer_load_dwordx4 v[204:207], v9, s[24:27], s22 offen")
    def dstep_issue(base, add):
        a("s_add_u32 s20, s28, s29")
        if add: a(f"s_add_u32 s21, s{base}, {add}")
        a(f"s_mov_b32 m0, s{21 if add else base}")
        a("s_add_u32 s29, s29, 128")
        for q in range(4):
            a(f"buffer_load_dwordx4 v{200+q}, s[24:27], s20 offen offset:{1024*q} lds")
        a("s_and_b32 s29, s29, 0x3ff")
    a("v_lshlrev_b32 v25, 4, v0")
    def g_issue():
        for rg in range(4):
            a(f"s_mov_b32 s22, {WS_MP + 8192*rg}")
            a(f"buffer_load_dwordx4 v[{184+4*rg}:{187+4*rg}], v25, s[16:19], s22 offen sc1")
    a("v_lshrrev_b32 v7, 4, v2")
    a("v_and_b32 v8, 15, v2")
    tr_addr_natural(a, 12, 13, 2, 14, 15)
    a("s_lshl_b32 s21, s33, 10")
    a("v_lshlrev_b32 v10, 5, v3")
    a("v_subrev_u32 v10, s21, v10")
    a("v_bfe_u32 v11, v3, 3, 1")
    a("v_lshlrev_b32 v11, 7, v11")
    a("v_xor_b32 v10, v10, v11")
    a("v_lshl_add_u32 v10, v6, 4, v10")
    a("v_and_b32 v10, 0x3fff, v10")
    a("v_xor_b32 v11, 1024, v10")
    a("s_lshl_b32 s20, s32, 11")
    a("s_sub_u32 s20, s20, s21")
    a("s_and_b32 s20, s20, 0x3fff")
    a("v_add_u32 v26, s20, v12")
    a("v_add_u32 v27, s20, v13")
    a("s_lshr_b32 s20, s20, 4")
    a(f"s_add_u32 s20, s20, {SAT}")
    a("v_lshl_add_u32 v30, v7, 4, s20")
    a("s_lshl_b32 s21, s32, 12")
    a(f"s_add_u32 s21, s21, {STG}")
    a("v_add_u32 v14, s21, v12")
    a("v_add_u32 v15, s21, v13")
    a("v_and_b32 v16, 6, v8")
    a("v_xor_b32 v16, v16, v7")
    a("v_lshlrev_b32 v16, 4, v16")
    a("v_and_b32 v17, 7, v8")
    a("v_lshl_add_u32 v16, v17, 7, v16")
    a("v_lshrrev_b32 v17, 3, v8")
    a("v_lshl_add_u32 v16, v17, 10, v16")
    a("v_xor_b32 v17, 64, v16")
    a("v_add_u32 v254, s49, v16")
    a("v_add_u32 v255, s49, v17")
    a("v_and_b32 v24, 31, v2")
    a("v_lshlrev_b32 v24, 4, v24")
    a("s_lshr_b32 s63, s28, 6")
    a(f"s_add_u32 s63, s63, {WS_ST1}")
    def rd_x2(d, reg, off):
        for e in range(2):
            for u in range(2):
                r = XR + 4 * (16 * u + 2 * d + e)
                a(f"ds_read_b128 v[{r}:{r+3}], v{reg+e} offset:{off + 2048*u}")
    def g_check(): chk_ne(a, [185, 187, 189, 191, 193, 195, 197, 199])
    stamp(a, "d7")
    def w56(fn):
        l = a.newlabel("Lw56")
        a("s_sub_u32 s20, s32, 5")
        a("s_cmp_gt_u32 s20, 1")
        a(f"s_cbranch_scc1 {l}")
        fn()
        a.label(l)
    def w12(fn):
        l = a.newlabel("Lw12")
        a("s_sub_u32 s20, s32, 1")
        a("s_cmp_gt_u32 s20, 1")
        a(f"s_cbranch_scc1 {l}")
        fn()
        a.label(l)
    def le_issue():
        srd(a, 12, 46, 512 * 6144)
        a("v_mul_u32_u24 v5, 6144, v11")
        a("v_add_u32 v5, v5, v10")
        a("s_lshr_b32 s21, s2, 6")
        a(f"s_mul_i32 s22, s21, {128*6144}")
        a("s_lshl_b32 s23, s62, 6")
        a("s_add_u32 s22, s22, s23")
        a("s_lshl_b32 s23, s20, 5")
        a("s_add_u32 s22, s22, s23")
        a("s_add_u32 s22, s22, 2048")
        a("s_mov_b32 s23, s36")
        a("s_lshl_b32 s21, s21, 8")
        a("v_lshl_add_u32 v6, v2, 2, s21")
        a(f"global_load_dword v{WO}, v6, s[44:45]")
        for n in range(4):
            a("s_mov_b32 m0, s23")
            if n: a(f"s_add_u32 s22, s22, {32*6144}")
            else: a("s_nop 0")
            a("buffer_load_dwordx4 v5, s[12:15], s22 offen lds")
            a("s_add_u32 s23, s23, 1024")
    a("s_lshr_b32 s41, s30, 2"); a("s_lshl_b32 s20, s31, 3"); a("s_add_u32 s41, s41, s20")
    a("s_and_b32 s42, s30, 3")
    a("v_and_b32 v29, 1, v2"); a("v_lshlrev_b32 v29, 4, v29")
    a("v_lshrrev_b32 v28, 1, v2"); a("v_lshl_add_u32 v1, v28, 10, v29")
    a("s_lshl_b32 s20, s42, 8"); a("s_lshl_b32 s21, s32, 5"); a("s_add_u32 s21, s21, s20"); a("v_add_u32 v1, s21, v1")
    a("v_bfe_u32 v16, v2, 4, 1"); a("v_lshlrev_b32 v17, 2, v16"); a("v_xor_b32 v28, v28, v17")
    a("v_lshrrev_b32 v5, 5, v2"); a("v_lshlrev_b32 v5, 9, v5"); a("v_lshl_add_u32 v5, v16, 7, v5")
    a("v_bfe_u32 v16, v2, 2, 2"); a("v_lshl_add_u32 v5, v16, 5, v5"); a("v_and_b32 v16, 3, v2"); a("v_lshl_add_u32 v5, v16, 3, v5")
    a("s_lshl_b32 s21, s32, 12"); a(f"s_add_u32 s21, s21, {STG}"); a("v_add_u32 v5, s21, v5")
    a("v_lshrrev_b32 v4, 4, v0"); a("v_lshlrev_b32 v4, 10, v4"); a("v_lshl_add_u32 v4, v8, 4, v4")
    a("s_lshl_b32 s21, s41, 15"); a("s_add_u32 s20, s20, s21"); a("v_add_u32 v4, s20, v4")
    a("s_lshl_b32 s20, s30, 13"); a("s_lshl_b32 s21, s32, 10"); a("s_add_u32 s40, s20, s21"); a(f"s_add_u32 s40, s40, {WS_F1}")
    a("s_cmp_lg_u32 s32, 0")
    a("s_cbranch_scc1 main_w0j")
    a(f"v_add_u32 v20, {EMB}, v12")
    a(f"v_add_u32 v21, {EMB}, v13")
    a("s_waitcnt vmcnt(5)")
    a("v_lshlrev_b32 v233, 16, v232")
    a("v_and_b32 v234, 0xffff0000, v232")
    silu(a, 233, 16); silu(a, 234, 16)
    a("v_cvt_pk_bf16_f32 v232, v233, v234")
    a("v_lshlrev_b32 v16, 2, v2")
    a(f"v_add_u32 v16, {CTE}, v16")
    a("ds_write_b32 v16, v232")
    a("v_and_b32 v17, 48, v2")
    a(f"v_add_u32 v17, {CTE}, v17")
    for n in range(4):
        a(f"ds_read_b128 v[{236+4*n}:{239+4*n}], v17 offset:{64*n}")
    a("s_lshr_b32 s38, s2, 6")
    a("s_lshl_b32 s38, s38, 13")
    a("s_lshl_b32 s22, s62, 7")
    a("s_add_u32 s38, s38, s22")
    a(f"s_add_u32 s38, s38, {WS_MP}")
    a("s_waitcnt vmcnt(0)")
    stamp(a, "emland")
    for n in range(4):
        trr(a, 216 + 4 * n, 20, 21, 1024 * n)
    a("s_waitcnt lgkmcnt(0)")
    a("s_add_u32 s22, s48, 1")
    for n in range(4):
        mf16(a, 232, 236 + 4 * n, 216 + 4 * n, None if n == 0 else 232)
    a("s_nop 7")
    a("v_mov_b32 v184, v232")
    a("v_mov_b32 v185, s22")
    a("s_branch main_w0b")
    a.label("main_w0j")
    a("s_waitcnt vmcnt(0)")
    a("s_cmp_eq_u32 s32, 7")
    a("s_cbranch_scc1 main_w0b")
    a("s_mul_i32 s20, s37, 6")
    a("s_add_u32 s20, s20, s32")
    a(f"s_mul_i32 s20, s20, {8*WPS}")
    a("s_lshl_b32 s21, s36, 7")
    a("s_add_u32 s20, s20, s21")
    a(f"s_add_u32 s20, s20, {WS_WP - 8*WPS}")
    a(f"buffer_store_dwordx4 v[{WR}:{WR+3}], v23, s[16:19], s20 offen sc1")
    a.label("main_w0b")
    stamp(a, "pk")
    if OSENT:
        for i in range(4): a(f"v_mov_b32 v{164+i}, -1")
        a("s_lshl_b32 s20, s31, 3")
        a("s_add_u32 s20, s20, s32")
        a("s_lshl_b32 s20, s20, 15")
        a("s_lshl_b32 s21, s30, 10")
        a("s_add_u32 s20, s20, s21")
        a(f"s_add_u32 s20, s20, {WS_OF}")
        a("buffer_store_dwordx4 v[164:167], v9, s[16:19], s20 offen sc1")
    a("s_barrier")
    dstep_issue(49, 0)
    a("s_waitcnt lgkmcnt(0)")
    a("s_add_u32 s48, s48, 1")
    unpack8(a, 208, 204)
    a("v_add_f32 v216, v208, v209")
    for i in range(2, 8): a(f"v_add_f32 v216, v216, v{208+i}")
    multi_allreduce(a, [216], [217])
    a(f"v_mul_f32 v216, {f32(1/512)}, v216")
    a("v_sub_f32 v217, v208, v216")
    a("v_mul_f32 v218, v217, v217")
    for i in range(1, 8):
        a(f"v_sub_f32 v217, v{208+i}, v216")
        a("v_fmac_f32 v218, v217, v217")
    multi_allreduce(a, [218], [217])
    a(f"v_mul_f32 v217, {f32(1/512)}, v218")
    rnd_pair(a, 216, 217, 218)
    a(f"v_add_f32 v217, {f32(1e-5)}, v217")
    rnd_bf16(a, 217)
    a("v_sqrt_f32 v217, v217")
    a("s_lshl_b32 s21, s39, 4")
    rnd_bf16(a, 217)
    a("v_rcp_f32 v217, v217")
    a("v_mov_b32 v218, s48")
    a("v_mov_b32 v219, s48")
    a(f"s_add_u32 s21, s21, {WS_ST1}")
    a("v_mov_b32 v16, 0")
    a("s_mov_b64 exec, 1")
    a("buffer_store_dwordx4 v[216:219], v16, s[16:19], s21 offen sc1")
    a("s_mov_b64 exec, -1")
    a("s_waitcnt vmcnt(5)")
    stamp(a, "ack")
    a("s_barrier")
    a("s_cmp_lg_u32 s32, 0")
    a("s_cbranch_scc1 main_w0c")
    a("s_mov_b64 exec, 0xffff")
    a("buffer_store_dwordx2 v[184:185], v19, s[16:19], s38 offen sc1")
    a("s_mov_b64 exec, -1")
    stamp(a, "mp")
    a.label("main_w0c")
    dstep_issue(49, 4096); dstep_issue(49, 8192)
    a("s_setprio 0")
    stamp(a, "i2")
    a("s_waitcnt vmcnt(9)")
    stamp(a, "l0")
    rd_x2(0, 254, 0)
    a("s_waitcnt lgkmcnt(0)")
    dstep_issue(49, 0)
    a("s_waitcnt vmcnt(8)")
    a("s_setprio 3")
    g_issue()
    rd_x2(1, 254, 4096)
    a("s_waitcnt vmcnt(8)")
    stamp(a, "l2")
    rd_x2(2, 254, 8192)
    a("s_waitcnt vmcnt(0)")
    stamp(a, "gath0")
    g_check()
    a("s_cbranch_scc1 main_gok")
    poll_loop(a, g_issue, g_check, "Lm")
    a.label("main_gok")
    stamp(a, "gath1")
    a(f"s_mul_i32 s20, s30, {WPS}")
    a("s_lshl_b32 s21, s32, 11")
    a("s_add_u32 s20, s20, s21")
    a(f"s_add_u32 s20, s20, {WS_WP}")
    for t in (0, 2, 1):
        a(f"s_add_u32 s21, s20, {32*WPS*t}")
        for p in range(2):
            r = WR + 4 * (3 * p + t)
            a(f"buffer_load_dwordx4 v[{r}:{r+3}], v9, s[16:19], s21 offen offset:{1024*p} sc1")
    a("s_setprio 0")
    rd_x2(3, 254, 0)
    for c in range(2):
        a(f"v_add_f32 v{184+2*c}, v{184+2*c}, v{188+2*c}")
        a(f"v_add_f32 v{192+2*c}, v{192+2*c}, v{196+2*c}")
        a(f"v_add_f32 v{184+2*c}, v{184+2*c}, v{192+2*c}")
    a("v_cvt_pk_bf16_f32 v188, v184, v186")
    a("s_cmp_gt_u32 s32, 3")
    a("s_cbranch_scc1 main_gca")
    a("s_lshl_b32 s21, s33, 6")
    a("v_lshlrev_b32 v16, 2, v0")
    a("v_subrev_u32 v16, s21, v16")
    a("v_and_b32 v16, 0x3ff, v16")
    a(f"v_add_u32 v16, {SAT}, v16")
    a("ds_write_b32 v16, v188")
    a("s_branch main_gdn")
    a.label("main_gca")
    a("v_lshlrev_b32 v184, 16, v188")
    a("v_and_b32 v185, 0xffff0000, v188")
    a("v_add_f32 v184, 1.0, v184")
    a("v_add_f32 v185, 1.0, v185")
    rnd_pair(a, 184, 185, 188)
    a("v_lshlrev_b32 v16, 3, v0")
    a(f"v_add_u32 v16, {CAT - 2048}, v16")
    a("ds_write_b64 v16, v[184:185]")
    a.label("main_gdn")
    a("v_lshlrev_b32 v16, 2, v3")
    a(f"v_add_u32 v16, {CAT}, v16")
    a("v_xor_b32 v17, 128, v16")
    a("s_waitcnt lgkmcnt(0)")
    dstep_issue(49, 4096)
    a("s_waitcnt vmcnt(6)")
    stamp(a, "wland")
    if PREF:
        a("s_lshl_b32 s20, s31, 7")
        a("s_add_u32 s20, s20, s40")
        a("s_xor_b32 s21, s48, 0x80000000")
        a("v_mov_b32 v18, s21")
        a("v_lshlrev_b32 v19, 2, v2")
        a("s_mov_b32 exec_hi, 0")
        a("buffer_store_dword v18, v19, s[16:19], s20 offen sc1")
        a("s_mov_b64 exec, -1")
    if PREF > 1:
        a("s_lshl_b32 s20, s31, 3")
        a("s_add_u32 s20, s20, s32")
        a("s_lshl_b32 s20, s20, 11")
        a("s_lshl_b32 s21, s30, 17")
        a("s_add_u32 s20, s20, s21")
        a(f"s_add_u32 s20, s20, {WS_KV}")
        a("buffer_store_dwordx4 v[32:35], v9, s[16:19], s20 offen sc1")
        a("buffer_store_dwordx4 v[32:35], v9, s[16:19], s20 offen offset:1024 sc1")
    for t in (0, 2):
        for p in range(2):
            r = WR + 4 * (3 * p + t)
            a(f"ds_write_b128 v{10+p}, v[{r}:{r+3}] offset:{REG[t]}")
    for n in range(2):
        trr(a, 236 + 8 * n, 26, 27, REG[0] + 1024 * n)
        trr(a, 240 + 8 * n, 26, 27, REG[2] + 1024 * n)
    for i in range(4): a(f"v_mov_b32 v{204+i}, 0x3f803f80")
    UPK = {1: 64, 2: 128, 0: 80}
    a("s_mov_b32 s22, 0xffff0000")
    for t in (0, 2, 1):
        if t == 1: a(f"s_waitcnt vmcnt({4 + (0, 1, 3)[PREF]})")
        for p in range(2):
            r = WR + 4 * (3 * p + t); T = UPK[t] + 8 * p
            for i in range(4):
                a(f"v_lshlrev_b32 v{T+2*i}, 16, v{r+i}")
                a(f"v_and_b32 v{T+2*i+1}, s22, v{r+i}")
    a("s_waitcnt lgkmcnt(0)")
    a("s_barrier")
    stamp(a, "barx")
    a("ds_read_b32 v188, v16")
    a("ds_read_b32 v189, v17")
    for n in range(2): a(f"ds_read_b128 v[{192+4*n}:{195+4*n}], v30 offset:{64*n}")
    a("s_mul_i32 s21, s32, 320")
    a(f"s_add_u32 s21, s21, {REC}")
    a("v_lshl_add_u32 v30, v7, 4, s21")
    a("v_lshl_add_u32 v31, v8, 3, s21")
    a("s_waitcnt lgkmcnt(2)")
    CSF = [80, 84, 64, 68, 128, 132]
    stamp(a, "sc0")
    for j, t in enumerate((1, 2, 0)):
        for p in range(2):
            r = WR + 4 * (3 * p + t)
            d = 208 + 4 * p
            T = UPK[t] + 8 * p
            for i in range(4):
                a(f"v_pk_mul_f32 v[{T+2*i}:{T+2*i+1}], v[{T+2*i}:{T+2*i+1}], v[188:189] " + ("op_sel_hi:[1,0]" if p == 0 else "op_sel:[0,1] op_sel_hi:[1,1]"))
            for i in range(4):
                a(f"v_cvt_pk_bf16_f32 v{d+i}, v{T+2*i}, v{T+2*i+1}")
            a(f"ds_write_b128 v{10+p}, v[{d}:{d+3}] offset:{REG[t]}")
        for n in range(2): trr(a, CSF[2 * t + n], 26, 27, REG[t] + 1024 * n)
        stamp(a, f"sc{j+1}")
        if j == 2: a("buffer_load_dwordx4 v[20:23], v24, s[16:19], s63 offen sc1")
        if j == 0:
            a("s_waitcnt lgkmcnt(6)")
            for n in range(2):
                mf16(a, 216, 236 + 8 * n, 192 + 4 * n, None if n == 0 else 216)
                mf16(a, 220, 192 + 4 * n, 240 + 8 * n, None if n == 0 else 220)
    a("s_waitcnt lgkmcnt(0)")
    for n in range(2):
        mf16(a, 228, CSF[2 + n], 204, None if n == 0 else 228)
        mf16(a, 232, 204, CSF[4 + n], None if n == 0 else 232)
        mf16(a, 224, CSF[n], 204, None if n == 0 else 224)
    a("v_lshlrev_b32 v16, 4, v7")
    a(f"v_add_u32 v16, {REC}, v16")
    a("v_lshlrev_b32 v17, 3, v8")
    a(f"v_add_u32 v17, {REC}, v17")
    stamp(a, "sc4")
    a("ds_write_b128 v30, v[216:219]")
    a("s_nop 1")
    a("v_mov_b32 v233, v220")
    a("ds_write_b128 v30, v[228:231] offset:128")
    a("ds_write_b64 v31, v[232:233] offset:192")
    a("ds_write_b128 v30, v[224:227] offset:64")
    a("s_waitcnt lgkmcnt(0)")
    stamp(a, "sc5")
    a("s_barrier")
    stamp(a, "bar1")
    WF3 = [236, 244, 176]
    def rd_kv(s):
        b = WF3[s % 3]
        trr(a, b, 12, 13, REG[1] + 1024 * s)
        trr(a, b + 4, 12, 13, REG[2] + 1024 * s)
    rd_kv(0); rd_kv(1)
    a("s_lshr_b32 s20, s32, 2")
    a("s_cmp_eq_u32 s20, 0")
    a("s_cbranch_scc1 main_p1o")
    a("s_setprio 1")
    a.label("main_p1o")
    DR = {2: 4, 7: 5, 9: 6, 11: 7}
    def rec_rd(w):
        d = (208, 212, 220, 224) if w == 0 else (228, 232, 216, 226)
        a(f"ds_read_b128 v[{d[0]}:{d[0]+3}], v16 offset:{320*w}")
        a(f"ds_read_b128 v[{d[1]}:{d[1]+3}], v16 offset:{320*w+64}")
        a(f"ds_read_b128 v[{d[2]}:{d[2]+3}], v16 offset:{320*w+128}")
        a(f"ds_read_b64 v[{d[3]}:{d[3]+1}], v17 offset:{320*w+192}")
    for s in range(16):
        if s < 14:
            rd_kv(s + 2)
            a(f"s_waitcnt lgkmcnt({8 if s == 0 else 4})")
        else:
            a(f"s_waitcnt lgkmcnt({4 * (15 - s)})")
        stamp(a, f"p{s}")
        if s == 0: dstep_issue(49, 8192)
        if s == 1: dstep_issue(49, 0)
        if s == 3: dstep_issue(49, 4096)
        b = WF3[s % 3]
        adds = []
        for u in range(2):
            x = XR + 4 * (16 * u + s)
            mf16(a, ACC + 4 * u, b, x, None if s == 0 else ACC + 4 * u)
            for q in adds[4*u:4*u+2]: a(q)
            mf16(a, ACC + 8 + 4 * u, x, b + 4, None if s == 0 else ACC + 8 + 4 * u)
            for q in adds[4*u+2:4*u+4]: a(q)
        if s == 0:
            l = a.newlabel("Lrs")
            a("s_cmp_lt_u32 s32, 6")
            a(f"s_cbranch_scc1 {l}")
            a("v_lshlrev_b32 v18, 2, v0")
            a(f"v_add_u32 v18, {REC - 1536}, v18")
            for w in range(8): a(f"ds_read_b32 v{208+w}, v18 offset:{320*w}")
            a("s_waitcnt lgkmcnt(0)")
            for w in range(1, 8): a(f"v_add_f32 v208, v208, v{208+w}")
            a(f"v_cmp_gt_u32 vcc, {384+80}, v0")
            a("s_nop 0")
            a("s_and_saveexec_b64 s[20:21], vcc")
            a("ds_write_b32 v18, v208")
            a("s_mov_b64 exec, -1")
            a.label(l)
        if s == P1FLIP: a("s_setprio 0")
        if s in DR:
            a(f"s_waitcnt vmcnt({ {4: 9, 5: 8, 6: 4, 7: 0}[DR[s]] })")
            rd_x2(DR[s], 254, 4096 * (DR[s] % 3))
        if s == 8:
            chk_ne(a, [22])
            a("s_cbranch_scc1 main_stok")
            poll_loop(a, lambda: a("buffer_load_dwordx4 v[20:23], v24, s[16:19], s63 offen sc1"),
                      lambda: chk_ne(a, [22]), "Lst")
            a.label("main_stok")
            a("s_lshl_b32 s21, s32, 8")
            a(f"s_add_u32 s21, s21, {STT}")
            a("v_lshrrev_b32 v18, 1, v24")
            a("v_add_u32 v18, s21, v18")
            a("ds_write_b64 v18, v[20:21]")
            a("v_lshl_add_u32 v18, v8, 3, s21")
            a("v_lshl_add_u32 v19, v7, 5, s21")
            for u in range(2):
                a(f"ds_read_b64 v[{204+2*u}:{205+2*u}], v18 offset:{128*u}")
                a(f"ds_read_b128 v[{160+8*u}:{163+8*u}], v19 offset:{128*u}")
                a(f"ds_read_b128 v[{164+8*u}:{167+8*u}], v19 offset:{128*u+16}")
        if s == 13:
            a("s_lshl_b32 s34, s31, 3")
            a("s_add_u32 s34, s34, s32")
            a("s_lshl_b32 s22, s30, 17")
            a(f"s_add_u32 s35, s22, {WS_KV}")
            a("s_lshl_b32 s23, s34, 11")
            a("s_add_u32 s22, s35, s23")
            a("v_and_b32 v18, 1, v7")
            a("v_lshlrev_b32 v18, 9, v18")
            a("v_lshrrev_b32 v19, 1, v7")
            a("v_lshl_add_u32 v18, v19, 8, v18")
            a("v_lshl_add_u32 v18, v8, 4, v18")
            a("s_lshl_b32 s23, s32, 11")
            a("v_add_u32 v19, s23, v9")
            a("v_add_u32 v20, s23, v18")
    stamp(a, "pass1")
    def rd_q(s):
        trr(a, 236 + 4 * (s & 3), 12, 13, REG[0] + 1024 * s)
    rd_q(0); rd_q(1)
    a("s_barrier")
    rec_rd(0)
    a("s_waitcnt lgkmcnt(0)")
    for u in range(2):
        for r in range(4):
            k = ACC + 4 * u + r
            a(f"v_fma_f32 v{k}, -v{204+2*u}, v{220+r}, v{k}")
            a(f"v_mul_f32 v{k}, v{k}, v{205+2*u}")
        a(f"v_cvt_pk_bf16_f32 v{228+2*u}, v{ACC+4*u}, v{ACC+4*u+1}")
        a(f"v_cvt_pk_bf16_f32 v{229+2*u}, v{ACC+4*u+2}, v{ACC+4*u+3}")
    for u in range(2):
        for r in range(4):
            v = ACC + 8 + 4 * u + r
            a(f"v_fma_f32 v{v}, -v{160+8*u+2*r}, v224, v{v}")
            a(f"v_fma_f32 v{v}, v{v}, v{161+8*u+2*r}, v225")
        if u == 0:
            a("v_permlane16_swap_b32 v228, v230")
            a("v_permlane16_swap_b32 v229, v231")
            a("buffer_store_dwordx4 v[228:231], v9, s[16:19], s22 offen sc1")
        a(f"v_cvt_pk_bf16_f32 v{232+2*u}, v{ACC+8+4*u}, v{ACC+8+4*u+1}")
        a(f"v_cvt_pk_bf16_f32 v{233+2*u}, v{ACC+8+4*u+2}, v{ACC+8+4*u+3}")
    a("ds_write_b128 v19, v[228:231]")
    a("s_nop 0")
    a("v_permlane16_swap_b32 v232, v234")
    a("v_permlane16_swap_b32 v233, v235")
    a("buffer_store_dwordx4 v[232:235], v18, s[16:19], s22 offen offset:1024 sc1")
    a("ds_write_b128 v20, v[232:235] offset:1024")
    l = a.newlabel("Lrz")
    a("s_sub_u32 s20, s32, 1")
    a("s_cmp_gt_u32 s20, 1")
    a(f"s_cbranch_scc1 {l}")
    for i in range(4): a(f"v_mov_b32 v{216+i}, -1")
    a("s_lshl_b32 s22, s2, 10")
    a(f"s_add_u32 s22, s22, {WS_CAND}")
    a("s_lshl_b32 s23, s2, 6")
    a(f"s_add_u32 s23, s23, {WS_ACT}")
    a("s_cmp_eq_u32 s32, 1")
    a("s_cselect_b32 s22, s22, s23")
    a("s_cselect_b32 s20, -1, 15")
    a("s_cselect_b32 s21, -1, 0")
    a("s_mov_b64 exec, s[20:21]")
    a("buffer_store_dwordx4 v[216:219], v9, s[16:19], s22 offen sc1")
    a("s_mov_b64 exec, -1")
    a.label(l)
    stamp(a, "kvpub")
    rd_q(2)
    side = []
    sd = side.append
    sd("v_and_b32 v25, 31, v2"); sd("v_cmp_eq_u32 vcc, 16, v25"); sd("v_mov_b32 v25, 0x3f803f80")
    sd("s_lshl_b32 s36, s32, 12"); sd(f"s_add_u32 s36, s36, {STG}")
    sd("v_cndmask_b32 v25, 0, v25, vcc")
    sd("v_mov_b32 v110, v5"); sd("v_mov_b32 v111, v4"); sd("v_mov_b32 v10, v29"); sd("v_mov_b32 v11, v28")
    sd("v_mov_b32 v3, v9")
    sd("v_lshrrev_b32 v4, 5, v2"); sd("v_lshlrev_b32 v4, 8, v4"); sd("v_lshl_add_u32 v4, v8, 4, v4"); sd("v_add_u32 v4, 1024, v4")
    sd("s_mov_b32 s38, 0x0000ffff"); sd("s_mov_b32 s39, 0x0000ffff"); sd("s_mov_b32 s37, 0")
    for i in range(12): sd(f"v_mov_b32 v{V[0]+4+i}, v25")
    sd(f"v_mov_b32 v{IDX}, 0xdddddddd")
    sd(f"s_mov_b32 s24, {f32(QSCALE)}")
    for r in range(4): sd(f"v_mul_f32 v{208+r}, s24, v{208+r}")
    for u in range(2): sd(f"v_mul_f32 v{205+2*u}, s24, v{205+2*u}")
    per = (len(side) + 7) // 8
    for s in range(16):
        if s < 13:
            rd_q(s + 3)
            a("s_waitcnt lgkmcnt(6)")
        else:
            a(f"s_waitcnt lgkmcnt({2 * (15 - s)})")
        stamp(a, f"q{s}")
        extra = []
        if 4 <= s < 12: extra += side[per*(s-4):per*(s-3)]
        if s >= 12: extra += [f"v_mov_b32 v{O+4*(s-12)+i}, 0" for i in range(4)]
        h = (len(extra) + 1) // 2
        for u in range(2):
            mf16(a, QA + 4 * u, 236 + 4 * (s & 3), XR + 4 * (16 * u + s), None if s == 0 else QA + 4 * u)
            for q in (extra[:h] if u == 0 else extra[h:]): a(q)
        if s == F1STEP:
            a("s_lshl_b32 s20, s31, 7")
            a("s_add_u32 s20, s20, s40")
            a("v_mov_b32 v6, 0")
            a("v_mov_b32 v7, s48")
            a("s_waitcnt vmcnt(0)")
            a("s_mov_b64 exec, 1")
            a("buffer_store_dword v7, v6, s[16:19], s20 offen sc1")
            a("s_mov_b64 exec, -1")
            stamp(a, "f1")
    for i in range(4): a(f"v_mov_b32 v{V[0]+i}, v25")
    for u in range(2):
        for r in range(4):
            q = QA + 4 * u + r
            a(f"v_fma_f32 v{q}, -v{204+2*u}, v{212+r}, v{q}")
            a(f"v_fma_f32 v{q}, v{q}, v{205+2*u}, v{208+r}")
        a(f"v_cvt_pk_bf16_f32 v{Q+2*u}, v{QA+4*u}, v{QA+4*u+1}")
        a(f"v_cvt_pk_bf16_f32 v{Q+1+2*u}, v{QA+4*u+2}, v{QA+4*u+3}")
    a("s_nop 1")
    a(f"v_permlane16_swap_b32 v{Q}, v{Q+2}")
    a(f"v_permlane16_swap_b32 v{Q+1}, v{Q+3}")
    a("s_barrier")
    stamp(a, "att0")
    a(f"ds_read_b128 v[{K[0]}:{K[0]+3}], v3")
    a(f"ds_read_b128 v[{K[1]}:{K[1]+3}], v3 offset:2048")
    a("s_and_b32 s28, s32, 3")
    a("s_lshl_b32 s20, s30, 13")
    a("s_lshl_b32 s21, s28, 11")
    a("s_add_u32 s40, s20, s21")
    a(f"s_add_u32 s40, s40, {WS_F1}")
    a("v_lshlrev_b32 v12, 7, v8")
    if not KVP: a("buffer_load_dword v13, v12, s[16:19], s40 offen" + PF)
    a("s_lshl_b32 s28, s28, 12")
    a("s_lshl_b32 s20, 6, s31")
    a("s_lshr_b32 s21, s20, 8")
    a("s_or_b32 s20, s20, s21")
    a("s_and_b32 s20, s20, 0xff")
    a("s_lshl_b32 s21, 1, s31")
    a("s_or_b32 s21, s21, s20")
    a("s_xor_b32 s20, s20, 0xff")
    a("s_add_u32 s22, s28, 32768")
    a("s_cmp_gt_u32 s32, 3")
    a("s_cselect_b32 s43, s21, s20")
    a("s_cselect_b32 s61, s22, s28")
    a("s_waitcnt lgkmcnt(1)")
    s0 = S[0]
    a(f"v_mfma_f32_32x32x16_bf16 v[{s0}:{s0+15}], v[{K[0]}:{K[0]+3}], v[{Q}:{Q+3}], 0")
    a("s_nop 11")
    a(f"v_max3_f32 v6, v{s0}, v{s0+1}, v{s0+2}")
    for i in range(3, 15, 2):
        a(f"v_max3_f32 v6, v6, v{s0+i}, v{s0+i+1}")
    a(f"v_max_f32 v6, v6, v{s0+15}")
    def setmax():
        a("v_mov_b32 v7, v6")
        a("s_nop 1")
        a("v_permlane32_swap_b32 v7, v6")
        a("s_nop 1")
        a("v_max_f32 v6, v6, v7")
        for i in range(16):
            a(f"v_sub_f32 v{C+i}, 0, v6")
    setmax()
    a("s_mov_b64 exec, s[38:39]")
    a(f"ds_read_b128 v[{V[0]}:{V[0]+3}], v4")
    a(f"ds_read_b128 v[{V[0]+4}:{V[0]+7}], v4 offset:512")
    a("s_mov_b64 exec, -1")
    a(f"v_mfma_f32_32x32x16_bf16 v[{s0}:{s0+15}], v[{K[0]}:{K[0]+3}], v[{Q}:{Q+3}], v[{C}:{C+15}]")
    for i in range(8):
        a(f"v_mov_b32 v{S[1]+8+i}, 0")
    a("s_nop 3")

    hooks = {}
    import os
    NOH = os.environ.get("NOHOOK", "")
    def hook(t, fn, kind=""):
        if kind and kind in NOH: return
        hooks.setdefault(t, []).append(fn)
    def old_only(fn):
        def f():
            l = a.newlabel("Lold")
            a("s_cmp_gt_u32 s32, 3")
            a(f"s_cbranch_scc1 {l}")
            fn()
            a.label(l)
        return f
    def late_only(fn):
        def f():
            l = a.newlabel("Llate")
            a("s_cmp_lt_u32 s2, 128")
            a(f"s_cbranch_scc1 {l}")
            fn()
            a.label(l)
        return f
    def kv_phase(need, cap, name, first=False):
        def f():
            top = a.newlabel("Lkv"); pick = a.newlabel("Lkp"); more = a.newlabel("Lkm"); done = a.newlabel("Lkd")
            a(f"s_mov_b32 s60, {SPIN}")
            if not first: a(f"s_branch {pick}")
            a.label(top)
            a("s_waitcnt vmcnt(0)")
            a("v_cmp_eq_u32 vcc, s48, v13")
            a("s_lshr_b32 s21, vcc_lo, 8")
            a("s_and_b32 s29, vcc_lo, s21")
            a("s_and_b32 s29, s29, 0xff")
            a.label(pick)
            a(f"s_cmp_ge_u32 s61, {16384 * cap}")
            a(f"s_cbranch_scc1 {done}")
            a("s_andn2_b32 s20, s29, s43")
            a(f"s_cbranch_scc0 {more}")
            a("s_ff1_i32_b32 s21, s20")
            a("s_bitset1_b32 s43, s21")
            a("s_add_u32 s61, s61, 16384")
            a("s_mov_b32 m0, s61")
            a("s_lshl_b32 s21, s21, 14")
            a("s_add_u32 s21, s21, s28")
            a("s_add_u32 s21, s21, s35")
            for n in range(4):
                a(f"buffer_load_dwordx4 v9, s[16:19], s21 offen offset:{1024*n} sc1 lds")
            a(f"s_branch {pick}")
            a.label(more)
            a(f"s_cmp_ge_u32 s61, {16384 * need}")
            a(f"s_cbranch_scc1 {done}")
            a("buffer_load_dword v13, v12, s[16:19], s40 offen" + PF)
            a("s_sub_u32 s60, s60, 1")
            a("s_cmp_lg_u32 s60, 0")
            a(f"s_cbranch_scc1 {top}")
            a.label(done)
            stamp(a, name)
        return f
    def h_bar(n, name):
        def f():
            a(f"s_waitcnt vmcnt({n})")
            a("s_barrier")
            stamp(a, name)
        return f
    if KVP: hook(KVP, lambda: a("buffer_load_dword v13, v12, s[16:19], s40 offen" + PF))
    hook(2 + KVP, old_only(kv_phase(1, 1, "kvok", first=True)))
    hook(4 + KVP, old_only(kv_phase(2, 2, "kv2")))
    def young_only(fn):
        def f():
            l = a.newlabel("Lyg")
            a("s_cmp_lt_u32 s32, 4")
            a(f"s_cbranch_scc1 {l}")
            fn()
            a.label(l)
        return f
    hook(YK, young_only(kv_phase(0, 7, "ky", first=True)))
    hook(6, old_only(lambda: a("s_waitcnt vmcnt(4)")))
    hook(6, h_bar(63, "bar6"))
    hook(6, young_only(kv_phase(7, 7, "kv7")))
    def le_a():
        a("s_waitcnt vmcnt(0)")
        a(f"v_lshlrev_b32 v{WO+1}, 16, v{WO}")
        a(f"v_and_b32 v{WO}, 0xffff0000, v{WO}")
        silu(a, WO + 1, 5); silu(a, WO, 5)
        for n in range(4): trr(a, WO + 20 + 4 * n, 14, 15, 1024 * n)
        a(f"v_cvt_pk_bf16_f32 v{WO}, v{WO+1}, v{WO}")
        a("v_lshl_add_u32 v5, v2, 2, s36")
        a(f"ds_write_b32 v5, v{WO}")
        a("v_and_b32 v5, 48, v2")
        a("v_add_u32 v5, s36, v5")
        for n in range(4): a(f"ds_read_b128 v[{WO+4+4*n}:{WO+7+4*n}], v5 offset:{64*n}")
    def le_b():
        for n in range(4): mf16(a, WO, WO + 4 + 4 * n, WO + 20 + 4 * n, None if n == 0 else WO)
    def le_c():
        a("s_lshr_b32 s21, s2, 6")
        a("s_lshl_b32 s21, s21, 14")
        a("s_lshl_b32 s22, s62, 8")
        a("s_add_u32 s21, s21, s22")
        a("s_lshl_b32 s22, s20, 7")
        a("s_add_u32 s21, s21, s22")
        a(f"s_add_u32 s21, s21, {WS_MPL}")
        a("v_lshlrev_b32 v5, 3, v2")
        a(f"v_mov_b32 v{WO+1}, s48")
        a("s_mov_b64 exec, 0xffff")
        a(f"buffer_store_dwordx2 v[{WO}:{WO+1}], v5, s[16:19], s21 offen sc1")
        a("s_mov_b64 exec, -1")
    hook(7, old_only(lambda: a("s_waitcnt vmcnt(0)")))
    hook(7, lambda: w12(le_issue))
    hook(14, young_only(lambda: a("s_waitcnt vmcnt(0)")))
    hook(14, h_bar(63, "bar14"))
    hook(14, lambda: w12(le_a)); hook(15, lambda: w12(le_b)); hook(16, lambda: w12(le_c))
    def h_prio():
        l = a.newlabel("Lpr")
        a("s_cmp_lt_u32 s32, 4")
        a(f"s_cbranch_scc1 {l}")
        a("s_setprio 1")
        a.label(l)
    hook(14, h_prio)
    hook(FLIP, lambda: a("s_setprio 0"))
    def h_wo(r):
        def f():
            if r == 0: srd(a, 12, 10, 512 * 1024)
            a("s_mov_b32 m0, s36")
            for n in range(4):
                a(f"s_mov_b32 s20, {32768*(4*r+n) - 1024*n}")
                a(f"buffer_load_dwordx4 v1, s[12:15], s20 offen offset:{1024*n} lds")
        return f
    def h_misc():
        a(f"global_load_dwordx4 v[{XT}:{XT+3}], v111, s[6:7]")
        a("s_lshl_b32 s21, s42, 8")
        a("v_lshl_add_u32 v5, v8, 4, s21")
        a("global_load_dwordx4 v[248:251], v5, s[52:53]")
        a("global_load_dwordx4 v[252:255], v9, s[52:53]")
    def h_moe_setup():
        l = a.newlabel("Lms"); l2 = a.newlabel("Lms")
        a("s_cmp_ge_u32 s2, 112")
        a(f"s_cbranch_scc1 {l}")
        a("v_mul_u32_u24 v109, 3584, v11")
        a("v_add_u32 v109, v109, v10")
        a("s_and_b32 s20, s32, 1")
        a("s_cmp_eq_u32 s20, 0")
        a("s_cselect_b32 s24, s54, s56")
        a("s_cselect_b32 s25, s55, s57")
        a(f"s_mov_b32 s26, {512*3584}")
        a("s_lshr_b32 s20, s32, 1")
        a(f"s_mul_i32 s43, s20, {128*3584}")
        a("s_and_b32 s33, s2, 7")
        a("s_mul_i32 s33, s33, 14")
        a("s_lshr_b32 s20, s2, 3")
        a("s_add_u32 s33, s33, s20")
        a("s_lshl_b32 s20, s33, 5")
        a("s_add_u32 s43, s43, s20")
        a(f"s_mov_b32 s61, {32*3584}")
        a(f"s_branch {l2}")
        a.label(l)
        a("v_lshl_add_u32 v109, v11, 10, v10")
        a("s_mov_b32 s24, s58")
        a("s_mov_b32 s25, s59")
        a(f"s_mov_b32 s26, {1792*1024}")
        a(f"s_mul_i32 s43, s32, {224*1024}")
        a("s_and_b32 s33, s2, 7")
        a("s_lshl_b32 s33, s33, 2")
        a("s_sub_u32 s20, s2, 112")
        a("s_bfe_u32 s20, s20, 0x20003")
        a("s_add_u32 s33, s33, s20")
        a("s_lshl_b32 s20, s33, 5")
        a("s_add_u32 s43, s43, s20")
        a(f"s_mov_b32 s61, {32*1024}")
        a.label(l2)
    def h_moe(n):
        def f():
            l = a.newlabel("Lmd")
            a("s_cmp_ge_u32 s2, 144")
            a(f"s_cbranch_scc1 {l}")
            if n >= 4:
                a("s_cmp_lt_u32 s2, 112")
                a(f"s_cbranch_scc1 {l}")
            a(f"buffer_load_dwordx4 v[{MW+4*n}:{MW+4*n+3}], v109, s[24:27], s43 offen")
            a("s_add_u32 s43, s43, s61")
            a.label(l)
        return f
    def cv_write(base, n):
        def f():
            for i in range(n): a(f"ds_write_b128 v1, v[{base+4*i}:{base+4*i+3}] offset:{1024*i}")
        return f
    def cv_wo(r):
        def f():
            for n in range(4):
                b = WO + 16 * r + 4 * n
                a(f"ds_read_b64_tr_b16 v[{b}:{b+1}], v110 offset:{1024*n}")
                a(f"ds_read_b64_tr_b16 v[{b+2}:{b+3}], v110 offset:{1024*n+256}")
        return f
    def cv_moe(base, n):
        def f():
            for i in range(n): trr(a, MW + base + 4 * i, 14, 15, 1024 * i)
        return f
    def lg_issue(lo=0, hi=4):
        a("v_lshlrev_b32 v5, 5, v0")
        for rg in range(lo, hi):
            a(f"s_mov_b32 s22, {WS_MPL + 16384*rg}")
            a(f"buffer_load_dwordx4 v[{GA+8*rg}:{GA+8*rg+3}], v5, s[16:19], s22 offen sc1")
            a(f"buffer_load_dwordx4 v[{GA+8*rg+4}:{GA+8*rg+7}], v5, s[16:19], s22 offen offset:16 sc1")
    WT = [15, 25, 35, 45]
    MT = [int(x) for x in os.environ.get('MT', '27,30,37,40,47,49,51').split(',')]
    def h_touch():
        l = a.newlabel("Ltc")
        a("s_cmp_lt_u32 s2, 144")
        a(f"s_cbranch_scc1 {l}")
        a("s_cmp_gt_u32 s32, 1")
        a(f"s_cbranch_scc1 {l}")
        a("s_sub_u32 s20, s2, 144")
        a("s_lshr_b32 s20, s20, 3")
        a("s_lshl_b32 s20, s20, 1")
        a("s_add_u32 s20, s20, s32")
        a("s_lshl_b32 s20, s20, 16")
        a("s_and_b32 s21, s2, 7")
        a("s_lshl_b32 s21, s21, 7")
        a("s_add_u32 s20, s20, s21")
        a("v_lshl_add_u32 v5, v2, 10, s20")
        a(f"global_load_dword v{XT}, v5, s[58:59]")
        a.label(l)
    if TOUCHD: hook(TOUCHD, h_touch)
    def h_touch_gu():
        l = a.newlabel("Ltg")
        a("s_cmp_lt_u32 s2, 144")
        a(f"s_cbranch_scc1 {l}")
        a("s_cmp_lt_u32 s32, 2")
        a(f"s_cbranch_scc1 {l}")
        a("s_and_b32 s20, s32, 1")
        a("s_cmp_eq_u32 s20, 0")
        a("s_cselect_b32 s24, s54, s56")
        a("s_cselect_b32 s25, s55, s57")
        a(f"s_mov_b32 s26, {512*3584}")
        a("s_sub_u32 s20, s2, 144")
        a("s_lshr_b32 s20, s20, 3")
        a("s_mul_i32 s20, s20, 3")
        a("s_lshr_b32 s21, s32, 1")
        a("s_add_u32 s20, s20, s21")
        a("s_lshl_b32 s20, s20, 6")
        a("s_sub_u32 s20, s20, 64")
        a("v_add_u32 v5, s20, v2")
        a("v_mul_u32_u24 v6, 13108, v5")
        a("v_lshrrev_b32 v6, 16, v6")
        a("v_mul_u32_u24 v7, 5, v6")
        a("v_sub_u32 v5, v5, v7")
        a("v_mul_u32_u24 v6, 3584, v6")
        a("v_lshl_add_u32 v5, v5, 7, v6")
        a("s_and_b32 s21, s2, 7")
        a("s_mul_i32 s21, s21, 448")
        a("s_and_b32 s21, s21, 0xff80")
        a(f"buffer_load_dword v{XT}, v5, s[24:27], s21 offen")
        a.label(l)
    if TOUCHG: hook(TOUCHG, h_touch_gu)
    def h_touch_wo():
        l = a.newlabel("Ltw")
        a("s_sub_u32 s20, s32, 2")
        a("s_cmp_gt_u32 s20, 1")
        a(f"s_cbranch_scc1 {l}")
        a("s_lshr_b32 s21, s2, 3")
        a("s_lshl_b32 s21, s21, 1")
        a("s_add_u32 s20, s20, s21")
        a("s_lshl_b32 s20, s20, 13")
        a("v_lshl_add_u32 v5, v2, 7, s20")
        a(f"global_load_dword v{XT}, v5, s[10:11]")
        a.label(l)
    if TOUCHW: hook(TOUCHW, h_touch_wo)
    hook(15, h_moe_setup)
    for r in range(4):
        if r: hook(WT[r], h_wo(r), 'w')
        else:
            def not12():
                l = a.newlabel("Ln12")
                a("s_sub_u32 s20, s32, 1")
                a("s_cmp_lt_u32 s20, 2")
                a(f"s_cbranch_scc1 {l}")
                h_wo(0)()
                a.label(l)
            hook(WT[0], not12)
            hook(WT[0] + 2, lambda: w12(h_wo(0)))
        hook(WT[r] + 9, lambda: a("s_waitcnt vmcnt(0)") if False else None)
    for n in range(7): hook(MT[n], h_moe(n), 'm')
    hook(43, h_misc)
    def h_prew():
        a("s_xor_b32 s20, s48, 0x80000000")
        a("v_mov_b32 v5, s20")
        a("v_lshlrev_b32 v6, 2, v2")
        a("s_lshl_b32 s21, s41, 12")
        a("s_lshl_b32 s22, s42, 10")
        a("s_add_u32 s21, s21, s22")
        a("s_lshl_b32 s22, s32, 7")
        a("s_add_u32 s21, s21, s22")
        a(f"s_add_u32 s21, s21, {WS_ST2}")
        a("s_mov_b32 exec_hi, 0")
        a("buffer_store_dword v5, v6, s[16:19], s21 offen sc1")
        a("s_lshl_b32 s21, s34, 12")
        a("s_lshl_b32 s22, s30, 7")
        a("s_add_u32 s21, s21, s22")
        a(f"s_add_u32 s21, s21, {WS_F2}")
        a("buffer_store_dword v5, v6, s[16:19], s21 offen sc1")
        l = a.newlabel("Lpw")
        a("s_or_b32 s20, s42, s32")
        a(f"s_cbranch_scc1 {l}")
        a(f"s_lshl_b32 s21, s41, {TOPSH}")
        a(f"s_add_u32 s21, s21, {WS_TOP}")
        a("buffer_store_dword v5, v6, s[16:19], s21 offen sc1")
        a.label(l)
        a("s_mov_b64 exec, -1")
    if PREW: hook(PREW, h_prew)
    def h_preo():
        a("s_lshl_b32 s21, s34, 15")
        a("s_lshl_b32 s22, s30, 10")
        a("s_add_u32 s21, s21, s22")
        a(f"s_add_u32 s21, s21, {WS_OF}")
        a(f"buffer_store_dwordx4 v[{Q}:{Q+3}], v9, s[16:19], s21 offen sc1")
    if PREO: hook(PREO, h_preo)
    for rg in range(4): hook(50 + rg, lambda rg=rg: lg_issue(rg, rg + 1), 'l')
    def wo_wait(r):
        def f():
            fixed = {0: 0, 1: 0, 2: 3, 3: 8}[r]
            inr = [n for n in range(7) if WT[r] < MT[n] < WT[r] + 9]
            ngu = len([n for n in inr if n < 4]); ndn = len(inr)
            l1 = a.newlabel("Lww"); l2 = a.newlabel("Lww")
            a(f"s_waitcnt vmcnt({fixed + ndn})")
            if ndn:
                a("s_sub_u32 s20, s2, 112")
                a("s_cmp_lt_u32 s20, 32")
                a(f"s_cbranch_scc1 {l2}")
                if ngu:
                    a(f"s_waitcnt vmcnt({fixed + ngu})")
                    a("s_cmp_lt_u32 s2, 112")
                    a(f"s_cbranch_scc1 {l2}")
                a(f"s_waitcnt vmcnt({fixed})")
                a.label(l2)
        return f
    for r in range(4):
        hook(WT[r] + 9, wo_wait(r), 'w')
        hook(WT[r] + 9, cv_wo(r), 'c')
    hook(56, lambda: a("v_add_u32 v1, s36, v9"))
    for t, nm in [(23, "t23"), (42, "t42")] + [(t, f"a{t}") for t in range(0, 64, 4)]:
        hook(t, lambda nm=nm: stamp(a, nm))

    def tile(t, off, hooks):
        cur = S[t & 1]; nxt = S[(t + 1) & 1]
        e = lambda i: a(f"v_exp_f32 v{cur+i}, v{cur+i}")
        vp = V[(t + 1) & 1]; kn = K[(t + 1) & 1]; kc = K[t & 1]; vc = V[t & 1]
        if TILEV:
            a("s_waitcnt lgkmcnt(0)")
            for fn in hooks.get(t, []): fn()
            a.raw(f".p2align {TILEV}")
            a(f"v_exp_f32_e64 v{cur}, v{cur}")
            e(1); e(2)
            a(f"v_smfmac_f32_32x32x32_bf16 v[{O}:{O+15}], v[{vp+4}:{vp+7}], v[{nxt+8}:{nxt+15}], v{IDX}")
            e(3); e(4); e(5); e(6)
            a(f"v_mfma_f32_32x32x16_bf16 v[{nxt}:{nxt+15}], v[{kn}:{kn+3}], v[{Q}:{Q+3}], v[{C}:{C+15}]")
            e(7)
            a("s_mov_b64 exec, s[38:39]")
            a(f"ds_read_b128 v[{vp}:{vp+3}], v4 offset:{2048*(off+1)}")
            a(f"ds_read_b128 v[{vp+4}:{vp+7}], v4 offset:{2048*(off+1)+512}")
            a("s_mov_b64 exec, -1")
            e(8)
            a(f"ds_read_b128 v[{kc}:{kc+3}], v3 offset:{2048*(off+2)}")
            e(9); e(10)
            a(f"v_smfmac_f32_32x32x32_bf16 v[{O}:{O+15}], v[{vc}:{vc+3}], v[{cur}:{cur+7}], v{IDX}")
            for i in range(11, 16): e(i)
            return
        a("s_waitcnt lgkmcnt(0)")
        for fn in hooks.get(t, []): fn()
        e(0); e(1); e(2)
        a(f"v_smfmac_f32_32x32x32_bf16 v[{O}:{O+15}], v[{vp+4}:{vp+7}], v[{nxt+8}:{nxt+15}], v{IDX}")
        e(3); e(4); e(5); e(6)
        a(f"v_mfma_f32_32x32x16_bf16 v[{nxt}:{nxt+15}], v[{kn}:{kn+3}], v[{Q}:{Q+3}], v[{C}:{C+15}]")
        a(f"ds_read_b128 v[{kc}:{kc+3}], v3 offset:{2048*(off+2)}")
        a("s_mov_b64 exec, s[38:39]")
        a(f"ds_read_b128 v[{vp}:{vp+3}], v4 offset:{2048*(off+1)}")
        a(f"ds_read_b128 v[{vp+4}:{vp+7}], v4 offset:{2048*(off+1)+512}")
        a("s_mov_b64 exec, -1")
        for i in range(7, 12): e(i)
        a(f"v_smfmac_f32_32x32x32_bf16 v[{O}:{O+15}], v[{vc}:{vc+3}], v[{cur}:{cur+7}], v{IDX}")
        for i in range(12, 16): e(i)
    for t in range(64):
        if t and t % 16 == 0:
            a("v_add_u32 v3, 0x8000, v3")
            a("v_add_u32 v4, 0x8000, v4")
        tile(t, t % 16, hooks)
    a("v_subrev_u32 v3, 0x18000, v3")
    a("v_subrev_u32 v4, 0x18000, v4")
    a.label("main_attn_tail")
    a(f"v_smfmac_f32_32x32x32_bf16 v[{O}:{O+15}], v[{V[1]+4}:{V[1]+7}], v[{S[1]+8}:{S[1]+15}], v{IDX}")
    stamp(a, "att1")
    a("s_lshl_b32 s21, s34, 15")
    a("s_lshl_b32 s22, s30, 10")
    a("s_add_u32 s21, s21, s22")
    a(f"s_add_u32 s21, s21, {WS_OF}")
    a(f"v_mov_b32 v6, {f32(2.0**40)}")
    a("s_waitcnt lgkmcnt(0)")
    a("s_nop 5")
    a(f"v_mov_b32 v7, v{O+8}")
    a(f"v_add_f32 v5, abs(v{O}), abs(v{O+1})")
    a(f"v_add_f32 v5, v5, abs(v{O+2})")
    a(f"v_permlane32_swap_b32 v{O+8}, v7")
    for i in range(3, 8):
        a(f"v_add_f32 v5, v5, abs(v{O+i})")
    a(f"v_mov_b32 v7, {f32(3.0e38)}")
    a(f"v_cmp_nle_f32 vcc, v{O+8}, v6")
    a(f"v_cmp_nle_f32 s[22:23], v5, v7")
    a("s_or_b64 vcc, vcc, s[22:23]")
    a("s_cmp_lg_u32 s37, 0")
    a("s_cbranch_scc1 main_fin")
    a("s_cbranch_vccnz main_fallback")
    a.label("main_fin")
    a(f"v_rcp_f32 v6, v{O+8}")
    a("s_nop 0")
    for i in range(8):
        a(f"v_mul_f32 v{O+i}, v{O+i}, v6")
    for i in range(4):
        a(f"v_cvt_pk_bf16_f32 v{16+i}, v{O+2*i}, v{O+2*i+1}")
    a("buffer_store_dwordx4 v[16:19], v9, s[16:19], s21 offen sc1")
    a("s_lshl_b32 s21, s34, 12")
    a("s_lshl_b32 s22, s30, 7")
    a("s_add_u32 s21, s21, s22")
    a(f"s_add_u32 s21, s21, {WS_F2}")
    a("v_mov_b32 v5, 0")
    a("v_mov_b32 v6, s48")
    def f2_store():
        a("s_mov_b64 exec, 1")
        a("buffer_store_dword v6, v5, s[16:19], s21 offen sc1")
        a("s_mov_b64 exec, -1")
        stamp(a, "f2")
    if OSENT: f2_store()
    a("v_lshrrev_b32 v20, 5, v2")
    a("v_lshlrev_b32 v20, 10, v20")
    a("v_bfe_u32 v21, v2, 4, 1")
    a("v_lshl_add_u32 v20, v21, 9, v20")
    a("v_lshl_add_u32 v20, v8, 4, v20")
    a("v_mul_u32_u24 v22, 528, v8")
    a("v_lshrrev_b32 v23, 4, v2")
    a("v_lshl_add_u32 v22, v23, 4, v22")
    a("s_lshl_b32 s22, s32, 6")
    a("s_add_u32 s22, s22, 32768")
    a("v_add_u32 v22, s22, v22")
    a("v_lshrrev_b32 v24, 4, v0")
    a("v_mul_u32_u24 v23, 528, v24")
    a("v_lshl_add_u32 v23, v8, 5, v23")
    a("v_add_u32 v23, 32768, v23")
    if ST2P:
        a("v_and_b32 v12, 48, v2")
        a("s_lshl_b32 s22, s32, 7")
        a("v_add_u32 v12, s22, v12")
        a("v_and_b32 v13, 3, v0")
        a("v_lshl_add_u32 v13, v13, 10, v12")
    else:
        a("v_lshlrev_b32 v12, 4, v24")
        a("v_and_b32 v13, 3, v0")
        a("v_lshl_add_u32 v13, v13, 9, v12")
    a("v_lshrrev_b32 v109, 10, v111")
    a("v_sub_u32 v109, 2047, v109")
    a("v_lshl_or_b32 v109, v109, 1, 1")
    a("v_lshlrev_b32 v110, 2, v24")
    a("v_add_u32 v110, 65536, v110")
    a(f"s_waitcnt vmcnt({2 if OSENT else 0})")
    unpack8(a, 40, XT)
    if not OSENT: f2_store()
    cv_write(MW, 4)(); cv_moe(0, 4)(); cv_write(MW + 16, 3)(); cv_moe(16, 3)()
    lchk = lambda: chk_ne(a, [GA + 2 * i + 1 for i in range(16)])
    lchk()
    a("s_cbranch_scc1 main_lok")
    poll_loop(a, lg_issue, lchk, "Ll")
    a.label("main_lok")
    for c in range(4):
        a(f"v_add_f32 v{GA+2*c}, v{GA+2*c}, v{GA+8+2*c}")
        a(f"v_add_f32 v{GA+16+2*c}, v{GA+16+2*c}, v{GA+24+2*c}")
        a(f"v_add_f32 v{56+c}, v{GA+2*c}, v{GA+16+2*c}")
    a("s_lshr_b32 s20, s32, 1")
    a("s_cmp_eq_u32 s20, 2")
    a("s_cselect_b32 s20, 1.0, 0")
    rnd_pair(a, 56, 57, 5); rnd_pair(a, 58, 59, 5)
    for c in range(4): a(f"v_add_f32 v{56+c}, s20, v{56+c}")
    rnd_pair(a, 56, 57, 5); rnd_pair(a, 58, 59, 5)
    a("ds_write_b128 v1, v[56:59]")
    a("s_lshr_b32 s20, s42, 1")
    a("s_lshl_b32 s20, s20, 12")
    a("s_and_b32 s21, s42, 1")
    a("s_lshl_b32 s21, s21, 9")
    a("s_add_u32 s20, s20, s21")
    a(f"s_add_u32 s20, s20, {STG}")
    a("v_lshl_add_u32 v10, v8, 5, s20")
    a("v_lshrrev_b32 v11, 5, v2")
    a("v_lshlrev_b32 v11, 12, v11")
    a("v_and_b32 v5, 31, v2")
    a("v_lshl_add_u32 v11, v5, 5, v11")
    a(f"v_add_u32 v11, {STG}, v11")
    unpack8(a, 72, 252)
    for i in range(4):
        a(f"v_lshlrev_b32 v{WP+2*i}, 16, v{248+i}")
        a(f"v_and_b32 v{WP+2*i+1}, 0xffff0000, v{248+i}")
    a("s_waitcnt lgkmcnt(0)")
    a("s_cmp_lg_u32 s32, 0")
    a("s_cbranch_scc1 main_s2")
    a("v_and_b32 v5, 31, v2")
    a("v_lshlrev_b32 v5, 7, v5")
    a("s_lshl_b32 s22, s41, 12")
    a(f"s_add_u32 s22, s22, {WS_F2}")
    poll_loop(a, lambda: a("buffer_load_dword v6, v5, s[16:19], s22 offen" + PF), lambda: chk_ne(a, [6]), "Lo", sleep=F2S)
    a.label("main_s2")
    a("s_lshl_b32 s23, s32, 12")
    a("s_lshl_b32 s22, s41, 15")
    a("s_add_u32 s22, s22, s23")
    a(f"s_add_u32 s62, s22, {WS_OF}")
    a("v_add_u32 v27, s23, v9")
    a("s_mov_b32 m0, s23")
    a("s_barrier")
    stamp(a, "s2")
    for n in range(4):
        a(f"buffer_load_dwordx4 v9, s[16:19], s62 offen offset:{1024*n} sc1 lds")
    a(f"s_lshl_b32 s21, s41, {11 + ST2P}")
    a(f"s_add_u32 s21, s21, {WS_ST2}")
    a(f"s_lshl_b32 s22, s42, {9 + ST2P}")
    a("s_add_u32 s22, s22, s21")
    a("s_mov_b32 s24, 0x00010001")
    a("s_mov_b32 s25, 0x00010001")
    a("v_mov_b32 v55, s48")
    for j, reg in enumerate((GA, SB, CB, GB)):
        a(f"ds_read_b128 v[{reg}:{reg+3}], v10 offset:{8192*j}")
        a(f"ds_read_b128 v[{reg+4}:{reg+7}], v10 offset:{8192*j+16}")
    for j in range(2):
        a(f"ds_read_b128 v[{56+8*j}:{59+8*j}], v11 offset:{8192*(j+1)}")
        a(f"ds_read_b128 v[{60+8*j}:{63+8*j}], v11 offset:{8192*(j+1)+16}")
    a("s_waitcnt lgkmcnt(0)")
    for i in range(8):
        a(f"v_mul_f32 v{WP+i}, v{WP+i}, v{CB+i}")
    a("v_mul_f32 v252, v72, v64")
    a("v_mul_f32 v253, v72, v56")
    for i in range(1, 8):
        a(f"v_fmac_f32 v252, v{72+i}, v{64+i}")
        a(f"v_fmac_f32 v253, v{72+i}, v{56+i}")
    multi_allreduce(a, [252, 253], [5, 6])
    a("s_waitcnt vmcnt(0)")
    if OSENT:
        a(f"s_mov_b32 s60, {SPIN}")
        a.label("main_ov")
        for n in range(4): a(f"ds_read_b32 v{28+n}, v27 offset:{1024*n}")
        a("s_waitcnt lgkmcnt(0)")
        a("v_max3_u32 v28, v28, v29, v30")
        a("v_max_u32 v28, v28, v31")
        a("v_cmp_eq_u32 vcc, -1, v28")
        a("s_cbranch_vccz main_ok")
        for n in range(4):
            a(f"buffer_load_dwordx4 v9, s[16:19], s62 offen offset:{1024*n} sc1 lds")
        a("s_sub_u32 s60, s60, 1")
        a("s_waitcnt vmcnt(0)")
        a("s_cmp_lg_u32 s60, 0")
        a("s_cbranch_scc1 main_ov")
        a.label("main_ok")
    a("s_barrier")
    stamp(a, "olan")
    OFR = 56
    def rd(s):
        b = OFR + 8 * (s % 4)
        a(f"ds_read_b128 v[{b}:{b+3}], v20 offset:{2048*s}")
        a(f"ds_read_b128 v[{b+4}:{b+7}], v20 offset:{2048*s+256}")
    rd(0); rd(1); rd(2)
    for s in range(16):
        if s < 13:
            rd(s + 3)
            a("s_waitcnt lgkmcnt(6)")
        else:
            a(f"s_waitcnt lgkmcnt({2*(15-s)})")
        b = OFR + 8 * (s % 4)
        stamp(a, f"o{s}")
        for u in range(2):
            mf16(a, 24 + 4 * u, WO + 4 * s, b + 4 * u, None if s == 0 else 24 + 4 * u)
    stamp(a, "omf")
    a("s_nop 6")
    a("ds_write_b128 v22, v[24:27]")
    a(f"ds_write_b128 v22, v[28:31] offset:{16*528}")
    a("s_waitcnt lgkmcnt(0)")
    a("s_barrier")
    stamp(a, "tbar")
    a("ds_read_b128 v[32:35], v23")
    a("ds_read_b128 v[36:39], v23 offset:16")
    a("s_mov_b32 s23, 0xffff0000")
    def rnd4(lo):
        for i in lo: a(f"v_cvt_pk_bf16_f32 v{56+i//2}, v{32+i}, v{33+i}")
        for i in lo:
            a(f"v_lshlrev_b32 v{32+i}, 16, v{56+i//2}")
            a(f"v_and_b32 v{33+i}, s23, v{56+i//2}")
    a("s_waitcnt lgkmcnt(0)")
    E = (0, 2, 4, 6)
    rnd4(E)
    for i in E: a(f"v_pk_mul_f32 v[{32+i}:{33+i}], v[{32+i}:{33+i}], v[{GA+i}:{GA+i+1}]")
    rnd4(E)
    for i in E: a(f"v_pk_add_f32 v[{32+i}:{33+i}], v[{32+i}:{33+i}], v[{40+i}:{41+i}]")
    for i in E: a(f"v_cvt_pk_bf16_f32 v{48+i//2}, v{32+i}, v{33+i}")
    for i in E:
        a(f"v_lshlrev_b32 v{32+i}, 16, v{48+i//2}")
        a(f"v_and_b32 v{33+i}, s23, v{48+i//2}")
    a("v_pk_add_f32 v[56:57], v[32:33], v[34:35]")
    a("v_pk_mul_f32 v[58:59], v[32:33], v[32:33]")
    a(f"v_pk_mul_f32 v[60:61], v[32:33], v[{WP}:{WP+1}]")
    for i in (2, 4, 6):
        if i > 2: a(f"v_pk_add_f32 v[56:57], v[56:57], v[{32+i}:{33+i}]")
        a(f"v_pk_fma_f32 v[58:59], v[{32+i}:{33+i}], v[{32+i}:{33+i}], v[58:59]")
        a(f"v_pk_fma_f32 v[60:61], v[{32+i}:{33+i}], v[{WP+i}:{WP+i+1}], v[60:61]")
    a("v_add_f32 v52, v56, v57")
    a("v_add_f32 v53, v58, v59")
    a("v_add_f32 v54, v60, v61")
    a("s_nop 0")
    for n in (8, 4, 2, 1):
        for r in (52, 53, 54):
            a(f"v_add_f32_dpp v{r}, v{r}, v{r} row_ror:{n} row_mask:0xf bank_mask:0xf")
    a("s_mov_b64 exec, s[24:25]")
    a("buffer_store_dwordx4 v[52:55], v12, s[16:19], s22 offen sc1")
    a("s_mov_b64 exec, -1")
    stamp(a, "st2")
    poll_loop(a, lambda: (a(f"s_sleep {S3D}"), a("buffer_load_dwordx4 v[56:59], v13, s[16:19], s21 offen" + PF)), lambda: chk_ne(a, [59]), "Ls", sleep=0)
    stamp(a, "s3")
    for qp in ("[1,0,3,2]", "[2,3,0,1]"):
        for r in (56, 57, 58):
            a(f"v_add_f32_dpp v{r}, v{r}, v{r} quad_perm:{qp} row_mask:0xf bank_mask:0xf")
    a(f"v_mul_f32 v56, {f32(1/512)}, v56")
    a(f"v_mul_f32 v57, {f32(1/512)}, v57")
    a("v_fma_f32 v57, -v56, v56, v57")
    a("v_max_f32 v57, 0, v57")
    rnd_pair(a, 56, 57, 26)
    a(f"v_add_f32 v57, {f32(1e-5)}, v57")
    rnd_bf16(a, 57)
    a("v_sqrt_f32 v57, v57")
    a("v_fma_f32 v58, -v56, v252, v58")
    rnd_bf16(a, 57)
    a("v_rcp_f32 v57, v57")
    a("s_nop 0")
    a("v_fma_f32 v58, v58, v57, v253")
    a("v_cvt_pk_bf16_f32 v58, v58, v58")
    a("v_ashrrev_i32 v59, 31, v58")
    a("v_or_b32 v59, 0x80000000, v59")
    a("v_xor_b32 v58, v58, v59")
    a("v_and_b32 v58, 0xffff0000, v58")
    a("v_or_b32 v58, v58, v109")
    a("ds_write_b32 v110, v58")
    a("v_and_b32 v5, 31, v2")
    a("v_lshlrev_b32 v5, 2, v5")
    a("v_add_u32 v5, 65536, v5")
    a("s_waitcnt lgkmcnt(0)")
    a("s_barrier")
    stamp(a, "kbar")
    a("ds_read_b32 v10, v5")
    def h2_math(i):
        a(f"v_sub_f32 v{40+i}, v{32+i}, v56")
        a(f"v_sub_f32 v{41+i}, v{33+i}, v56")
        rnd_pair(a, 40 + i, 41 + i, 26)
        a(f"v_mul_f32 v{40+i}, v{40+i}, v57")
        a(f"v_mul_f32 v{41+i}, v{41+i}, v57")
        rnd_pair(a, 40 + i, 41 + i, 26)
        a(f"v_mul_f32 v{40+i}, v{40+i}, v{CB+i}")
        a(f"v_mul_f32 v{41+i}, v{41+i}, v{CB+i+1}")
        rnd_pair(a, 40 + i, 41 + i, 26)
        a(f"v_add_f32 v{40+i}, v{40+i}, v{SB+i}")
        a(f"v_add_f32 v{41+i}, v{41+i}, v{SB+i+1}")
        a(f"v_cvt_pk_bf16_f32 v{60+i//2}, v{40+i}, v{41+i}")
    h2_math(0)
    a("s_waitcnt lgkmcnt(0)")
    a("v_mov_b32 v64, v10")
    multi_allreduce(a, [64], [11], op="v_max_u32")
    a("v_cmp_eq_u32 vcc, v64, v10")
    a("s_nop 1")
    a("v_cndmask_b32 v65, v10, 0, vcc")
    multi_allreduce(a, [65], [11], op="v_max_u32")
    a("v_cmp_eq_u32 s[26:27], v64, v58")
    a("v_cmp_eq_u32 s[28:29], v65, v58")
    a("s_or_b32 s20, s42, s32")
    a("s_cmp_lg_u32 s20, 0")
    a("s_cbranch_scc1 main_notop")
    a("v_and_b32 v65, -2, v65")
    a("v_mov_b32 v66, s48")
    a("v_mov_b32 v67, s48")
    a(f"s_lshl_b32 s20, s41, {TOPSH}")
    a(f"s_add_u32 s20, s20, {WS_TOP}")
    a("v_mov_b32 v5, 0")
    a("s_mov_b64 exec, 1")
    a("buffer_store_dwordx4 v[64:67], v5, s[16:19], s20 offen sc1")
    a("s_mov_b64 exec, -1")
    a.label("main_notop")
    stamp(a, "top")
    for i in (2, 4, 6): h2_math(i)
    a("s_or_b64 s[62:63], s[26:27], s[28:29]")
    a("s_cmp_eq_u64 s[62:63], 0")
    a("s_cbranch_scc1 main_nocand")
    a("v_mov_b32 v5, 2048")
    a("v_cndmask_b32 v5, 0, v5, s[28:29]")
    a("v_lshl_add_u32 v5, v8, 4, v5")
    a("s_lshl_b32 s20, s41, 12")
    a("s_lshl_b32 s21, s42, 8")
    a("s_add_u32 s20, s20, s21")
    a(f"s_add_u32 s20, s20, {WS_CAND}")
    a("s_mov_b64 exec, s[62:63]")
    a("buffer_store_dwordx4 v[60:63], v5, s[16:19], s20 offen sc1")
    a("buffer_store_dwordx4 v[48:51], v5, s[16:19], s20 offen offset:1024 sc1")
    a("s_mov_b64 exec, -1")
    a.label("main_nocand")
    a("s_cmp_lg_u32 s32, 0")
    a("s_cbranch_scc1 main_notp")
    a(f"s_mov_b32 s22, {WS_TOP}")
    a(f"v_lshlrev_b32 v76, {TOPSH}, v2")
    a("buffer_load_dwordx4 v[68:71], v76, s[16:19], s22 offen" + PF)
    a.label("main_notp")
    for i in range(0, 8, 2):
        a(f"v_lshlrev_b32 v{40+i}, 16, v{60+i//2}")
        a(f"v_and_b32 v{41+i}, 0xffff0000, v{60+i//2}")
        a(f"v_mul_f32 v{40+i}, v{40+i}, v{GB+i}")
        a(f"v_mul_f32 v{41+i}, v{41+i}, v{GB+i+1}")
        rnd_pair(a, 40 + i, 41 + i, 26)
        a(f"v_add_f32 v{40+i}, v{40+i}, v{32+i}")
        a(f"v_add_f32 v{41+i}, v{41+i}, v{33+i}")
        a(f"v_cvt_pk_bf16_f32 v{72+i//2}, v{40+i}, v{41+i}")
    a("s_cmp_lg_u32 s32, 0")
    a("s_cbranch_scc1 main_w0e")
    def t_issue():
        if SLOWP:
            l = a.newlabel("Lsl")
            a("s_cmp_lt_u32 s2, 144")
            a(f"s_cbranch_scc1 {l}")
            a(f"s_sleep {SLOWP}")
            a.label(l)
        a("buffer_load_dwordx4 v[68:71], v76, s[16:19], s22 offen" + PF)
    poll_loop(a, t_issue, lambda: chk_ne(a, [70]), "Lt", first_issued=True, sleep=TSLEEP)
    a("v_mov_b32 v64, v68")
    multi_allreduce(a, [64], [11], op="v_max_u32")
    a("v_cmp_eq_u32 vcc, v64, v68")
    a("s_nop 1")
    a("v_cndmask_b32 v65, v68, v69, vcc")
    multi_allreduce(a, [65], [11], op="v_max_u32")
    a("v_mov_b32 v5, 65792")
    a("ds_write_b64 v5, v[64:65]")
    a("s_waitcnt lgkmcnt(0)")
    a.label("main_w0e")
    a("s_andn2_b64 exec, -1, s[62:63]")
    a("global_store_dwordx4 v111, v[72:75], s[50:51]" + OUTF)
    a("s_mov_b64 exec, -1")
    a("s_barrier")
    stamp(a, "s4")
    a("v_mov_b32 v5, 65792")
    a("ds_read_b64 v[64:65], v5")
    a("s_waitcnt lgkmcnt(0)")
    a("s_cmp_eq_u64 s[62:63], 0")
    a("s_cbranch_scc1 main_nodef")
    a("v_or_b32 v5, 1, v64")
    a("v_or_b32 v6, 1, v65")
    a("v_cmp_ne_u32 vcc, v5, v58")
    a("v_cmp_ne_u32 s[20:21], v6, v58")
    a("s_and_b64 vcc, vcc, s[20:21]")
    a("s_and_b64 exec, vcc, s[62:63]")
    a("s_cbranch_execz main_nodef")
    a("global_store_dwordx4 v111, v[72:75], s[50:51]" + OUTF)
    a.label("main_nodef")
    a("s_mov_b64 exec, -1")
    a("s_cmp_ge_u32 s2, 144")
    a("s_cbranch_scc1 main_done")
    def cand_off(key, d, t):
        a(f"v_bfe_u32 v{d}, v{key}, 6, 6")
        a(f"v_sub_u32 v{d}, 63, v{d}")
        a(f"v_lshlrev_b32 v{d}, 12, v{d}")
        a(f"v_not_b32 v{t}, v{key}")
        a(f"v_and_b32 v{t}, 1, v{t}")
        a(f"v_lshl_add_u32 v{d}, v{t}, 11, v{d}")
    a("s_cmp_ge_u32 s2, 112")
    a("s_cbranch_scc1 main_down")
    a("v_and_b32 v15, 1, v2")
    a("v_cmp_eq_u32 vcc, 0, v15")
    a("s_lshr_b32 s21, s32, 1")
    a("s_lshl_b32 s21, s21, 8")
    a("v_cndmask_b32 v16, v65, v64, vcc")
    cand_off(16, 17, 18)
    a("v_lshrrev_b32 v18, 4, v2")
    a("v_lshl_add_u32 v17, v18, 4, v17")
    a(f"s_add_u32 s22, s21, {WS_CAND}")
    def issue():
        for n in range(4):
            a(f"buffer_load_dwordx4 v[{32+4*n}:{35+4*n}], v17, s[16:19], s22 offen offset:{64*n} sc1")
    def check():
        a("v_max3_u32 v5, v32, v36, v40")
        a("v_max_u32 v5, v5, v44")
        a("v_cmp_eq_u32 vcc, -1, v5")
        a("s_cmp_eq_u64 vcc, 0")
    poll_loop(a, issue, check, "Lh", sleep=2)
    stamp(a, "moe")
    for n in range(4):
        mf16(a, 20, 32 + 4 * n, MW + 4 * n, None if n == 0 else 20)
    PB = 66560
    def partial_and_gather():
        a("s_lshl_b32 s23, s32, 7")
        a(f"s_add_u32 s23, s23, {PB}")
        a("v_lshl_add_u32 v24, v2, 2, s23")
        a("s_mov_b64 exec, 0xffff")
        a("s_nop 4")
        a("ds_write_b32 v24, v20")
        a("ds_write_b32 v24, v21 offset:64")
        a("s_mov_b64 exec, -1")
        a("s_waitcnt lgkmcnt(0)")
        a("s_barrier")
        a("s_cmp_lg_u32 s32, 0")
        a("s_cbranch_scc1 main_done")
        a("v_and_b32 v24, 31, v0")
        a("v_lshlrev_b32 v24, 2, v24")
        a(f"v_add_u32 v24, {PB}, v24")
        for w in range(8):
            a(f"ds_read_b32 v{32+w}, v24 offset:{128*w}")
    partial_and_gather()
    a("v_lshlrev_b32 v25, 1, v0")
    a("s_lshl_b32 s21, s33, 7")
    a(f"s_add_u32 s21, s21, {WS_ACT}")
    a("s_waitcnt lgkmcnt(0)")
    for w in range(2, 8):
        a(f"v_add_f32 v{32+(w&1)}, v{32+(w&1)}, v{32+w}")
    rnd_pair(a, 32, 33, 40)
    silu(a, 32, 34)
    rnd_bf16(a, 32)
    a("v_mul_f32 v32, v32, v33")
    a("s_nop 1")
    a("v_mov_b32_dpp v33, v32 quad_perm:[1,0,3,2] row_mask:0xf bank_mask:0xf")
    a("v_cvt_pk_bf16_f32 v32, v32, v33")
    a("s_mov_b64 exec, 0x55555555")
    a("buffer_store_dword v32, v25, s[16:19], s21 offen sc1")
    a("s_mov_b64 exec, -1")
    a("s_branch main_done")
    a.label("main_down")
    if STAMPS is not None and "moe" in STAMPS: Prof.n -= 1
    a("v_bfe_u32 v15, v0, 4, 1")
    a("v_cmp_eq_u32 vcc, 0, v15")
    a("s_lshl_b32 s21, s33, 5")
    a(f"s_add_u32 s22, s21, {WS_CAND}")
    a("v_cndmask_b32 v12, v65, v64, vcc")
    cand_off(12, 16, 17)
    a("v_and_b32 v17, 14, v8")
    a("v_lshl_add_u32 v16, v17, 1, v16")
    def issue():
        a("buffer_load_dword v17, v16, s[16:19], s22 offen sc1")
        a("buffer_load_dword v18, v16, s[16:19], s22 offen offset:1024 sc1")
    def check():
        a("v_max_u32 v5, v17, v18")
        a("v_cmp_eq_u32 vcc, -1, v5")
        a("s_cmp_eq_u64 vcc, 0")
    a("s_lshr_b32 s23, s33, 4")
    a("s_lshl_b32 s23, s23, 12")
    a("s_and_b32 s20, s33, 15")
    a("s_lshl_b32 s20, s20, 6")
    a("s_add_u32 s23, s23, s20")
    a(f"s_add_u32 s23, s23, {STG + 3*8192}")
    a("v_lshl_add_u32 v19, v8, 2, s23")
    a("ds_read_b32 v19, v19")
    poll_loop(a, issue, check, "Lf", sleep=2)
    a("v_bfe_u32 v15, v12, 1, 11")
    a("v_sub_u32 v15, 2047, v15")
    a("v_lshlrev_b32 v15, 10, v15")
    a("v_lshl_add_u32 v15, v8, 1, v15")
    a("v_add_u32 v15, s21, v15")
    a("v_and_b32 v16, 1, v0")
    a("v_lshlrev_b32 v16, 4, v16")
    a("v_lshrrev_b32 v17, v16, v17")
    a("v_lshrrev_b32 v18, v16, v18")
    a("v_lshlrev_b32 v17, 16, v17")
    a("v_lshlrev_b32 v18, 16, v18")
    a("v_and_b32 v12, 0xffff0000, v12")
    a("v_ashrrev_i32 v25, 31, v12")
    a("v_not_b32 v25, v25")
    a("v_or_b32 v25, 0x80000000, v25")
    a("v_xor_b32 v12, v12, v25")
    a("v_and_b32 v12, 0xffff0000, v12")
    a(f"v_mul_f32 v25, {NLOG2E:#x}, v12")
    a("v_exp_f32 v25, v25")
    a("s_nop 0")
    a("v_add_f32 v25, 1.0, v25")
    a("v_rcp_f32 v25, v25")
    a("s_nop 0")
    rnd_bf16(a, 25)
    a("v_and_b32 v13, 1, v2")
    a("v_lshlrev_b32 v13, 5, v13")
    a("v_bfe_u32 v14, v2, 4, 1")
    a("v_lshl_add_u32 v13, v14, 4, v13")
    a("v_lshrrev_b32 v14, 5, v2")
    a("v_lshl_add_u32 v13, v14, 7, v13")
    a("s_mul_i32 s22, s32, 1792")
    a(f"s_add_u32 s22, s22, {WS_ACT}")
    def issue():
        for n in range(7):
            a(f"buffer_load_dwordx4 v[{32+4*n}:{35+4*n}], v13, s[16:19], s22 offen offset:{256*n}" + PF)
    def check():
        a("v_max3_u32 v5, v32, v33, v34")
        for i in range(3, 27, 2):
            a(f"v_max3_u32 v5, v5, v{32+i}, v{33+i}")
        a("v_max_u32 v5, v5, v59")
        a("v_cmp_eq_u32 vcc, -1, v5")
        a("s_cmp_eq_u64 vcc, 0")
    if ACTD: a(f"s_sleep {ACTD}")
    poll_loop(a, issue, check, "La", sleep=ACTS)
    stamp(a, "moe")
    for n in range(7):
        mf16(a, 20, 32 + 4 * n, MW + 4 * n, None if n == 0 else 20)
    partial_and_gather()
    a("s_waitcnt lgkmcnt(0)")
    for w in range(1, 8):
        a(f"v_add_f32 v32, v32, v{32+w}")
    rnd_bf16(a, 32)
    a("v_mul_f32 v32, v32, v25")
    rnd_bf16(a, 32)
    a("v_add_f32 v32, v32, v17")
    rnd_bf16(a, 32)
    a("v_mul_f32 v32, v32, v19")
    rnd_bf16(a, 32)
    a("v_add_f32 v32, v32, v18")
    a("v_cvt_pk_bf16_f32 v32, v32, v32")
    a("s_mov_b32 exec_hi, 0")
    a("global_store_short v15, v32, s[50:51]" + OUTF)
    a("s_cmp_lg_u32 s33, 0")
    a("s_cbranch_scc1 main_done")
    a("v_mov_b32 v5, 0")
    a("v_mov_b32 v6, s48")
    a("s_mov_b64 exec, 1")
    a("global_store_dword v5, v6, s[4:5]" + OUTF)
    a.label("main_done")
    if STAMPS is not None: stamp_end(a)
    a.label("main_end")
    a("s_endpgm")
    a.label("main_fallback")
    a("s_mov_b32 s37, 1")
    a("s_mov_b32 s20, 64")
    a("v_mov_b32 v6, 0xff800000")
    a("v_mov_b32 v5, v3")
    a.label("main_fb_loop")
    a(f"ds_read_b128 v[{K[0]}:{K[0]+3}], v5")
    a("v_add_u32 v5, 0x800, v5")
    a("s_waitcnt lgkmcnt(0)")
    a(f"v_mfma_f32_32x32x16_bf16 v[{s0}:{s0+15}], v[{K[0]}:{K[0]+3}], v[{Q}:{Q+3}], 0")
    a("s_nop 11")
    for i in range(0, 16, 2):
        a(f"v_max3_f32 v6, v6, v{s0+i}, v{s0+i+1}")
    a("s_sub_u32 s20, s20, 1")
    a("s_cmp_lg_u32 s20, 0")
    a("s_cbranch_scc1 main_fb_loop")
    a(f"ds_read_b128 v[{K[0]}:{K[0]+3}], v3")
    a(f"ds_read_b128 v[{K[1]}:{K[1]+3}], v3 offset:2048")
    for i in range(16):
        a(f"v_mov_b32 v{O+i}, 0")
    setmax()
    a("s_mov_b64 exec, s[38:39]")
    a(f"ds_read_b128 v[{V[0]}:{V[0]+3}], v4")
    a(f"ds_read_b128 v[{V[0]+4}:{V[0]+7}], v4 offset:512")
    a("s_mov_b64 exec, -1")
    a("s_waitcnt lgkmcnt(0)")
    a(f"v_mfma_f32_32x32x16_bf16 v[{s0}:{s0+15}], v[{K[0]}:{K[0]+3}], v[{Q}:{Q+3}], v[{C}:{C+15}]")
    for i in range(8):
        a(f"v_mov_b32 v{S[1]+8+i}, 0")
    a("s_mov_b32 s20, 32")
    a("s_nop 3")
    a.label("main_fb2")
    tile(0, 0, {}); tile(1, 1, {})
    a("v_add_u32 v3, 0x1000, v3")
    a("v_add_u32 v4, 0x1000, v4")
    a("s_sub_u32 s20, s20, 1")
    a("s_cmp_lg_u32 s20, 0")
    a("s_cbranch_scc1 main_fb2")
    a("v_subrev_u32 v3, 0x20000, v3")
    a("v_subrev_u32 v4, 0x20000, v4")
    a("s_branch main_attn_tail")

NOTES = """;
"""
def main(out, aslist=False):
    hdr = open("adaLN_cond__mha_block__moe_arch_mod__prompt.s.ref").read().split("; Override launch")[0]
    txt = hdr
    if aslist:
        txt += f"; @launch kernel={KNAME} grid=(256,1,1) block=(512,1,1) lds=163840\n"
    else:
        txt += "; @launch grid=(256,1,1) block=(512,1,1) lds=163840\n"
    txt += NOTES
    txt += '.amdgcn_target "amdgcn-amd-amdhsa--gfx950"\n'
    a = Asm()
    k_main(a)
    txt += a.text()
    txt += kernel_desc(KNAME, 256)
    open(out, "w").write(txt)

SETS = {
    "t2": ["s2", "olan", "o0", "o4", "o8", "o12", "omf", "tbar", "st2", "s3", "kbar", "top", "s4"],
    "sc": ["wland", "barx", "sc0", "sc1", "sc2", "sc3", "sc4", "sc5", "bar1", "p2", "p4", "p8", "p12"],
    "q": ["pass1", "kvpub", "q0", "q2", "q4", "q6", "q8", "q10", "f1", "q12", "q14", "att0", "a4"],
    "at": ["att0", "a4", "a8", "a12", "a16", "a24", "a32", "a40", "a48", "a52", "a56", "a60", "att1"],
    "ld": ["karg", "mp", "iw", "i2", "l0", "l1", "l2", "gath1", "barx", "bar1", "p3", "p6", "p9"],
    "p1": ["bar1", "p0", "p1", "p2", "p3", "p4", "p5", "p6", "p7", "p8", "p10", "p12", "p14"],
    "p2": ["p8", "p9", "p10", "p11", "p12", "p13", "p14", "p15", "pass1", "kvpub", "att0", "f1", "kvok"],
    "f0": ["karg", "pk", "ack", "l0", "l2", "gath0", "gath1", "wland", "barx", "bar1", "pass1", "f1", "att0"],
    "f1": ["barx", "bar1", "p5", "pass1", "kvpub", "att0", "f1", "kvok", "ky", "bar6", "bar14", "att1"],
    "tail": ["att0", "t23", "t42", "att1", "f2", "s2", "olan", "st2", "s3", "top", "s4", "moe"],
}
if __name__ == "__main__":
    if len(sys.argv) > 2 and sys.argv[2] in SETS:
        G1.PROF = True
        STAMPS = set(SETS[sys.argv[2]])
    main(sys.argv[1], aslist=(len(sys.argv) > 2 and sys.argv[2] != "final"))
    if STAMPS: print(" ".join(["start"] + ORDER + ["end"]))
```

```python
import sys, os
from asmlib import *
import gen_v1 as G1
from gen_v1 import (f32, multi_allreduce, unpack8, rnd_pair, tr_addr_natural, dma_row_src,
                    stamp_begin, stamp_end, Prof, NLOG2E, QSCALE, WS_BYTES)

KNAME = "adaLN_cond__mha_block__moe_arch_mod__prompt_kernel"
WS_EPOCH = 0
WS_MP = 0x1000
WS_ST1 = 0x10000
WS_MPL = 0x20000
WS_ST2 = 0x180000
WS_TOP = 0x60000
WS_ACT = 0x64000
WS_CAND = 0x80000
WS_F1 = 0x100000
WS_F2 = 0x140000
WS_WP = 0x200000
WS_KV = 0x500000
WS_OF = 0x900000
SPIN = 50000
STAMPS = None
ORDER = []

def stamp(a, name):
    if STAMPS is not None and name in STAMPS:
        if name not in ORDER: ORDER.append(name)
        G1.stamp(a)

def poll_loop(a, issue, check, name, first_issued=False, sleep=4):
    l = a.newlabel(name); d = a.newlabel(name + "d"); w = a.newlabel(name + "w")
    a(f"s_mov_b32 s60, {SPIN}")
    if first_issued: a(f"s_branch {w}")
    a.label(l)
    issue()
    if first_issued: a.label(w)
    a("s_waitcnt vmcnt(0)")
    check()
    a(f"s_cbranch_scc1 {d}")
    a("s_sub_u32 s60, s60, 1")
    if sleep: a(f"s_sleep {sleep}")
    a("s_cmp_lg_u32 s60, 0")
    a(f"s_cbranch_scc1 {l}")
    a.label(d)

def chk_ne(a, regs):
    a(f"v_cmp_ne_u32 vcc, s48, v{regs[0]}")
    for r in regs[1:]:
        a(f"v_cmp_ne_u32 s[20:21], s48, v{r}")
        a("s_or_b64 vcc, vcc, s[20:21]")
    a("s_cmp_eq_u64 vcc, 0")

def silu(a, x, t):
    a(f"v_mul_f32 v{t}, {NLOG2E:#x}, v{x}")
    a(f"v_exp_f32 v{t}, v{t}")
    a("s_nop 0")
    a(f"v_add_f32 v{t}, 1.0, v{t}")
    a(f"v_rcp_f32 v{t}, v{t}")
    a("s_nop 0")
    a(f"v_mul_f32 v{x}, v{x}, v{t}")

def mf16(a, d, A, B, c):
    cs = "0" if c is None else f"v[{c}:{c+3}]"
    a(f"v_mfma_f32_16x16x32_bf16 v[{d}:{d+3}], v[{A}:{A+3}], v[{B}:{B+3}], {cs}")

def trr(a, d, a1, a2, off):
    a(f"ds_read_b64_tr_b16 v[{d}:{d+1}], v{a1} offset:{off}")
    a(f"ds_read_b64_tr_b16 v[{d+2}:{d+3}], v{a2} offset:{off}")

WPB = 0; RING = 49152
REG = {0: 32768, 1: 0, 2: 16384}
EMB = 147456; SAT = 151552; CTE = 152576; CAT = 152832; REC = 154880; STT = 157440; FINR = 152576 - 0
STG = 131072
EM2 = 159744
FIN = 159488 - 320 + 64 - 64
Q = 16; C = 20; S = [36, 52]; O = 68; K = [84, 88]; V = [92, 100]; IDX = 108
WO = 112; MW = 176; XT = 204
GA = 208; SB = 216; CB = 224; GB = 232; WP = 240
FLIP = int(os.environ.get('FLIP', 50))
RBAR = int(os.environ.get('RBAR', 12))
TILEV = int(os.environ.get('TILEV', 0))
YK = int(os.environ.get('YK', 4))
TOUCHD = int(os.environ.get('TOUCHD', 16))
TOUCHG = int(os.environ.get('TOUCHG', 0))
TOUCHW = int(os.environ.get('TOUCHW', 9))
OUTF = os.environ.get('OUTF', '')
OSENT = int(os.environ.get('OSENT', 0))
TOPSH = int(os.environ.get('TOPSH', 7))
SLOWP = int(os.environ.get('SLOWP', 40))
TSLEEP = int(os.environ.get('TSLEEP', 2))
ST2P = int(os.environ.get('ST2P', 1))
PREW = int(os.environ.get('PREW', 25))
PREO = int(os.environ.get('PREO', 0))
PREF = int(os.environ.get('PREF', 1))
S3D = int(os.environ.get('S3D', 8))
S3S = int(os.environ.get('S3S', 1))
ACTD = int(os.environ.get('ACTD', 0))
ACTS = int(os.environ.get('ACTS', 2))
F2S = int(os.environ.get('F2S', 1))
PF = os.environ.get('PF', ' sc1')
KVP = int(os.environ.get('KVP', 0))
TLB = int(os.environ.get('TLB', 21))
CODEPF = int(os.environ.get('CODEPF', 0))
B8 = int(os.environ.get('B8', 1))
NOLD = int(os.environ.get('NOLD', 3))
OK1 = int(os.environ.get('OK1', 1))
P1FLIP = int(os.environ.get('P1FLIP', 11))
TOUCH = 0
WPS = 16384 + 384
F1STEP = 10
XR = 32; WR = 160; ACC = 184; QA = 176; WF = [236, 244]

def k_main(a):
    kernel_begin(a, KNAME)
    a("s_cmp_ge_u32 s2, 256")
    a("s_cbranch_scc1 main_end")
    if STAMPS is not None: stamp_begin(a, 0)
    a("s_setprio 3")
    a("s_load_dwordx2 s[4:5], s[0:1], 96")
    a("s_load_dwordx4 s[44:47], s[0:1], 64")
    a("s_load_dwordx2 s[6:7], s[0:1], 0")
    a("s_load_dwordx4 s[8:11], s[0:1], 8")
    a("s_load_dwordx8 s[52:59], s[0:1], 32")
    a("s_load_dwordx2 s[50:51], s[0:1], 80")
    a("v_lshrrev_b32 v1, 6, v0")
    a("v_and_b32 v2, 63, v0")
    a("s_and_b32 s31, s2, 1")
    a("s_lshl_b32 s31, s31, 2")
    a("v_readfirstlane_b32 s32, v1")
    a("s_bfe_u32 s20, s2, 0x20003")
    a("s_add_u32 s31, s31, s20")
    a("s_and_b32 s30, s2, 6")
    a("s_lshl_b32 s30, s30, 2")
    a("s_lshr_b32 s20, s2, 5")
    a("s_add_u32 s30, s30, s20")
    a("s_lshl_b32 s33, s20, 1")
    a("v_lshlrev_b32 v9, 4, v2")
    a("v_lshrrev_b32 v17, 3, v2")
    a("v_and_b32 v16, 6, v17")
    a("v_xor_b32 v16, v16, v2")
    a("v_and_b32 v16, 7, v16")
    a("v_lshlrev_b32 v200, 10, v17")
    a("v_lshl_add_u32 v200, v16, 4, v200")
    for q in range(1, 4): a(f"v_add_u32 v{200+q}, {7168*q}, v200")
    dma_row_src(a, 255, 2, 6144, 16, 17)
    a("s_lshl_b32 s28, s31, 18")
    a("s_lshl_b32 s21, s32, 15")
    a("s_add_u32 s28, s28, s21")
    a("s_lshl_b32 s29, s33, 6")
    a("s_mul_i32 s49, s32, 12288")
    a(f"s_add_u32 s49, s49, {RING}")
    a("v_lshrrev_b32 v3, 1, v2")
    a("v_lshl_add_u32 v3, v1, 6, v3")
    a("v_and_b32 v6, 1, v0")
    a("v_bfe_u32 v22, v2, 1, 2")
    a("v_mul_u32_u24 v22, 3072, v22")
    a("v_lshrrev_b32 v17, 3, v2")
    a("v_lshl_add_u32 v22, v17, 5, v22")
    a("v_lshl_add_u32 v22, v6, 4, v22")
    a(f"v_mul_u32_u24 v23, {WPS}, v17")
    a("v_and_b32 v17, 7, v2")
    a("v_lshl_add_u32 v23, v17, 4, v23")
    a("s_and_b32 s36, s2, 7")
    a("s_lshl_b32 s36, s36, 4")
    a("s_lshr_b32 s20, s2, 4")
    a("s_add_u32 s36, s36, s20")
    a("s_bfe_u32 s37, s2, 0x10003")
    a("v_lshlrev_b32 v19, 3, v2")
    a("s_lshl_b32 s39, s2, 3")
    a("s_add_u32 s39, s39, s32")
    a("s_and_b32 s62, s2, 7")
    a("s_lshl_b32 s62, s62, 3")
    a("s_bfe_u32 s23, s2, 0x30003")
    a("s_add_u32 s62, s62, s23")
    a("s_waitcnt lgkmcnt(0)")
    stamp(a, "karg")
    a("s_load_dword s48, s[4:5], 0")
    srd(a, 24, 6, 2048 * 1024)
    srd(a, 16, 4, WS_BYTES)
    srd(a, 12, 8, 512 * 3072)
    a("s_cmp_lg_u32 s32, 0")
    a("s_cbranch_scc1 main_w0a")
    a("s_lshr_b32 s21, s2, 6")
    a("s_lshl_b32 s22, s21, 8")
    a("v_lshl_add_u32 v16, v2, 2, s22")
    a("global_load_dword v232, v16, s[44:45]")
    srd(a, 40, 46, 512 * 6144)
    a(f"s_mul_i32 s22, s21, {128*6144}")
    a("s_lshl_b32 s23, s62, 5")
    a("s_add_u32 s22, s22, s23")
    for n in range(4):
        a(f"s_mov_b32 m0, {EMB + 1024*n}")
        if n: a(f"s_add_u32 s22, s22, {32*6144}")
        else: a("s_nop 0")
        a("buffer_load_dwordx4 v255, s[40:43], s22 offen lds")
    a("s_branch main_w0i")
    a.label("main_w0a")
    a("s_cmp_eq_u32 s32, 7")
    a("s_cbranch_scc1 main_w7" if TLB else "s_cbranch_scc1 main_w0i")
    a(f"s_mul_i32 s20, s36, {4*3072}")
    a("s_mul_i32 s21, s37, 1536")
    a("s_add_u32 s20, s20, s21")
    a("s_lshl_b32 s21, s32, 8")
    a("s_add_u32 s20, s20, s21")
    a("s_sub_u32 s20, s20, 256")
    a(f"buffer_load_dwordx4 v[{WR}:{WR+3}], v22, s[12:15], s20 offen")
    if TLB:
        a("s_branch main_w0i")
        a.label("main_w7")
        a("s_lshl_b32 s20, s2, 8")
        a(f"v_lshlrev_b32 v16, {TLB}, v2")
        a(f"s_mov_b64 exec, {(1 << min(63, (12 << 20) >> TLB)) - 1:#x}") if ((12 << 20) >> TLB) <= 31 else a("s_nop 0")
        a("buffer_load_dword v160, v16, s[16:19], s20 offen")
        a("s_mov_b64 exec, 1")
        a("v_mov_b32 v16, s20")
        for j, b in enumerate((10, 54, 56, 58, 50)):
            a(f"global_load_dword v{161+j}, v16, s[{b}:{b+1}]")
        if CODEPF:
            a("s_getpc_b64 s[22:23]")
            a.label("main_pc")
            a(f"s_sub_u32 s22, s22, main_pc-{KNAME}")
            a("s_subb_u32 s23, s23, 0")
            a("s_mov_b64 exec, 0xff")
            a("s_lshr_b32 s20, s2, 3")
            a("s_min_u32 s20, s20, 24")
            a("s_lshl_b32 s20, s20, 10")
            a("v_lshl_add_u32 v16, v2, 7, s20")
            a("global_load_dword v166, v16, s[22:23]")
        a("s_mov_b64 exec, -1")
    a.label("main_w0i")
    a("s_lshl_b32 s22, s39, 10")
    a("buffer_load_dwordx4 v[204:207], v9, s[24:27], s22 offen")
    def dstep_issue(base, add):
        a("s_add_u32 s20, s28, s29")
        if add: a(f"s_add_u32 s21, s{base}, {add}")
        a(f"s_mov_b32 m0, s{21 if add else base}")
        a("s_add_u32 s29, s29, 128")
        for q in range(4):
            a(f"buffer_load_dwordx4 v{200+q}, s[24:27], s20 offen offset:{1024*q} lds")
        a("s_and_b32 s29, s29, 0x3ff")
    a("v_lshlrev_b32 v25, 4, v0")
    def g_issue():
        for rg in range(4):
            a(f"s_mov_b32 s22, {WS_MP + 8192*rg}")
            a(f"buffer_load_dwordx4 v[{184+4*rg}:{187+4*rg}], v25, s[16:19], s22 offen sc1")
    a("v_lshrrev_b32 v7, 4, v2")
    a("v_and_b32 v8, 15, v2")
    tr_addr_natural(a, 12, 13, 2, 14, 15)
    a("s_lshl_b32 s21, s33, 10")
    a("v_lshlrev_b32 v10, 5, v3")
    a("v_subrev_u32 v10, s21, v10")
    a("v_bfe_u32 v11, v3, 3, 1")
    a("v_lshlrev_b32 v11, 7, v11")
    a("v_xor_b32 v10, v10, v11")
    a("v_lshl_add_u32 v10, v6, 4, v10")
    a("v_and_b32 v10, 0x3fff, v10")
    a("v_xor_b32 v11, 1024, v10")
    a("s_lshl_b32 s20, s32, 11")
    a("s_sub_u32 s20, s20, s21")
    a("s_and_b32 s20, s20, 0x3fff")
    a("v_add_u32 v26, s20, v12")
    a("v_add_u32 v27, s20, v13")
    a("s_lshr_b32 s20, s20, 4")
    a(f"s_add_u32 s20, s20, {SAT}")
    a("v_lshl_add_u32 v30, v7, 4, s20")
    a("s_lshl_b32 s21, s32, 12")
    a(f"s_add_u32 s21, s21, {STG}")
    a("v_add_u32 v14, s21, v12")
    a("v_add_u32 v15, s21, v13")
    a("v_and_b32 v16, 6, v8")
    a("v_xor_b32 v16, v16, v7")
    a("v_lshlrev_b32 v16, 4, v16")
    a("v_and_b32 v17, 7, v8")
    a("v_lshl_add_u32 v16, v17, 7, v16")
    a("v_lshrrev_b32 v17, 3, v8")
    a("v_lshl_add_u32 v16, v17, 10, v16")
    a("v_xor_b32 v17, 64, v16")
    a("v_add_u32 v254, s49, v16")
    a("v_add_u32 v255, s49, v17")
    a("v_and_b32 v24, 31, v2")
    a("v_lshlrev_b32 v24, 4, v24")
    a("s_lshr_b32 s63, s28, 6")
    a(f"s_add_u32 s63, s63, {WS_ST1}")
    def rd_x2(d, reg, off):
        for e in range(2):
            for u in range(2):
                r = XR + 4 * (16 * u + 2 * d + e)
                a(f"ds_read_b128 v[{r}:{r+3}], v{reg+e} offset:{off + 2048*u}")
    def g_check(): chk_ne(a, [185, 187, 189, 191, 193, 195, 197, 199])
    stamp(a, "d7")
    def w56(fn):
        l = a.newlabel("Lw56")
        a("s_sub_u32 s20, s32, 5")
        a("s_cmp_gt_u32 s20, 1")
        a(f"s_cbranch_scc1 {l}")
        fn()
        a.label(l)
    def w12(fn):
        l = a.newlabel("Lw12")
        a("s_sub_u32 s20, s32, 1")
        a("s_cmp_gt_u32 s20, 1")
        a(f"s_cbranch_scc1 {l}")
        fn()
        a.label(l)
    def le_issue():
        srd(a, 12, 46, 512 * 6144)
        a("v_mul_u32_u24 v5, 6144, v11")
        a("v_add_u32 v5, v5, v10")
        a("s_lshr_b32 s21, s2, 6")
        a(f"s_mul_i32 s22, s21, {128*6144}")
        a("s_lshl_b32 s23, s62, 6")
        a("s_add_u32 s22, s22, s23")
        a("s_lshl_b32 s23, s20, 5")
        a("s_add_u32 s22, s22, s23")
        a("s_add_u32 s22, s22, 2048")
        a("s_mov_b32 s23, s36")
        a("s_lshl_b32 s21, s21, 8")
        a("v_lshl_add_u32 v6, v2, 2, s21")
        a(f"global_load_dword v{WO}, v6, s[44:45]")
        for n in range(4):
            a("s_mov_b32 m0, s23")
            if n: a(f"s_add_u32 s22, s22, {32*6144}")
            else: a("s_nop 0")
            a("buffer_load_dwordx4 v5, s[12:15], s22 offen lds")
            a("s_add_u32 s23, s23, 1024")
    a("s_lshr_b32 s41, s30, 2"); a("s_lshl_b32 s20, s31, 3"); a("s_add_u32 s41, s41, s20")
    a("s_and_b32 s42, s30, 3")
    a("v_and_b32 v29, 1, v2"); a("v_lshlrev_b32 v29, 4, v29")
    a("v_lshrrev_b32 v28, 1, v2"); a("v_lshl_add_u32 v1, v28, 10, v29")
    a("s_lshl_b32 s20, s42, 8"); a("s_lshl_b32 s21, s32, 5"); a("s_add_u32 s21, s21, s20"); a("v_add_u32 v1, s21, v1")
    a("v_bfe_u32 v16, v2, 4, 1"); a("v_lshlrev_b32 v17, 2, v16"); a("v_xor_b32 v28, v28, v17")
    a("v_lshrrev_b32 v5, 5, v2"); a("v_lshlrev_b32 v5, 9, v5"); a("v_lshl_add_u32 v5, v16, 7, v5")
    a("v_bfe_u32 v16, v2, 2, 2"); a("v_lshl_add_u32 v5, v16, 5, v5"); a("v_and_b32 v16, 3, v2"); a("v_lshl_add_u32 v5, v16, 3, v5")
    a("s_lshl_b32 s21, s32, 12"); a(f"s_add_u32 s21, s21, {STG}"); a("v_add_u32 v5, s21, v5")
    a("v_lshrrev_b32 v4, 4, v0"); a("v_lshlrev_b32 v4, 10, v4"); a("v_lshl_add_u32 v4, v8, 4, v4")
    a("s_lshl_b32 s21, s41, 15"); a("s_add_u32 s20, s20, s21"); a("v_add_u32 v4, s20, v4")
    a("s_lshl_b32 s20, s30, 13"); a("s_lshl_b32 s21, s32, 10"); a("s_add_u32 s40, s20, s21"); a(f"s_add_u32 s40, s40, {WS_F1}")
    a("s_cmp_lg_u32 s32, 0")
    a("s_cbranch_scc1 main_w0j")
    a(f"v_add_u32 v20, {EMB}, v12")
    a(f"v_add_u32 v21, {EMB}, v13")
    a("s_waitcnt vmcnt(5)")
    a("v_lshlrev_b32 v233, 16, v232")
    a("v_and_b32 v234, 0xffff0000, v232")
    silu(a, 233, 16); silu(a, 234, 16)
    a("v_cvt_pk_bf16_f32 v232, v233, v234")
    a("v_lshlrev_b32 v16, 2, v2")
    a(f"v_add_u32 v16, {CTE}, v16")
    a("ds_write_b32 v16, v232")
    a("v_and_b32 v17, 48, v2")
    a(f"v_add_u32 v17, {CTE}, v17")
    for n in range(4):
        a(f"ds_read_b128 v[{236+4*n}:{239+4*n}], v17 offset:{64*n}")
    a("s_lshr_b32 s38, s2, 6")
    a("s_lshl_b32 s38, s38, 13")
    a("s_lshl_b32 s22, s62, 7")
    a("s_add_u32 s38, s38, s22")
    a(f"s_add_u32 s38, s38, {WS_MP}")
    a("s_waitcnt vmcnt(0)")
    stamp(a, "emland")
    for n in range(4):
        trr(a, 216 + 4 * n, 20, 21, 1024 * n)
    a("s_waitcnt lgkmcnt(0)")
    a("s_add_u32 s22, s48, 1")
    for n in range(4):
        mf16(a, 232, 236 + 4 * n, 216 + 4 * n, None if n == 0 else 232)
    a("s_nop 7")
    a("v_mov_b32 v184, v232")
    a("v_mov_b32 v185, s22")
    a("s_branch main_w0b")
    a.label("main_w0j")
    a("s_waitcnt vmcnt(0)")
    a("s_cmp_eq_u32 s32, 7")
    a("s_cbranch_scc1 main_w0b")
    a("s_mul_i32 s20, s37, 6")
    a("s_add_u32 s20, s20, s32")
    a(f"s_mul_i32 s20, s20, {8*WPS}")
    a("s_lshl_b32 s21, s36, 7")
    a("s_add_u32 s20, s20, s21")
    a(f"s_add_u32 s20, s20, {WS_WP - 8*WPS}")
    a(f"buffer_store_dwordx4 v[{WR}:{WR+3}], v23, s[16:19], s20 offen sc1")
    a.label("main_w0b")
    stamp(a, "pk")
    if OSENT:
        for i in range(4): a(f"v_mov_b32 v{164+i}, -1")
        a("s_lshl_b32 s20, s31, 3")
        a("s_add_u32 s20, s20, s32")
        a("s_lshl_b32 s20, s20, 15")
        a("s_lshl_b32 s21, s30, 10")
        a("s_add_u32 s20, s20, s21")
        a(f"s_add_u32 s20, s20, {WS_OF}")
        a("buffer_store_dwordx4 v[164:167], v9, s[16:19], s20 offen sc1")
    a("s_barrier")
    dstep_issue(49, 0)
    a("s_waitcnt lgkmcnt(0)")
    a("s_add_u32 s48, s48, 1")
    unpack8(a, 208, 204)
    a("v_add_f32 v216, v208, v209")
    for i in range(2, 8): a(f"v_add_f32 v216, v216, v{208+i}")
    multi_allreduce(a, [216], [217])
    a(f"v_mul_f32 v216, {f32(1/512)}, v216")
    a("v_sub_f32 v217, v208, v216")
    a("v_mul_f32 v218, v217, v217")
    for i in range(1, 8):
        a(f"v_sub_f32 v217, v{208+i}, v216")
        a("v_fmac_f32 v218, v217, v217")
    multi_allreduce(a, [218], [217])
    a(f"v_mul_f32 v217, {f32(1/512)}, v218")
    rnd_pair(a, 216, 217, 218)
    a(f"v_add_f32 v217, {f32(1e-5)}, v217")
    rnd_bf16(a, 217)
    a("v_sqrt_f32 v217, v217")
    a("s_lshl_b32 s21, s39, 4")
    rnd_bf16(a, 217)
    a("v_rcp_f32 v217, v217")
    a("v_mov_b32 v218, s48")
    a("v_mov_b32 v219, s48")
    a(f"s_add_u32 s21, s21, {WS_ST1}")
    a("v_mov_b32 v16, 0")
    a("s_mov_b64 exec, 1")
    a("buffer_store_dwordx4 v[216:219], v16, s[16:19], s21 offen sc1")
    a("s_mov_b64 exec, -1")
    a("s_waitcnt vmcnt(5)")
    stamp(a, "ack")
    a("s_barrier")
    a("s_cmp_lg_u32 s32, 0")
    a("s_cbranch_scc1 main_w0c")
    a("s_mov_b64 exec, 0xffff")
    a("buffer_store_dwordx2 v[184:185], v19, s[16:19], s38 offen sc1")
    a("s_mov_b64 exec, -1")
    stamp(a, "mp")
    a.label("main_w0c")
    dstep_issue(49, 4096); dstep_issue(49, 8192)
    a("s_setprio 0")
    stamp(a, "i2")
    a("s_waitcnt vmcnt(9)")
    stamp(a, "l0")
    rd_x2(0, 254, 0)
    a("s_waitcnt lgkmcnt(0)")
    dstep_issue(49, 0)
    a("s_waitcnt vmcnt(8)")
    a("s_setprio 3")
    g_issue()
    rd_x2(1, 254, 4096)
    a("s_waitcnt vmcnt(8)")
    stamp(a, "l2")
    rd_x2(2, 254, 8192)
    a("s_waitcnt vmcnt(0)")
    stamp(a, "gath0")
    g_check()
    a("s_cbranch_scc1 main_gok")
    poll_loop(a, g_issue, g_check, "Lm")
    a.label("main_gok")
    stamp(a, "gath1")
    a(f"s_mul_i32 s20, s30, {WPS}")
    a("s_lshl_b32 s21, s32, 11")
    a("s_add_u32 s20, s20, s21")
    a(f"s_add_u32 s20, s20, {WS_WP}")
    for t in (0, 2, 1):
        a(f"s_add_u32 s21, s20, {32*WPS*t}")
        for p in range(2):
            r = WR + 4 * (3 * p + t)
            a(f"buffer_load_dwordx4 v[{r}:{r+3}], v9, s[16:19], s21 offen offset:{1024*p} sc1")
    a("s_setprio 0")
    rd_x2(3, 254, 0)
    for c in range(2):
        a(f"v_add_f32 v{184+2*c}, v{184+2*c}, v{188+2*c}")
        a(f"v_add_f32 v{192+2*c}, v{192+2*c}, v{196+2*c}")
        a(f"v_add_f32 v{184+2*c}, v{184+2*c}, v{192+2*c}")
    a("v_cvt_pk_bf16_f32 v188, v184, v186")
    a("s_cmp_gt_u32 s32, 3")
    a("s_cbranch_scc1 main_gca")
    a("s_lshl_b32 s21, s33, 6")
    a("v_lshlrev_b32 v16, 2, v0")
    a("v_subrev_u32 v16, s21, v16")
    a("v_and_b32 v16, 0x3ff, v16")
    a(f"v_add_u32 v16, {SAT}, v16")
    a("ds_write_b32 v16, v188")
    a("s_branch main_gdn")
    a.label("main_gca")
    a("v_lshlrev_b32 v184, 16, v188")
    a("v_and_b32 v185, 0xffff0000, v188")
    a("v_add_f32 v184, 1.0, v184")
    a("v_add_f32 v185, 1.0, v185")
    rnd_pair(a, 184, 185, 188)
    a("v_lshlrev_b32 v16, 3, v0")
    a(f"v_add_u32 v16, {CAT - 2048}, v16")
    a("ds_write_b64 v16, v[184:185]")
    a.label("main_gdn")
    a("v_lshlrev_b32 v16, 2, v3")
    a(f"v_add_u32 v16, {CAT}, v16")
    a("v_xor_b32 v17, 128, v16")
    a("s_waitcnt lgkmcnt(0)")
    dstep_issue(49, 4096)
    a("s_waitcnt vmcnt(6)")
    stamp(a, "wland")
    if PREF:
        a("s_lshl_b32 s20, s31, 7")
        a("s_add_u32 s20, s20, s40")
        a("s_xor_b32 s21, s48, 0x80000000")
        a("v_mov_b32 v18, s21")
        a("v_lshlrev_b32 v19, 2, v2")
        a("s_mov_b32 exec_hi, 0")
        a("buffer_store_dword v18, v19, s[16:19], s20 offen sc1")
        a("s_mov_b64 exec, -1")
    if PREF > 1:
        a("s_lshl_b32 s20, s31, 3")
        a("s_add_u32 s20, s20, s32")
        a("s_lshl_b32 s20, s20, 11")
        a("s_lshl_b32 s21, s30, 17")
        a("s_add_u32 s20, s20, s21")
        a(f"s_add_u32 s20, s20, {WS_KV}")
        a("buffer_store_dwordx4 v[32:35], v9, s[16:19], s20 offen sc1")
        a("buffer_store_dwordx4 v[32:35], v9, s[16:19], s20 offen offset:1024 sc1")
    for t in (0, 2):
        for p in range(2):
            r = WR + 4 * (3 * p + t)
            a(f"ds_write_b128 v{10+p}, v[{r}:{r+3}] offset:{REG[t]}")
    for n in range(2):
        trr(a, 236 + 8 * n, 26, 27, REG[0] + 1024 * n)
        trr(a, 240 + 8 * n, 26, 27, REG[2] + 1024 * n)
    for i in range(4): a(f"v_mov_b32 v{204+i}, 0x3f803f80")
    UPK = {1: 64, 2: 128, 0: 80}
    a("s_mov_b32 s22, 0xffff0000")
    for t in (0, 2, 1):
        if t == 1: a(f"s_waitcnt vmcnt({4 + (0, 1, 3)[PREF]})")
        for p in range(2):
            r = WR + 4 * (3 * p + t); T = UPK[t] + 8 * p
            for i in range(4):
                a(f"v_lshlrev_b32 v{T+2*i}, 16, v{r+i}")
                a(f"v_and_b32 v{T+2*i+1}, s22, v{r+i}")
    a("s_waitcnt lgkmcnt(0)")
    a("s_barrier")
    stamp(a, "barx")
    a("ds_read_b32 v188, v16")
    a("ds_read_b32 v189, v17")
    for n in range(2): a(f"ds_read_b128 v[{192+4*n}:{195+4*n}], v30 offset:{64*n}")
    a("s_mul_i32 s21, s32, 320")
    a(f"s_add_u32 s21, s21, {REC}")
    a("v_lshl_add_u32 v30, v7, 4, s21")
    a("v_lshl_add_u32 v31, v8, 3, s21")
    a("s_waitcnt lgkmcnt(2)")
    CSF = [80, 84, 64, 68, 128, 132]
    stamp(a, "sc0")
    for j, t in enumerate((1, 2, 0)):
        for p in range(2):
            r = WR + 4 * (3 * p + t)
            d = 208 + 4 * p
            T = UPK[t] + 8 * p
            for i in range(4):
                a(f"v_pk_mul_f32 v[{T+2*i}:{T+2*i+1}], v[{T+2*i}:{T+2*i+1}], v[188:189] " + ("op_sel_hi:[1,0]" if p == 0 else "op_sel:[0,1] op_sel_hi:[1,1]"))
            for i in range(4):
                a(f"v_cvt_pk_bf16_f32 v{d+i}, v{T+2*i}, v{T+2*i+1}")
            a(f"ds_write_b128 v{10+p}, v[{d}:{d+3}] offset:{REG[t]}")
        for n in range(2): trr(a, CSF[2 * t + n], 26, 27, REG[t] + 1024 * n)
        stamp(a, f"sc{j+1}")
        if j == 2: a("buffer_load_dwordx4 v[20:23], v24, s[16:19], s63 offen sc1")
        if j == 0:
            a("s_waitcnt lgkmcnt(6)")
            for n in range(2):
                mf16(a, 216, 236 + 8 * n, 192 + 4 * n, None if n == 0 else 216)
                mf16(a, 220, 192 + 4 * n, 240 + 8 * n, None if n == 0 else 220)
    a("s_waitcnt lgkmcnt(0)")
    for n in range(2):
        mf16(a, 228, CSF[2 + n], 204, None if n == 0 else 228)
        mf16(a, 232, 204, CSF[4 + n], None if n == 0 else 232)
        mf16(a, 224, CSF[n], 204, None if n == 0 else 224)
    a("v_lshlrev_b32 v16, 4, v7")
    a(f"v_add_u32 v16, {REC}, v16")
    a("v_lshlrev_b32 v17, 3, v8")
    a(f"v_add_u32 v17, {REC}, v17")
    stamp(a, "sc4")
    a("ds_write_b128 v30, v[216:219]")
    a("s_nop 1")
    a("v_mov_b32 v233, v220")
    a("ds_write_b128 v30, v[228:231] offset:128")
    a("ds_write_b64 v31, v[232:233] offset:192")
    a("ds_write_b128 v30, v[224:227] offset:64")
    a("s_waitcnt lgkmcnt(0)")
    stamp(a, "sc5")
    a("s_barrier")
    stamp(a, "bar1")
    WF3 = [236, 244, 176]
    def rd_kv(s):
        b = WF3[s % 3]
        trr(a, b, 12, 13, REG[1] + 1024 * s)
        trr(a, b + 4, 12, 13, REG[2] + 1024 * s)
    rd_kv(0); rd_kv(1)
    a("s_lshr_b32 s20, s32, 2")
    a("s_cmp_eq_u32 s20, 0")
    a("s_cbranch_scc1 main_p1o")
    a("s_setprio 1")
    a.label("main_p1o")
    DR = {2: 4, 7: 5, 9: 6, 11: 7}
    def rec_rd(w):
        d = (208, 212, 220, 224) if w == 0 else (228, 232, 216, 226)
        a(f"ds_read_b128 v[{d[0]}:{d[0]+3}], v16 offset:{320*w}")
        a(f"ds_read_b128 v[{d[1]}:{d[1]+3}], v16 offset:{320*w+64}")
        a(f"ds_read_b128 v[{d[2]}:{d[2]+3}], v16 offset:{320*w+128}")
        a(f"ds_read_b64 v[{d[3]}:{d[3]+1}], v17 offset:{320*w+192}")
    for s in range(16):
        if s < 14:
            rd_kv(s + 2)
            a(f"s_waitcnt lgkmcnt({8 if s == 0 else 4})")
        else:
            a(f"s_waitcnt lgkmcnt({4 * (15 - s)})")
        stamp(a, f"p{s}")
        if s == 0: dstep_issue(49, 8192)
        if s == 1: dstep_issue(49, 0)
        if s == 3: dstep_issue(49, 4096)
        b = WF3[s % 3]
        adds = []
        for u in range(2):
            x = XR + 4 * (16 * u + s)
            mf16(a, ACC + 4 * u, b, x, None if s == 0 else ACC + 4 * u)
            for q in adds[4*u:4*u+2]: a(q)
            mf16(a, ACC + 8 + 4 * u, x, b + 4, None if s == 0 else ACC + 8 + 4 * u)
            for q in adds[4*u+2:4*u+4]: a(q)
        if s == 0:
            l = a.newlabel("Lrs")
            a("s_cmp_lt_u32 s32, 6")
            a(f"s_cbranch_scc1 {l}")
            a("v_lshlrev_b32 v18, 2, v0")
            a(f"v_add_u32 v18, {REC - 1536}, v18")
            for w in range(8): a(f"ds_read_b32 v{208+w}, v18 offset:{320*w}")
            a("s_waitcnt lgkmcnt(0)")
            for w in range(1, 8): a(f"v_add_f32 v208, v208, v{208+w}")
            a(f"v_cmp_gt_u32 vcc, {384+80}, v0")
            a("s_nop 0")
            a("s_and_saveexec_b64 s[20:21], vcc")
            a("ds_write_b32 v18, v208")
            a("s_mov_b64 exec, -1")
            a.label(l)
        if s == P1FLIP: a("s_setprio 0")
        if s in DR:
            a(f"s_waitcnt vmcnt({ {4: 9, 5: 8, 6: 4, 7: 0}[DR[s]] })")
            rd_x2(DR[s], 254, 4096 * (DR[s] % 3))
        if s == 8:
            chk_ne(a, [22])
            a("s_cbranch_scc1 main_stok")
            poll_loop(a, lambda: a("buffer_load_dwordx4 v[20:23], v24, s[16:19], s63 offen sc1"),
                      lambda: chk_ne(a, [22]), "Lst")
            a.label("main_stok")
            a("s_lshl_b32 s21, s32, 8")
            a(f"s_add_u32 s21, s21, {STT}")
            a("v_lshrrev_b32 v18, 1, v24")
            a("v_add_u32 v18, s21, v18")
            a("ds_write_b64 v18, v[20:21]")
            a("v_lshl_add_u32 v18, v8, 3, s21")
            a("v_lshl_add_u32 v19, v7, 5, s21")
            for u in range(2):
                a(f"ds_read_b64 v[{204+2*u}:{205+2*u}], v18 offset:{128*u}")
                a(f"ds_read_b128 v[{160+8*u}:{163+8*u}], v19 offset:{128*u}")
                a(f"ds_read_b128 v[{164+8*u}:{167+8*u}], v19 offset:{128*u+16}")
        if s == 13:
            a("s_lshl_b32 s34, s31, 3")
            a("s_add_u32 s34, s34, s32")
            a("s_lshl_b32 s22, s30, 17")
            a(f"s_add_u32 s35, s22, {WS_KV}")
            a("s_lshl_b32 s23, s34, 11")
            a("s_add_u32 s22, s35, s23")
            a("v_and_b32 v18, 1, v7")
            a("v_lshlrev_b32 v18, 9, v18")
            a("v_lshrrev_b32 v19, 1, v7")
            a("v_lshl_add_u32 v18, v19, 8, v18")
            a("v_lshl_add_u32 v18, v8, 4, v18")
            a("s_lshl_b32 s23, s32, 11")
            a("v_add_u32 v19, s23, v9")
            a("v_add_u32 v20, s23, v18")
    stamp(a, "pass1")
    def rd_q(s):
        trr(a, 236 + 4 * (s & 3), 12, 13, REG[0] + 1024 * s)
    rd_q(0); rd_q(1)
    a("s_barrier")
    rec_rd(0)
    a("s_waitcnt lgkmcnt(0)")
    for u in range(2):
        for r in range(4):
            k = ACC + 4 * u + r
            a(f"v_fma_f32 v{k}, -v{204+2*u}, v{220+r}, v{k}")
            a(f"v_mul_f32 v{k}, v{k}, v{205+2*u}")
        a(f"v_cvt_pk_bf16_f32 v{228+2*u}, v{ACC+4*u}, v{ACC+4*u+1}")
        a(f"v_cvt_pk_bf16_f32 v{229+2*u}, v{ACC+4*u+2}, v{ACC+4*u+3}")
    for u in range(2):
        for r in range(4):
            v = ACC + 8 + 4 * u + r
            a(f"v_fma_f32 v{v}, -v{160+8*u+2*r}, v224, v{v}")
            a(f"v_fma_f32 v{v}, v{v}, v{161+8*u+2*r}, v225")
        if u == 0:
            a("v_permlane16_swap_b32 v228, v230")
            a("v_permlane16_swap_b32 v229, v231")
            a("buffer_store_dwordx4 v[228:231], v9, s[16:19], s22 offen sc1")
        a(f"v_cvt_pk_bf16_f32 v{232+2*u}, v{ACC+8+4*u}, v{ACC+8+4*u+1}")
        a(f"v_cvt_pk_bf16_f32 v{233+2*u}, v{ACC+8+4*u+2}, v{ACC+8+4*u+3}")
    a("ds_write_b128 v19, v[228:231]")
    a("s_nop 0")
    a("v_permlane16_swap_b32 v232, v234")
    a("v_permlane16_swap_b32 v233, v235")
    a("buffer_store_dwordx4 v[232:235], v18, s[16:19], s22 offen offset:1024 sc1")
    a("ds_write_b128 v20, v[232:235] offset:1024")
    l = a.newlabel("Lrz")
    a("s_sub_u32 s20, s32, 1")
    a("s_cmp_gt_u32 s20, 1")
    a(f"s_cbranch_scc1 {l}")
    for i in range(4): a(f"v_mov_b32 v{216+i}, -1")
    a("s_lshl_b32 s22, s2, 10")
    a(f"s_add_u32 s22, s22, {WS_CAND}")
    a("s_lshl_b32 s23, s2, 6")
    a(f"s_add_u32 s23, s23, {WS_ACT}")
    a("s_cmp_eq_u32 s32, 1")
    a("s_cselect_b32 s22, s22, s23")
    a("s_cselect_b32 s20, -1, 15")
    a("s_cselect_b32 s21, -1, 0")
    a("s_mov_b64 exec, s[20:21]")
    a("buffer_store_dwordx4 v[216:219], v9, s[16:19], s22 offen sc1")
    a("s_mov_b64 exec, -1")
    a.label(l)
    stamp(a, "kvpub")
    rd_q(2)
    side = []
    sd = side.append
    sd("v_and_b32 v25, 31, v2"); sd("v_cmp_eq_u32 vcc, 16, v25"); sd("v_mov_b32 v25, 0x3f803f80")
    sd("s_lshl_b32 s36, s32, 12"); sd(f"s_add_u32 s36, s36, {STG}")
    sd("v_cndmask_b32 v25, 0, v25, vcc")
    sd("v_mov_b32 v110, v5"); sd("v_mov_b32 v111, v4"); sd("v_mov_b32 v10, v29"); sd("v_mov_b32 v11, v28")
    sd("v_mov_b32 v3, v9")
    sd("v_lshrrev_b32 v4, 5, v2"); sd("v_lshlrev_b32 v4, 8, v4"); sd("v_lshl_add_u32 v4, v8, 4, v4"); sd("v_add_u32 v4, 1024, v4")
    sd("s_mov_b32 s38, 0x0000ffff"); sd("s_mov_b32 s39, 0x0000ffff"); sd("s_mov_b32 s37, 0")
    for i in range(12): sd(f"v_mov_b32 v{V[0]+4+i}, v25")
    sd(f"v_mov_b32 v{IDX}, 0xdddddddd")
    sd(f"s_mov_b32 s24, {f32(QSCALE)}")
    for r in range(4): sd(f"v_mul_f32 v{208+r}, s24, v{208+r}")
    for u in range(2): sd(f"v_mul_f32 v{205+2*u}, s24, v{205+2*u}")
    per = (len(side) + 7) // 8
    for s in range(16):
        if s < 13:
            rd_q(s + 3)
            a("s_waitcnt lgkmcnt(6)")
        else:
            a(f"s_waitcnt lgkmcnt({2 * (15 - s)})")
        stamp(a, f"q{s}")
        extra = []
        if 4 <= s < 12: extra += side[per*(s-4):per*(s-3)]
        if s >= 12: extra += [f"v_mov_b32 v{O+4*(s-12)+i}, 0" for i in range(4)]
        h = (len(extra) + 1) // 2
        for u in range(2):
            mf16(a, QA + 4 * u, 236 + 4 * (s & 3), XR + 4 * (16 * u + s), None if s == 0 else QA + 4 * u)
            for q in (extra[:h] if u == 0 else extra[h:]): a(q)
        if s == F1STEP:
            a("s_lshl_b32 s20, s31, 7")
            a("s_add_u32 s20, s20, s40")
            a("v_mov_b32 v6, 0")
            a("v_mov_b32 v7, s48")
            a("s_waitcnt vmcnt(0)")
            a("s_mov_b64 exec, 1")
            a("buffer_store_dword v7, v6, s[16:19], s20 offen sc1")
            a("s_mov_b64 exec, -1")
            stamp(a, "f1")
    for i in range(4): a(f"v_mov_b32 v{V[0]+i}, v25")
    for u in range(2):
        for r in range(4):
            q = QA + 4 * u + r
            a(f"v_fma_f32 v{q}, -v{204+2*u}, v{212+r}, v{q}")
            a(f"v_fma_f32 v{q}, v{q}, v{205+2*u}, v{208+r}")
        a(f"v_cvt_pk_bf16_f32 v{Q+2*u}, v{QA+4*u}, v{QA+4*u+1}")
        a(f"v_cvt_pk_bf16_f32 v{Q+1+2*u}, v{QA+4*u+2}, v{QA+4*u+3}")
    a("s_nop 1")
    a(f"v_permlane16_swap_b32 v{Q}, v{Q+2}")
    a(f"v_permlane16_swap_b32 v{Q+1}, v{Q+3}")
    a("s_barrier")
    stamp(a, "att0")
    a(f"ds_read_b128 v[{K[0]}:{K[0]+3}], v3")
    a(f"ds_read_b128 v[{K[1]}:{K[1]+3}], v3 offset:2048")
    a("s_and_b32 s28, s32, 3")
    a("s_lshl_b32 s20, s30, 13")
    a("s_lshl_b32 s21, s28, 11")
    a("s_add_u32 s40, s20, s21")
    a(f"s_add_u32 s40, s40, {WS_F1}")
    a("v_lshlrev_b32 v12, 7, v8")
    if not KVP: a("buffer_load_dword v13, v12, s[16:19], s40 offen" + PF)
    a("s_lshl_b32 s28, s28, 12")
    a(f"s_lshl_b32 s20, {((1 << NOLD) - 1) << 1}, s31")
    a("s_lshr_b32 s21, s20, 8")
    a("s_or_b32 s20, s20, s21")
    a("s_and_b32 s20, s20, 0xff")
    a("s_lshl_b32 s21, 1, s31")
    a("s_or_b32 s21, s21, s20")
    a("s_xor_b32 s20, s20, 0xff")
    a(f"s_add_u32 s22, s28, {16384 * NOLD}")
    a("s_cmp_gt_u32 s32, 3")
    a("s_cselect_b32 s43, s21, s20")
    a("s_cselect_b32 s61, s22, s28")
    a("s_waitcnt lgkmcnt(1)")
    s0 = S[0]
    a(f"v_mfma_f32_32x32x16_bf16 v[{s0}:{s0+15}], v[{K[0]}:{K[0]+3}], v[{Q}:{Q+3}], 0")
    a("s_nop 11")
    a(f"v_max3_f32 v6, v{s0}, v{s0+1}, v{s0+2}")
    for i in range(3, 15, 2):
        a(f"v_max3_f32 v6, v6, v{s0+i}, v{s0+i+1}")
    a(f"v_max_f32 v6, v6, v{s0+15}")
    def setmax():
        a("v_mov_b32 v7, v6")
        a("s_nop 1")
        a("v_permlane32_swap_b32 v7, v6")
        a("s_nop 1")
        a("v_max_f32 v6, v6, v7")
        for i in range(16):
            a(f"v_sub_f32 v{C+i}, 0, v6")
    setmax()
    a("s_mov_b64 exec, s[38:39]")
    a(f"ds_read_b128 v[{V[0]}:{V[0]+3}], v4")
    a(f"ds_read_b128 v[{V[0]+4}:{V[0]+7}], v4 offset:512")
    a("s_mov_b64 exec, -1")
    a(f"v_mfma_f32_32x32x16_bf16 v[{s0}:{s0+15}], v[{K[0]}:{K[0]+3}], v[{Q}:{Q+3}], v[{C}:{C+15}]")
    for i in range(8):
        a(f"v_mov_b32 v{S[1]+8+i}, 0")
    a("s_nop 3")

    hooks = {}
    import os
    NOH = os.environ.get("NOHOOK", "")
    def hook(t, fn, kind=""):
        if kind and kind in NOH: return
        hooks.setdefault(t, []).append(fn)
    def old_only(fn):
        def f():
            l = a.newlabel("Lold")
            a("s_cmp_gt_u32 s32, 3")
            a(f"s_cbranch_scc1 {l}")
            fn()
            a.label(l)
        return f
    def late_only(fn):
        def f():
            l = a.newlabel("Llate")
            a("s_cmp_lt_u32 s2, 128")
            a(f"s_cbranch_scc1 {l}")
            fn()
            a.label(l)
        return f
    def kv_phase(need, cap, name, first=False):
        def f():
            top = a.newlabel("Lkv"); pick = a.newlabel("Lkp"); more = a.newlabel("Lkm"); done = a.newlabel("Lkd")
            a(f"s_mov_b32 s60, {SPIN}")
            if not first: a(f"s_branch {pick}")
            a.label(top)
            a("s_waitcnt vmcnt(0)")
            a("v_cmp_eq_u32 vcc, s48, v13")
            a("s_lshr_b32 s21, vcc_lo, 8")
            a("s_and_b32 s29, vcc_lo, s21")
            a("s_and_b32 s29, s29, 0xff")
            a.label(pick)
            a(f"s_cmp_ge_u32 s61, {16384 * cap}")
            a(f"s_cbranch_scc1 {done}")
            a("s_andn2_b32 s20, s29, s43")
            a(f"s_cbranch_scc0 {more}")
            a("s_ff1_i32_b32 s21, s20")
            a("s_bitset1_b32 s43, s21")
            a("s_add_u32 s61, s61, 16384")
            a("s_mov_b32 m0, s61")
            a("s_lshl_b32 s21, s21, 14")
            a("s_add_u32 s21, s21, s28")
            a("s_add_u32 s21, s21, s35")
            for n in range(4):
                a(f"buffer_load_dwordx4 v9, s[16:19], s21 offen offset:{1024*n} sc1 lds")
            a(f"s_branch {pick}")
            a.label(more)
            a(f"s_cmp_ge_u32 s61, {16384 * need}")
            a(f"s_cbranch_scc1 {done}")
            a("buffer_load_dword v13, v12, s[16:19], s40 offen" + PF)
            a("s_sub_u32 s60, s60, 1")
            a("s_cmp_lg_u32 s60, 0")
            a(f"s_cbranch_scc1 {top}")
            a.label(done)
            stamp(a, name)
        return f
    def h_bar(n, name):
        def f():
            a(f"s_waitcnt vmcnt({n})")
            a("s_barrier")
            stamp(a, name)
        return f
    if KVP: hook(KVP, lambda: a("buffer_load_dword v13, v12, s[16:19], s40 offen" + PF))
    hook(2 + KVP, old_only(kv_phase(OK1, NOLD, "kvok", first=True)))
    hook(5, old_only(kv_phase(NOLD, NOLD, "kv2")))
    def young_only(fn):
        def f():
            l = a.newlabel("Lyg")
            a("s_cmp_lt_u32 s32, 4")
            a(f"s_cbranch_scc1 {l}")
            fn()
            a.label(l)
        return f
    hook(YK, young_only(kv_phase(0, 7, "ky", first=True)))
    BT = 8 if B8 else 6
    hook(BT, young_only(kv_phase(7, 7, "kv7")))
    hook(BT, h_bar(0, "bar6"))
    def le_a():
        a("s_waitcnt vmcnt(0)")
        a(f"v_lshlrev_b32 v{WO+1}, 16, v{WO}")
        a(f"v_and_b32 v{WO}, 0xffff0000, v{WO}")
        silu(a, WO + 1, 5); silu(a, WO, 5)
        for n in range(4): trr(a, WO + 20 + 4 * n, 14, 15, 1024 * n)
        a(f"v_cvt_pk_bf16_f32 v{WO}, v{WO+1}, v{WO}")
        a("v_lshl_add_u32 v5, v2, 2, s36")
        a(f"ds_write_b32 v5, v{WO}")
        a("v_and_b32 v5, 48, v2")
        a("v_add_u32 v5, s36, v5")
        for n in range(4): a(f"ds_read_b128 v[{WO+4+4*n}:{WO+7+4*n}], v5 offset:{64*n}")
    def le_b():
        for n in range(4): mf16(a, WO, WO + 4 + 4 * n, WO + 20 + 4 * n, None if n == 0 else WO)
    def le_c():
        a("s_lshr_b32 s21, s2, 6")
        a("s_lshl_b32 s21, s21, 14")
        a("s_lshl_b32 s22, s62, 8")
        a("s_add_u32 s21, s21, s22")
        a("s_lshl_b32 s22, s20, 7")
        a("s_add_u32 s21, s21, s22")
        a(f"s_add_u32 s21, s21, {WS_MPL}")
        a("v_lshlrev_b32 v5, 3, v2")
        a(f"v_mov_b32 v{WO+1}, s48")
        a("s_mov_b64 exec, 0xffff")
        a(f"buffer_store_dwordx2 v[{WO}:{WO+1}], v5, s[16:19], s21 offen sc1")
        a("s_mov_b64 exec, -1")
    hook(9, lambda: w12(le_issue))
    hook(14, lambda: w12(le_a)); hook(15, lambda: w12(le_b)); hook(16, lambda: w12(le_c))
    def h_prio():
        l = a.newlabel("Lpr")
        a("s_cmp_lt_u32 s32, 4")
        a(f"s_cbranch_scc1 {l}")
        a("s_setprio 1")
        a.label(l)
    hook(BT, h_prio)
    hook(FLIP, lambda: a("s_setprio 0"))
    def h_wo(r):
        def f():
            if r == 0: srd(a, 12, 10, 512 * 1024)
            a("s_mov_b32 m0, s36")
            for n in range(4):
                a(f"s_mov_b32 s20, {32768*(4*r+n) - 1024*n}")
                a(f"buffer_load_dwordx4 v1, s[12:15], s20 offen offset:{1024*n} lds")
        return f
    def h_misc():
        a(f"global_load_dwordx4 v[{XT}:{XT+3}], v111, s[6:7]")
        a("s_lshl_b32 s21, s42, 8")
        a("v_lshl_add_u32 v5, v8, 4, s21")
        a("global_load_dwordx4 v[248:251], v5, s[52:53]")
        a("global_load_dwordx4 v[252:255], v9, s[52:53]")
    def h_moe_setup():
        l = a.newlabel("Lms"); l2 = a.newlabel("Lms")
        a("s_cmp_ge_u32 s2, 112")
        a(f"s_cbranch_scc1 {l}")
        a("v_mul_u32_u24 v109, 3584, v11")
        a("v_add_u32 v109, v109, v10")
        a("s_and_b32 s20, s32, 1")
        a("s_cmp_eq_u32 s20, 0")
        a("s_cselect_b32 s24, s54, s56")
        a("s_cselect_b32 s25, s55, s57")
        a(f"s_mov_b32 s26, {512*3584}")
        a("s_lshr_b32 s20, s32, 1")
        a(f"s_mul_i32 s43, s20, {128*3584}")
        a("s_and_b32 s33, s2, 7")
        a("s_mul_i32 s33, s33, 14")
        a("s_lshr_b32 s20, s2, 3")
        a("s_add_u32 s33, s33, s20")
        a("s_lshl_b32 s20, s33, 5")
        a("s_add_u32 s43, s43, s20")
        a(f"s_mov_b32 s61, {32*3584}")
        a(f"s_branch {l2}")
        a.label(l)
        a("v_lshl_add_u32 v109, v11, 10, v10")
        a("s_mov_b32 s24, s58")
        a("s_mov_b32 s25, s59")
        a(f"s_mov_b32 s26, {1792*1024}")
        a(f"s_mul_i32 s43, s32, {224*1024}")
        a("s_and_b32 s33, s2, 7")
        a("s_lshl_b32 s33, s33, 2")
        a("s_sub_u32 s20, s2, 112")
        a("s_bfe_u32 s20, s20, 0x20003")
        a("s_add_u32 s33, s33, s20")
        a("s_lshl_b32 s20, s33, 5")
        a("s_add_u32 s43, s43, s20")
        a(f"s_mov_b32 s61, {32*1024}")
        a.label(l2)
    def h_moe(n):
        def f():
            l = a.newlabel("Lmd")
            a("s_cmp_ge_u32 s2, 144")
            a(f"s_cbranch_scc1 {l}")
            if n >= 4:
                a("s_cmp_lt_u32 s2, 112")
                a(f"s_cbranch_scc1 {l}")
            a(f"buffer_load_dwordx4 v[{MW+4*n}:{MW+4*n+3}], v109, s[24:27], s43 offen")
            a("s_add_u32 s43, s43, s61")
            a.label(l)
        return f
    def cv_write(base, n):
        def f():
            for i in range(n): a(f"ds_write_b128 v1, v[{base+4*i}:{base+4*i+3}] offset:{1024*i}")
        return f
    def cv_wo(r):
        def f():
            for n in range(4):
                b = WO + 16 * r + 4 * n
                a(f"ds_read_b64_tr_b16 v[{b}:{b+1}], v110 offset:{1024*n}")
                a(f"ds_read_b64_tr_b16 v[{b+2}:{b+3}], v110 offset:{1024*n+256}")
        return f
    def cv_moe(base, n):
        def f():
            for i in range(n): trr(a, MW + base + 4 * i, 14, 15, 1024 * i)
        return f
    def lg_issue(lo=0, hi=4):
        a("v_lshlrev_b32 v5, 5, v0")
        for rg in range(lo, hi):
            a(f"s_mov_b32 s22, {WS_MPL + 16384*rg}")
            a(f"buffer_load_dwordx4 v[{GA+8*rg}:{GA+8*rg+3}], v5, s[16:19], s22 offen sc1")
            a(f"buffer_load_dwordx4 v[{GA+8*rg+4}:{GA+8*rg+7}], v5, s[16:19], s22 offen offset:16 sc1")
    WT = [15, 25, 35, 45]
    MT = [int(x) for x in os.environ.get('MT', '27,30,37,40,47,49,51').split(',')]
    def h_touch():
        l = a.newlabel("Ltc")
        a("s_cmp_lt_u32 s2, 144")
        a(f"s_cbranch_scc1 {l}")
        a("s_cmp_gt_u32 s32, 1")
        a(f"s_cbranch_scc1 {l}")
        a("s_sub_u32 s20, s2, 144")
        a("s_lshr_b32 s20, s20, 3")
        a("s_lshl_b32 s20, s20, 1")
        a("s_add_u32 s20, s20, s32")
        a("s_lshl_b32 s20, s20, 16")
        a("s_and_b32 s21, s2, 7")
        a("s_lshl_b32 s21, s21, 7")
        a("s_add_u32 s20, s20, s21")
        a("v_lshl_add_u32 v5, v2, 10, s20")
        a(f"global_load_dword v{XT}, v5, s[58:59]")
        a.label(l)
    if TOUCHD: hook(TOUCHD, h_touch)
    def h_touch_gu():
        l = a.newlabel("Ltg")
        a("s_cmp_lt_u32 s2, 144")
        a(f"s_cbranch_scc1 {l}")
        a("s_cmp_lt_u32 s32, 2")
        a(f"s_cbranch_scc1 {l}")
        a("s_and_b32 s20, s32, 1")
        a("s_cmp_eq_u32 s20, 0")
        a("s_cselect_b32 s24, s54, s56")
        a("s_cselect_b32 s25, s55, s57")
        a(f"s_mov_b32 s26, {512*3584}")
        a("s_sub_u32 s20, s2, 144")
        a("s_lshr_b32 s20, s20, 3")
        a("s_mul_i32 s20, s20, 3")
        a("s_lshr_b32 s21, s32, 1")
        a("s_add_u32 s20, s20, s21")
        a("s_lshl_b32 s20, s20, 6")
        a("s_sub_u32 s20, s20, 64")
        a("v_add_u32 v5, s20, v2")
        a("v_mul_u32_u24 v6, 13108, v5")
        a("v_lshrrev_b32 v6, 16, v6")
        a("v_mul_u32_u24 v7, 5, v6")
        a("v_sub_u32 v5, v5, v7")
        a("v_mul_u32_u24 v6, 3584, v6")
        a("v_lshl_add_u32 v5, v5, 7, v6")
        a("s_and_b32 s21, s2, 7")
        a("s_mul_i32 s21, s21, 448")
        a("s_and_b32 s21, s21, 0xff80")
        a(f"buffer_load_dword v{XT}, v5, s[24:27], s21 offen")
        a.label(l)
    if TOUCHG: hook(TOUCHG, h_touch_gu)
    def h_touch_wo():
        l = a.newlabel("Ltw")
        a("s_sub_u32 s20, s32, 2")
        a("s_cmp_gt_u32 s20, 1")
        a(f"s_cbranch_scc1 {l}")
        a("s_lshr_b32 s21, s2, 3")
        a("s_lshl_b32 s21, s21, 1")
        a("s_add_u32 s20, s20, s21")
        a("s_lshl_b32 s20, s20, 13")
        a("v_lshl_add_u32 v5, v2, 7, s20")
        a(f"global_load_dword v{XT}, v5, s[10:11]")
        a.label(l)
    if TOUCHW: hook(TOUCHW, h_touch_wo)
    hook(15, h_moe_setup)
    for r in range(4):
        if r: hook(WT[r], h_wo(r), 'w')
        else:
            def not12():
                l = a.newlabel("Ln12")
                a("s_sub_u32 s20, s32, 1")
                a("s_cmp_lt_u32 s20, 2")
                a(f"s_cbranch_scc1 {l}")
                h_wo(0)()
                a.label(l)
            hook(WT[0], not12)
            hook(WT[0] + 2, lambda: w12(h_wo(0)))
        hook(WT[r] + 9, lambda: a("s_waitcnt vmcnt(0)") if False else None)
    for n in range(7): hook(MT[n], h_moe(n), 'm')
    hook(43, h_misc)
    def h_prew():
        a("s_xor_b32 s20, s48, 0x80000000")
        a("v_mov_b32 v5, s20")
        a("v_lshlrev_b32 v6, 2, v2")
        a("s_lshl_b32 s21, s41, 12")
        a("s_lshl_b32 s22, s42, 10")
        a("s_add_u32 s21, s21, s22")
        a("s_lshl_b32 s22, s32, 7")
        a("s_add_u32 s21, s21, s22")
        a(f"s_add_u32 s21, s21, {WS_ST2}")
        a("s_mov_b32 exec_hi, 0")
        a("buffer_store_dword v5, v6, s[16:19], s21 offen sc1")
        a("s_lshl_b32 s21, s34, 12")
        a("s_lshl_b32 s22, s30, 7")
        a("s_add_u32 s21, s21, s22")
        a(f"s_add_u32 s21, s21, {WS_F2}")
        a("buffer_store_dword v5, v6, s[16:19], s21 offen sc1")
        l = a.newlabel("Lpw")
        a("s_or_b32 s20, s42, s32")
        a(f"s_cbranch_scc1 {l}")
        a(f"s_lshl_b32 s21, s41, {TOPSH}")
        a(f"s_add_u32 s21, s21, {WS_TOP}")
        a("buffer_store_dword v5, v6, s[16:19], s21 offen sc1")
        a.label(l)
        a("s_mov_b64 exec, -1")
    if PREW: hook(PREW, h_prew)
    def h_preo():
        a("s_lshl_b32 s21, s34, 15")
        a("s_lshl_b32 s22, s30, 10")
        a("s_add_u32 s21, s21, s22")
        a(f"s_add_u32 s21, s21, {WS_OF}")
        a(f"buffer_store_dwordx4 v[{Q}:{Q+3}], v9, s[16:19], s21 offen sc1")
    if PREO: hook(PREO, h_preo)
    for rg in range(4): hook(50 + rg, lambda rg=rg: lg_issue(rg, rg + 1), 'l')
    def wo_wait(r):
        def f():
            fixed = {0: 0, 1: 0, 2: 3, 3: 8}[r]
            inr = [n for n in range(7) if WT[r] < MT[n] < WT[r] + 9]
            ngu = len([n for n in inr if n < 4]); ndn = len(inr)
            l1 = a.newlabel("Lww"); l2 = a.newlabel("Lww")
            a(f"s_waitcnt vmcnt({fixed + ndn})")
            if ndn:
                a("s_sub_u32 s20, s2, 112")
                a("s_cmp_lt_u32 s20, 32")
                a(f"s_cbranch_scc1 {l2}")
                if ngu:
                    a(f"s_waitcnt vmcnt({fixed + ngu})")
                    a("s_cmp_lt_u32 s2, 112")
                    a(f"s_cbranch_scc1 {l2}")
                a(f"s_waitcnt vmcnt({fixed})")
                a.label(l2)
        return f
    for r in range(4):
        hook(WT[r] + 9, wo_wait(r), 'w')
        hook(WT[r] + 9, cv_wo(r), 'c')
    hook(56, lambda: a("v_add_u32 v1, s36, v9"))
    for t, nm in [(23, "t23"), (42, "t42")] + [(t, f"a{t}") for t in range(0, 64, 4)]:
        hook(t, lambda nm=nm: stamp(a, nm))

    def tile(t, off, hooks):
        cur = S[t & 1]; nxt = S[(t + 1) & 1]
        e = lambda i: a(f"v_exp_f32 v{cur+i}, v{cur+i}")
        vp = V[(t + 1) & 1]; kn = K[(t + 1) & 1]; kc = K[t & 1]; vc = V[t & 1]
        if TILEV:
            a("s_waitcnt lgkmcnt(0)")
            for fn in hooks.get(t, []): fn()
            a.raw(f".p2align {TILEV}")
            a(f"v_exp_f32_e64 v{cur}, v{cur}")
            e(1); e(2)
            a(f"v_smfmac_f32_32x32x32_bf16 v[{O}:{O+15}], v[{vp+4}:{vp+7}], v[{nxt+8}:{nxt+15}], v{IDX}")
            e(3); e(4); e(5); e(6)
            a(f"v_mfma_f32_32x32x16_bf16 v[{nxt}:{nxt+15}], v[{kn}:{kn+3}], v[{Q}:{Q+3}], v[{C}:{C+15}]")
            e(7)
            a("s_mov_b64 exec, s[38:39]")
            a(f"ds_read_b128 v[{vp}:{vp+3}], v4 offset:{2048*(off+1)}")
            a(f"ds_read_b128 v[{vp+4}:{vp+7}], v4 offset:{2048*(off+1)+512}")
            a("s_mov_b64 exec, -1")
            e(8)
            a(f"ds_read_b128 v[{kc}:{kc+3}], v3 offset:{2048*(off+2)}")
            e(9); e(10)
            a(f"v_smfmac_f32_32x32x32_bf16 v[{O}:{O+15}], v[{vc}:{vc+3}], v[{cur}:{cur+7}], v{IDX}")
            for i in range(11, 16): e(i)
            return
        a("s_waitcnt lgkmcnt(0)")
        for fn in hooks.get(t, []): fn()
        if B8 and hooks and t == 8:
            a(f"ds_read_b128 v[{kc}:{kc+3}], v3 offset:{2048*8}")
            a(f"ds_read_b128 v[{kn}:{kn+3}], v3 offset:{2048*9}")
            a("s_mov_b64 exec, s[38:39]")
            a(f"ds_read_b128 v[{vc}:{vc+3}], v4 offset:{2048*8}")
            a(f"ds_read_b128 v[{vc+4}:{vc+7}], v4 offset:{2048*8+512}")
            a("s_mov_b64 exec, -1")
            a("s_waitcnt lgkmcnt(3)")
            a(f"v_mfma_f32_32x32x16_bf16 v[{cur}:{cur+15}], v[{kc}:{kc+3}], v[{Q}:{Q+3}], v[{C}:{C+15}]")
            a("s_waitcnt lgkmcnt(0)")
            a("s_nop 10")
        if B8 and hooks and t in (6, 7):
            e(0); e(1); e(2)
            a(f"v_smfmac_f32_32x32x32_bf16 v[{O}:{O+15}], v[{vp+4}:{vp+7}], v[{nxt+8}:{nxt+15}], v{IDX}")
            e(3); e(4); e(5); e(6)
            if t == 6:
                a(f"v_mfma_f32_32x32x16_bf16 v[{nxt}:{nxt+15}], v[{kn}:{kn+3}], v[{Q}:{Q+3}], v[{C}:{C+15}]")
                a("s_mov_b64 exec, s[38:39]")
                a(f"ds_read_b128 v[{vp}:{vp+3}], v4 offset:{2048*(off+1)}")
                a(f"ds_read_b128 v[{vp+4}:{vp+7}], v4 offset:{2048*(off+1)+512}")
                a("s_mov_b64 exec, -1")
            for i in range(7, 12): e(i)
            a(f"v_smfmac_f32_32x32x32_bf16 v[{O}:{O+15}], v[{vc}:{vc+3}], v[{cur}:{cur+7}], v{IDX}")
            for i in range(12, 16): e(i)
            return
        e(0); e(1); e(2)
        a(f"v_smfmac_f32_32x32x32_bf16 v[{O}:{O+15}], v[{vp+4}:{vp+7}], v[{nxt+8}:{nxt+15}], v{IDX}")
        e(3); e(4); e(5); e(6)
        a(f"v_mfma_f32_32x32x16_bf16 v[{nxt}:{nxt+15}], v[{kn}:{kn+3}], v[{Q}:{Q+3}], v[{C}:{C+15}]")
        a(f"ds_read_b128 v[{kc}:{kc+3}], v3 offset:{2048*(off+2)}")
        a("s_mov_b64 exec, s[38:39]")
        a(f"ds_read_b128 v[{vp}:{vp+3}], v4 offset:{2048*(off+1)}")
        a(f"ds_read_b128 v[{vp+4}:{vp+7}], v4 offset:{2048*(off+1)+512}")
        a("s_mov_b64 exec, -1")
        for i in range(7, 12): e(i)
        a(f"v_smfmac_f32_32x32x32_bf16 v[{O}:{O+15}], v[{vc}:{vc+3}], v[{cur}:{cur+7}], v{IDX}")
        for i in range(12, 16): e(i)
    for t in range(64):
        if t and t % 16 == 0:
            a("v_add_u32 v3, 0x8000, v3")
            a("v_add_u32 v4, 0x8000, v4")
        tile(t, t % 16, hooks)
    a("v_subrev_u32 v3, 0x18000, v3")
    a("v_subrev_u32 v4, 0x18000, v4")
    a.label("main_attn_tail")
    a(f"v_smfmac_f32_32x32x32_bf16 v[{O}:{O+15}], v[{V[1]+4}:{V[1]+7}], v[{S[1]+8}:{S[1]+15}], v{IDX}")
    stamp(a, "att1")
    a("s_lshl_b32 s21, s34, 15")
    a("s_lshl_b32 s22, s30, 10")
    a("s_add_u32 s21, s21, s22")
    a(f"s_add_u32 s21, s21, {WS_OF}")
    a(f"v_mov_b32 v6, {f32(2.0**40)}")
    a("s_waitcnt lgkmcnt(0)")
    a("s_nop 5")
    a(f"v_mov_b32 v7, v{O+8}")
    a(f"v_add_f32 v5, abs(v{O}), abs(v{O+1})")
    a(f"v_add_f32 v5, v5, abs(v{O+2})")
    a(f"v_permlane32_swap_b32 v{O+8}, v7")
    for i in range(3, 8):
        a(f"v_add_f32 v5, v5, abs(v{O+i})")
    a(f"v_mov_b32 v7, {f32(3.0e38)}")
    a(f"v_cmp_nle_f32 vcc, v{O+8}, v6")
    a(f"v_cmp_nle_f32 s[22:23], v5, v7")
    a("s_or_b64 vcc, vcc, s[22:23]")
    a("s_cmp_lg_u32 s37, 0")
    a("s_cbranch_scc1 main_fin")
    a("s_cbranch_vccnz main_fallback")
    a.label("main_fin")
    a(f"v_rcp_f32 v6, v{O+8}")
    a("s_nop 0")
    for i in range(8):
        a(f"v_mul_f32 v{O+i}, v{O+i}, v6")
    for i in range(4):
        a(f"v_cvt_pk_bf16_f32 v{16+i}, v{O+2*i}, v{O+2*i+1}")
    a("buffer_store_dwordx4 v[16:19], v9, s[16:19], s21 offen sc1")
    a("s_lshl_b32 s21, s34, 12")
    a("s_lshl_b32 s22, s30, 7")
    a("s_add_u32 s21, s21, s22")
    a(f"s_add_u32 s21, s21, {WS_F2}")
    a("v_mov_b32 v5, 0")
    a("v_mov_b32 v6, s48")
    def f2_store():
        a("s_mov_b64 exec, 1")
        a("buffer_store_dword v6, v5, s[16:19], s21 offen sc1")
        a("s_mov_b64 exec, -1")
        stamp(a, "f2")
    if OSENT: f2_store()
    a("v_lshrrev_b32 v20, 5, v2")
    a("v_lshlrev_b32 v20, 10, v20")
    a("v_bfe_u32 v21, v2, 4, 1")
    a("v_lshl_add_u32 v20, v21, 9, v20")
    a("v_lshl_add_u32 v20, v8, 4, v20")
    a("v_mul_u32_u24 v22, 528, v8")
    a("v_lshrrev_b32 v23, 4, v2")
    a("v_lshl_add_u32 v22, v23, 4, v22")
    a("s_lshl_b32 s22, s32, 6")
    a("s_add_u32 s22, s22, 32768")
    a("v_add_u32 v22, s22, v22")
    a("v_lshrrev_b32 v24, 4, v0")
    a("v_mul_u32_u24 v23, 528, v24")
    a("v_lshl_add_u32 v23, v8, 5, v23")
    a("v_add_u32 v23, 32768, v23")
    if ST2P:
        a("v_and_b32 v12, 48, v2")
        a("s_lshl_b32 s22, s32, 7")
        a("v_add_u32 v12, s22, v12")
        a("v_and_b32 v13, 3, v0")
        a("v_lshl_add_u32 v13, v13, 10, v12")
    else:
        a("v_lshlrev_b32 v12, 4, v24")
        a("v_and_b32 v13, 3, v0")
        a("v_lshl_add_u32 v13, v13, 9, v12")
    a("v_lshrrev_b32 v109, 10, v111")
    a("v_sub_u32 v109, 2047, v109")
    a("v_lshl_or_b32 v109, v109, 1, 1")
    a("v_lshlrev_b32 v110, 2, v24")
    a("v_add_u32 v110, 65536, v110")
    a(f"s_waitcnt vmcnt({2 if OSENT else 0})")
    unpack8(a, 40, XT)
    if not OSENT: f2_store()
    cv_write(MW, 4)(); cv_moe(0, 4)(); cv_write(MW + 16, 3)(); cv_moe(16, 3)()
    lchk = lambda: chk_ne(a, [GA + 2 * i + 1 for i in range(16)])
    lchk()
    a("s_cbranch_scc1 main_lok")
    poll_loop(a, lg_issue, lchk, "Ll")
    a.label("main_lok")
    for c in range(4):
        a(f"v_add_f32 v{GA+2*c}, v{GA+2*c}, v{GA+8+2*c}")
        a(f"v_add_f32 v{GA+16+2*c}, v{GA+16+2*c}, v{GA+24+2*c}")
        a(f"v_add_f32 v{56+c}, v{GA+2*c}, v{GA+16+2*c}")
    a("s_lshr_b32 s20, s32, 1")
    a("s_cmp_eq_u32 s20, 2")
    a("s_cselect_b32 s20, 1.0, 0")
    rnd_pair(a, 56, 57, 5); rnd_pair(a, 58, 59, 5)
    for c in range(4): a(f"v_add_f32 v{56+c}, s20, v{56+c}")
    rnd_pair(a, 56, 57, 5); rnd_pair(a, 58, 59, 5)
    a("ds_write_b128 v1, v[56:59]")
    a("s_lshr_b32 s20, s42, 1")
    a("s_lshl_b32 s20, s20, 12")
    a("s_and_b32 s21, s42, 1")
    a("s_lshl_b32 s21, s21, 9")
    a("s_add_u32 s20, s20, s21")
    a(f"s_add_u32 s20, s20, {STG}")
    a("v_lshl_add_u32 v10, v8, 5, s20")
    a("v_lshrrev_b32 v11, 5, v2")
    a("v_lshlrev_b32 v11, 12, v11")
    a("v_and_b32 v5, 31, v2")
    a("v_lshl_add_u32 v11, v5, 5, v11")
    a(f"v_add_u32 v11, {STG}, v11")
    unpack8(a, 72, 252)
    for i in range(4):
        a(f"v_lshlrev_b32 v{WP+2*i}, 16, v{248+i}")
        a(f"v_and_b32 v{WP+2*i+1}, 0xffff0000, v{248+i}")
    a("s_waitcnt lgkmcnt(0)")
    a("s_cmp_lg_u32 s32, 0")
    a("s_cbranch_scc1 main_s2")
    a("v_and_b32 v5, 31, v2")
    a("v_lshlrev_b32 v5, 7, v5")
    a("s_lshl_b32 s22, s41, 12")
    a(f"s_add_u32 s22, s22, {WS_F2}")
    poll_loop(a, lambda: a("buffer_load_dword v6, v5, s[16:19], s22 offen" + PF), lambda: chk_ne(a, [6]), "Lo", sleep=F2S)
    a.label("main_s2")
    a("s_lshl_b32 s23, s32, 12")
    a("s_lshl_b32 s22, s41, 15")
    a("s_add_u32 s22, s22, s23")
    a(f"s_add_u32 s62, s22, {WS_OF}")
    a("v_add_u32 v27, s23, v9")
    a("s_mov_b32 m0, s23")
    a("s_barrier")
    stamp(a, "s2")
    for n in range(4):
        a(f"buffer_load_dwordx4 v9, s[16:19], s62 offen offset:{1024*n} sc1 lds")
    a(f"s_lshl_b32 s21, s41, {11 + ST2P}")
    a(f"s_add_u32 s21, s21, {WS_ST2}")
    a(f"s_lshl_b32 s22, s42, {9 + ST2P}")
    a("s_add_u32 s22, s22, s21")
    a("s_mov_b32 s24, 0x00010001")
    a("s_mov_b32 s25, 0x00010001")
    a("v_mov_b32 v55, s48")
    for j, reg in enumerate((GA, SB, CB, GB)):
        a(f"ds_read_b128 v[{reg}:{reg+3}], v10 offset:{8192*j}")
        a(f"ds_read_b128 v[{reg+4}:{reg+7}], v10 offset:{8192*j+16}")
    for j in range(2):
        a(f"ds_read_b128 v[{56+8*j}:{59+8*j}], v11 offset:{8192*(j+1)}")
        a(f"ds_read_b128 v[{60+8*j}:{63+8*j}], v11 offset:{8192*(j+1)+16}")
    a("s_waitcnt lgkmcnt(0)")
    for i in range(8):
        a(f"v_mul_f32 v{WP+i}, v{WP+i}, v{CB+i}")
    a("v_mul_f32 v252, v72, v64")
    a("v_mul_f32 v253, v72, v56")
    for i in range(1, 8):
        a(f"v_fmac_f32 v252, v{72+i}, v{64+i}")
        a(f"v_fmac_f32 v253, v{72+i}, v{56+i}")
    multi_allreduce(a, [252, 253], [5, 6])
    a("s_waitcnt vmcnt(0)")
    if OSENT:
        a(f"s_mov_b32 s60, {SPIN}")
        a.label("main_ov")
        for n in range(4): a(f"ds_read_b32 v{28+n}, v27 offset:{1024*n}")
        a("s_waitcnt lgkmcnt(0)")
        a("v_max3_u32 v28, v28, v29, v30")
        a("v_max_u32 v28, v28, v31")
        a("v_cmp_eq_u32 vcc, -1, v28")
        a("s_cbranch_vccz main_ok")
        for n in range(4):
            a(f"buffer_load_dwordx4 v9, s[16:19], s62 offen offset:{1024*n} sc1 lds")
        a("s_sub_u32 s60, s60, 1")
        a("s_waitcnt vmcnt(0)")
        a("s_cmp_lg_u32 s60, 0")
        a("s_cbranch_scc1 main_ov")
        a.label("main_ok")
    a("s_barrier")
    stamp(a, "olan")
    OFR = 56
    def rd(s):
        b = OFR + 8 * (s % 4)
        a(f"ds_read_b128 v[{b}:{b+3}], v20 offset:{2048*s}")
        a(f"ds_read_b128 v[{b+4}:{b+7}], v20 offset:{2048*s+256}")
    rd(0); rd(1); rd(2)
    for s in range(16):
        if s < 13:
            rd(s + 3)
            a("s_waitcnt lgkmcnt(6)")
        else:
            a(f"s_waitcnt lgkmcnt({2*(15-s)})")
        b = OFR + 8 * (s % 4)
        stamp(a, f"o{s}")
        for u in range(2):
            mf16(a, 24 + 4 * u, WO + 4 * s, b + 4 * u, None if s == 0 else 24 + 4 * u)
    stamp(a, "omf")
    a("s_nop 6")
    a("ds_write_b128 v22, v[24:27]")
    a(f"ds_write_b128 v22, v[28:31] offset:{16*528}")
    a("s_waitcnt lgkmcnt(0)")
    a("s_barrier")
    stamp(a, "tbar")
    a("ds_read_b128 v[32:35], v23")
    a("ds_read_b128 v[36:39], v23 offset:16")
    a("s_mov_b32 s23, 0xffff0000")
    def rnd4(lo):
        for i in lo: a(f"v_cvt_pk_bf16_f32 v{56+i//2}, v{32+i}, v{33+i}")
        for i in lo:
            a(f"v_lshlrev_b32 v{32+i}, 16, v{56+i//2}")
            a(f"v_and_b32 v{33+i}, s23, v{56+i//2}")
    a("s_waitcnt lgkmcnt(0)")
    E = (0, 2, 4, 6)
    rnd4(E)
    for i in E: a(f"v_pk_mul_f32 v[{32+i}:{33+i}], v[{32+i}:{33+i}], v[{GA+i}:{GA+i+1}]")
    rnd4(E)
    for i in E: a(f"v_pk_add_f32 v[{32+i}:{33+i}], v[{32+i}:{33+i}], v[{40+i}:{41+i}]")
    for i in E: a(f"v_cvt_pk_bf16_f32 v{48+i//2}, v{32+i}, v{33+i}")
    for i in E:
        a(f"v_lshlrev_b32 v{32+i}, 16, v{48+i//2}")
        a(f"v_and_b32 v{33+i}, s23, v{48+i//2}")
    a("v_pk_add_f32 v[56:57], v[32:33], v[34:35]")
    a("v_pk_mul_f32 v[58:59], v[32:33], v[32:33]")
    a(f"v_pk_mul_f32 v[60:61], v[32:33], v[{WP}:{WP+1}]")
    for i in (2, 4, 6):
        if i > 2: a(f"v_pk_add_f32 v[56:57], v[56:57], v[{32+i}:{33+i}]")
        a(f"v_pk_fma_f32 v[58:59], v[{32+i}:{33+i}], v[{32+i}:{33+i}], v[58:59]")
        a(f"v_pk_fma_f32 v[60:61], v[{32+i}:{33+i}], v[{WP+i}:{WP+i+1}], v[60:61]")
    a("v_add_f32 v52, v56, v57")
    a("v_add_f32 v53, v58, v59")
    a("v_add_f32 v54, v60, v61")
    a("s_nop 0")
    for n in (8, 4, 2, 1):
        for r in (52, 53, 54):
            a(f"v_add_f32_dpp v{r}, v{r}, v{r} row_ror:{n} row_mask:0xf bank_mask:0xf")
    a("s_mov_b64 exec, s[24:25]")
    a("buffer_store_dwordx4 v[52:55], v12, s[16:19], s22 offen sc1")
    a("s_mov_b64 exec, -1")
    stamp(a, "st2")
    poll_loop(a, lambda: (a(f"s_sleep {S3D}"), a("buffer_load_dwordx4 v[56:59], v13, s[16:19], s21 offen" + PF)), lambda: chk_ne(a, [59]), "Ls", sleep=0)
    stamp(a, "s3")
    for qp in ("[1,0,3,2]", "[2,3,0,1]"):
        for r in (56, 57, 58):
            a(f"v_add_f32_dpp v{r}, v{r}, v{r} quad_perm:{qp} row_mask:0xf bank_mask:0xf")
    a(f"v_mul_f32 v56, {f32(1/512)}, v56")
    a(f"v_mul_f32 v57, {f32(1/512)}, v57")
    a("v_fma_f32 v57, -v56, v56, v57")
    a("v_max_f32 v57, 0, v57")
    rnd_pair(a, 56, 57, 26)
    a(f"v_add_f32 v57, {f32(1e-5)}, v57")
    rnd_bf16(a, 57)
    a("v_sqrt_f32 v57, v57")
    a("v_fma_f32 v58, -v56, v252, v58")
    rnd_bf16(a, 57)
    a("v_rcp_f32 v57, v57")
    a("s_nop 0")
    a("v_fma_f32 v58, v58, v57, v253")
    a("v_cvt_pk_bf16_f32 v58, v58, v58")
    a("v_ashrrev_i32 v59, 31, v58")
    a("v_or_b32 v59, 0x80000000, v59")
    a("v_xor_b32 v58, v58, v59")
    a("v_and_b32 v58, 0xffff0000, v58")
    a("v_or_b32 v58, v58, v109")
    a("ds_write_b32 v110, v58")
    a("v_and_b32 v5, 31, v2")
    a("v_lshlrev_b32 v5, 2, v5")
    a("v_add_u32 v5, 65536, v5")
    a("s_waitcnt lgkmcnt(0)")
    a("s_barrier")
    stamp(a, "kbar")
    a("ds_read_b32 v10, v5")
    def h2_math(i):
        a(f"v_sub_f32 v{40+i}, v{32+i}, v56")
        a(f"v_sub_f32 v{41+i}, v{33+i}, v56")
        rnd_pair(a, 40 + i, 41 + i, 26)
        a(f"v_mul_f32 v{40+i}, v{40+i}, v57")
        a(f"v_mul_f32 v{41+i}, v{41+i}, v57")
        rnd_pair(a, 40 + i, 41 + i, 26)
        a(f"v_mul_f32 v{40+i}, v{40+i}, v{CB+i}")
        a(f"v_mul_f32 v{41+i}, v{41+i}, v{CB+i+1}")
        rnd_pair(a, 40 + i, 41 + i, 26)
        a(f"v_add_f32 v{40+i}, v{40+i}, v{SB+i}")
        a(f"v_add_f32 v{41+i}, v{41+i}, v{SB+i+1}")
        a(f"v_cvt_pk_bf16_f32 v{60+i//2}, v{40+i}, v{41+i}")
    h2_math(0)
    a("s_waitcnt lgkmcnt(0)")
    a("v_mov_b32 v64, v10")
    multi_allreduce(a, [64], [11], op="v_max_u32")
    a("v_cmp_eq_u32 vcc, v64, v10")
    a("s_nop 1")
    a("v_cndmask_b32 v65, v10, 0, vcc")
    multi_allreduce(a, [65], [11], op="v_max_u32")
    a("v_cmp_eq_u32 s[26:27], v64, v58")
    a("v_cmp_eq_u32 s[28:29], v65, v58")
    a("s_or_b32 s20, s42, s32")
    a("s_cmp_lg_u32 s20, 0")
    a("s_cbranch_scc1 main_notop")
    a("v_and_b32 v65, -2, v65")
    a("v_mov_b32 v66, s48")
    a("v_mov_b32 v67, s48")
    a(f"s_lshl_b32 s20, s41, {TOPSH}")
    a(f"s_add_u32 s20, s20, {WS_TOP}")
    a("v_mov_b32 v5, 0")
    a("s_mov_b64 exec, 1")
    a("buffer_store_dwordx4 v[64:67], v5, s[16:19], s20 offen sc1")
    a("s_mov_b64 exec, -1")
    a.label("main_notop")
    stamp(a, "top")
    for i in (2, 4, 6): h2_math(i)
    a("s_or_b64 s[62:63], s[26:27], s[28:29]")
    a("s_cmp_eq_u64 s[62:63], 0")
    a("s_cbranch_scc1 main_nocand")
    a("v_mov_b32 v5, 2048")
    a("v_cndmask_b32 v5, 0, v5, s[28:29]")
    a("v_lshl_add_u32 v5, v8, 4, v5")
    a("s_lshl_b32 s20, s41, 12")
    a("s_lshl_b32 s21, s42, 8")
    a("s_add_u32 s20, s20, s21")
    a(f"s_add_u32 s20, s20, {WS_CAND}")
    a("s_mov_b64 exec, s[62:63]")
    a("buffer_store_dwordx4 v[60:63], v5, s[16:19], s20 offen sc1")
    a("buffer_store_dwordx4 v[48:51], v5, s[16:19], s20 offen offset:1024 sc1")
    a("s_mov_b64 exec, -1")
    a.label("main_nocand")
    a("s_cmp_lg_u32 s32, 0")
    a("s_cbranch_scc1 main_notp")
    a(f"s_mov_b32 s22, {WS_TOP}")
    a(f"v_lshlrev_b32 v76, {TOPSH}, v2")
    a("buffer_load_dwordx4 v[68:71], v76, s[16:19], s22 offen" + PF)
    a.label("main_notp")
    for i in range(0, 8, 2):
        a(f"v_lshlrev_b32 v{40+i}, 16, v{60+i//2}")
        a(f"v_and_b32 v{41+i}, 0xffff0000, v{60+i//2}")
        a(f"v_mul_f32 v{40+i}, v{40+i}, v{GB+i}")
        a(f"v_mul_f32 v{41+i}, v{41+i}, v{GB+i+1}")
        rnd_pair(a, 40 + i, 41 + i, 26)
        a(f"v_add_f32 v{40+i}, v{40+i}, v{32+i}")
        a(f"v_add_f32 v{41+i}, v{41+i}, v{33+i}")
        a(f"v_cvt_pk_bf16_f32 v{72+i//2}, v{40+i}, v{41+i}")
    a("s_cmp_lg_u32 s32, 0")
    a("s_cbranch_scc1 main_w0e")
    def t_issue():
        if SLOWP:
            l = a.newlabel("Lsl")
            a("s_cmp_lt_u32 s2, 144")
            a(f"s_cbranch_scc1 {l}")
            a(f"s_sleep {SLOWP}")
            a.label(l)
        a("buffer_load_dwordx4 v[68:71], v76, s[16:19], s22 offen" + PF)
    poll_loop(a, t_issue, lambda: chk_ne(a, [70]), "Lt", first_issued=True, sleep=TSLEEP)
    a("v_mov_b32 v64, v68")
    multi_allreduce(a, [64], [11], op="v_max_u32")
    a("v_cmp_eq_u32 vcc, v64, v68")
    a("s_nop 1")
    a("v_cndmask_b32 v65, v68, v69, vcc")
    multi_allreduce(a, [65], [11], op="v_max_u32")
    a("v_mov_b32 v5, 65792")
    a("ds_write_b64 v5, v[64:65]")
    a("s_waitcnt lgkmcnt(0)")
    a.label("main_w0e")
    a("s_andn2_b64 exec, -1, s[62:63]")
    a("global_store_dwordx4 v111, v[72:75], s[50:51]" + OUTF)
    a("s_mov_b64 exec, -1")
    a("s_barrier")
    stamp(a, "s4")
    a("v_mov_b32 v5, 65792")
    a("ds_read_b64 v[64:65], v5")
    a("s_waitcnt lgkmcnt(0)")
    a("s_cmp_eq_u64 s[62:63], 0")
    a("s_cbranch_scc1 main_nodef")
    a("v_or_b32 v5, 1, v64")
    a("v_or_b32 v6, 1, v65")
    a("v_cmp_ne_u32 vcc, v5, v58")
    a("v_cmp_ne_u32 s[20:21], v6, v58")
    a("s_and_b64 vcc, vcc, s[20:21]")
    a("s_and_b64 exec, vcc, s[62:63]")
    a("s_cbranch_execz main_nodef")
    a("global_store_dwordx4 v111, v[72:75], s[50:51]" + OUTF)
    a.label("main_nodef")
    a("s_mov_b64 exec, -1")
    a("s_cmp_ge_u32 s2, 144")
    a("s_cbranch_scc1 main_done")
    def cand_off(key, d, t):
        a(f"v_bfe_u32 v{d}, v{key}, 6, 6")
        a(f"v_sub_u32 v{d}, 63, v{d}")
        a(f"v_lshlrev_b32 v{d}, 12, v{d}")
        a(f"v_not_b32 v{t}, v{key}")
        a(f"v_and_b32 v{t}, 1, v{t}")
        a(f"v_lshl_add_u32 v{d}, v{t}, 11, v{d}")
    a("s_cmp_ge_u32 s2, 112")
    a("s_cbranch_scc1 main_down")
    a("v_and_b32 v15, 1, v2")
    a("v_cmp_eq_u32 vcc, 0, v15")
    a("s_lshr_b32 s21, s32, 1")
    a("s_lshl_b32 s21, s21, 8")
    a("v_cndmask_b32 v16, v65, v64, vcc")
    cand_off(16, 17, 18)
    a("v_lshrrev_b32 v18, 4, v2")
    a("v_lshl_add_u32 v17, v18, 4, v17")
    a(f"s_add_u32 s22, s21, {WS_CAND}")
    def issue():
        for n in range(4):
            a(f"buffer_load_dwordx4 v[{32+4*n}:{35+4*n}], v17, s[16:19], s22 offen offset:{64*n} sc1")
    def check():
        a("v_max3_u32 v5, v32, v36, v40")
        a("v_max_u32 v5, v5, v44")
        a("v_cmp_eq_u32 vcc, -1, v5")
        a("s_cmp_eq_u64 vcc, 0")
    poll_loop(a, issue, check, "Lh", sleep=2)
    stamp(a, "moe")
    for n in range(4):
        mf16(a, 20, 32 + 4 * n, MW + 4 * n, None if n == 0 else 20)
    PB = 66560
    def partial_and_gather():
        a("s_lshl_b32 s23, s32, 7")
        a(f"s_add_u32 s23, s23, {PB}")
        a("v_lshl_add_u32 v24, v2, 2, s23")
        a("s_mov_b64 exec, 0xffff")
        a("s_nop 4")
        a("ds_write_b32 v24, v20")
        a("ds_write_b32 v24, v21 offset:64")
        a("s_mov_b64 exec, -1")
        a("s_waitcnt lgkmcnt(0)")
        a("s_barrier")
        a("s_cmp_lg_u32 s32, 0")
        a("s_cbranch_scc1 main_done")
        a("v_and_b32 v24, 31, v0")
        a("v_lshlrev_b32 v24, 2, v24")
        a(f"v_add_u32 v24, {PB}, v24")
        for w in range(8):
            a(f"ds_read_b32 v{32+w}, v24 offset:{128*w}")
    partial_and_gather()
    a("v_lshlrev_b32 v25, 1, v0")
    a("s_lshl_b32 s21, s33, 7")
    a(f"s_add_u32 s21, s21, {WS_ACT}")
    a("s_waitcnt lgkmcnt(0)")
    for w in range(2, 8):
        a(f"v_add_f32 v{32+(w&1)}, v{32+(w&1)}, v{32+w}")
    rnd_pair(a, 32, 33, 40)
    silu(a, 32, 34)
    rnd_bf16(a, 32)
    a("v_mul_f32 v32, v32, v33")
    a("s_nop 1")
    a("v_mov_b32_dpp v33, v32 quad_perm:[1,0,3,2] row_mask:0xf bank_mask:0xf")
    a("v_cvt_pk_bf16_f32 v32, v32, v33")
    a("s_mov_b64 exec, 0x55555555")
    a("buffer_store_dword v32, v25, s[16:19], s21 offen sc1")
    a("s_mov_b64 exec, -1")
    a("s_branch main_done")
    a.label("main_down")
    if STAMPS is not None and "moe" in STAMPS: Prof.n -= 1
    a("v_bfe_u32 v15, v0, 4, 1")
    a("v_cmp_eq_u32 vcc, 0, v15")
    a("s_lshl_b32 s21, s33, 5")
    a(f"s_add_u32 s22, s21, {WS_CAND}")
    a("v_cndmask_b32 v12, v65, v64, vcc")
    cand_off(12, 16, 17)
    a("v_and_b32 v17, 14, v8")
    a("v_lshl_add_u32 v16, v17, 1, v16")
    def issue():
        a("buffer_load_dword v17, v16, s[16:19], s22 offen sc1")
        a("buffer_load_dword v18, v16, s[16:19], s22 offen offset:1024 sc1")
    def check():
        a("v_max_u32 v5, v17, v18")
        a("v_cmp_eq_u32 vcc, -1, v5")
        a("s_cmp_eq_u64 vcc, 0")
    a("s_lshr_b32 s23, s33, 4")
    a("s_lshl_b32 s23, s23, 12")
    a("s_and_b32 s20, s33, 15")
    a("s_lshl_b32 s20, s20, 6")
    a("s_add_u32 s23, s23, s20")
    a(f"s_add_u32 s23, s23, {STG + 3*8192}")
    a("v_lshl_add_u32 v19, v8, 2, s23")
    a("ds_read_b32 v19, v19")
    poll_loop(a, issue, check, "Lf", sleep=2)
    a("v_bfe_u32 v15, v12, 1, 11")
    a("v_sub_u32 v15, 2047, v15")
    a("v_lshlrev_b32 v15, 10, v15")
    a("v_lshl_add_u32 v15, v8, 1, v15")
    a("v_add_u32 v15, s21, v15")
    a("v_and_b32 v16, 1, v0")
    a("v_lshlrev_b32 v16, 4, v16")
    a("v_lshrrev_b32 v17, v16, v17")
    a("v_lshrrev_b32 v18, v16, v18")
    a("v_lshlrev_b32 v17, 16, v17")
    a("v_lshlrev_b32 v18, 16, v18")
    a("v_and_b32 v12, 0xffff0000, v12")
    a("v_ashrrev_i32 v25, 31, v12")
    a("v_not_b32 v25, v25")
    a("v_or_b32 v25, 0x80000000, v25")
    a("v_xor_b32 v12, v12, v25")
    a("v_and_b32 v12, 0xffff0000, v12")
    a(f"v_mul_f32 v25, {NLOG2E:#x}, v12")
    a("v_exp_f32 v25, v25")
    a("s_nop 0")
    a("v_add_f32 v25, 1.0, v25")
    a("v_rcp_f32 v25, v25")
    a("s_nop 0")
    rnd_bf16(a, 25)
    a("v_and_b32 v13, 1, v2")
    a("v_lshlrev_b32 v13, 5, v13")
    a("v_bfe_u32 v14, v2, 4, 1")
    a("v_lshl_add_u32 v13, v14, 4, v13")
    a("v_lshrrev_b32 v14, 5, v2")
    a("v_lshl_add_u32 v13, v14, 7, v13")
    a("s_mul_i32 s22, s32, 1792")
    a(f"s_add_u32 s22, s22, {WS_ACT}")
    def issue():
        for n in range(7):
            a(f"buffer_load_dwordx4 v[{32+4*n}:{35+4*n}], v13, s[16:19], s22 offen offset:{256*n}" + PF)
    def check():
        a("v_max3_u32 v5, v32, v33, v34")
        for i in range(3, 27, 2):
            a(f"v_max3_u32 v5, v5, v{32+i}, v{33+i}")
        a("v_max_u32 v5, v5, v59")
        a("v_cmp_eq_u32 vcc, -1, v5")
        a("s_cmp_eq_u64 vcc, 0")
    if ACTD: a(f"s_sleep {ACTD}")
    poll_loop(a, issue, check, "La", sleep=ACTS)
    stamp(a, "moe")
    for n in range(7):
        mf16(a, 20, 32 + 4 * n, MW + 4 * n, None if n == 0 else 20)
    partial_and_gather()
    a("s_waitcnt lgkmcnt(0)")
    for w in range(1, 8):
        a(f"v_add_f32 v32, v32, v{32+w}")
    rnd_bf16(a, 32)
    a("v_mul_f32 v32, v32, v25")
    rnd_bf16(a, 32)
    a("v_add_f32 v32, v32, v17")
    rnd_bf16(a, 32)
    a("v_mul_f32 v32, v32, v19")
    rnd_bf16(a, 32)
    a("v_add_f32 v32, v32, v18")
    a("v_cvt_pk_bf16_f32 v32, v32, v32")
    a("s_mov_b32 exec_hi, 0")
    a("global_store_short v15, v32, s[50:51]" + OUTF)
    a("s_cmp_lg_u32 s33, 0")
    a("s_cbranch_scc1 main_done")
    a("v_mov_b32 v5, 0")
    a("v_mov_b32 v6, s48")
    a("s_mov_b64 exec, 1")
    a("global_store_dword v5, v6, s[4:5]" + OUTF)
    a.label("main_done")
    if STAMPS is not None: stamp_end(a)
    a.label("main_end")
    a("s_endpgm")
    a.label("main_fallback")
    a("s_mov_b32 s37, 1")
    a("s_mov_b32 s20, 64")
    a("v_mov_b32 v6, 0xff800000")
    a("v_mov_b32 v5, v3")
    a.label("main_fb_loop")
    a(f"ds_read_b128 v[{K[0]}:{K[0]+3}], v5")
    a("v_add_u32 v5, 0x800, v5")
    a("s_waitcnt lgkmcnt(0)")
    a(f"v_mfma_f32_32x32x16_bf16 v[{s0}:{s0+15}], v[{K[0]}:{K[0]+3}], v[{Q}:{Q+3}], 0")
    a("s_nop 11")
    for i in range(0, 16, 2):
        a(f"v_max3_f32 v6, v6, v{s0+i}, v{s0+i+1}")
    a("s_sub_u32 s20, s20, 1")
    a("s_cmp_lg_u32 s20, 0")
    a("s_cbranch_scc1 main_fb_loop")
    a(f"ds_read_b128 v[{K[0]}:{K[0]+3}], v3")
    a(f"ds_read_b128 v[{K[1]}:{K[1]+3}], v3 offset:2048")
    for i in range(16):
        a(f"v_mov_b32 v{O+i}, 0")
    setmax()
    a("s_mov_b64 exec, s[38:39]")
    a(f"ds_read_b128 v[{V[0]}:{V[0]+3}], v4")
    a(f"ds_read_b128 v[{V[0]+4}:{V[0]+7}], v4 offset:512")
    a("s_mov_b64 exec, -1")
    a("s_waitcnt lgkmcnt(0)")
    a(f"v_mfma_f32_32x32x16_bf16 v[{s0}:{s0+15}], v[{K[0]}:{K[0]+3}], v[{Q}:{Q+3}], v[{C}:{C+15}]")
    for i in range(8):
        a(f"v_mov_b32 v{S[1]+8+i}, 0")
    a("s_mov_b32 s20, 32")
    a("s_nop 3")
    a.label("main_fb2")
    tile(0, 0, {}); tile(1, 1, {})
    a("v_add_u32 v3, 0x1000, v3")
    a("v_add_u32 v4, 0x1000, v4")
    a("s_sub_u32 s20, s20, 1")
    a("s_cmp_lg_u32 s20, 0")
    a("s_cbranch_scc1 main_fb2")
    a("v_subrev_u32 v3, 0x20000, v3")
    a("v_subrev_u32 v4, 0x20000, v4")
    a("s_branch main_attn_tail")

NOTES = """;
"""
def main(out, aslist=False):
    hdr = open("adaLN_cond__mha_block__moe_arch_mod__prompt.s.ref").read().split("; Override launch")[0]
    txt = hdr
    if aslist:
        txt += f"; @launch kernel={KNAME} grid=(256,1,1) block=(512,1,1) lds=163840\n"
    else:
        txt += "; @launch grid=(256,1,1) block=(512,1,1) lds=163840\n"
    txt += NOTES
    txt += '.amdgcn_target "amdgcn-amd-amdhsa--gfx950"\n'
    a = Asm()
    k_main(a)
    txt += a.text()
    txt += kernel_desc(KNAME, 256)
    open(out, "w").write(txt)

SETS = {
    "t2": ["s2", "olan", "o0", "o4", "o8", "o12", "omf", "tbar", "st2", "s3", "kbar", "top", "s4"],
    "sc": ["wland", "barx", "sc0", "sc1", "sc2", "sc3", "sc4", "sc5", "bar1", "p2", "p4", "p8", "p12"],
    "q": ["pass1", "kvpub", "q0", "q2", "q4", "q6", "q8", "q10", "f1", "q12", "q14", "att0", "a4"],
    "at": ["att0", "a4", "a8", "a12", "a16", "a24", "a32", "a40", "a48", "a52", "a56", "a60", "att1"],
    "ld": ["karg", "mp", "iw", "i2", "l0", "l1", "l2", "gath1", "barx", "bar1", "p3", "p6", "p9"],
    "p1": ["bar1", "p0", "p1", "p2", "p3", "p4", "p5", "p6", "p7", "p8", "p10", "p12", "p14"],
    "p2": ["p8", "p9", "p10", "p11", "p12", "p13", "p14", "p15", "pass1", "kvpub", "att0", "f1", "kvok"],
    "f0": ["karg", "pk", "ack", "l0", "l2", "gath0", "gath1", "wland", "barx", "bar1", "pass1", "f1", "att0"],
    "f1": ["barx", "bar1", "p5", "pass1", "kvpub", "att0", "f1", "kvok", "ky", "bar6", "bar14", "att1"],
    "tail": ["att0", "t23", "t42", "att1", "f2", "s2", "olan", "st2", "s3", "top", "s4", "moe"],
}
if __name__ == "__main__":
    if len(sys.argv) > 2 and sys.argv[2] in SETS:
        G1.PROF = True
        STAMPS = set(SETS[sys.argv[2]])
    main(sys.argv[1], aslist=(len(sys.argv) > 2 and sys.argv[2] != "final"))
    if STAMPS: print(" ".join(["start"] + ORDER + ["end"]))
```

```python
import sys, os
from asmlib import *
import gen_v1 as G1
from gen_v1 import (f32, multi_allreduce, unpack8, rnd_pair, tr_addr_natural, dma_row_src,
                    stamp_begin, stamp_end, Prof, NLOG2E, QSCALE, WS_BYTES)

KNAME = "adaLN_cond__mha_block__moe_arch_mod__prompt_kernel"
WS_EPOCH = 0
WS_MP = 0x1000
WS_ST1 = 0x10000
WS_MPL = 0x20000
WS_ST2 = 0x180000
WS_TOP = 0x60000
WS_ACT = 0x64000
WS_CAND = 0x80000
WS_F1 = 0x100000
WS_F2 = 0x140000
WS_WP = 0x200000
WS_KV = 0x500000
WS_OF = 0x900000
SPIN = 50000
STAMPS = None
ORDER = []

def stamp(a, name):
    if STAMPS is not None and name in STAMPS:
        if name not in ORDER: ORDER.append(name)
        G1.stamp(a)

def poll_loop(a, issue, check, name, first_issued=False, sleep=4):
    l = a.newlabel(name); d = a.newlabel(name + "d"); w = a.newlabel(name + "w")
    a(f"s_mov_b32 s60, {SPIN}")
    if first_issued: a(f"s_branch {w}")
    a.label(l)
    issue()
    if first_issued: a.label(w)
    a("s_waitcnt vmcnt(0)")
    check()
    a(f"s_cbranch_scc1 {d}")
    a("s_sub_u32 s60, s60, 1")
    if sleep: a(f"s_sleep {sleep}")
    a("s_cmp_lg_u32 s60, 0")
    a(f"s_cbranch_scc1 {l}")
    a.label(d)

def chk_ne(a, regs):
    a(f"v_cmp_ne_u32 vcc, s48, v{regs[0]}")
    for r in regs[1:]:
        a(f"v_cmp_ne_u32 s[20:21], s48, v{r}")
        a("s_or_b64 vcc, vcc, s[20:21]")
    a("s_cmp_eq_u64 vcc, 0")

def silu(a, x, t):
    a(f"v_mul_f32 v{t}, {NLOG2E:#x}, v{x}")
    a(f"v_exp_f32 v{t}, v{t}")
    a("s_nop 0")
    a(f"v_add_f32 v{t}, 1.0, v{t}")
    a(f"v_rcp_f32 v{t}, v{t}")
    a("s_nop 0")
    a(f"v_mul_f32 v{x}, v{x}, v{t}")

def mf16(a, d, A, B, c):
    cs = "0" if c is None else f"v[{c}:{c+3}]"
    a(f"v_mfma_f32_16x16x32_bf16 v[{d}:{d+3}], v[{A}:{A+3}], v[{B}:{B+3}], {cs}")

def trr(a, d, a1, a2, off):
    a(f"ds_read_b64_tr_b16 v[{d}:{d+1}], v{a1} offset:{off}")
    a(f"ds_read_b64_tr_b16 v[{d+2}:{d+3}], v{a2} offset:{off}")

WPB = 0; RING = 49152
REG = {0: 32768, 1: 0, 2: 16384}
EMB = 147456; SAT = 151552; CTE = 152576; CAT = 152832; REC = 154880; STT = 157440; FINR = 152576 - 0
STG = 131072
EM2 = 159744
FIN = 159488 - 320 + 64 - 64
Q = 16; C = 20; S = [36, 52]; O = 68; K = [84, 88]; V = [92, 100]; IDX = 108
WO = 112; MW = 176; XT = 204
GA = 208; SB = 216; CB = 224; GB = 232; WP = 240
FLIP = int(os.environ.get('FLIP', 50))
RBAR = int(os.environ.get('RBAR', 12))
TILEV = int(os.environ.get('TILEV', 0))
YK = int(os.environ.get('YK', 4))
TOUCHD = int(os.environ.get('TOUCHD', 16))
TOUCHG = int(os.environ.get('TOUCHG', 0))
TOUCHW = int(os.environ.get('TOUCHW', 9))
OUTF = os.environ.get('OUTF', '')
OSENT = int(os.environ.get('OSENT', 0))
TOPSH = int(os.environ.get('TOPSH', 7))
SLOWP = int(os.environ.get('SLOWP', 40))
TSLEEP = int(os.environ.get('TSLEEP', 2))
ST2P = int(os.environ.get('ST2P', 1))
PREW = int(os.environ.get('PREW', 25))
PREO = int(os.environ.get('PREO', 0))
PREF = int(os.environ.get('PREF', 1))
S3D = int(os.environ.get('S3D', 8))
S3S = int(os.environ.get('S3S', 1))
ACTD = int(os.environ.get('ACTD', 0))
ACTS = int(os.environ.get('ACTS', 2))
F2S = int(os.environ.get('F2S', 1))
PF = os.environ.get('PF', ' sc1')
KVP = int(os.environ.get('KVP', 0))
TLB = int(os.environ.get('TLB', 21))
CODEPF = int(os.environ.get('CODEPF', 0))
B8 = int(os.environ.get('B8', 1))
NOLD = int(os.environ.get('NOLD', 3))
OK1 = int(os.environ.get('OK1', 1))
MAP = os.environ.get('MAP', 'A4')
P1FLIP = int(os.environ.get('P1FLIP', 11))
TOUCH = 0
WPS = 16384 + 384
F1STEP = 10
XR = 32; WR = 160; ACC = 184; QA = 176; WF = [236, 244]

def k_main(a):
    kernel_begin(a, KNAME)
    a("s_cmp_ge_u32 s2, 256")
    a("s_cbranch_scc1 main_end")
    if STAMPS is not None: stamp_begin(a, 0)
    a("s_setprio 3")
    a("s_load_dwordx2 s[4:5], s[0:1], 96")
    a("s_load_dwordx4 s[44:47], s[0:1], 64")
    a("s_load_dwordx2 s[6:7], s[0:1], 0")
    a("s_load_dwordx4 s[8:11], s[0:1], 8")
    a("s_load_dwordx8 s[52:59], s[0:1], 32")
    a("s_load_dwordx2 s[50:51], s[0:1], 80")
    a("v_lshrrev_b32 v1, 6, v0")
    a("v_and_b32 v2, 63, v0")
    if MAP == "A4":
        a("s_and_b32 s31, s2, 1")
        a("s_lshl_b32 s31, s31, 2")
        a("v_readfirstlane_b32 s32, v1")
        a("s_bfe_u32 s20, s2, 0x20003")
        a("s_add_u32 s31, s31, s20")
        a("s_and_b32 s30, s2, 6")
        a("s_lshl_b32 s30, s30, 2")
        a("s_lshr_b32 s20, s2, 5")
        a("s_add_u32 s30, s30, s20")
        a("s_lshl_b32 s33, s20, 1")
    elif MAP == "A1":
        a("s_and_b32 s31, s2, 7")
        a("s_lshr_b32 s30, s2, 3")
        a("v_readfirstlane_b32 s32, v1")
        a("s_and_b32 s33, s30, 7")
        a("s_lshl_b32 s33, s33, 1")
    elif MAP == "A2":
        a("s_and_b32 s31, s2, 3")
        a("s_lshl_b32 s31, s31, 1")
        a("v_readfirstlane_b32 s32, v1")
        a("s_bfe_u32 s20, s2, 0x10003")
        a("s_add_u32 s31, s31, s20")
        a("s_and_b32 s30, s2, 4")
        a("s_lshl_b32 s30, s30, 2")
        a("s_lshr_b32 s20, s2, 4")
        a("s_add_u32 s30, s30, s20")
        a("s_and_b32 s33, s20, 7")
        a("s_lshl_b32 s33, s33, 1")
    else:
        a("s_and_b32 s30, s2, 7")
        a("s_lshl_b32 s30, s30, 2")
        a("v_readfirstlane_b32 s32, v1")
        a("s_bfe_u32 s20, s2, 0x20003")
        a("s_add_u32 s30, s30, s20")
        a("s_lshr_b32 s31, s2, 5")
        a("s_lshl_b32 s33, s20, 2")
        a("s_and_b32 s20, s2, 1")
        a("s_lshl_b32 s20, s20, 1")
        a("s_add_u32 s33, s33, s20")
    a("v_lshlrev_b32 v9, 4, v2")
    a("v_lshrrev_b32 v17, 3, v2")
    a("v_and_b32 v16, 6, v17")
    a("v_xor_b32 v16, v16, v2")
    a("v_and_b32 v16, 7, v16")
    a("v_lshlrev_b32 v200, 10, v17")
    a("v_lshl_add_u32 v200, v16, 4, v200")
    for q in range(1, 4): a(f"v_add_u32 v{200+q}, {7168*q}, v200")
    dma_row_src(a, 255, 2, 6144, 16, 17)
    a("s_lshl_b32 s28, s31, 18")
    a("s_lshl_b32 s21, s32, 15")
    a("s_add_u32 s28, s28, s21")
    a("s_lshl_b32 s29, s33, 6")
    a("s_mul_i32 s49, s32, 12288")
    a(f"s_add_u32 s49, s49, {RING}")
    a("v_lshrrev_b32 v3, 1, v2")
    a("v_lshl_add_u32 v3, v1, 6, v3")
    a("v_and_b32 v6, 1, v0")
    a("v_bfe_u32 v22, v2, 1, 2")
    a("v_mul_u32_u24 v22, 3072, v22")
    a("v_lshrrev_b32 v17, 3, v2")
    a("v_lshl_add_u32 v22, v17, 5, v22")
    a("v_lshl_add_u32 v22, v6, 4, v22")
    a(f"v_mul_u32_u24 v23, {WPS}, v17")
    a("v_and_b32 v17, 7, v2")
    a("v_lshl_add_u32 v23, v17, 4, v23")
    a("s_and_b32 s36, s2, 7")
    a("s_lshl_b32 s36, s36, 4")
    a("s_lshr_b32 s20, s2, 4")
    a("s_add_u32 s36, s36, s20")
    a("s_bfe_u32 s37, s2, 0x10003")
    a("v_lshlrev_b32 v19, 3, v2")
    a("s_lshl_b32 s39, s2, 3")
    a("s_add_u32 s39, s39, s32")
    a("s_and_b32 s62, s2, 7")
    a("s_lshl_b32 s62, s62, 3")
    a("s_bfe_u32 s23, s2, 0x30003")
    a("s_add_u32 s62, s62, s23")
    a("s_waitcnt lgkmcnt(0)")
    stamp(a, "karg")
    a("s_load_dword s48, s[4:5], 0")
    srd(a, 24, 6, 2048 * 1024)
    srd(a, 16, 4, WS_BYTES)
    srd(a, 12, 8, 512 * 3072)
    a("s_cmp_lg_u32 s32, 0")
    a("s_cbranch_scc1 main_w0a")
    a("s_lshr_b32 s21, s2, 6")
    a("s_lshl_b32 s22, s21, 8")
    a("v_lshl_add_u32 v16, v2, 2, s22")
    a("global_load_dword v232, v16, s[44:45]")
    srd(a, 40, 46, 512 * 6144)
    a(f"s_mul_i32 s22, s21, {128*6144}")
    a("s_lshl_b32 s23, s62, 5")
    a("s_add_u32 s22, s22, s23")
    for n in range(4):
        a(f"s_mov_b32 m0, {EMB + 1024*n}")
        if n: a(f"s_add_u32 s22, s22, {32*6144}")
        else: a("s_nop 0")
        a("buffer_load_dwordx4 v255, s[40:43], s22 offen lds")
    a("s_branch main_w0i")
    a.label("main_w0a")
    a("s_cmp_eq_u32 s32, 7")
    a("s_cbranch_scc1 main_w7" if TLB else "s_cbranch_scc1 main_w0i")
    a(f"s_mul_i32 s20, s36, {4*3072}")
    a("s_mul_i32 s21, s37, 1536")
    a("s_add_u32 s20, s20, s21")
    a("s_lshl_b32 s21, s32, 8")
    a("s_add_u32 s20, s20, s21")
    a("s_sub_u32 s20, s20, 256")
    a(f"buffer_load_dwordx4 v[{WR}:{WR+3}], v22, s[12:15], s20 offen")
    if TLB:
        a("s_branch main_w0i")
        a.label("main_w7")
        a("s_lshl_b32 s20, s2, 8")
        a(f"v_lshlrev_b32 v16, {TLB}, v2")
        a(f"s_mov_b64 exec, {(1 << min(63, (12 << 20) >> TLB)) - 1:#x}") if ((12 << 20) >> TLB) <= 31 else a("s_nop 0")
        a("buffer_load_dword v160, v16, s[16:19], s20 offen")
        a("s_mov_b64 exec, 1")
        a("v_mov_b32 v16, s20")
        for j, b in enumerate((10, 54, 56, 58, 50)):
            a(f"global_load_dword v{161+j}, v16, s[{b}:{b+1}]")
        if CODEPF:
            a("s_getpc_b64 s[22:23]")
            a.label("main_pc")
            a(f"s_sub_u32 s22, s22, main_pc-{KNAME}")
            a("s_subb_u32 s23, s23, 0")
            a("s_mov_b64 exec, 0xff")
            a("s_lshr_b32 s20, s2, 3")
            a("s_min_u32 s20, s20, 24")
            a("s_lshl_b32 s20, s20, 10")
            a("v_lshl_add_u32 v16, v2, 7, s20")
            a("global_load_dword v166, v16, s[22:23]")
        a("s_mov_b64 exec, -1")
    a.label("main_w0i")
    a("s_lshl_b32 s22, s39, 10")
    a("buffer_load_dwordx4 v[204:207], v9, s[24:27], s22 offen")
    def dstep_issue(base, add):
        a("s_add_u32 s20, s28, s29")
        if add: a(f"s_add_u32 s21, s{base}, {add}")
        a(f"s_mov_b32 m0, s{21 if add else base}")
        a("s_add_u32 s29, s29, 128")
        for q in range(4):
            a(f"buffer_load_dwordx4 v{200+q}, s[24:27], s20 offen offset:{1024*q} lds")
        a("s_and_b32 s29, s29, 0x3ff")
    a("v_lshlrev_b32 v25, 4, v0")
    def g_issue():
        for rg in range(4):
            a(f"s_mov_b32 s22, {WS_MP + 8192*rg}")
            a(f"buffer_load_dwordx4 v[{184+4*rg}:{187+4*rg}], v25, s[16:19], s22 offen sc1")
    a("v_lshrrev_b32 v7, 4, v2")
    a("v_and_b32 v8, 15, v2")
    tr_addr_natural(a, 12, 13, 2, 14, 15)
    a("s_lshl_b32 s21, s33, 10")
    a("v_lshlrev_b32 v10, 5, v3")
    a("v_subrev_u32 v10, s21, v10")
    a("v_bfe_u32 v11, v3, 3, 1")
    a("v_lshlrev_b32 v11, 7, v11")
    a("v_xor_b32 v10, v10, v11")
    a("v_lshl_add_u32 v10, v6, 4, v10")
    a("v_and_b32 v10, 0x3fff, v10")
    a("v_xor_b32 v11, 1024, v10")
    a("s_lshl_b32 s20, s32, 11")
    a("s_sub_u32 s20, s20, s21")
    a("s_and_b32 s20, s20, 0x3fff")
    a("v_add_u32 v26, s20, v12")
    a("v_add_u32 v27, s20, v13")
    a("s_lshr_b32 s20, s20, 4")
    a(f"s_add_u32 s20, s20, {SAT}")
    a("v_lshl_add_u32 v30, v7, 4, s20")
    a("s_lshl_b32 s21, s32, 12")
    a(f"s_add_u32 s21, s21, {STG}")
    a("v_add_u32 v14, s21, v12")
    a("v_add_u32 v15, s21, v13")
    a("v_and_b32 v16, 6, v8")
    a("v_xor_b32 v16, v16, v7")
    a("v_lshlrev_b32 v16, 4, v16")
    a("v_and_b32 v17, 7, v8")
    a("v_lshl_add_u32 v16, v17, 7, v16")
    a("v_lshrrev_b32 v17, 3, v8")
    a("v_lshl_add_u32 v16, v17, 10, v16")
    a("v_xor_b32 v17, 64, v16")
    a("v_add_u32 v254, s49, v16")
    a("v_add_u32 v255, s49, v17")
    a("v_and_b32 v24, 31, v2")
    a("v_lshlrev_b32 v24, 4, v24")
    a("s_lshr_b32 s63, s28, 6")
    a(f"s_add_u32 s63, s63, {WS_ST1}")
    def rd_x2(d, reg, off):
        for e in range(2):
            for u in range(2):
                r = XR + 4 * (16 * u + 2 * d + e)
                a(f"ds_read_b128 v[{r}:{r+3}], v{reg+e} offset:{off + 2048*u}")
    def g_check(): chk_ne(a, [185, 187, 189, 191, 193, 195, 197, 199])
    stamp(a, "d7")
    def w56(fn):
        l = a.newlabel("Lw56")
        a("s_sub_u32 s20, s32, 5")
        a("s_cmp_gt_u32 s20, 1")
        a(f"s_cbranch_scc1 {l}")
        fn()
        a.label(l)
    def w12(fn):
        l = a.newlabel("Lw12")
        a("s_sub_u32 s20, s32, 1")
        a("s_cmp_gt_u32 s20, 1")
        a(f"s_cbranch_scc1 {l}")
        fn()
        a.label(l)
    def le_issue():
        srd(a, 12, 46, 512 * 6144)
        a("v_mul_u32_u24 v5, 6144, v11")
        a("v_add_u32 v5, v5, v10")
        a("s_lshr_b32 s21, s2, 6")
        a(f"s_mul_i32 s22, s21, {128*6144}")
        a("s_lshl_b32 s23, s62, 6")
        a("s_add_u32 s22, s22, s23")
        a("s_lshl_b32 s23, s20, 5")
        a("s_add_u32 s22, s22, s23")
        a("s_add_u32 s22, s22, 2048")
        a("s_mov_b32 s23, s36")
        a("s_lshl_b32 s21, s21, 8")
        a("v_lshl_add_u32 v6, v2, 2, s21")
        a(f"global_load_dword v{WO}, v6, s[44:45]")
        for n in range(4):
            a("s_mov_b32 m0, s23")
            if n: a(f"s_add_u32 s22, s22, {32*6144}")
            else: a("s_nop 0")
            a("buffer_load_dwordx4 v5, s[12:15], s22 offen lds")
            a("s_add_u32 s23, s23, 1024")
    a("s_lshr_b32 s41, s30, 2"); a("s_lshl_b32 s20, s31, 3"); a("s_add_u32 s41, s41, s20")
    a("s_and_b32 s42, s30, 3")
    a("v_and_b32 v29, 1, v2"); a("v_lshlrev_b32 v29, 4, v29")
    a("v_lshrrev_b32 v28, 1, v2"); a("v_lshl_add_u32 v1, v28, 10, v29")
    a("s_lshl_b32 s20, s42, 8"); a("s_lshl_b32 s21, s32, 5"); a("s_add_u32 s21, s21, s20"); a("v_add_u32 v1, s21, v1")
    a("v_bfe_u32 v16, v2, 4, 1"); a("v_lshlrev_b32 v17, 2, v16"); a("v_xor_b32 v28, v28, v17")
    a("v_lshrrev_b32 v5, 5, v2"); a("v_lshlrev_b32 v5, 9, v5"); a("v_lshl_add_u32 v5, v16, 7, v5")
    a("v_bfe_u32 v16, v2, 2, 2"); a("v_lshl_add_u32 v5, v16, 5, v5"); a("v_and_b32 v16, 3, v2"); a("v_lshl_add_u32 v5, v16, 3, v5")
    a("s_lshl_b32 s21, s32, 12"); a(f"s_add_u32 s21, s21, {STG}"); a("v_add_u32 v5, s21, v5")
    a("v_lshrrev_b32 v4, 4, v0"); a("v_lshlrev_b32 v4, 10, v4"); a("v_lshl_add_u32 v4, v8, 4, v4")
    a("s_lshl_b32 s21, s41, 15"); a("s_add_u32 s20, s20, s21"); a("v_add_u32 v4, s20, v4")
    a("s_lshl_b32 s20, s30, 13"); a("s_lshl_b32 s21, s32, 10"); a("s_add_u32 s40, s20, s21"); a(f"s_add_u32 s40, s40, {WS_F1}")
    a("s_cmp_lg_u32 s32, 0")
    a("s_cbranch_scc1 main_w0j")
    a(f"v_add_u32 v20, {EMB}, v12")
    a(f"v_add_u32 v21, {EMB}, v13")
    a("s_waitcnt vmcnt(5)")
    a("v_lshlrev_b32 v233, 16, v232")
    a("v_and_b32 v234, 0xffff0000, v232")
    silu(a, 233, 16); silu(a, 234, 16)
    a("v_cvt_pk_bf16_f32 v232, v233, v234")
    a("v_lshlrev_b32 v16, 2, v2")
    a(f"v_add_u32 v16, {CTE}, v16")
    a("ds_write_b32 v16, v232")
    a("v_and_b32 v17, 48, v2")
    a(f"v_add_u32 v17, {CTE}, v17")
    for n in range(4):
        a(f"ds_read_b128 v[{236+4*n}:{239+4*n}], v17 offset:{64*n}")
    a("s_lshr_b32 s38, s2, 6")
    a("s_lshl_b32 s38, s38, 13")
    a("s_lshl_b32 s22, s62, 7")
    a("s_add_u32 s38, s38, s22")
    a(f"s_add_u32 s38, s38, {WS_MP}")
    a("s_waitcnt vmcnt(0)")
    stamp(a, "emland")
    for n in range(4):
        trr(a, 216 + 4 * n, 20, 21, 1024 * n)
    a("s_waitcnt lgkmcnt(0)")
    a("s_add_u32 s22, s48, 1")
    for n in range(4):
        mf16(a, 232, 236 + 4 * n, 216 + 4 * n, None if n == 0 else 232)
    a("s_nop 7")
    a("v_mov_b32 v184, v232")
    a("v_mov_b32 v185, s22")
    a("s_branch main_w0b")
    a.label("main_w0j")
    a("s_waitcnt vmcnt(0)")
    a("s_cmp_eq_u32 s32, 7")
    a("s_cbranch_scc1 main_w0b")
    a("s_mul_i32 s20, s37, 6")
    a("s_add_u32 s20, s20, s32")
    a(f"s_mul_i32 s20, s20, {8*WPS}")
    a("s_lshl_b32 s21, s36, 7")
    a("s_add_u32 s20, s20, s21")
    a(f"s_add_u32 s20, s20, {WS_WP - 8*WPS}")
    a(f"buffer_store_dwordx4 v[{WR}:{WR+3}], v23, s[16:19], s20 offen sc1")
    a.label("main_w0b")
    stamp(a, "pk")
    if OSENT:
        for i in range(4): a(f"v_mov_b32 v{164+i}, -1")
        a("s_lshl_b32 s20, s31, 3")
        a("s_add_u32 s20, s20, s32")
        a("s_lshl_b32 s20, s20, 15")
        a("s_lshl_b32 s21, s30, 10")
        a("s_add_u32 s20, s20, s21")
        a(f"s_add_u32 s20, s20, {WS_OF}")
        a("buffer_store_dwordx4 v[164:167], v9, s[16:19], s20 offen sc1")
    a("s_barrier")
    dstep_issue(49, 0)
    a("s_waitcnt lgkmcnt(0)")
    a("s_add_u32 s48, s48, 1")
    unpack8(a, 208, 204)
    a("v_add_f32 v216, v208, v209")
    for i in range(2, 8): a(f"v_add_f32 v216, v216, v{208+i}")
    multi_allreduce(a, [216], [217])
    a(f"v_mul_f32 v216, {f32(1/512)}, v216")
    a("v_sub_f32 v217, v208, v216")
    a("v_mul_f32 v218, v217, v217")
    for i in range(1, 8):
        a(f"v_sub_f32 v217, v{208+i}, v216")
        a("v_fmac_f32 v218, v217, v217")
    multi_allreduce(a, [218], [217])
    a(f"v_mul_f32 v217, {f32(1/512)}, v218")
    rnd_pair(a, 216, 217, 218)
    a(f"v_add_f32 v217, {f32(1e-5)}, v217")
    rnd_bf16(a, 217)
    a("v_sqrt_f32 v217, v217")
    a("s_lshl_b32 s21, s39, 4")
    rnd_bf16(a, 217)
    a("v_rcp_f32 v217, v217")
    a("v_mov_b32 v218, s48")
    a("v_mov_b32 v219, s48")
    a(f"s_add_u32 s21, s21, {WS_ST1}")
    a("v_mov_b32 v16, 0")
    a("s_mov_b64 exec, 1")
    a("buffer_store_dwordx4 v[216:219], v16, s[16:19], s21 offen sc1")
    a("s_mov_b64 exec, -1")
    a("s_waitcnt vmcnt(5)")
    stamp(a, "ack")
    a("s_barrier")
    a("s_cmp_lg_u32 s32, 0")
    a("s_cbranch_scc1 main_w0c")
    a("s_mov_b64 exec, 0xffff")
    a("buffer_store_dwordx2 v[184:185], v19, s[16:19], s38 offen sc1")
    a("s_mov_b64 exec, -1")
    stamp(a, "mp")
    a.label("main_w0c")
    dstep_issue(49, 4096); dstep_issue(49, 8192)
    a("s_setprio 0")
    stamp(a, "i2")
    a("s_waitcnt vmcnt(9)")
    stamp(a, "l0")
    rd_x2(0, 254, 0)
    a("s_waitcnt lgkmcnt(0)")
    dstep_issue(49, 0)
    a("s_waitcnt vmcnt(8)")
    a("s_setprio 3")
    g_issue()
    rd_x2(1, 254, 4096)
    a("s_waitcnt vmcnt(8)")
    stamp(a, "l2")
    rd_x2(2, 254, 8192)
    a("s_waitcnt vmcnt(0)")
    stamp(a, "gath0")
    g_check()
    a("s_cbranch_scc1 main_gok")
    poll_loop(a, g_issue, g_check, "Lm")
    a.label("main_gok")
    stamp(a, "gath1")
    a(f"s_mul_i32 s20, s30, {WPS}")
    a("s_lshl_b32 s21, s32, 11")
    a("s_add_u32 s20, s20, s21")
    a(f"s_add_u32 s20, s20, {WS_WP}")
    for t in (0, 2, 1):
        a(f"s_add_u32 s21, s20, {32*WPS*t}")
        for p in range(2):
            r = WR + 4 * (3 * p + t)
            a(f"buffer_load_dwordx4 v[{r}:{r+3}], v9, s[16:19], s21 offen offset:{1024*p} sc1")
    a("s_setprio 0")
    rd_x2(3, 254, 0)
    for c in range(2):
        a(f"v_add_f32 v{184+2*c}, v{184+2*c}, v{188+2*c}")
        a(f"v_add_f32 v{192+2*c}, v{192+2*c}, v{196+2*c}")
        a(f"v_add_f32 v{184+2*c}, v{184+2*c}, v{192+2*c}")
    a("v_cvt_pk_bf16_f32 v188, v184, v186")
    a("s_cmp_gt_u32 s32, 3")
    a("s_cbranch_scc1 main_gca")
    a("s_lshl_b32 s21, s33, 6")
    a("v_lshlrev_b32 v16, 2, v0")
    a("v_subrev_u32 v16, s21, v16")
    a("v_and_b32 v16, 0x3ff, v16")
    a(f"v_add_u32 v16, {SAT}, v16")
    a("ds_write_b32 v16, v188")
    a("s_branch main_gdn")
    a.label("main_gca")
    a("v_lshlrev_b32 v184, 16, v188")
    a("v_and_b32 v185, 0xffff0000, v188")
    a("v_add_f32 v184, 1.0, v184")
    a("v_add_f32 v185, 1.0, v185")
    rnd_pair(a, 184, 185, 188)
    a("v_lshlrev_b32 v16, 3, v0")
    a(f"v_add_u32 v16, {CAT - 2048}, v16")
    a("ds_write_b64 v16, v[184:185]")
    a.label("main_gdn")
    a("v_lshlrev_b32 v16, 2, v3")
    a(f"v_add_u32 v16, {CAT}, v16")
    a("v_xor_b32 v17, 128, v16")
    a("s_waitcnt lgkmcnt(0)")
    dstep_issue(49, 4096)
    a("s_waitcnt vmcnt(6)")
    stamp(a, "wland")
    if PREF:
        a("s_lshl_b32 s20, s31, 7")
        a("s_add_u32 s20, s20, s40")
        a("s_xor_b32 s21, s48, 0x80000000")
        a("v_mov_b32 v18, s21")
        a("v_lshlrev_b32 v19, 2, v2")
        a("s_mov_b32 exec_hi, 0")
        a("buffer_store_dword v18, v19, s[16:19], s20 offen sc1")
        a("s_mov_b64 exec, -1")
    if PREF > 1:
        a("s_lshl_b32 s20, s31, 3")
        a("s_add_u32 s20, s20, s32")
        a("s_lshl_b32 s20, s20, 11")
        a("s_lshl_b32 s21, s30, 17")
        a("s_add_u32 s20, s20, s21")
        a(f"s_add_u32 s20, s20, {WS_KV}")
        a("buffer_store_dwordx4 v[32:35], v9, s[16:19], s20 offen sc1")
        a("buffer_store_dwordx4 v[32:35], v9, s[16:19], s20 offen offset:1024 sc1")
    for t in (0, 2):
        for p in range(2):
            r = WR + 4 * (3 * p + t)
            a(f"ds_write_b128 v{10+p}, v[{r}:{r+3}] offset:{REG[t]}")
    for n in range(2):
        trr(a, 236 + 8 * n, 26, 27, REG[0] + 1024 * n)
        trr(a, 240 + 8 * n, 26, 27, REG[2] + 1024 * n)
    for i in range(4): a(f"v_mov_b32 v{204+i}, 0x3f803f80")
    UPK = {1: 64, 2: 128, 0: 80}
    a("s_mov_b32 s22, 0xffff0000")
    for t in (0, 2, 1):
        if t == 1: a(f"s_waitcnt vmcnt({4 + (0, 1, 3)[PREF]})")
        for p in range(2):
            r = WR + 4 * (3 * p + t); T = UPK[t] + 8 * p
            for i in range(4):
                a(f"v_lshlrev_b32 v{T+2*i}, 16, v{r+i}")
                a(f"v_and_b32 v{T+2*i+1}, s22, v{r+i}")
    a("s_waitcnt lgkmcnt(0)")
    a("s_barrier")
    stamp(a, "barx")
    a("ds_read_b32 v188, v16")
    a("ds_read_b32 v189, v17")
    for n in range(2): a(f"ds_read_b128 v[{192+4*n}:{195+4*n}], v30 offset:{64*n}")
    a("s_mul_i32 s21, s32, 320")
    a(f"s_add_u32 s21, s21, {REC}")
    a("v_lshl_add_u32 v30, v7, 4, s21")
    a("v_lshl_add_u32 v31, v8, 3, s21")
    a("s_waitcnt lgkmcnt(2)")
    CSF = [80, 84, 64, 68, 128, 132]
    stamp(a, "sc0")
    for j, t in enumerate((1, 2, 0)):
        for p in range(2):
            r = WR + 4 * (3 * p + t)
            d = 208 + 4 * p
            T = UPK[t] + 8 * p
            for i in range(4):
                a(f"v_pk_mul_f32 v[{T+2*i}:{T+2*i+1}], v[{T+2*i}:{T+2*i+1}], v[188:189] " + ("op_sel_hi:[1,0]" if p == 0 else "op_sel:[0,1] op_sel_hi:[1,1]"))
            for i in range(4):
                a(f"v_cvt_pk_bf16_f32 v{d+i}, v{T+2*i}, v{T+2*i+1}")
            a(f"ds_write_b128 v{10+p}, v[{d}:{d+3}] offset:{REG[t]}")
        for n in range(2): trr(a, CSF[2 * t + n], 26, 27, REG[t] + 1024 * n)
        stamp(a, f"sc{j+1}")
        if j == 2: a("buffer_load_dwordx4 v[20:23], v24, s[16:19], s63 offen sc1")
        if j == 0:
            a("s_waitcnt lgkmcnt(6)")
            for n in range(2):
                mf16(a, 216, 236 + 8 * n, 192 + 4 * n, None if n == 0 else 216)
                mf16(a, 220, 192 + 4 * n, 240 + 8 * n, None if n == 0 else 220)
    a("s_waitcnt lgkmcnt(0)")
    for n in range(2):
        mf16(a, 228, CSF[2 + n], 204, None if n == 0 else 228)
        mf16(a, 232, 204, CSF[4 + n], None if n == 0 else 232)
        mf16(a, 224, CSF[n], 204, None if n == 0 else 224)
    a("v_lshlrev_b32 v16, 4, v7")
    a(f"v_add_u32 v16, {REC}, v16")
    a("v_lshlrev_b32 v17, 3, v8")
    a(f"v_add_u32 v17, {REC}, v17")
    stamp(a, "sc4")
    a("ds_write_b128 v30, v[216:219]")
    a("s_nop 1")
    a("v_mov_b32 v233, v220")
    a("ds_write_b128 v30, v[228:231] offset:128")
    a("ds_write_b64 v31, v[232:233] offset:192")
    a("ds_write_b128 v30, v[224:227] offset:64")
    a("s_waitcnt lgkmcnt(0)")
    stamp(a, "sc5")
    a("s_barrier")
    stamp(a, "bar1")
    WF3 = [236, 244, 176]
    def rd_kv(s):
        b = WF3[s % 3]
        trr(a, b, 12, 13, REG[1] + 1024 * s)
        trr(a, b + 4, 12, 13, REG[2] + 1024 * s)
    rd_kv(0); rd_kv(1)
    a("s_lshr_b32 s20, s32, 2")
    a("s_cmp_eq_u32 s20, 0")
    a("s_cbranch_scc1 main_p1o")
    a("s_setprio 1")
    a.label("main_p1o")
    DR = {2: 4, 7: 5, 9: 6, 11: 7}
    def rec_rd(w):
        d = (208, 212, 220, 224) if w == 0 else (228, 232, 216, 226)
        a(f"ds_read_b128 v[{d[0]}:{d[0]+3}], v16 offset:{320*w}")
        a(f"ds_read_b128 v[{d[1]}:{d[1]+3}], v16 offset:{320*w+64}")
        a(f"ds_read_b128 v[{d[2]}:{d[2]+3}], v16 offset:{320*w+128}")
        a(f"ds_read_b64 v[{d[3]}:{d[3]+1}], v17 offset:{320*w+192}")
    for s in range(16):
        if s < 14:
            rd_kv(s + 2)
            a(f"s_waitcnt lgkmcnt({8 if s == 0 else 4})")
        else:
            a(f"s_waitcnt lgkmcnt({4 * (15 - s)})")
        stamp(a, f"p{s}")
        if s == 0: dstep_issue(49, 8192)
        if s == 1: dstep_issue(49, 0)
        if s == 3: dstep_issue(49, 4096)
        b = WF3[s % 3]
        adds = []
        for u in range(2):
            x = XR + 4 * (16 * u + s)
            mf16(a, ACC + 4 * u, b, x, None if s == 0 else ACC + 4 * u)
            for q in adds[4*u:4*u+2]: a(q)
            mf16(a, ACC + 8 + 4 * u, x, b + 4, None if s == 0 else ACC + 8 + 4 * u)
            for q in adds[4*u+2:4*u+4]: a(q)
        if s == 0:
            l = a.newlabel("Lrs")
            a("s_cmp_lt_u32 s32, 6")
            a(f"s_cbranch_scc1 {l}")
            a("v_lshlrev_b32 v18, 2, v0")
            a(f"v_add_u32 v18, {REC - 1536}, v18")
            for w in range(8): a(f"ds_read_b32 v{208+w}, v18 offset:{320*w}")
            a("s_waitcnt lgkmcnt(0)")
            for w in range(1, 8): a(f"v_add_f32 v208, v208, v{208+w}")
            a(f"v_cmp_gt_u32 vcc, {384+80}, v0")
            a("s_nop 0")
            a("s_and_saveexec_b64 s[20:21], vcc")
            a("ds_write_b32 v18, v208")
            a("s_mov_b64 exec, -1")
            a.label(l)
        if s == P1FLIP: a("s_setprio 0")
        if s in DR:
            a(f"s_waitcnt vmcnt({ {4: 9, 5: 8, 6: 4, 7: 0}[DR[s]] })")
            rd_x2(DR[s], 254, 4096 * (DR[s] % 3))
        if s == 8:
            chk_ne(a, [22])
            a("s_cbranch_scc1 main_stok")
            poll_loop(a, lambda: a("buffer_load_dwordx4 v[20:23], v24, s[16:19], s63 offen sc1"),
                      lambda: chk_ne(a, [22]), "Lst")
            a.label("main_stok")
            a("s_lshl_b32 s21, s32, 8")
            a(f"s_add_u32 s21, s21, {STT}")
            a("v_lshrrev_b32 v18, 1, v24")
            a("v_add_u32 v18, s21, v18")
            a("ds_write_b64 v18, v[20:21]")
            a("v_lshl_add_u32 v18, v8, 3, s21")
            a("v_lshl_add_u32 v19, v7, 5, s21")
            for u in range(2):
                a(f"ds_read_b64 v[{204+2*u}:{205+2*u}], v18 offset:{128*u}")
                a(f"ds_read_b128 v[{160+8*u}:{163+8*u}], v19 offset:{128*u}")
                a(f"ds_read_b128 v[{164+8*u}:{167+8*u}], v19 offset:{128*u+16}")
        if s == 13:
            a("s_lshl_b32 s34, s31, 3")
            a("s_add_u32 s34, s34, s32")
            a("s_lshl_b32 s22, s30, 17")
            a(f"s_add_u32 s35, s22, {WS_KV}")
            a("s_lshl_b32 s23, s34, 11")
            a("s_add_u32 s22, s35, s23")
            a("v_and_b32 v18, 1, v7")
            a("v_lshlrev_b32 v18, 9, v18")
            a("v_lshrrev_b32 v19, 1, v7")
            a("v_lshl_add_u32 v18, v19, 8, v18")
            a("v_lshl_add_u32 v18, v8, 4, v18")
            a("s_lshl_b32 s23, s32, 11")
            a("v_add_u32 v19, s23, v9")
            a("v_add_u32 v20, s23, v18")
    stamp(a, "pass1")
    def rd_q(s):
        trr(a, 236 + 4 * (s & 3), 12, 13, REG[0] + 1024 * s)
    rd_q(0); rd_q(1)
    a("s_barrier")
    rec_rd(0)
    a("s_waitcnt lgkmcnt(0)")
    for u in range(2):
        for r in range(4):
            k = ACC + 4 * u + r
            a(f"v_fma_f32 v{k}, -v{204+2*u}, v{220+r}, v{k}")
            a(f"v_mul_f32 v{k}, v{k}, v{205+2*u}")
        a(f"v_cvt_pk_bf16_f32 v{228+2*u}, v{ACC+4*u}, v{ACC+4*u+1}")
        a(f"v_cvt_pk_bf16_f32 v{229+2*u}, v{ACC+4*u+2}, v{ACC+4*u+3}")
    for u in range(2):
        for r in range(4):
            v = ACC + 8 + 4 * u + r
            a(f"v_fma_f32 v{v}, -v{160+8*u+2*r}, v224, v{v}")
            a(f"v_fma_f32 v{v}, v{v}, v{161+8*u+2*r}, v225")
        if u == 0:
            a("v_permlane16_swap_b32 v228, v230")
            a("v_permlane16_swap_b32 v229, v231")
            a("buffer_store_dwordx4 v[228:231], v9, s[16:19], s22 offen sc1")
        a(f"v_cvt_pk_bf16_f32 v{232+2*u}, v{ACC+8+4*u}, v{ACC+8+4*u+1}")
        a(f"v_cvt_pk_bf16_f32 v{233+2*u}, v{ACC+8+4*u+2}, v{ACC+8+4*u+3}")
    a("ds_write_b128 v19, v[228:231]")
    a("s_nop 0")
    a("v_permlane16_swap_b32 v232, v234")
    a("v_permlane16_swap_b32 v233, v235")
    a("buffer_store_dwordx4 v[232:235], v18, s[16:19], s22 offen offset:1024 sc1")
    a("ds_write_b128 v20, v[232:235] offset:1024")
    l = a.newlabel("Lrz")
    a("s_sub_u32 s20, s32, 1")
    a("s_cmp_gt_u32 s20, 1")
    a(f"s_cbranch_scc1 {l}")
    for i in range(4): a(f"v_mov_b32 v{216+i}, -1")
    a("s_lshl_b32 s22, s2, 10")
    a(f"s_add_u32 s22, s22, {WS_CAND}")
    a("s_lshl_b32 s23, s2, 6")
    a(f"s_add_u32 s23, s23, {WS_ACT}")
    a("s_cmp_eq_u32 s32, 1")
    a("s_cselect_b32 s22, s22, s23")
    a("s_cselect_b32 s20, -1, 15")
    a("s_cselect_b32 s21, -1, 0")
    a("s_mov_b64 exec, s[20:21]")
    a("buffer_store_dwordx4 v[216:219], v9, s[16:19], s22 offen sc1")
    a("s_mov_b64 exec, -1")
    a.label(l)
    stamp(a, "kvpub")
    rd_q(2)
    side = []
    sd = side.append
    sd("v_and_b32 v25, 31, v2"); sd("v_cmp_eq_u32 vcc, 16, v25"); sd("v_mov_b32 v25, 0x3f803f80")
    sd("s_lshl_b32 s36, s32, 12"); sd(f"s_add_u32 s36, s36, {STG}")
    sd("v_cndmask_b32 v25, 0, v25, vcc")
    sd("v_mov_b32 v110, v5"); sd("v_mov_b32 v111, v4"); sd("v_mov_b32 v10, v29"); sd("v_mov_b32 v11, v28")
    sd("v_mov_b32 v3, v9")
    sd("v_lshrrev_b32 v4, 5, v2"); sd("v_lshlrev_b32 v4, 8, v4"); sd("v_lshl_add_u32 v4, v8, 4, v4"); sd("v_add_u32 v4, 1024, v4")
    sd("s_mov_b32 s38, 0x0000ffff"); sd("s_mov_b32 s39, 0x0000ffff"); sd("s_mov_b32 s37, 0")
    for i in range(12): sd(f"v_mov_b32 v{V[0]+4+i}, v25")
    sd(f"v_mov_b32 v{IDX}, 0xdddddddd")
    sd(f"s_mov_b32 s24, {f32(QSCALE)}")
    for r in range(4): sd(f"v_mul_f32 v{208+r}, s24, v{208+r}")
    for u in range(2): sd(f"v_mul_f32 v{205+2*u}, s24, v{205+2*u}")
    per = (len(side) + 7) // 8
    for s in range(16):
        if s < 13:
            rd_q(s + 3)
            a("s_waitcnt lgkmcnt(6)")
        else:
            a(f"s_waitcnt lgkmcnt({2 * (15 - s)})")
        stamp(a, f"q{s}")
        extra = []
        if 4 <= s < 12: extra += side[per*(s-4):per*(s-3)]
        if s >= 12: extra += [f"v_mov_b32 v{O+4*(s-12)+i}, 0" for i in range(4)]
        h = (len(extra) + 1) // 2
        for u in range(2):
            mf16(a, QA + 4 * u, 236 + 4 * (s & 3), XR + 4 * (16 * u + s), None if s == 0 else QA + 4 * u)
            for q in (extra[:h] if u == 0 else extra[h:]): a(q)
        if s == F1STEP:
            a("s_lshl_b32 s20, s31, 7")
            a("s_add_u32 s20, s20, s40")
            a("v_mov_b32 v6, 0")
            a("v_mov_b32 v7, s48")
            a("s_waitcnt vmcnt(0)")
            a("s_mov_b64 exec, 1")
            a("buffer_store_dword v7, v6, s[16:19], s20 offen sc1")
            a("s_mov_b64 exec, -1")
            stamp(a, "f1")
    for i in range(4): a(f"v_mov_b32 v{V[0]+i}, v25")
    for u in range(2):
        for r in range(4):
            q = QA + 4 * u + r
            a(f"v_fma_f32 v{q}, -v{204+2*u}, v{212+r}, v{q}")
            a(f"v_fma_f32 v{q}, v{q}, v{205+2*u}, v{208+r}")
        a(f"v_cvt_pk_bf16_f32 v{Q+2*u}, v{QA+4*u}, v{QA+4*u+1}")
        a(f"v_cvt_pk_bf16_f32 v{Q+1+2*u}, v{QA+4*u+2}, v{QA+4*u+3}")
    a("s_nop 1")
    a(f"v_permlane16_swap_b32 v{Q}, v{Q+2}")
    a(f"v_permlane16_swap_b32 v{Q+1}, v{Q+3}")
    a("s_barrier")
    stamp(a, "att0")
    a(f"ds_read_b128 v[{K[0]}:{K[0]+3}], v3")
    a(f"ds_read_b128 v[{K[1]}:{K[1]+3}], v3 offset:2048")
    a("s_and_b32 s28, s32, 3")
    a("s_lshl_b32 s20, s30, 13")
    a("s_lshl_b32 s21, s28, 11")
    a("s_add_u32 s40, s20, s21")
    a(f"s_add_u32 s40, s40, {WS_F1}")
    a("v_lshlrev_b32 v12, 7, v8")
    if not KVP: a("buffer_load_dword v13, v12, s[16:19], s40 offen" + PF)
    a("s_lshl_b32 s28, s28, 12")
    a(f"s_lshl_b32 s20, {((1 << NOLD) - 1) << 1}, s31")
    a("s_lshr_b32 s21, s20, 8")
    a("s_or_b32 s20, s20, s21")
    a("s_and_b32 s20, s20, 0xff")
    a("s_lshl_b32 s21, 1, s31")
    a("s_or_b32 s21, s21, s20")
    a("s_xor_b32 s20, s20, 0xff")
    a(f"s_add_u32 s22, s28, {16384 * NOLD}")
    a("s_cmp_gt_u32 s32, 3")
    a("s_cselect_b32 s43, s21, s20")
    a("s_cselect_b32 s61, s22, s28")
    a("s_waitcnt lgkmcnt(1)")
    s0 = S[0]
    a(f"v_mfma_f32_32x32x16_bf16 v[{s0}:{s0+15}], v[{K[0]}:{K[0]+3}], v[{Q}:{Q+3}], 0")
    a("s_nop 11")
    a(f"v_max3_f32 v6, v{s0}, v{s0+1}, v{s0+2}")
    for i in range(3, 15, 2):
        a(f"v_max3_f32 v6, v6, v{s0+i}, v{s0+i+1}")
    a(f"v_max_f32 v6, v6, v{s0+15}")
    def setmax():
        a("v_mov_b32 v7, v6")
        a("s_nop 1")
        a("v_permlane32_swap_b32 v7, v6")
        a("s_nop 1")
        a("v_max_f32 v6, v6, v7")
        for i in range(16):
            a(f"v_sub_f32 v{C+i}, 0, v6")
    setmax()
    a("s_mov_b64 exec, s[38:39]")
    a(f"ds_read_b128 v[{V[0]}:{V[0]+3}], v4")
    a(f"ds_read_b128 v[{V[0]+4}:{V[0]+7}], v4 offset:512")
    a("s_mov_b64 exec, -1")
    a(f"v_mfma_f32_32x32x16_bf16 v[{s0}:{s0+15}], v[{K[0]}:{K[0]+3}], v[{Q}:{Q+3}], v[{C}:{C+15}]")
    for i in range(8):
        a(f"v_mov_b32 v{S[1]+8+i}, 0")
    a("s_nop 3")

    hooks = {}
    import os
    NOH = os.environ.get("NOHOOK", "")
    def hook(t, fn, kind=""):
        if kind and kind in NOH: return
        hooks.setdefault(t, []).append(fn)
    def old_only(fn):
        def f():
            l = a.newlabel("Lold")
            a("s_cmp_gt_u32 s32, 3")
            a(f"s_cbranch_scc1 {l}")
            fn()
            a.label(l)
        return f
    def late_only(fn):
        def f():
            l = a.newlabel("Llate")
            a("s_cmp_lt_u32 s2, 128")
            a(f"s_cbranch_scc1 {l}")
            fn()
            a.label(l)
        return f
    def kv_phase(need, cap, name, first=False):
        def f():
            top = a.newlabel("Lkv"); pick = a.newlabel("Lkp"); more = a.newlabel("Lkm"); done = a.newlabel("Lkd")
            a(f"s_mov_b32 s60, {SPIN}")
            if not first: a(f"s_branch {pick}")
            a.label(top)
            a("s_waitcnt vmcnt(0)")
            a("v_cmp_eq_u32 vcc, s48, v13")
            a("s_lshr_b32 s21, vcc_lo, 8")
            a("s_and_b32 s29, vcc_lo, s21")
            a("s_and_b32 s29, s29, 0xff")
            a.label(pick)
            a(f"s_cmp_ge_u32 s61, {16384 * cap}")
            a(f"s_cbranch_scc1 {done}")
            a("s_andn2_b32 s20, s29, s43")
            a(f"s_cbranch_scc0 {more}")
            a("s_ff1_i32_b32 s21, s20")
            a("s_bitset1_b32 s43, s21")
            a("s_add_u32 s61, s61, 16384")
            a("s_mov_b32 m0, s61")
            a("s_lshl_b32 s21, s21, 14")
            a("s_add_u32 s21, s21, s28")
            a("s_add_u32 s21, s21, s35")
            for n in range(4):
                a(f"buffer_load_dwordx4 v9, s[16:19], s21 offen offset:{1024*n} sc1 lds")
            a(f"s_branch {pick}")
            a.label(more)
            a(f"s_cmp_ge_u32 s61, {16384 * need}")
            a(f"s_cbranch_scc1 {done}")
            a("buffer_load_dword v13, v12, s[16:19], s40 offen" + PF)
            a("s_sub_u32 s60, s60, 1")
            a("s_cmp_lg_u32 s60, 0")
            a(f"s_cbranch_scc1 {top}")
            a.label(done)
            stamp(a, name)
        return f
    def h_bar(n, name):
        def f():
            a(f"s_waitcnt vmcnt({n})")
            a("s_barrier")
            stamp(a, name)
        return f
    if KVP: hook(KVP, lambda: a("buffer_load_dword v13, v12, s[16:19], s40 offen" + PF))
    hook(2 + KVP, old_only(kv_phase(OK1, NOLD, "kvok", first=True)))
    hook(5, old_only(kv_phase(NOLD, NOLD, "kv2")))
    def young_only(fn):
        def f():
            l = a.newlabel("Lyg")
            a("s_cmp_lt_u32 s32, 4")
            a(f"s_cbranch_scc1 {l}")
            fn()
            a.label(l)
        return f
    hook(YK, young_only(kv_phase(0, 7, "ky", first=True)))
    BT = 8 if B8 else 6
    hook(BT, young_only(kv_phase(7, 7, "kv7")))
    hook(BT, h_bar(0, "bar6"))
    def le_a():
        a("s_waitcnt vmcnt(0)")
        a(f"v_lshlrev_b32 v{WO+1}, 16, v{WO}")
        a(f"v_and_b32 v{WO}, 0xffff0000, v{WO}")
        silu(a, WO + 1, 5); silu(a, WO, 5)
        for n in range(4): trr(a, WO + 20 + 4 * n, 14, 15, 1024 * n)
        a(f"v_cvt_pk_bf16_f32 v{WO}, v{WO+1}, v{WO}")
        a("v_lshl_add_u32 v5, v2, 2, s36")
        a(f"ds_write_b32 v5, v{WO}")
        a("v_and_b32 v5, 48, v2")
        a("v_add_u32 v5, s36, v5")
        for n in range(4): a(f"ds_read_b128 v[{WO+4+4*n}:{WO+7+4*n}], v5 offset:{64*n}")
    def le_b():
        for n in range(4): mf16(a, WO, WO + 4 + 4 * n, WO + 20 + 4 * n, None if n == 0 else WO)
    def le_c():
        a("s_lshr_b32 s21, s2, 6")
        a("s_lshl_b32 s21, s21, 14")
        a("s_lshl_b32 s22, s62, 8")
        a("s_add_u32 s21, s21, s22")
        a("s_lshl_b32 s22, s20, 7")
        a("s_add_u32 s21, s21, s22")
        a(f"s_add_u32 s21, s21, {WS_MPL}")
        a("v_lshlrev_b32 v5, 3, v2")
        a(f"v_mov_b32 v{WO+1}, s48")
        a("s_mov_b64 exec, 0xffff")
        a(f"buffer_store_dwordx2 v[{WO}:{WO+1}], v5, s[16:19], s21 offen sc1")
        a("s_mov_b64 exec, -1")
    hook(9, lambda: w12(le_issue))
    hook(14, lambda: w12(le_a)); hook(15, lambda: w12(le_b)); hook(16, lambda: w12(le_c))
    def h_prio():
        l = a.newlabel("Lpr")
        a("s_cmp_lt_u32 s32, 4")
        a(f"s_cbranch_scc1 {l}")
        a("s_setprio 1")
        a.label(l)
    hook(BT, h_prio)
    hook(FLIP, lambda: a("s_setprio 0"))
    def h_wo(r):
        def f():
            if r == 0: srd(a, 12, 10, 512 * 1024)
            a("s_mov_b32 m0, s36")
            for n in range(4):
                a(f"s_mov_b32 s20, {32768*(4*r+n) - 1024*n}")
                a(f"buffer_load_dwordx4 v1, s[12:15], s20 offen offset:{1024*n} lds")
        return f
    def h_misc():
        a(f"global_load_dwordx4 v[{XT}:{XT+3}], v111, s[6:7]")
        a("s_lshl_b32 s21, s42, 8")
        a("v_lshl_add_u32 v5, v8, 4, s21")
        a("global_load_dwordx4 v[248:251], v5, s[52:53]")
        a("global_load_dwordx4 v[252:255], v9, s[52:53]")
    def h_moe_setup():
        l = a.newlabel("Lms"); l2 = a.newlabel("Lms")
        a("s_cmp_ge_u32 s2, 112")
        a(f"s_cbranch_scc1 {l}")
        a("v_mul_u32_u24 v109, 3584, v11")
        a("v_add_u32 v109, v109, v10")
        a("s_and_b32 s20, s32, 1")
        a("s_cmp_eq_u32 s20, 0")
        a("s_cselect_b32 s24, s54, s56")
        a("s_cselect_b32 s25, s55, s57")
        a(f"s_mov_b32 s26, {512*3584}")
        a("s_lshr_b32 s20, s32, 1")
        a(f"s_mul_i32 s43, s20, {128*3584}")
        a("s_and_b32 s33, s2, 7")
        a("s_mul_i32 s33, s33, 14")
        a("s_lshr_b32 s20, s2, 3")
        a("s_add_u32 s33, s33, s20")
        a("s_lshl_b32 s20, s33, 5")
        a("s_add_u32 s43, s43, s20")
        a(f"s_mov_b32 s61, {32*3584}")
        a(f"s_branch {l2}")
        a.label(l)
        a("v_lshl_add_u32 v109, v11, 10, v10")
        a("s_mov_b32 s24, s58")
        a("s_mov_b32 s25, s59")
        a(f"s_mov_b32 s26, {1792*1024}")
        a(f"s_mul_i32 s43, s32, {224*1024}")
        a("s_and_b32 s33, s2, 7")
        a("s_lshl_b32 s33, s33, 2")
        a("s_sub_u32 s20, s2, 112")
        a("s_bfe_u32 s20, s20, 0x20003")
        a("s_add_u32 s33, s33, s20")
        a("s_lshl_b32 s20, s33, 5")
        a("s_add_u32 s43, s43, s20")
        a(f"s_mov_b32 s61, {32*1024}")
        a.label(l2)
    def h_moe(n):
        def f():
            l = a.newlabel("Lmd")
            a("s_cmp_ge_u32 s2, 144")
            a(f"s_cbranch_scc1 {l}")
            if n >= 4:
                a("s_cmp_lt_u32 s2, 112")
                a(f"s_cbranch_scc1 {l}")
            a(f"buffer_load_dwordx4 v[{MW+4*n}:{MW+4*n+3}], v109, s[24:27], s43 offen")
            a("s_add_u32 s43, s43, s61")
            a.label(l)
        return f
    def cv_write(base, n):
        def f():
            for i in range(n): a(f"ds_write_b128 v1, v[{base+4*i}:{base+4*i+3}] offset:{1024*i}")
        return f
    def cv_wo(r):
        def f():
            for n in range(4):
                b = WO + 16 * r + 4 * n
                a(f"ds_read_b64_tr_b16 v[{b}:{b+1}], v110 offset:{1024*n}")
                a(f"ds_read_b64_tr_b16 v[{b+2}:{b+3}], v110 offset:{1024*n+256}")
        return f
    def cv_moe(base, n):
        def f():
            for i in range(n): trr(a, MW + base + 4 * i, 14, 15, 1024 * i)
        return f
    def lg_issue(lo=0, hi=4):
        a("v_lshlrev_b32 v5, 5, v0")
        for rg in range(lo, hi):
            a(f"s_mov_b32 s22, {WS_MPL + 16384*rg}")
            a(f"buffer_load_dwordx4 v[{GA+8*rg}:{GA+8*rg+3}], v5, s[16:19], s22 offen sc1")
            a(f"buffer_load_dwordx4 v[{GA+8*rg+4}:{GA+8*rg+7}], v5, s[16:19], s22 offen offset:16 sc1")
    WT = [15, 25, 35, 45]
    MT = [int(x) for x in os.environ.get('MT', '27,30,37,40,47,49,51').split(',')]
    def h_touch():
        l = a.newlabel("Ltc")
        a("s_cmp_lt_u32 s2, 144")
        a(f"s_cbranch_scc1 {l}")
        a("s_cmp_gt_u32 s32, 1")
        a(f"s_cbranch_scc1 {l}")
        a("s_sub_u32 s20, s2, 144")
        a("s_lshr_b32 s20, s20, 3")
        a("s_lshl_b32 s20, s20, 1")
        a("s_add_u32 s20, s20, s32")
        a("s_lshl_b32 s20, s20, 16")
        a("s_and_b32 s21, s2, 7")
        a("s_lshl_b32 s21, s21, 7")
        a("s_add_u32 s20, s20, s21")
        a("v_lshl_add_u32 v5, v2, 10, s20")
        a(f"global_load_dword v{XT}, v5, s[58:59]")
        a.label(l)
    if TOUCHD: hook(TOUCHD, h_touch)
    def h_touch_gu():
        l = a.newlabel("Ltg")
        a("s_cmp_lt_u32 s2, 144")
        a(f"s_cbranch_scc1 {l}")
        a("s_cmp_lt_u32 s32, 2")
        a(f"s_cbranch_scc1 {l}")
        a("s_and_b32 s20, s32, 1")
        a("s_cmp_eq_u32 s20, 0")
        a("s_cselect_b32 s24, s54, s56")
        a("s_cselect_b32 s25, s55, s57")
        a(f"s_mov_b32 s26, {512*3584}")
        a("s_sub_u32 s20, s2, 144")
        a("s_lshr_b32 s20, s20, 3")
        a("s_mul_i32 s20, s20, 3")
        a("s_lshr_b32 s21, s32, 1")
        a("s_add_u32 s20, s20, s21")
        a("s_lshl_b32 s20, s20, 6")
        a("s_sub_u32 s20, s20, 64")
        a("v_add_u32 v5, s20, v2")
        a("v_mul_u32_u24 v6, 13108, v5")
        a("v_lshrrev_b32 v6, 16, v6")
        a("v_mul_u32_u24 v7, 5, v6")
        a("v_sub_u32 v5, v5, v7")
        a("v_mul_u32_u24 v6, 3584, v6")
        a("v_lshl_add_u32 v5, v5, 7, v6")
        a("s_and_b32 s21, s2, 7")
        a("s_mul_i32 s21, s21, 448")
        a("s_and_b32 s21, s21, 0xff80")
        a(f"buffer_load_dword v{XT}, v5, s[24:27], s21 offen")
        a.label(l)
    if TOUCHG: hook(TOUCHG, h_touch_gu)
    def h_touch_wo():
        l = a.newlabel("Ltw")
        a("s_sub_u32 s20, s32, 2")
        a("s_cmp_gt_u32 s20, 1")
        a(f"s_cbranch_scc1 {l}")
        a("s_lshr_b32 s21, s2, 3")
        a("s_lshl_b32 s21, s21, 1")
        a("s_add_u32 s20, s20, s21")
        a("s_lshl_b32 s20, s20, 13")
        a("v_lshl_add_u32 v5, v2, 7, s20")
        a(f"global_load_dword v{XT}, v5, s[10:11]")
        a.label(l)
    if TOUCHW: hook(TOUCHW, h_touch_wo)
    hook(15, h_moe_setup)
    for r in range(4):
        if r: hook(WT[r], h_wo(r), 'w')
        else:
            def not12():
                l = a.newlabel("Ln12")
                a("s_sub_u32 s20, s32, 1")
                a("s_cmp_lt_u32 s20, 2")
                a(f"s_cbranch_scc1 {l}")
                h_wo(0)()
                a.label(l)
            hook(WT[0], not12)
            hook(WT[0] + 2, lambda: w12(h_wo(0)))
        hook(WT[r] + 9, lambda: a("s_waitcnt vmcnt(0)") if False else None)
    for n in range(7): hook(MT[n], h_moe(n), 'm')
    hook(43, h_misc)
    def h_prew():
        a("s_xor_b32 s20, s48, 0x80000000")
        a("v_mov_b32 v5, s20")
        a("v_lshlrev_b32 v6, 2, v2")
        a("s_lshl_b32 s21, s41, 12")
        a("s_lshl_b32 s22, s42, 10")
        a("s_add_u32 s21, s21, s22")
        a("s_lshl_b32 s22, s32, 7")
        a("s_add_u32 s21, s21, s22")
        a(f"s_add_u32 s21, s21, {WS_ST2}")
        a("s_mov_b32 exec_hi, 0")
        a("buffer_store_dword v5, v6, s[16:19], s21 offen sc1")
        a("s_lshl_b32 s21, s34, 12")
        a("s_lshl_b32 s22, s30, 7")
        a("s_add_u32 s21, s21, s22")
        a(f"s_add_u32 s21, s21, {WS_F2}")
        a("buffer_store_dword v5, v6, s[16:19], s21 offen sc1")
        l = a.newlabel("Lpw")
        a("s_or_b32 s20, s42, s32")
        a(f"s_cbranch_scc1 {l}")
        a(f"s_lshl_b32 s21, s41, {TOPSH}")
        a(f"s_add_u32 s21, s21, {WS_TOP}")
        a("buffer_store_dword v5, v6, s[16:19], s21 offen sc1")
        a.label(l)
        a("s_mov_b64 exec, -1")
    if PREW: hook(PREW, h_prew)
    def h_preo():
        a("s_lshl_b32 s21, s34, 15")
        a("s_lshl_b32 s22, s30, 10")
        a("s_add_u32 s21, s21, s22")
        a(f"s_add_u32 s21, s21, {WS_OF}")
        a(f"buffer_store_dwordx4 v[{Q}:{Q+3}], v9, s[16:19], s21 offen sc1")
    if PREO: hook(PREO, h_preo)
    for rg in range(4): hook(50 + rg, lambda rg=rg: lg_issue(rg, rg + 1), 'l')
    def wo_wait(r):
        def f():
            fixed = {0: 0, 1: 0, 2: 3, 3: 8}[r]
            inr = [n for n in range(7) if WT[r] < MT[n] < WT[r] + 9]
            ngu = len([n for n in inr if n < 4]); ndn = len(inr)
            l1 = a.newlabel("Lww"); l2 = a.newlabel("Lww")
            a(f"s_waitcnt vmcnt({fixed + ndn})")
            if ndn:
                a("s_sub_u32 s20, s2, 112")
                a("s_cmp_lt_u32 s20, 32")
                a(f"s_cbranch_scc1 {l2}")
                if ngu:
                    a(f"s_waitcnt vmcnt({fixed + ngu})")
                    a("s_cmp_lt_u32 s2, 112")
                    a(f"s_cbranch_scc1 {l2}")
                a(f"s_waitcnt vmcnt({fixed})")
                a.label(l2)
        return f
    for r in range(4):
        hook(WT[r] + 9, wo_wait(r), 'w')
        hook(WT[r] + 9, cv_wo(r), 'c')
    hook(56, lambda: a("v_add_u32 v1, s36, v9"))
    for t, nm in [(23, "t23"), (42, "t42")] + [(t, f"a{t}") for t in range(0, 64, 4)]:
        hook(t, lambda nm=nm: stamp(a, nm))

    def tile(t, off, hooks):
        cur = S[t & 1]; nxt = S[(t + 1) & 1]
        e = lambda i: a(f"v_exp_f32 v{cur+i}, v{cur+i}")
        vp = V[(t + 1) & 1]; kn = K[(t + 1) & 1]; kc = K[t & 1]; vc = V[t & 1]
        if TILEV:
            a("s_waitcnt lgkmcnt(0)")
            for fn in hooks.get(t, []): fn()
            a.raw(f".p2align {TILEV}")
            a(f"v_exp_f32_e64 v{cur}, v{cur}")
            e(1); e(2)
            a(f"v_smfmac_f32_32x32x32_bf16 v[{O}:{O+15}], v[{vp+4}:{vp+7}], v[{nxt+8}:{nxt+15}], v{IDX}")
            e(3); e(4); e(5); e(6)
            a(f"v_mfma_f32_32x32x16_bf16 v[{nxt}:{nxt+15}], v[{kn}:{kn+3}], v[{Q}:{Q+3}], v[{C}:{C+15}]")
            e(7)
            a("s_mov_b64 exec, s[38:39]")
            a(f"ds_read_b128 v[{vp}:{vp+3}], v4 offset:{2048*(off+1)}")
            a(f"ds_read_b128 v[{vp+4}:{vp+7}], v4 offset:{2048*(off+1)+512}")
            a("s_mov_b64 exec, -1")
            e(8)
            a(f"ds_read_b128 v[{kc}:{kc+3}], v3 offset:{2048*(off+2)}")
            e(9); e(10)
            a(f"v_smfmac_f32_32x32x32_bf16 v[{O}:{O+15}], v[{vc}:{vc+3}], v[{cur}:{cur+7}], v{IDX}")
            for i in range(11, 16): e(i)
            return
        a("s_waitcnt lgkmcnt(0)")
        for fn in hooks.get(t, []): fn()
        if B8 and hooks and t == 8:
            a(f"ds_read_b128 v[{kc}:{kc+3}], v3 offset:{2048*8}")
            a(f"ds_read_b128 v[{kn}:{kn+3}], v3 offset:{2048*9}")
            a("s_mov_b64 exec, s[38:39]")
            a(f"ds_read_b128 v[{vc}:{vc+3}], v4 offset:{2048*8}")
            a(f"ds_read_b128 v[{vc+4}:{vc+7}], v4 offset:{2048*8+512}")
            a("s_mov_b64 exec, -1")
            a("s_waitcnt lgkmcnt(3)")
            a(f"v_mfma_f32_32x32x16_bf16 v[{cur}:{cur+15}], v[{kc}:{kc+3}], v[{Q}:{Q+3}], v[{C}:{C+15}]")
            a("s_waitcnt lgkmcnt(0)")
            a("s_nop 10")
        if B8 and hooks and t in (6, 7):
            e(0); e(1); e(2)
            a(f"v_smfmac_f32_32x32x32_bf16 v[{O}:{O+15}], v[{vp+4}:{vp+7}], v[{nxt+8}:{nxt+15}], v{IDX}")
            e(3); e(4); e(5); e(6)
            if t == 6:
                a(f"v_mfma_f32_32x32x16_bf16 v[{nxt}:{nxt+15}], v[{kn}:{kn+3}], v[{Q}:{Q+3}], v[{C}:{C+15}]")
                a("s_mov_b64 exec, s[38:39]")
                a(f"ds_read_b128 v[{vp}:{vp+3}], v4 offset:{2048*(off+1)}")
                a(f"ds_read_b128 v[{vp+4}:{vp+7}], v4 offset:{2048*(off+1)+512}")
                a("s_mov_b64 exec, -1")
            for i in range(7, 12): e(i)
            a(f"v_smfmac_f32_32x32x32_bf16 v[{O}:{O+15}], v[{vc}:{vc+3}], v[{cur}:{cur+7}], v{IDX}")
            for i in range(12, 16): e(i)
            return
        e(0); e(1); e(2)
        a(f"v_smfmac_f32_32x32x32_bf16 v[{O}:{O+15}], v[{vp+4}:{vp+7}], v[{nxt+8}:{nxt+15}], v{IDX}")
        e(3); e(4); e(5); e(6)
        a(f"v_mfma_f32_32x32x16_bf16 v[{nxt}:{nxt+15}], v[{kn}:{kn+3}], v[{Q}:{Q+3}], v[{C}:{C+15}]")
        a(f"ds_read_b128 v[{kc}:{kc+3}], v3 offset:{2048*(off+2)}")
        a("s_mov_b64 exec, s[38:39]")
        a(f"ds_read_b128 v[{vp}:{vp+3}], v4 offset:{2048*(off+1)}")
        a(f"ds_read_b128 v[{vp+4}:{vp+7}], v4 offset:{2048*(off+1)+512}")
        a("s_mov_b64 exec, -1")
        for i in range(7, 12): e(i)
        a(f"v_smfmac_f32_32x32x32_bf16 v[{O}:{O+15}], v[{vc}:{vc+3}], v[{cur}:{cur+7}], v{IDX}")
        for i in range(12, 16): e(i)
    for t in range(64):
        if t and t % 16 == 0:
            a("v_add_u32 v3, 0x8000, v3")
            a("v_add_u32 v4, 0x8000, v4")
        tile(t, t % 16, hooks)
    a("v_subrev_u32 v3, 0x18000, v3")
    a("v_subrev_u32 v4, 0x18000, v4")
    a.label("main_attn_tail")
    a(f"v_smfmac_f32_32x32x32_bf16 v[{O}:{O+15}], v[{V[1]+4}:{V[1]+7}], v[{S[1]+8}:{S[1]+15}], v{IDX}")
    stamp(a, "att1")
    a("s_lshl_b32 s21, s34, 15")
    a("s_lshl_b32 s22, s30, 10")
    a("s_add_u32 s21, s21, s22")
    a(f"s_add_u32 s21, s21, {WS_OF}")
    a(f"v_mov_b32 v6, {f32(2.0**40)}")
    a("s_waitcnt lgkmcnt(0)")
    a("s_nop 5")
    a(f"v_mov_b32 v7, v{O+8}")
    a(f"v_add_f32 v5, abs(v{O}), abs(v{O+1})")
    a(f"v_add_f32 v5, v5, abs(v{O+2})")
    a(f"v_permlane32_swap_b32 v{O+8}, v7")
    for i in range(3, 8):
        a(f"v_add_f32 v5, v5, abs(v{O+i})")
    a(f"v_mov_b32 v7, {f32(3.0e38)}")
    a(f"v_cmp_nle_f32 vcc, v{O+8}, v6")
    a(f"v_cmp_nle_f32 s[22:23], v5, v7")
    a("s_or_b64 vcc, vcc, s[22:23]")
    a("s_cmp_lg_u32 s37, 0")
    a("s_cbranch_scc1 main_fin")
    a("s_cbranch_vccnz main_fallback")
    a.label("main_fin")
    a(f"v_rcp_f32 v6, v{O+8}")
    a("s_nop 0")
    for i in range(8):
        a(f"v_mul_f32 v{O+i}, v{O+i}, v6")
    for i in range(4):
        a(f"v_cvt_pk_bf16_f32 v{16+i}, v{O+2*i}, v{O+2*i+1}")
    a("buffer_store_dwordx4 v[16:19], v9, s[16:19], s21 offen sc1")
    a("s_lshl_b32 s21, s34, 12")
    a("s_lshl_b32 s22, s30, 7")
    a("s_add_u32 s21, s21, s22")
    a(f"s_add_u32 s21, s21, {WS_F2}")
    a("v_mov_b32 v5, 0")
    a("v_mov_b32 v6, s48")
    def f2_store():
        a("s_mov_b64 exec, 1")
        a("buffer_store_dword v6, v5, s[16:19], s21 offen sc1")
        a("s_mov_b64 exec, -1")
        stamp(a, "f2")
    if OSENT: f2_store()
    a("v_lshrrev_b32 v20, 5, v2")
    a("v_lshlrev_b32 v20, 10, v20")
    a("v_bfe_u32 v21, v2, 4, 1")
    a("v_lshl_add_u32 v20, v21, 9, v20")
    a("v_lshl_add_u32 v20, v8, 4, v20")
    a("v_mul_u32_u24 v22, 528, v8")
    a("v_lshrrev_b32 v23, 4, v2")
    a("v_lshl_add_u32 v22, v23, 4, v22")
    a("s_lshl_b32 s22, s32, 6")
    a("s_add_u32 s22, s22, 32768")
    a("v_add_u32 v22, s22, v22")
    a("v_lshrrev_b32 v24, 4, v0")
    a("v_mul_u32_u24 v23, 528, v24")
    a("v_lshl_add_u32 v23, v8, 5, v23")
    a("v_add_u32 v23, 32768, v23")
    if ST2P:
        a("v_and_b32 v12, 48, v2")
        a("s_lshl_b32 s22, s32, 7")
        a("v_add_u32 v12, s22, v12")
        a("v_and_b32 v13, 3, v0")
        a("v_lshl_add_u32 v13, v13, 10, v12")
    else:
        a("v_lshlrev_b32 v12, 4, v24")
        a("v_and_b32 v13, 3, v0")
        a("v_lshl_add_u32 v13, v13, 9, v12")
    a("v_lshrrev_b32 v109, 10, v111")
    a("v_sub_u32 v109, 2047, v109")
    a("v_lshl_or_b32 v109, v109, 1, 1")
    a("v_lshlrev_b32 v110, 2, v24")
    a("v_add_u32 v110, 65536, v110")
    a(f"s_waitcnt vmcnt({2 if OSENT else 0})")
    unpack8(a, 40, XT)
    if not OSENT: f2_store()
    cv_write(MW, 4)(); cv_moe(0, 4)(); cv_write(MW + 16, 3)(); cv_moe(16, 3)()
    lchk = lambda: chk_ne(a, [GA + 2 * i + 1 for i in range(16)])
    lchk()
    a("s_cbranch_scc1 main_lok")
    poll_loop(a, lg_issue, lchk, "Ll")
    a.label("main_lok")
    for c in range(4):
        a(f"v_add_f32 v{GA+2*c}, v{GA+2*c}, v{GA+8+2*c}")
        a(f"v_add_f32 v{GA+16+2*c}, v{GA+16+2*c}, v{GA+24+2*c}")
        a(f"v_add_f32 v{56+c}, v{GA+2*c}, v{GA+16+2*c}")
    a("s_lshr_b32 s20, s32, 1")
    a("s_cmp_eq_u32 s20, 2")
    a("s_cselect_b32 s20, 1.0, 0")
    rnd_pair(a, 56, 57, 5); rnd_pair(a, 58, 59, 5)
    for c in range(4): a(f"v_add_f32 v{56+c}, s20, v{56+c}")
    rnd_pair(a, 56, 57, 5); rnd_pair(a, 58, 59, 5)
    a("ds_write_b128 v1, v[56:59]")
    a("s_lshr_b32 s20, s42, 1")
    a("s_lshl_b32 s20, s20, 12")
    a("s_and_b32 s21, s42, 1")
    a("s_lshl_b32 s21, s21, 9")
    a("s_add_u32 s20, s20, s21")
    a(f"s_add_u32 s20, s20, {STG}")
    a("v_lshl_add_u32 v10, v8, 5, s20")
    a("v_lshrrev_b32 v11, 5, v2")
    a("v_lshlrev_b32 v11, 12, v11")
    a("v_and_b32 v5, 31, v2")
    a("v_lshl_add_u32 v11, v5, 5, v11")
    a(f"v_add_u32 v11, {STG}, v11")
    unpack8(a, 72, 252)
    for i in range(4):
        a(f"v_lshlrev_b32 v{WP+2*i}, 16, v{248+i}")
        a(f"v_and_b32 v{WP+2*i+1}, 0xffff0000, v{248+i}")
    a("s_waitcnt lgkmcnt(0)")
    a("s_cmp_lg_u32 s32, 0")
    a("s_cbranch_scc1 main_s2")
    a("v_and_b32 v5, 31, v2")
    a("v_lshlrev_b32 v5, 7, v5")
    a("s_lshl_b32 s22, s41, 12")
    a(f"s_add_u32 s22, s22, {WS_F2}")
    poll_loop(a, lambda: a("buffer_load_dword v6, v5, s[16:19], s22 offen" + PF), lambda: chk_ne(a, [6]), "Lo", sleep=F2S)
    a.label("main_s2")
    a("s_lshl_b32 s23, s32, 12")
    a("s_lshl_b32 s22, s41, 15")
    a("s_add_u32 s22, s22, s23")
    a(f"s_add_u32 s62, s22, {WS_OF}")
    a("v_add_u32 v27, s23, v9")
    a("s_mov_b32 m0, s23")
    a("s_barrier")
    stamp(a, "s2")
    for n in range(4):
        a(f"buffer_load_dwordx4 v9, s[16:19], s62 offen offset:{1024*n} sc1 lds")
    a(f"s_lshl_b32 s21, s41, {11 + ST2P}")
    a(f"s_add_u32 s21, s21, {WS_ST2}")
    a(f"s_lshl_b32 s22, s42, {9 + ST2P}")
    a("s_add_u32 s22, s22, s21")
    a("s_mov_b32 s24, 0x00010001")
    a("s_mov_b32 s25, 0x00010001")
    a("v_mov_b32 v55, s48")
    for j, reg in enumerate((GA, SB, CB, GB)):
        a(f"ds_read_b128 v[{reg}:{reg+3}], v10 offset:{8192*j}")
        a(f"ds_read_b128 v[{reg+4}:{reg+7}], v10 offset:{8192*j+16}")
    for j in range(2):
        a(f"ds_read_b128 v[{56+8*j}:{59+8*j}], v11 offset:{8192*(j+1)}")
        a(f"ds_read_b128 v[{60+8*j}:{63+8*j}], v11 offset:{8192*(j+1)+16}")
    a("s_waitcnt lgkmcnt(0)")
    for i in range(8):
        a(f"v_mul_f32 v{WP+i}, v{WP+i}, v{CB+i}")
    a("v_mul_f32 v252, v72, v64")
    a("v_mul_f32 v253, v72, v56")
    for i in range(1, 8):
        a(f"v_fmac_f32 v252, v{72+i}, v{64+i}")
        a(f"v_fmac_f32 v253, v{72+i}, v{56+i}")
    multi_allreduce(a, [252, 253], [5, 6])
    a("s_waitcnt vmcnt(0)")
    if OSENT:
        a(f"s_mov_b32 s60, {SPIN}")
        a.label("main_ov")
        for n in range(4): a(f"ds_read_b32 v{28+n}, v27 offset:{1024*n}")
        a("s_waitcnt lgkmcnt(0)")
        a("v_max3_u32 v28, v28, v29, v30")
        a("v_max_u32 v28, v28, v31")
        a("v_cmp_eq_u32 vcc, -1, v28")
        a("s_cbranch_vccz main_ok")
        for n in range(4):
            a(f"buffer_load_dwordx4 v9, s[16:19], s62 offen offset:{1024*n} sc1 lds")
        a("s_sub_u32 s60, s60, 1")
        a("s_waitcnt vmcnt(0)")
        a("s_cmp_lg_u32 s60, 0")
        a("s_cbranch_scc1 main_ov")
        a.label("main_ok")
    a("s_barrier")
    stamp(a, "olan")
    OFR = 56
    def rd(s):
        b = OFR + 8 * (s % 4)
        a(f"ds_read_b128 v[{b}:{b+3}], v20 offset:{2048*s}")
        a(f"ds_read_b128 v[{b+4}:{b+7}], v20 offset:{2048*s+256}")
    rd(0); rd(1); rd(2)
    for s in range(16):
        if s < 13:
            rd(s + 3)
            a("s_waitcnt lgkmcnt(6)")
        else:
            a(f"s_waitcnt lgkmcnt({2*(15-s)})")
        b = OFR + 8 * (s % 4)
        stamp(a, f"o{s}")
        for u in range(2):
            mf16(a, 24 + 4 * u, WO + 4 * s, b + 4 * u, None if s == 0 else 24 + 4 * u)
    stamp(a, "omf")
    a("s_nop 6")
    a("ds_write_b128 v22, v[24:27]")
    a(f"ds_write_b128 v22, v[28:31] offset:{16*528}")
    a("s_waitcnt lgkmcnt(0)")
    a("s_barrier")
    stamp(a, "tbar")
    a("ds_read_b128 v[32:35], v23")
    a("ds_read_b128 v[36:39], v23 offset:16")
    a("s_mov_b32 s23, 0xffff0000")
    def rnd4(lo):
        for i in lo: a(f"v_cvt_pk_bf16_f32 v{56+i//2}, v{32+i}, v{33+i}")
        for i in lo:
            a(f"v_lshlrev_b32 v{32+i}, 16, v{56+i//2}")
            a(f"v_and_b32 v{33+i}, s23, v{56+i//2}")
    a("s_waitcnt lgkmcnt(0)")
    E = (0, 2, 4, 6)
    rnd4(E)
    for i in E: a(f"v_pk_mul_f32 v[{32+i}:{33+i}], v[{32+i}:{33+i}], v[{GA+i}:{GA+i+1}]")
    rnd4(E)
    for i in E: a(f"v_pk_add_f32 v[{32+i}:{33+i}], v[{32+i}:{33+i}], v[{40+i}:{41+i}]")
    for i in E: a(f"v_cvt_pk_bf16_f32 v{48+i//2}, v{32+i}, v{33+i}")
    for i in E:
        a(f"v_lshlrev_b32 v{32+i}, 16, v{48+i//2}")
        a(f"v_and_b32 v{33+i}, s23, v{48+i//2}")
    a("v_pk_add_f32 v[56:57], v[32:33], v[34:35]")
    a("v_pk_mul_f32 v[58:59], v[32:33], v[32:33]")
    a(f"v_pk_mul_f32 v[60:61], v[32:33], v[{WP}:{WP+1}]")
    for i in (2, 4, 6):
        if i > 2: a(f"v_pk_add_f32 v[56:57], v[56:57], v[{32+i}:{33+i}]")
        a(f"v_pk_fma_f32 v[58:59], v[{32+i}:{33+i}], v[{32+i}:{33+i}], v[58:59]")
        a(f"v_pk_fma_f32 v[60:61], v[{32+i}:{33+i}], v[{WP+i}:{WP+i+1}], v[60:61]")
    a("v_add_f32 v52, v56, v57")
    a("v_add_f32 v53, v58, v59")
    a("v_add_f32 v54, v60, v61")
    a("s_nop 0")
    for n in (8, 4, 2, 1):
        for r in (52, 53, 54):
            a(f"v_add_f32_dpp v{r}, v{r}, v{r} row_ror:{n} row_mask:0xf bank_mask:0xf")
    a("s_mov_b64 exec, s[24:25]")
    a("buffer_store_dwordx4 v[52:55], v12, s[16:19], s22 offen sc1")
    a("s_mov_b64 exec, -1")
    stamp(a, "st2")
    poll_loop(a, lambda: (a(f"s_sleep {S3D}"), a("buffer_load_dwordx4 v[56:59], v13, s[16:19], s21 offen" + PF)), lambda: chk_ne(a, [59]), "Ls", sleep=0)
    stamp(a, "s3")
    for qp in ("[1,0,3,2]", "[2,3,0,1]"):
        for r in (56, 57, 58):
            a(f"v_add_f32_dpp v{r}, v{r}, v{r} quad_perm:{qp} row_mask:0xf bank_mask:0xf")
    a(f"v_mul_f32 v56, {f32(1/512)}, v56")
    a(f"v_mul_f32 v57, {f32(1/512)}, v57")
    a("v_fma_f32 v57, -v56, v56, v57")
    a("v_max_f32 v57, 0, v57")
    rnd_pair(a, 56, 57, 26)
    a(f"v_add_f32 v57, {f32(1e-5)}, v57")
    rnd_bf16(a, 57)
    a("v_sqrt_f32 v57, v57")
    a("v_fma_f32 v58, -v56, v252, v58")
    rnd_bf16(a, 57)
    a("v_rcp_f32 v57, v57")
    a("s_nop 0")
    a("v_fma_f32 v58, v58, v57, v253")
    a("v_cvt_pk_bf16_f32 v58, v58, v58")
    a("v_ashrrev_i32 v59, 31, v58")
    a("v_or_b32 v59, 0x80000000, v59")
    a("v_xor_b32 v58, v58, v59")
    a("v_and_b32 v58, 0xffff0000, v58")
    a("v_or_b32 v58, v58, v109")
    a("ds_write_b32 v110, v58")
    a("v_and_b32 v5, 31, v2")
    a("v_lshlrev_b32 v5, 2, v5")
    a("v_add_u32 v5, 65536, v5")
    a("s_waitcnt lgkmcnt(0)")
    a("s_barrier")
    stamp(a, "kbar")
    a("ds_read_b32 v10, v5")
    def h2_math(i):
        a(f"v_sub_f32 v{40+i}, v{32+i}, v56")
        a(f"v_sub_f32 v{41+i}, v{33+i}, v56")
        rnd_pair(a, 40 + i, 41 + i, 26)
        a(f"v_mul_f32 v{40+i}, v{40+i}, v57")
        a(f"v_mul_f32 v{41+i}, v{41+i}, v57")
        rnd_pair(a, 40 + i, 41 + i, 26)
        a(f"v_mul_f32 v{40+i}, v{40+i}, v{CB+i}")
        a(f"v_mul_f32 v{41+i}, v{41+i}, v{CB+i+1}")
        rnd_pair(a, 40 + i, 41 + i, 26)
        a(f"v_add_f32 v{40+i}, v{40+i}, v{SB+i}")
        a(f"v_add_f32 v{41+i}, v{41+i}, v{SB+i+1}")
        a(f"v_cvt_pk_bf16_f32 v{60+i//2}, v{40+i}, v{41+i}")
    h2_math(0)
    a("s_waitcnt lgkmcnt(0)")
    a("v_mov_b32 v64, v10")
    multi_allreduce(a, [64], [11], op="v_max_u32")
    a("v_cmp_eq_u32 vcc, v64, v10")
    a("s_nop 1")
    a("v_cndmask_b32 v65, v10, 0, vcc")
    multi_allreduce(a, [65], [11], op="v_max_u32")
    a("v_cmp_eq_u32 s[26:27], v64, v58")
    a("v_cmp_eq_u32 s[28:29], v65, v58")
    a("s_or_b32 s20, s42, s32")
    a("s_cmp_lg_u32 s20, 0")
    a("s_cbranch_scc1 main_notop")
    a("v_and_b32 v65, -2, v65")
    a("v_mov_b32 v66, s48")
    a("v_mov_b32 v67, s48")
    a(f"s_lshl_b32 s20, s41, {TOPSH}")
    a(f"s_add_u32 s20, s20, {WS_TOP}")
    a("v_mov_b32 v5, 0")
    a("s_mov_b64 exec, 1")
    a("buffer_store_dwordx4 v[64:67], v5, s[16:19], s20 offen sc1")
    a("s_mov_b64 exec, -1")
    a.label("main_notop")
    stamp(a, "top")
    for i in (2, 4, 6): h2_math(i)
    a("s_or_b64 s[62:63], s[26:27], s[28:29]")
    a("s_cmp_eq_u64 s[62:63], 0")
    a("s_cbranch_scc1 main_nocand")
    a("v_mov_b32 v5, 2048")
    a("v_cndmask_b32 v5, 0, v5, s[28:29]")
    a("v_lshl_add_u32 v5, v8, 4, v5")
    a("s_lshl_b32 s20, s41, 12")
    a("s_lshl_b32 s21, s42, 8")
    a("s_add_u32 s20, s20, s21")
    a(f"s_add_u32 s20, s20, {WS_CAND}")
    a("s_mov_b64 exec, s[62:63]")
    a("buffer_store_dwordx4 v[60:63], v5, s[16:19], s20 offen sc1")
    a("buffer_store_dwordx4 v[48:51], v5, s[16:19], s20 offen offset:1024 sc1")
    a("s_mov_b64 exec, -1")
    a.label("main_nocand")
    a("s_cmp_lg_u32 s32, 0")
    a("s_cbranch_scc1 main_notp")
    a(f"s_mov_b32 s22, {WS_TOP}")
    a(f"v_lshlrev_b32 v76, {TOPSH}, v2")
    a("buffer_load_dwordx4 v[68:71], v76, s[16:19], s22 offen" + PF)
    a.label("main_notp")
    for i in range(0, 8, 2):
        a(f"v_lshlrev_b32 v{40+i}, 16, v{60+i//2}")
        a(f"v_and_b32 v{41+i}, 0xffff0000, v{60+i//2}")
        a(f"v_mul_f32 v{40+i}, v{40+i}, v{GB+i}")
        a(f"v_mul_f32 v{41+i}, v{41+i}, v{GB+i+1}")
        rnd_pair(a, 40 + i, 41 + i, 26)
        a(f"v_add_f32 v{40+i}, v{40+i}, v{32+i}")
        a(f"v_add_f32 v{41+i}, v{41+i}, v{33+i}")
        a(f"v_cvt_pk_bf16_f32 v{72+i//2}, v{40+i}, v{41+i}")
    a("s_cmp_lg_u32 s32, 0")
    a("s_cbranch_scc1 main_w0e")
    def t_issue():
        if SLOWP:
            l = a.newlabel("Lsl")
            a("s_cmp_lt_u32 s2, 144")
            a(f"s_cbranch_scc1 {l}")
            a(f"s_sleep {SLOWP}")
            a.label(l)
        a("buffer_load_dwordx4 v[68:71], v76, s[16:19], s22 offen" + PF)
    poll_loop(a, t_issue, lambda: chk_ne(a, [70]), "Lt", first_issued=True, sleep=TSLEEP)
    a("v_mov_b32 v64, v68")
    multi_allreduce(a, [64], [11], op="v_max_u32")
    a("v_cmp_eq_u32 vcc, v64, v68")
    a("s_nop 1")
    a("v_cndmask_b32 v65, v68, v69, vcc")
    multi_allreduce(a, [65], [11], op="v_max_u32")
    a("v_mov_b32 v5, 65792")
    a("ds_write_b64 v5, v[64:65]")
    a("s_waitcnt lgkmcnt(0)")
    a.label("main_w0e")
    a("s_andn2_b64 exec, -1, s[62:63]")
    a("global_store_dwordx4 v111, v[72:75], s[50:51]" + OUTF)
    a("s_mov_b64 exec, -1")
    a("s_barrier")
    stamp(a, "s4")
    a("v_mov_b32 v5, 65792")
    a("ds_read_b64 v[64:65], v5")
    a("s_waitcnt lgkmcnt(0)")
    a("s_cmp_eq_u64 s[62:63], 0")
    a("s_cbranch_scc1 main_nodef")
    a("v_or_b32 v5, 1, v64")
    a("v_or_b32 v6, 1, v65")
    a("v_cmp_ne_u32 vcc, v5, v58")
    a("v_cmp_ne_u32 s[20:21], v6, v58")
    a("s_and_b64 vcc, vcc, s[20:21]")
    a("s_and_b64 exec, vcc, s[62:63]")
    a("s_cbranch_execz main_nodef")
    a("global_store_dwordx4 v111, v[72:75], s[50:51]" + OUTF)
    a.label("main_nodef")
    a("s_mov_b64 exec, -1")
    a("s_cmp_ge_u32 s2, 144")
    a("s_cbranch_scc1 main_done")
    def cand_off(key, d, t):
        a(f"v_bfe_u32 v{d}, v{key}, 6, 6")
        a(f"v_sub_u32 v{d}, 63, v{d}")
        a(f"v_lshlrev_b32 v{d}, 12, v{d}")
        a(f"v_not_b32 v{t}, v{key}")
        a(f"v_and_b32 v{t}, 1, v{t}")
        a(f"v_lshl_add_u32 v{d}, v{t}, 11, v{d}")
    a("s_cmp_ge_u32 s2, 112")
    a("s_cbranch_scc1 main_down")
    a("v_and_b32 v15, 1, v2")
    a("v_cmp_eq_u32 vcc, 0, v15")
    a("s_lshr_b32 s21, s32, 1")
    a("s_lshl_b32 s21, s21, 8")
    a("v_cndmask_b32 v16, v65, v64, vcc")
    cand_off(16, 17, 18)
    a("v_lshrrev_b32 v18, 4, v2")
    a("v_lshl_add_u32 v17, v18, 4, v17")
    a(f"s_add_u32 s22, s21, {WS_CAND}")
    def issue():
        for n in range(4):
            a(f"buffer_load_dwordx4 v[{32+4*n}:{35+4*n}], v17, s[16:19], s22 offen offset:{64*n} sc1")
    def check():
        a("v_max3_u32 v5, v32, v36, v40")
        a("v_max_u32 v5, v5, v44")
        a("v_cmp_eq_u32 vcc, -1, v5")
        a("s_cmp_eq_u64 vcc, 0")
    poll_loop(a, issue, check, "Lh", sleep=2)
    stamp(a, "moe")
    for n in range(4):
        mf16(a, 20, 32 + 4 * n, MW + 4 * n, None if n == 0 else 20)
    PB = 66560
    def partial_and_gather():
        a("s_lshl_b32 s23, s32, 7")
        a(f"s_add_u32 s23, s23, {PB}")
        a("v_lshl_add_u32 v24, v2, 2, s23")
        a("s_mov_b64 exec, 0xffff")
        a("s_nop 4")
        a("ds_write_b32 v24, v20")
        a("ds_write_b32 v24, v21 offset:64")
        a("s_mov_b64 exec, -1")
        a("s_waitcnt lgkmcnt(0)")
        a("s_barrier")
        a("s_cmp_lg_u32 s32, 0")
        a("s_cbranch_scc1 main_done")
        a("v_and_b32 v24, 31, v0")
        a("v_lshlrev_b32 v24, 2, v24")
        a(f"v_add_u32 v24, {PB}, v24")
        for w in range(8):
            a(f"ds_read_b32 v{32+w}, v24 offset:{128*w}")
    partial_and_gather()
    a("v_lshlrev_b32 v25, 1, v0")
    a("s_lshl_b32 s21, s33, 7")
    a(f"s_add_u32 s21, s21, {WS_ACT}")
    a("s_waitcnt lgkmcnt(0)")
    for w in range(2, 8):
        a(f"v_add_f32 v{32+(w&1)}, v{32+(w&1)}, v{32+w}")
    rnd_pair(a, 32, 33, 40)
    silu(a, 32, 34)
    rnd_bf16(a, 32)
    a("v_mul_f32 v32, v32, v33")
    a("s_nop 1")
    a("v_mov_b32_dpp v33, v32 quad_perm:[1,0,3,2] row_mask:0xf bank_mask:0xf")
    a("v_cvt_pk_bf16_f32 v32, v32, v33")
    a("s_mov_b64 exec, 0x55555555")
    a("buffer_store_dword v32, v25, s[16:19], s21 offen sc1")
    a("s_mov_b64 exec, -1")
    a("s_branch main_done")
    a.label("main_down")
    if STAMPS is not None and "moe" in STAMPS: Prof.n -= 1
    a("v_bfe_u32 v15, v0, 4, 1")
    a("v_cmp_eq_u32 vcc, 0, v15")
    a("s_lshl_b32 s21, s33, 5")
    a(f"s_add_u32 s22, s21, {WS_CAND}")
    a("v_cndmask_b32 v12, v65, v64, vcc")
    cand_off(12, 16, 17)
    a("v_and_b32 v17, 14, v8")
    a("v_lshl_add_u32 v16, v17, 1, v16")
    def issue():
        a("buffer_load_dword v17, v16, s[16:19], s22 offen sc1")
        a("buffer_load_dword v18, v16, s[16:19], s22 offen offset:1024 sc1")
    def check():
        a("v_max_u32 v5, v17, v18")
        a("v_cmp_eq_u32 vcc, -1, v5")
        a("s_cmp_eq_u64 vcc, 0")
    a("s_lshr_b32 s23, s33, 4")
    a("s_lshl_b32 s23, s23, 12")
    a("s_and_b32 s20, s33, 15")
    a("s_lshl_b32 s20, s20, 6")
    a("s_add_u32 s23, s23, s20")
    a(f"s_add_u32 s23, s23, {STG + 3*8192}")
    a("v_lshl_add_u32 v19, v8, 2, s23")
    a("ds_read_b32 v19, v19")
    poll_loop(a, issue, check, "Lf", sleep=2)
    a("v_bfe_u32 v15, v12, 1, 11")
    a("v_sub_u32 v15, 2047, v15")
    a("v_lshlrev_b32 v15, 10, v15")
    a("v_lshl_add_u32 v15, v8, 1, v15")
    a("v_add_u32 v15, s21, v15")
    a("v_and_b32 v16, 1, v0")
    a("v_lshlrev_b32 v16, 4, v16")
    a("v_lshrrev_b32 v17, v16, v17")
    a("v_lshrrev_b32 v18, v16, v18")
    a("v_lshlrev_b32 v17, 16, v17")
    a("v_lshlrev_b32 v18, 16, v18")
    a("v_and_b32 v12, 0xffff0000, v12")
    a("v_ashrrev_i32 v25, 31, v12")
    a("v_not_b32 v25, v25")
    a("v_or_b32 v25, 0x80000000, v25")
    a("v_xor_b32 v12, v12, v25")
    a("v_and_b32 v12, 0xffff0000, v12")
    a(f"v_mul_f32 v25, {NLOG2E:#x}, v12")
    a("v_exp_f32 v25, v25")
    a("s_nop 0")
    a("v_add_f32 v25, 1.0, v25")
    a("v_rcp_f32 v25, v25")
    a("s_nop 0")
    rnd_bf16(a, 25)
    a("v_and_b32 v13, 1, v2")
    a("v_lshlrev_b32 v13, 5, v13")
    a("v_bfe_u32 v14, v2, 4, 1")
    a("v_lshl_add_u32 v13, v14, 4, v13")
    a("v_lshrrev_b32 v14, 5, v2")
    a("v_lshl_add_u32 v13, v14, 7, v13")
    a("s_mul_i32 s22, s32, 1792")
    a(f"s_add_u32 s22, s22, {WS_ACT}")
    def issue():
        for n in range(7):
            a(f"buffer_load_dwordx4 v[{32+4*n}:{35+4*n}], v13, s[16:19], s22 offen offset:{256*n}" + PF)
    def check():
        a("v_max3_u32 v5, v32, v33, v34")
        for i in range(3, 27, 2):
            a(f"v_max3_u32 v5, v5, v{32+i}, v{33+i}")
        a("v_max_u32 v5, v5, v59")
        a("v_cmp_eq_u32 vcc, -1, v5")
        a("s_cmp_eq_u64 vcc, 0")
    if ACTD: a(f"s_sleep {ACTD}")
    poll_loop(a, issue, check, "La", sleep=ACTS)
    stamp(a, "moe")
    for n in range(7):
        mf16(a, 20, 32 + 4 * n, MW + 4 * n, None if n == 0 else 20)
    partial_and_gather()
    a("s_waitcnt lgkmcnt(0)")
    for w in range(1, 8):
        a(f"v_add_f32 v32, v32, v{32+w}")
    rnd_bf16(a, 32)
    a("v_mul_f32 v32, v32, v25")
    rnd_bf16(a, 32)
    a("v_add_f32 v32, v32, v17")
    rnd_bf16(a, 32)
    a("v_mul_f32 v32, v32, v19")
    rnd_bf16(a, 32)
    a("v_add_f32 v32, v32, v18")
    a("v_cvt_pk_bf16_f32 v32, v32, v32")
    a("s_mov_b32 exec_hi, 0")
    a("global_store_short v15, v32, s[50:51]" + OUTF)
    a("s_cmp_lg_u32 s33, 0")
    a("s_cbranch_scc1 main_done")
    a("v_mov_b32 v5, 0")
    a("v_mov_b32 v6, s48")
    a("s_mov_b64 exec, 1")
    a("global_store_dword v5, v6, s[4:5]" + OUTF)
    a.label("main_done")
    if STAMPS is not None: stamp_end(a)
    a.label("main_end")
    a("s_endpgm")
    a.label("main_fallback")
    a("s_mov_b32 s37, 1")
    a("s_mov_b32 s20, 64")
    a("v_mov_b32 v6, 0xff800000")
    a("v_mov_b32 v5, v3")
    a.label("main_fb_loop")
    a(f"ds_read_b128 v[{K[0]}:{K[0]+3}], v5")
    a("v_add_u32 v5, 0x800, v5")
    a("s_waitcnt lgkmcnt(0)")
    a(f"v_mfma_f32_32x32x16_bf16 v[{s0}:{s0+15}], v[{K[0]}:{K[0]+3}], v[{Q}:{Q+3}], 0")
    a("s_nop 11")
    for i in range(0, 16, 2):
        a(f"v_max3_f32 v6, v6, v{s0+i}, v{s0+i+1}")
    a("s_sub_u32 s20, s20, 1")
    a("s_cmp_lg_u32 s20, 0")
    a("s_cbranch_scc1 main_fb_loop")
    a(f"ds_read_b128 v[{K[0]}:{K[0]+3}], v3")
    a(f"ds_read_b128 v[{K[1]}:{K[1]+3}], v3 offset:2048")
    for i in range(16):
        a(f"v_mov_b32 v{O+i}, 0")
    setmax()
    a("s_mov_b64 exec, s[38:39]")
    a(f"ds_read_b128 v[{V[0]}:{V[0]+3}], v4")
    a(f"ds_read_b128 v[{V[0]+4}:{V[0]+7}], v4 offset:512")
    a("s_mov_b64 exec, -1")
    a("s_waitcnt lgkmcnt(0)")
    a(f"v_mfma_f32_32x32x16_bf16 v[{s0}:{s0+15}], v[{K[0]}:{K[0]+3}], v[{Q}:{Q+3}], v[{C}:{C+15}]")
    for i in range(8):
        a(f"v_mov_b32 v{S[1]+8+i}, 0")
    a("s_mov_b32 s20, 32")
    a("s_nop 3")
    a.label("main_fb2")
    tile(0, 0, {}); tile(1, 1, {})
    a("v_add_u32 v3, 0x1000, v3")
    a("v_add_u32 v4, 0x1000, v4")
    a("s_sub_u32 s20, s20, 1")
    a("s_cmp_lg_u32 s20, 0")
    a("s_cbranch_scc1 main_fb2")
    a("v_subrev_u32 v3, 0x20000, v3")
    a("v_subrev_u32 v4, 0x20000, v4")
    a("s_branch main_attn_tail")

NOTES = """;
"""
def main(out, aslist=False):
    hdr = open("adaLN_cond__mha_block__moe_arch_mod__prompt.s.ref").read().split("; Override launch")[0]
    txt = hdr
    if aslist:
        txt += f"; @launch kernel={KNAME} grid=(256,1,1) block=(512,1,1) lds=163840\n"
    else:
        txt += "; @launch grid=(256,1,1) block=(512,1,1) lds=163840\n"
    txt += NOTES
    txt += '.amdgcn_target "amdgcn-amd-amdhsa--gfx950"\n'
    a = Asm()
    k_main(a)
    txt += a.text()
    txt += kernel_desc(KNAME, 256)
    open(out, "w").write(txt)

SETS = {
    "t2": ["s2", "olan", "o0", "o4", "o8", "o12", "omf", "tbar", "st2", "s3", "kbar", "top", "s4"],
    "sc": ["wland", "barx", "sc0", "sc1", "sc2", "sc3", "sc4", "sc5", "bar1", "p2", "p4", "p8", "p12"],
    "q": ["pass1", "kvpub", "q0", "q2", "q4", "q6", "q8", "q10", "f1", "q12", "q14", "att0", "a4"],
    "at": ["att0", "a4", "a8", "a12", "a16", "a24", "a32", "a40", "a48", "a52", "a56", "a60", "att1"],
    "ld": ["karg", "mp", "iw", "i2", "l0", "l1", "l2", "gath1", "barx", "bar1", "p3", "p6", "p9"],
    "p1": ["bar1", "p0", "p1", "p2", "p3", "p4", "p5", "p6", "p7", "p8", "p10", "p12", "p14"],
    "p2": ["p8", "p9", "p10", "p11", "p12", "p13", "p14", "p15", "pass1", "kvpub", "att0", "f1", "kvok"],
    "f0": ["karg", "pk", "ack", "l0", "l2", "gath0", "gath1", "wland", "barx", "bar1", "pass1", "f1", "att0"],
    "f1": ["barx", "bar1", "p5", "pass1", "kvpub", "att0", "f1", "kvok", "ky", "bar6", "bar14", "att1"],
    "tail": ["att0", "t23", "t42", "att1", "f2", "s2", "olan", "st2", "s3", "top", "s4", "moe"],
}
if __name__ == "__main__":
    if len(sys.argv) > 2 and sys.argv[2] in SETS:
        G1.PROF = True
        STAMPS = set(SETS[sys.argv[2]])
    main(sys.argv[1], aslist=(len(sys.argv) > 2 and sys.argv[2] != "final"))
    if STAMPS: print(" ".join(["start"] + ORDER + ["end"]))
```
